```python
import torch

def _softmax(x, axis=-1):
    return torch.softmax(x, dim=axis)
def _gelu(x):
    return torch.nn.functional.gelu(x, approximate="tanh")
def _silu(x):
    return torch.nn.functional.silu(x)
def _sigmoid(x):
    return torch.sigmoid(x)
def _layernorm(x, axis=-1, eps=1e-5):
    m = x.mean(dim=axis, keepdim=True)
    v = x.var(dim=axis, keepdim=True, unbiased=False)
    return (x - m) / torch.sqrt(v + eps)
def _scatter_add(tgt, idx, src, axis=0):
    return tgt.clone().index_add_(axis, idx, src)
def _segment_sum(src, seg, n):
    out = torch.zeros((n,) + src.shape[1:], dtype=src.dtype)
    return out.index_add_(0, seg, src)
def _pad(x, pw):
    flat = tuple(v for pair in reversed(pw) for v in pair)
    return torch.nn.functional.pad(x, flat)

kernel_name = 'concat_heads__mha_block__spectral_gfnet__prompt'

def setup_inputs():

    _w = (lambda a: (lambda t: t.to(torch.bfloat16) if t.is_floating_point() else t)(torch.as_tensor(a)))
    def _A_setup():
        B, S, D, H = 1, 2048, 512, 32
        return {
            "x": _w((lambda *s: torch.randn(*s, dtype=torch.bfloat16) * 0.2)(B, S, D)),
            "wqkv": _w((lambda *s: torch.randn(*s, dtype=torch.bfloat16) * 0.2)(D, 3 * D)),
            "wo": _w((lambda *s: torch.randn(*s, dtype=torch.bfloat16) * 0.05)(D, D)),
        }
    _A_in = _A_setup()

    def _B_setup():
        B, S, D = 1, 2048, 512
        Df = D // 2 + 1
        return {
            "x": _w((lambda *s: torch.randn(*s, dtype=torch.bfloat16) * 0.05)(B, S, D)),
            "w_r": _w((lambda *s: torch.randn(*s, dtype=torch.bfloat16) * 6.4)(S, Df) * 0.02),
            "w_i": _w((lambda *s: torch.randn(*s, dtype=torch.bfloat16) * 6.4)(S, Df) * 0.02),
        }
    _B_in = _B_setup()

    return {
        "A_x": _A_in["x"],
        "A_wqkv": _A_in["wqkv"],
        "A_wo": _A_in["wo"],
        "B_x": _B_in["x"],
        "B_w_r": _B_in["w_r"],
        "B_w_i": _B_in["w_i"],
    }

def reference(A_x, A_wqkv, A_wo, B_x, B_w_r, B_w_i):
    def _A_ref(x, wqkv, wo):
        B, S, D = x.shape
        H = 32
        Dh = D // H
        qkv = (lambda x, *d: x.permute(*d))((x @ wqkv).reshape(B, S, 3, H, Dh), 2, 0, 3, 1, 4)
        q, k, v = qkv[0], qkv[1], qkv[2]
        scores = torch.einsum("bhqd,bhkd->bhqk", q, k) * (Dh ** -0.5)
        p = _softmax(scores, axis=-1)
        o = torch.einsum("bhqk,bhkd->bhqd", p, v)
        return (lambda x, *d: x.permute(*d))(o, 0, 2, 1, 3).reshape(B, S, D) @ wo

    def _B_ref(x, w_r, w_i):
        B, S, D = x.shape
        X = (lambda x, axes=(-2,-1): torch.fft.rfft2(x.float(), dim=axes))(x, axes=(-2, -1))
        W = w_r + 1j * w_i
        X = X * W
        y = (lambda x, s, axes=(-2,-1): torch.fft.irfft2(x, s=s, dim=axes).to(torch.bfloat16))(X, (S, D), axes=(-2, -1))
        return y

    a = _A_ref(A_x, A_wqkv, A_wo)
    b = _B_ref(B_x, B_w_r, B_w_i)
    return torch.concatenate([a, b], axis=-1)
```

```python
import struct
def f2u(x): return struct.unpack("<I",struct.pack("<f",x))[0]
class Asm:
    def __init__(self):
        self.lines=[]
    def __call__(self, s):
        for l in s.strip("\n").split("\n"):
            l=l.strip()
            if l: self.lines.append("    "+l)
    def label(self,name): self.lines.append(name+":")
    def comment(self,s): self.lines.append("    ; "+s)
    def raw(self,s): self.lines.append(s)
    def text(self): return "\n".join(self.lines)+"\n"
def vr(b,n=1): return f"v{b}" if n==1 else f"v[{b}:{b+n-1}]"
def sr(b,n=1): return f"s{b}" if n==1 else f"s[{b}:{b+n-1}]"
```

```python
from asm import *
from layout import *

K1_LDS = 131072

def srd(a, d, base, size):
    a(f"s_mov_b32 s{d}, s{base}")
    a(f"s_and_b32 s{d+1}, s{base+1}, 0xffff")
    a(f"s_mov_b32 s{d+2}, {size}")
    a(f"s_mov_b32 s{d+3}, 0x20000")

def k1_prologue(a):
    a("""
    s_cmp_ge_u32 s2, 256
    s_cbranch_scc1 k1_end
    s_load_dwordx4 s[4:7], s[0:1], 0
    s_load_dwordx2 s[8:9], s[0:1], 16
    s_load_dwordx2 s[10:11], s[0:1], 24
    s_load_dwordx4 s[12:15], s[0:1], 32
    s_load_dwordx2 s[16:17], s[0:1], 64
    v_and_b32 v1, 63, v0
    v_lshrrev_b32 v2, 6, v0
    s_nop 0
    v_readfirstlane_b32 s3, v2
    s_cmp_ge_u32 s2, 192
    s_cbranch_scc1 k1_B
    s_and_b32 s18, s2, 7
    s_lshr_b32 s19, s2, 3
    s_and_b32 s28, s18, 3
    s_lshl_b32 s28, s28, 2
    s_and_b32 s29, s19, 3
    s_add_u32 s28, s28, s29          ; s28 = rb
    s_lshr_b32 s29, s18, 2
    s_mul_i32 s29, s29, 6
    s_lshr_b32 s30, s19, 2
    s_add_u32 s29, s29, s30          ; s29 = cb
    s_cmp_ge_u32 s3, 4
    s_cbranch_scc0 k1_compute
    """)

def k1_loader(a):
    a.comment("---- loader waves 4..7 ----")
    a("""
    s_sub_u32 s30, s3, 4             ; lw
    v_lshrrev_b32 v2, 3, v1          ; l>>3
    v_lshrrev_b32 v3, 4, v1          ; l>>4
    v_and_b32 v4, 7, v1
    v_xor_b32 v4, v4, v3
    v_lshlrev_b32 v4, 4, v4
    v_lshl_add_u32 v4, v2, 10, v4    ; voffX0
    v_xor_b32 v5, 64, v4             ; voffX1
    v_and_b32 v6, 15, v1
    v_lshlrev_b32 v7, 2, v3
    v_xor_b32 v6, v6, v7
    v_lshlrev_b32 v6, 4, v6
    v_mul_u32_u24 v7, 3072, v3
    v_add_u32 v6, v6, v7             ; voffW
    s_lshl_b32 s31, s28, 17          ; rb*128*1024
    s_lshl_b32 s32, s30, 15          ; lw*32*1024
    s_add_u32 s31, s31, s32          ; sX0
    s_mul_i32 s32, s30, 16*3072
    s_lshl_b32 s33, s29, 8
    s_add_u32 s32, s32, s33          ; sW0
    s_lshl_b32 s33, s30, 12
    s_waitcnt lgkmcnt(0)
    """)
    srd(a,20,4,2097152); srd(a,24,6,1572864)
    def issue(c):
        slot=c&3
        for e in range(4):
            a(f"s_add_u32 m0, s33, {slot*32768+e*1024}")
            a(f"s_add_u32 s34, s31, {e*8192+c*128}")
            a(f"buffer_load_dwordx4 v{4+(e&1)}, s[20:23], s34 offen lds")
        for e in range(4):
            a(f"s_add_u32 m0, s33, {slot*32768+16384+e*1024}")
            a(f"s_add_u32 s34, s32, {(c*64+4*e)*3072}")
            a(f"buffer_load_dwordx4 v6, s[24:27], s34 offen lds")
    for c in range(4): issue(c)
    issued=3
    for c in range(8):
        n=8*(issued-c)
        a(f"s_waitcnt vmcnt({n})")
        a("s_barrier")
        if c>=1 and c+3<=7:
            issue(c+3); issued=c+3
    a("s_endpgm")

def k1_compute(a):
    a.label("k1_compute")
    XA,XB,WA,WB=2,6,10,12
    a("""
    s_lshr_b32 s30, s3, 1            ; wm
    s_and_b32 s31, s3, 1             ; wn
    v_and_b32 v14, 31, v1            ; r
    v_lshrrev_b32 v15, 5, v1         ; h
    v_lshrrev_b32 v16, 1, v14
    v_and_b32 v16, 7, v16            ; (r>>1)&7
    v_xor_b32 v16, v16, v15          ; h ^ c
    v_lshlrev_b32 v16, 4, v16
    v_lshl_add_u32 v16, v14, 7, v16  ; r*128 + slot*16
    s_lshl_b32 s32, s30, 13          ; wm*64*128
    v_add_u32 v2, s32, v16
    v_xor_b32 v3, 32, v2
    v_xor_b32 v4, 64, v2
    v_xor_b32 v5, 96, v2
    v_add_u32 v6, 0x10000, v2
    v_add_u32 v7, 0x10000, v3
    v_add_u32 v8, 0x10000, v4
    v_add_u32 v9, 0x10000, v5
    v_and_b32 v16, 15, v1
    v_lshrrev_b32 v16, 2, v16        ; r4
    v_lshl_add_u32 v17, v15, 3, v16  ; 8h + r4
    v_lshlrev_b32 v17, 8, v17        ; *256
    s_lshl_b32 s32, s31, 1
    v_xor_b32 v18, s32, v16          ; nt0 ^ r4
    v_lshl_add_u32 v17, v18, 6, v17
    v_lshrrev_b32 v18, 4, v1
    v_and_b32 v18, 1, v18
    v_lshl_add_u32 v17, v18, 5, v17  ; + cg*32
    v_and_b32 v18, 3, v1
    v_lshl_add_u32 v17, v18, 3, v17  ; + c4*8
    v_add_u32 v10, 16384, v17
    v_xor_b32 v11, 64, v10
    v_add_u32 v12, 0x10000, v10
    v_add_u32 v13, 0x10000, v11
    """)
    for i in range(64): a(f"v_mov_b32 v{64+i}, 0")
    a("s_waitcnt lgkmcnt(0)")
    srd(a,20,16,WS_SIZE)
    a("""
    s_cmp_ge_u32 s29, 8
    s_cbranch_scc1 k1_vloop
    """)
    bufs=[(16,20,24,28),(32,36,40,44)]
    def reads(c,ks,buf):
        slot=c&3
        xa=(XA if slot<2 else XB)+ks; wa=(WA if slot<2 else WB)
        so=(slot&1)*32768
        X0,X1,W0,W1=buf
        a(f"ds_read_b128 {vr(X0,4)}, v{xa} offset:{so}")
        a(f"ds_read_b64_tr_b16 {vr(W0,2)}, v{wa} offset:{so+ks*4096}")
        a(f"ds_read_b64_tr_b16 {vr(W0+2,2)}, v{wa} offset:{so+ks*4096+1024}")
        a(f"ds_read_b128 {vr(X1,4)}, v{xa} offset:{so+4096}")
        a(f"ds_read_b64_tr_b16 {vr(W1,2)}, v{wa+1} offset:{so+ks*4096}")
        a(f"ds_read_b64_tr_b16 {vr(W1+2,2)}, v{wa+1} offset:{so+ks*4096+1024}")
    def loop(vtype):
        a("s_barrier")
        reads(0,0,bufs[0])
        for c in range(8):
            for ks in range(4):
                j=4*c+ks
                cur=bufs[j&1]; nxt=bufs[(j+1)&1]
                if ks<3:
                    reads(c,ks+1,nxt)
                    a("s_waitcnt lgkmcnt(6)")
                else:
                    a("s_waitcnt lgkmcnt(0)")
                    if c<7:
                        a("s_barrier")
                        reads(c+1,0,nxt)
                X0,X1,W0,W1=cur
                for ntl in range(2):
                    for rt in range(2):
                        acc=64+(ntl*2+rt)*16
                        W=(W0,W1)[ntl]; X=(X0,X1)[rt]
                        if not vtype: a(f"v_mfma_f32_32x32x16_bf16 {vr(acc,16)}, {vr(W,4)}, {vr(X,4)}, {vr(acc,16)}")
                        else:         a(f"v_mfma_f32_32x32x16_bf16 {vr(acc,16)}, {vr(X,4)}, {vr(W,4)}, {vr(acc,16)}")
    loop(False)
    a("""
    s_and_b32 s33, s29, 3
    s_lshl_b32 s33, s33, 3
    s_lshl_b32 s34, s31, 2
    s_add_u32 s33, s33, s34          ; head0
    s_lshl_b32 s34, s28, 2
    s_lshl_b32 s35, s30, 1
    s_add_u32 s34, s34, s35          ; tile0
    s_cmp_ge_u32 s29, 4
    s_cbranch_scc1 k1_kepi
    """)
    a(f"""
    v_lshlrev_b32 v2, 9, v15
    v_lshl_add_u32 v2, v14, 4, v2    ; h*512 + r*16
    s_lshl_b32 s35, s33, 16
    s_lshl_b32 s36, s34, 10
    s_add_u32 s35, s35, s36
    s_add_u32 s35, s35, {OFF_Q}
    s_mov_b32 s37, {hex(f2u(QSCALE))}
    s_nop 7
    """)
    for ntl in range(2):
        for rt in range(2):
            acc=64+(ntl*2+rt)*16
            for i in range(16): a(f"v_mul_f32 v{acc+i}, s37, v{acc+i}")
            t=16+(ntl*2+rt)*8
            for i in range(8): a(f"v_cvt_pk_bf16_f32 v{t+i}, v{acc+2*i}, v{acc+2*i+1}")
            for hh in range(2):
                a(f"s_add_u32 s36, s35, {(2*ntl+hh)*65536+rt*1024}")
                a(f"buffer_store_dwordx4 {vr(t+4*hh,4)}, v2, s[20:23], s36 offen")
    a("s_endpgm")
    a.label("k1_kepi")
    a(f"""
    v_and_b32 v2, 0x13, v14
    v_and_b32 v3, 4, v14
    v_lshl_or_b32 v2, v3, 1, v2
    v_and_b32 v3, 8, v14
    v_lshrrev_b32 v3, 1, v3
    v_or_b32 v2, v2, v3              ; pi(r)
    v_lshlrev_b32 v2, 4, v2
    v_mul_u32_u24 v3, 1056, v15
    v_add_u32 v2, v2, v3             ; h*1056 + pi(r)*16
    s_mul_i32 s35, s33, {KV_HEAD}
    s_mul_i32 s36, s34, {KV_TILE}
    s_add_u32 s35, s35, s36
    s_add_u32 s35, s35, {OFF_KV}
    s_nop 5
    """)
    for ntl in range(2):
        for rt in range(2):
            acc=64+(ntl*2+rt)*16
            t=16+(ntl*2+rt)*8
            for i in range(8): a(f"v_cvt_pk_bf16_f32 v{t+i}, v{acc+2*i}, v{acc+2*i+1}")
            for hh in range(2):
                a(f"s_add_u32 s36, s35, {(2*ntl+hh)*KV_HEAD+rt*KV_TILE}")
                a(f"buffer_store_dwordx4 {vr(t+4*hh,4)}, v2, s[20:23], s36 offen")
    for q in range(4):
        acc=64+q*16
        for hh in range(2):
            a(f"v_mul_f32 v{48+2*q+hh}, v{acc+8*hh}, v{acc+8*hh}")
        for i in range(1,8):
            for hh in range(2):
                a(f"v_fmac_f32 v{48+2*q+hh}, v{acc+8*hh+i}, v{acc+8*hh+i}")
    a("s_nop 1")
    for q in range(4): a(f"v_permlane32_swap_b32 v{48+2*q}, v{49+2*q}")
    a("s_nop 1")
    for q in range(4): a(f"v_add_f32 v{48+2*q}, v{48+2*q}, v{49+2*q}")
    for sh in ("row_shr:1","row_shr:2","row_shr:4","row_shr:8"):
        for q in range(4): a(f"v_max_f32_dpp v{48+2*q}, v{48+2*q}, v{48+2*q} {sh} row_mask:0xf bank_mask:0xf bound_ctrl:0")
    for q in range(4): a(f"v_max_f32_dpp v{48+2*q}, v{48+2*q}, v{48+2*q} row_bcast:15 row_mask:0xa bank_mask:0xf")
    a(f"""
    v_lshlrev_b32 v3, 8, v15
    s_lshl_b32 s35, s33, 8
    s_lshl_b32 s36, s34, 2
    s_add_u32 s35, s35, s36
    s_add_u32 s35, s35, {OFF_KN}
    s_mov_b32 exec_lo, 0x80000000
    s_mov_b32 exec_hi, 0x80000000
    """)
    for ntl in range(2):
        for rt in range(2):
            q=ntl*2+rt
            a(f"s_add_u32 s36, s35, {2*ntl*256+rt*4}")
            a(f"buffer_store_dword v{48+2*q}, v3, s[20:23], s36 offen")
    a("s_endpgm")
    a.label("k1_vloop")
    loop(True)
    a(f"""
    s_and_b32 s33, s29, 3
    s_lshl_b32 s33, s33, 3
    s_lshl_b32 s34, s31, 2
    s_add_u32 s33, s33, s34          ; head0
    s_lshl_b32 s34, s28, 2
    s_lshl_b32 s35, s30, 1
    s_add_u32 s34, s34, s35          ; tile0
    v_lshrrev_b32 v2, 4, v14         ; n>>4
    s_mov_b32 s36, {KV_HEAD}
    v_mul_lo_u32 v2, v2, s36
    v_mul_u32_u24 v3, 1056, v15
    v_add_u32 v2, v2, v3
    v_and_b32 v3, 15, v14
    v_lshl_add_u32 v2, v3, 4, v2
    s_mul_i32 s35, s33, {KV_HEAD}
    s_mul_i32 s36, s34, {KV_TILE}
    s_add_u32 s35, s35, s36
    s_add_u32 s35, s35, {OFF_KV+512}
    """)
    for ntl in range(2):
        for rt in range(2):
            acc=64+(ntl*2+rt)*16
            t=16+(ntl*2+rt)*8
            for i in range(8): a(f"v_cvt_pk_bf16_f32 v{t+i}, v{acc+2*i}, v{acc+2*i+1}")
            for u in range(2):
                a(f"s_add_u32 s36, s35, {2*ntl*KV_HEAD+rt*KV_TILE+u*272}")
                a(f"buffer_store_dwordx4 {vr(t+4*u,4)}, v2, s[20:23], s36 offen")
    a(f"""
    v_and_b32 v3, 1, v1
    v_mul_u32_u24 v3, 1056, v3
    v_bfe_u32 v4, v1, 1, 1
    v_mul_u32_u24 v4, 272, v4
    v_add_u32 v3, v3, v4
    v_bfe_u32 v4, v1, 2, 1
    v_mul_u32_u24 v4, {KV_TILE}, v4
    v_add_u32 v3, v3, v4
    v_bfe_u32 v4, v1, 3, 2
    s_mov_b32 s36, {KV_HEAD}
    v_mul_lo_u32 v4, v4, s36
    v_add_u32 v3, v3, v4
    v_mov_b32 v4, 0x3f803f80
    v_mov_b32 v5, 0x3f803f80
    v_mov_b32 v6, 0x3f803f80
    v_mov_b32 v7, 0x3f803f80
    s_add_u32 s36, s35, 256
    s_mov_b32 exec_hi, 0
    buffer_store_dwordx4 v[4:7], v3, s[20:23], s36 offen
    s_endpgm
    """)

def gen_consts(a, inv, scale, R16, TWc, TWs, A32, tmp, vm, vq):
    T=tmp
    a(f"v_mul_f32 v{T}, {hex(f2u(1/16.))}, v{vm}")
    for i in range(4):
        a(f"v_add_f32 v{T+1+i}, {float(i)}, v{vq}" if i else f"v_mov_b32 v{T+1}, v{vq}")
    for i in range(4): a(f"v_mul_f32 v{T+1+i}, v{T+1+i}, v{T}")
    for i in range(4):
        a(f"v_cos_f32 v{T+5+i}, v{T+1+i}")
        a(f"v_sin_f32 v{T+9+i}, v{T+1+i}")
    if scale!=1.0:
        a(f"s_mov_b32 s40, {hex(f2u(scale))}")
        for i in range(8): a(f"v_mul_f32 v{T+5+i}, s40, v{T+5+i}")
    else: a("s_nop 0")
    for i in range(4):
        c,s=T+5+i,T+9+i
        if not inv:
            a(f"v_cvt_pk_bf16_f32 v{R16+i}, v{c}, v{s}")
            a(f"v_cvt_pk_bf16_f32 v{R16+4+i}, -v{s}, v{c}")
        else:
            a(f"v_cvt_pk_bf16_f32 v{R16+i}, v{c}, -v{s}")
            a(f"v_cvt_pk_bf16_f32 v{R16+4+i}, v{s}, v{c}")
    a(f"v_mul_f32 v{T}, {hex(f2u(1/512.))}, v{vm}")
    for t in range(2):
        for i in range(4):
            k=16*t+i
            if k==0: a(f"v_mov_b32 v{T+1}, v{vq}")
            else:
                a(f"v_add_f32 v{T+1+4*t+i}, {hex(f2u(float(k)))}, v{vq}")
    for e in range(8): a(f"v_mul_f32 v{T+1+e}, v{T+1+e}, v{T}")
    for e in range(8):
        a(f"v_cos_f32 v{TWc+e}, v{T+1+e}")
        a(f"v_sin_f32 v{TWs+e}, {'-' if inv else ''}v{T+1+e}")
    gen_a32(a, inv, A32, tmp, vm, vq)

def gen_a32(a, inv, A32, tmp, vm, vq):
    T=tmp
    for t in range(2):
        for i in range(4):
            k=16*t+i
            if k==0: a(f"v_mov_b32 v{T+1}, v{vq}")
            else: a(f"v_add_f32 v{T+1+4*t+i}, {hex(f2u(float(k)))}, v{vq}")
    a(f"v_mul_f32 v{T+9}, {hex(f2u(1/32.))}, v{vm}")
    a(f"v_add_f32 v{T+10}, 0.5, v{T+9}")
    for tp in range(2):
        for e in range(8): a(f"v_mul_f32 v{T+11+e}, v{T+1+e}, v{T+9+tp}")
        for e in range(8):
            a(f"v_cos_f32 v{T+19+e}, v{T+11+e}")
            a(f"v_sin_f32 v{T+11+e}, v{T+11+e}")
        a("s_nop 0")
        for t in range(2):
            for i in range(4):
                e=4*t+i; c,s=T+19+e,T+11+e
                re=A32+((tp*2+0)*2+t)*4+i; im=A32+((tp*2+1)*2+t)*4+i
                if not inv:
                    a(f"v_cvt_pk_bf16_f32 v{re}, v{c}, v{s}")
                    a(f"v_cvt_pk_bf16_f32 v{im}, -v{s}, v{c}")
                else:
                    a(f"v_cvt_pk_bf16_f32 v{re}, v{c}, -v{s}")
                    a(f"v_cvt_pk_bf16_f32 v{im}, v{s}, v{c}")

def twiddle(a, re, im, c, s, out, tmp):
    T,U=tmp,tmp+4
    for p in (0,2):
        a(f"v_pk_mul_f32 {vr(T+p,2)}, {vr(re+p,2)}, {vr(c+p,2)}")
        a(f"v_pk_mul_f32 {vr(U+p,2)}, {vr(im+p,2)}, {vr(c+p,2)}")
    for p in (0,2):
        a(f"v_pk_fma_f32 {vr(T+p,2)}, {vr(im+p,2)}, {vr(s+p,2)}, {vr(T+p,2)}")
        a(f"v_pk_fma_f32 {vr(U+p,2)}, {vr(re+p,2)}, {vr(s+p,2)}, {vr(U+p,2)} neg_lo:[1,0,0] neg_hi:[1,0,0]")
    for i in range(4): a(f"v_cvt_pk_bf16_f32 v{out+i}, v{T+i}, v{U+i}")

XR_STRIDE=1056
B1_PX=34816
B1_MB=67584

def k1_B(a):
    a.label("k1_B")
    VM,VQ,VMF,VQF=2,3,4,5
    R16,TWc,TWs,A32=8,16,24,32
    PIN=64
    D1=80
    D2=112
    TMP=144
    WOL,WOH=192,196
    ABL=200
    a(f"""
    s_sub_u32 s18, s2, 192           ; b
    s_lshr_b32 s19, s18, 1           ; n2
    s_and_b32 s28, s18, 1            ; hf
    v_and_b32 v{VM}, 15, v1
    v_lshrrev_b32 v{VQ}, 4, v1
    v_lshlrev_b32 v6, 4, v1          ; lane*16
    s_waitcnt lgkmcnt(0)
    """)
    srd(a,20,10,2097152)
    srd(a,24,16,WS_SIZE)
    srd(a,44,8,524288)
    a(f"""
    s_lshl_b32 s29, s28, 5
    s_lshl_b32 s30, s3, 2
    s_add_u32 s29, s29, s30
    s_lshl_b32 s29, s29, 5
    s_add_u32 s29, s29, s19          ; s0
    s_lshl_b32 s29, s29, 10
    s_mul_i32 s30, s3, {4*XR_STRIDE}
    """)
    for e in range(4):
        a(f"s_add_u32 m0, s30, {e*XR_STRIDE}")
        a(f"s_add_u32 s31, s29, {e*32*1024}")
        a(f"buffer_load_dwordx4 v6, s[20:23], s31 offen lds")
    a(f"""
    s_lshl_b32 s32, s18, 3
    s_add_u32 s32, s32, s3           ; idx
    s_lshr_b32 s33, s32, 5
    s_lshl_b32 s33, s33, 6
    s_and_b32 s34, s32, 31
    s_lshl_b32 s34, s34, 14
    s_add_u32 s33, s33, s34
    v_and_b32 v7, 31, v1
    v_lshlrev_b32 v7, 1, v7
    v_lshrrev_b32 v{TMP}, 5, v1
    v_lshl_add_u32 v7, v{TMP}, 12, v7    ; h*4 rows*1024 + n*2
    """)
    for j8 in range(8):
        d=8*(j8>>2)+(j8&3)
        a(f"s_add_u32 s34, s33, {d*1024}")
        dst=(WOL if j8%2==0 else WOH)+j8//2
        a(f"buffer_load_ushort v{dst}, v7, s[44:47], s34 offen")
    a(f"""
    s_sub_u32 s35, s18, 4
    s_cmp_lt_u32 s35, 4
    s_cbranch_scc0 k1_B_noab
    s_lshl_b32 s35, s35, 3
    s_add_u32 s35, s35, s3           ; k2
    s_lshl_b32 s36, s35, 6
    v_add_u32 v{TMP}, s36, v1        ; g
    v_sub_u32 v{TMP+1}, 2048, v{TMP}
    v_and_b32 v{TMP+1}, 2047, v{TMP+1}   ; -g
    v_mul_u32_u24 v{TMP}, 514, v{TMP}
    v_mul_u32_u24 v{TMP+1}, 514, v{TMP+1}
    """)
    srd(a,48,12,2048*257*2); srd(a,52,14,2048*257*2)
    for k,(arr,val,off) in enumerate([(48,TMP,0),(52,TMP,0),(48,TMP+1,0),(52,TMP+1,0),(48,TMP,512),(52,TMP,512),(48,TMP+1,512),(52,TMP+1,512)]):
        a(f"buffer_load_ushort v{ABL+k}, v{val}, s[{arr}:{arr+3}], 0 offen offset:{off}")
    a.label("k1_B_noab")
    a(f"""
    v_cvt_f32_u32 v{VMF}, v{VM}
    v_lshlrev_b32 v{VQF}, 2, v{VQ}
    v_cvt_f32_u32 v{VQF}, v{VQF}
    """)
    gen_consts(a, False, 1.0, R16, TWc, TWs, A32, TMP, VMF, VQF)
    a(f"""
    s_cmp_lt_u32 s18, 2
    s_cbranch_scc0 k1_B_not64
    s_lshl_b32 s36, s18, 3
    s_add_u32 s36, s36, s3           ; unit
    s_lshr_b32 s37, s36, 2           ; w
    s_and_b32 s38, s36, 3            ; u
    s_lshl_b32 s37, s37, 4
    s_lshl_b32 s38, s38, 4
    v_add_u32 v{TMP}, s37, v{VM}
    v_cvt_f32_u32 v{TMP}, v{TMP}
    v_mul_f32 v{TMP}, {hex(f2u(1/64.))}, v{TMP}
    v_cvt_f32_u32 v{TMP+1}, s38
    v_add_f32 v{TMP+1}, v{TMP+1}, v{VQF}
    v_add_f32 v{TMP+2}, 1.0, v{TMP+1}
    v_add_f32 v{TMP+3}, 2.0, v{TMP+1}
    v_add_f32 v{TMP+4}, 1.0, v{TMP+3}
    """)
    for i in range(4): a(f"v_mul_f32 v{TMP+1+i}, v{TMP+1+i}, v{TMP}")
    for i in range(4):
        a(f"v_cos_f32 v{TMP+5+i}, v{TMP+1+i}")
        a(f"v_sin_f32 v{TMP+9+i}, v{TMP+1+i}")
    a("s_nop 0")
    for i in range(4):
        a(f"v_cvt_pk_bf16_f32 v{TMP+16+i}, v{TMP+5+i}, v{TMP+9+i}")
        a(f"v_cvt_pk_bf16_f32 v{TMP+20+i}, -v{TMP+9+i}, v{TMP+5+i}")
    a(f"""
    s_lshl_b32 s36, s36, 11
    s_add_u32 s36, s36, {OFF_T64}
    buffer_store_dwordx4 {vr(TMP+16,4)}, v6, s[24:27], s36 offen
    buffer_store_dwordx4 {vr(TMP+20,4)}, v6, s[24:27], s36 offen offset:1024
    """)
    a.label("k1_B_not64")
    a(f"""
    s_cmp_eq_u32 s18, 2
    s_cbranch_scc0 k1_B_notw
    s_cmp_lt_u32 s3, 4
    s_cbranch_scc0 k1_B_a32
    s_lshl_b32 s37, s3, 4
    v_add_u32 v{TMP}, s37, v{VM}
    v_cvt_f32_u32 v{TMP}, v{TMP}
    v_mul_f32 v{TMP}, {hex(f2u(1/2048.))}, v{TMP}
    """)
    for t in range(2):
        for i in range(4):
            k=16*t+i
            if k==0: a(f"v_mov_b32 v{TMP+1}, v{VQF}")
            else: a(f"v_add_f32 v{TMP+1+4*t+i}, {hex(f2u(float(k)))}, v{VQF}")
    for e in range(8): a(f"v_mul_f32 v{TMP+1+e}, v{TMP+1+e}, v{TMP}")
    for e in range(8):
        a(f"v_cos_f32 v{TMP+16+e}, v{TMP+1+e}")
        a(f"v_sin_f32 v{TMP+24+e}, v{TMP+1+e}")
    a(f"""
    s_lshl_b32 s36, s3, 12
    s_add_u32 s36, s36, {OFF_TW}
    buffer_store_dwordx4 {vr(TMP+16,4)}, v6, s[24:27], s36 offen
    buffer_store_dwordx4 {vr(TMP+20,4)}, v6, s[24:27], s36 offen offset:1024
    buffer_store_dwordx4 {vr(TMP+24,4)}, v6, s[24:27], s36 offen offset:2048
    buffer_store_dwordx4 {vr(TMP+28,4)}, v6, s[24:27], s36 offen offset:3072
    s_branch k1_B_notw
    """)
    a.label("k1_B_a32")
    a("""
    s_cmp_eq_u32 s3, 4
    s_cbranch_scc0 k1_B_notw
    """)
    for blk in range(8):
        a(f"s_mov_b32 s36, {OFF_A32+blk*1024}")
        a(f"buffer_store_dwordx4 {vr(A32+4*blk,4)}, v6, s[24:27], s36 offen")
    a.label("k1_B_notw")
    a(f"""
    v_bfe_u32 v{TMP}, v1, 2, 2       ; r4
    v_and_b32 v{TMP+1}, 1, v{TMP}
    v_mul_u32_u24 v{TMP+1}, {XR_STRIDE}, v{TMP+1}
    v_lshrrev_b32 v{TMP+2}, 1, v{TMP}
    v_lshl_add_u32 v{TMP+2}, v{VQ}, 2, v{TMP+2}    ; 4q + (r4>>1)
    v_lshl_add_u32 v{TMP+1}, v{TMP+2}, 6, v{TMP+1}
    v_and_b32 v{TMP+2}, 3, v1
    v_lshl_add_u32 v{TMP+1}, v{TMP+2}, 3, v{TMP+1}
    s_mul_i32 s30, s3, {4*XR_STRIDE}
    v_add_u32 v7, s30, v{TMP+1}
    """)
    a("s_waitcnt vmcnt(0)")
    for pp in range(2):
        for t in range(2):
            a(f"ds_read_b64_tr_b16 {vr(PIN+8*pp+4*t,2)}, v7 offset:{pp*2*XR_STRIDE+t*32}")
            a(f"ds_read_b64_tr_b16 {vr(PIN+8*pp+4*t+2,2)}, v7 offset:{pp*2*XR_STRIDE+t*32+128}")
    for j in range(4): a(f"v_lshl_or_b32 v{WOL+j}, v{WOH+j}, 16, v{WOL+j}")
    a(f"""
    s_lshl_b32 s32, s32, 10
    s_add_u32 s32, s32, {OFF_WOF}
    buffer_store_dwordx4 {vr(WOL,4)}, v6, s[24:27], s32 offen
    """)
    a(f"""
    s_sub_u32 s36, s18, 4
    s_cmp_lt_u32 s36, 4
    s_cbranch_scc0 k1_B_noab2
    """)
    for k in range(8): a(f"v_lshlrev_b32 v{ABL+k}, 16, v{ABL+k}")
    a(f"""
    v_add_f32 v{TMP}, v{ABL}, v{ABL+2}        ; 2*Wh0.re
    v_sub_f32 v{TMP+1}, v{ABL+1}, v{ABL+3}    ; 2*Wh0.im
    v_add_f32 v{TMP+2}, v{ABL+4}, v{ABL+6}    ; 2*Wh256.re
    v_sub_f32 v{TMP+3}, v{ABL+5}, v{ABL+7}    ; 2*Wh256.im
    v_add_f32 v{TMP+4}, v{TMP}, v{TMP+2}
    v_add_f32 v{TMP+5}, v{TMP+1}, v{TMP+3}
    v_sub_f32 v{TMP+6}, v{TMP}, v{TMP+2}
    v_sub_f32 v{TMP+7}, v{TMP+1}, v{TMP+3}
    v_mul_f32 v{TMP+4}, 0.25, v{TMP+4}
    v_mul_f32 v{TMP+5}, 0.25, v{TMP+5}
    v_mul_f32 v{TMP+6}, 0.25, v{TMP+6}
    v_mul_f32 v{TMP+7}, 0.25, v{TMP+7}
    s_lshr_b32 s36, s35, 4
    s_lshl_b32 s36, s36, 2
    s_and_b32 s37, s35, 3
    s_add_u32 s36, s36, s37          ; e
    s_lshl_b32 s36, s36, 10
    s_lshr_b32 s37, s35, 2
    s_and_b32 s37, s37, 3
    s_lshl_b32 s37, s37, 8           ; q*16*16
    s_add_u32 s36, s36, s37
    s_add_u32 s36, s36, {OFF_AB}
    v_lshlrev_b32 v{TMP+8}, 13, v{VQ}
    v_lshl_add_u32 v{TMP+8}, v{VM}, 4, v{TMP+8}
    buffer_store_dwordx4 {vr(TMP+4,4)}, v{TMP+8}, s[24:27], s36 offen
    """)
    a.label("k1_B_noab2")
    a("s_waitcnt lgkmcnt(0)")
    for pp in range(2):
        for t in range(2):
            for part in range(2):
                a(f"v_mfma_f32_16x16x32_bf16 {vr(D1+16*pp+8*t+4*part,4)}, {vr(PIN+8*pp+4*t,4)}, {vr(R16+4*part,4)}, 0")
    a("s_nop 4")
    for pp in range(2):
        for t in range(2):
            twiddle(a, D1+16*pp+8*t, D1+16*pp+8*t+4, TWc+4*t, TWs+4*t, PIN+8*pp+4*t, TMP)
    a("s_nop 1")
    for pp in range(2):
        for tp in range(2):
            for part in range(2):
                d=D2+16*pp+8*tp+4*part
                for t in range(2):
                    A=A32+((tp*2+part)*2+t)*4
                    a(f"v_mfma_f32_16x16x32_bf16 {vr(d,4)}, {vr(A,4)}, {vr(PIN+8*pp+4*t,4)}, {'0' if t==0 else vr(d,4)}")
    a(f"""
    v_lshl_add_u32 v{TMP}, v{VQ}, 6, v{VM}         ; m + 64q
    s_lshl_b32 s30, s3, 12
    s_add_u32 s30, s30, {B1_PX}
    v_lshl_add_u32 v{TMP+1}, v{TMP}, 3, s30
    v_sub_u32 v{TMP+2}, {256-48}, v{TMP}            ; 256-48-f0
    v_lshl_add_u32 v{TMP+2}, v{TMP+2}, 3, s30
    v_add_u32 v{TMP+3}, 384, v{TMP+2}               ; i=0 address
    v_cmp_eq_u32 vcc, 0, v1
    v_mov_b32 v{TMP+4}, s30
    s_nop 0
    v_cndmask_b32 v{TMP+3}, v{TMP+3}, v{TMP+4}, vcc ; lane0 -> g=0 (Z[256])
    s_nop 1
    """)
    for pp in range(2):
        for i in range(4):
            a(f"ds_write2_b32 v{TMP+1}, v{D2+16*pp+8+i}, v{D2+16*pp+12+i} offset0:{(pp*2048+i*128)//4 if False else i*32} offset1:{i*32+1}" if pp==0 else
              f"ds_write2_b32 v{TMP+5}, v{D2+16*pp+8+i}, v{D2+16*pp+12+i} offset0:{i*32} offset1:{i*32+1}")
        if pp==0: a(f"v_add_u32 v{TMP+5}, 2048, v{TMP+1}")
    a("s_waitcnt lgkmcnt(0)")
    PR=D1
    for pp in range(2):
        a(f"ds_read_b64 {vr(PR+8*pp,2)}, v{TMP+3} offset:{pp*2048}")
        for i in range(1,4):
            a(f"ds_read_b64 {vr(PR+8*pp+2*i,2)}, v{TMP+2} offset:{pp*2048+(3-i)*128}")
    a(f"""
    v_lshrrev_b32 v{TMP+6}, 1, v{VM}               ; (f>>1)&7 = m>>1
    v_xor_b32 v{TMP+6}, s3, v{TMP+6}               ; wave ^ (m>>1)
    v_lshlrev_b32 v{TMP+6}, 4, v{TMP+6}
    v_lshl_add_u32 v{TMP+6}, v{TMP}, 7, v{TMP+6}
    v_add_u32 v{TMP+6}, {B1_MB}, v{TMP+6}
    s_waitcnt lgkmcnt(0)
    """)
    O=TMP+8
    for pp in range(2):
        for i in range(4):
            zr,zi=D2+16*pp+i, D2+16*pp+4+i
            pr,pi=PR+8*pp+2*i, PR+8*pp+2*i+1
            a(f"v_add_f32 v{O}, v{zr}, v{pr}")
            a(f"v_sub_f32 v{O+1}, v{zi}, v{pi}")
            a(f"v_add_f32 v{O+2}, v{zi}, v{pi}")
            a(f"v_sub_f32 v{O+3}, v{pr}, v{zr}")
            if i==0:
                a(f"v_add_f32 v{O+4}, v{zr}, v{zr}")
                a(f"v_add_f32 v{O+5}, v{pr}, v{pr}")
                a(f"v_add_f32 v{O+6}, v{zi}, v{zi}")
                a(f"v_add_f32 v{O+7}, v{pi}, v{pi}")
                for k in range(4): a(f"v_cndmask_b32 v{O+k}, v{O+k}, v{O+4+k}, vcc")
            o2=O+8+2*((pp*4+i)%4)
            a(f"v_cvt_pk_bf16_f32 v{o2}, v{O}, v{O+1}")
            a(f"v_cvt_pk_bf16_f32 v{o2+1}, v{O+2}, v{O+3}")
            a(f"ds_write_b64 v{TMP+6}, {vr(o2,2)} offset:{i*2048+pp*8}")
    a("""
    s_waitcnt lgkmcnt(0)
    s_barrier
    """)
    a(f"""
    v_lshrrev_b32 v{TMP}, 3, v1                    ; fl
    v_and_b32 v{TMP+1}, 7, v1                      ; c8
    s_lshl_b32 s30, s3, 5
    v_add_u32 v{TMP+2}, s30, v{TMP}                ; f (jj=0)
    v_lshrrev_b32 v{TMP+3}, 1, v{TMP}
    v_xor_b32 v{TMP+3}, v{TMP+3}, v{TMP+1}
    v_lshlrev_b32 v{TMP+3}, 4, v{TMP+3}
    v_lshl_add_u32 v{TMP+3}, v{TMP+2}, 7, v{TMP+3}
    v_add_u32 v{TMP+3}, {B1_MB}, v{TMP+3}
    v_xor_b32 v{TMP+4}, 64, v{TMP+3}
    v_lshlrev_b32 v{TMP+5}, 13, v{TMP+2}
    v_lshl_add_u32 v{TMP+5}, v{TMP+1}, 4, v{TMP+5} ; f*8192 + c8*16
    s_lshl_b32 s31, s19, 8
    s_lshl_b32 s32, s28, 7
    s_add_u32 s31, s31, s32
    s_add_u32 s31, s31, {OFF_Z}
    """)
    for jj in range(4):
        a(f"ds_read_b128 {vr(D2+4*jj,4)}, v{TMP+3+(jj&1)} offset:{jj*1024}")
    for jj in range(4):
        a(f"s_waitcnt lgkmcnt({3-jj})")
        a(f"s_add_u32 s32, s31, {jj*8*8192}")
        a(f"buffer_store_dwordx4 {vr(D2+4*jj,4)}, v{TMP+5}, s[24:27], s32 offen")
    a("s_endpgm")

def build_k1():
    a=Asm()
    k1_prologue(a)
    k1_loader(a)
    k1_compute(a)
    k1_B(a)
    a.label("k1_end")
    a("s_endpgm")
    return a
```

```python
from asm import *
from layout import *
from k1 import srd, twiddle
K2_COL=135168
K2_E=K2_COL+8192
K2_LDS=K2_E+8192
THRESH2=4096.0/1.03

VADDR,VIDX,VQ=2,3,4
S=[8,24]; CI=40; O=56
SET=[(72,76,80),(84,88,92)]
TMP=96
T64,A32,TW,WG_,BUF,D1,P=104,136,168,184,200,232,248
X2=200
VM,VQd=100,101

def expo(a,r): a(f"v_exp_f32 v{r}, v{r}")

def period(a,p):
    par=p&1
    Sc,Sn=S[par],S[1-par]
    K,V0,V1=SET[par]; Kn,V0n,V1n=SET[1-par]
    a("s_waitcnt lgkmcnt(0)")
    expo(a,Sc)
    a(f"ds_read_b128 {vr(Kn,4)}, v{VADDR} offset:{(p+2)*KV_TILE}")
    expo(a,Sc+1)
    a(f"ds_read_b128 {vr(V0n,4)}, v{VADDR} offset:{(p+1)*KV_TILE+512}")
    a(f"v_smfmac_f32_32x32x32_bf16 {vr(O,16)}, {vr(V1,4)}, {vr(Sn+8,8)}, v{VIDX}")
    a(f"ds_read_b128 {vr(V1n,4)}, v{VADDR} offset:{p*KV_TILE+784}")
    for i in range(2,6): expo(a,Sc+i)
    a(f"v_mfma_f32_32x32x16_bf16 {vr(Sn,16)}, {vr(K,4)}, {vr(VQ,4)}, {vr(CI,16)}")
    for i in range(6,12): expo(a,Sc+i)
    a(f"v_smfmac_f32_32x32x32_bf16 {vr(O,16)}, {vr(V0,4)}, {vr(Sc,8)}, v{VIDX}")
    for i in range(12,16): expo(a,Sc+i)

def kv_dma(a, r0, r1, last_only_lo=False):
    for r in range(r0,r1):
        a(f"s_add_u32 m0, s34, {r*8192}")
        a(f"s_add_u32 s36, s35, {r*8192}")
        a(f"buffer_load_dwordx4 v{TMP}, s[20:23], s36 offen lds")

def b2_part1(a):
    a.label("k2_part1")
    a("""
    s_cmp_eq_u32 s28, 0
    s_cbranch_scc0 k2_p1_w16
    s_waitcnt vmcnt(0)
    """)
    a.label("k2_p1_w16")
    a("s_waitcnt vmcnt(16)")
    a(f"""
    v_and_b32 v{VM}, 15, v1
    v_lshrrev_b32 v{VQd}, 4, v1
    v_xor_b32 v96, v{VM}, v{VQd}
    v_lshlrev_b32 v96, 4, v96
    v_lshl_add_u32 v96, v{VM}, 8, v96
    v_add_u32 v96, {K2_COL}, v96
    v_xor_b32 v97, 64, v96
    v_xor_b32 v98, 128, v96
    v_xor_b32 v99, 192, v96
    """)
    for u in range(4):
        for t in range(2):
            a(f"ds_read_b128 {vr(BUF+16*t+4*u,4)}, v{96+u} offset:{t*4096}")
    for u in range(4):
        a(f"s_waitcnt lgkmcnt({6-2*u})")
        for t in range(2):
            for part in range(2):
                d=D1+8*t+4*part
                a(f"v_mfma_f32_16x16x32_bf16 {vr(d,4)}, {vr(BUF+16*t+4*u,4)}, {vr(T64+8*u+4*part,4)}, {'0' if u==0 else vr(d,4)}")
    a("""
    s_cmp_eq_u32 s28, 0
    s_cbranch_scc0 k2_p1_noab
    """)
    a(f"v_lshlrev_b32 v102, 4, v1")
    a(f"s_lshl_b32 s36, s3, 13")
    a(f"s_add_u32 s36, s36, {OFF_AB}")
    for e in range(8):
        dst=(WG_+4*e) if e<4 else (216+4*(e-4))
        a(f"buffer_load_dwordx4 {vr(dst,4)}, v102, s[20:23], s36 offen offset:{(e%4)*1024}")
        if e==3: a("s_add_u32 s36, s36, 4096")
    a.label("k2_p1_noab")
    a("s_nop 6")
    for t in range(2):
        twiddle(a, D1+8*t, D1+8*t+4, TW+4*t, TW+8+4*t, P+4*t, 96)
    a("s_nop 1")
    for t in range(2):
        for tp in range(2):
            for part in range(2):
                d=X2+8*tp+4*part
                a(f"v_mfma_f32_16x16x32_bf16 {vr(d,4)}, {vr(A32+((tp*2+part)*2+t)*4,4)}, {vr(P+4*t,4)}, {'0' if t==0 else vr(d,4)}")
    a("s_barrier")
    a("s_setpc_b64 s[60:61]")

def b2_part2(a):
    a.label("k2_part2")
    a("s_waitcnt vmcnt(0)")
    a("""
    s_cmp_eq_u32 s28, 0
    s_cbranch_scc1 k2_p2_special
    """)
    for tp in range(2):
        xr,xi=X2+8*tp,X2+8*tp+4
        wr,wi=WG_+4*tp,WG_+8+4*tp
        for p in (0,2):
            a(f"v_pk_mul_f32 {vr(96+p,2)}, {vr(xr+p,2)}, {vr(wr+p,2)}")
            a(f"v_pk_mul_f32 {vr(100+p,2)}, {vr(xr+p,2)}, {vr(wi+p,2)}")
        for p in (0,2):
            a(f"v_pk_fma_f32 {vr(96+p,2)}, {vr(xi+p,2)}, {vr(wi+p,2)}, {vr(96+p,2)} neg_lo:[1,0,0] neg_hi:[1,0,0]")
            a(f"v_pk_fma_f32 {vr(100+p,2)}, {vr(xi+p,2)}, {vr(wr+p,2)}, {vr(100+p,2)}")
        for i in range(4): a(f"v_cvt_pk_bf16_f32 v{P+4*tp+i}, v{96+i}, -v{100+i}")
    a.label("k2_p2_common")
    a("s_nop 1")
    for tp in range(2):
        for t in range(2):
            for part in range(2):
                d=D1+8*t+4*part
                a(f"v_mfma_f32_16x16x32_bf16 {vr(d,4)}, {vr(A32+((t*2+part)*2+tp)*4,4)}, {vr(P+4*tp,4)}, {'0' if tp==0 else vr(d,4)}")
    t0=X2
    a(f"""
    v_and_b32 v{t0}, 15, v1                 ; m
    v_lshrrev_b32 v{t0+1}, 4, v1            ; q
    v_lshrrev_b32 v{t0+2}, 2, v{t0}         ; m>>2
    s_lshl_b32 s36, s3, 2
    v_add_u32 v{t0+2}, s36, v{t0+2}         ; 4w + (m>>2)
    v_lshlrev_b32 v{t0+3}, 2, v{t0+1}       ; 4q
    v_xor_b32 v{t0+2}, v{t0+2}, v{t0+3}
    v_lshlrev_b32 v{t0+2}, 4, v{t0+2}
    v_lshl_add_u32 v{t0+2}, v{t0+3}, 8, v{t0+2}
    v_and_b32 v{t0+4}, 3, v{t0}
    v_lshl_add_u32 v{t0+2}, v{t0+4}, 2, v{t0+2}
    v_add_u32 v{t0+8}, {K2_E}, v{t0+2}
    v_xor_b32 v{t0+9}, 16, v{t0+8}
    v_xor_b32 v{t0+10}, 32, v{t0+8}
    v_xor_b32 v{t0+11}, 48, v{t0+8}
    """)
    for t in range(2):
        twiddle(a, D1+8*t, D1+8*t+4, TW+4*t, TW+8+4*t, P+4*t, 96)
    for t in range(2):
        for i in range(4):
            a(f"ds_write_b32 v{t0+8+i}, v{P+4*t+i} offset:{t*4096+i*256}")
    a("""
    s_waitcnt lgkmcnt(0)
    s_barrier
    """)
    a(f"""
    v_and_b32 v{VM}, 15, v1
    v_lshrrev_b32 v{VQd}, 4, v1
    v_xor_b32 v96, v{VM}, v{VQd}
    v_lshlrev_b32 v96, 4, v96
    v_lshl_add_u32 v96, v{VM}, 8, v96
    v_add_u32 v96, {K2_E}, v96
    v_xor_b32 v97, 64, v96
    v_xor_b32 v98, 128, v96
    v_xor_b32 v99, 192, v96
    """)
    for u in range(4):
        for t in range(2):
            a(f"ds_read_b128 {vr(BUF+16*t+4*u,4)}, v{96+u} offset:{t*4096}")
    a(f"""
    v_lshlrev_b32 v102, 8, v{VM}
    v_lshl_add_u32 v102, v{VQd}, 4, v102
    s_lshl_b32 s36, s28, 13
    s_lshl_b32 s37, s3, 6
    s_add_u32 s36, s36, s37
    s_add_u32 s36, s36, {OFF_Y}
    """)
    for u in range(4):
        a(f"s_waitcnt lgkmcnt({6-2*u})")
        for t in range(2):
            for part in range(2):
                d=D1+8*t+4*part
                a(f"v_mfma_f32_16x16x32_bf16 {vr(d,4)}, {vr(T64+8*u+4*part,4)}, {vr(BUF+16*t+4*u,4)}, {'0' if u==0 else vr(d,4)}")
    a("s_nop 7")
    for t in range(2):
        for i in range(4): a(f"v_cvt_pk_bf16_f32 v{P+4*t+i}, v{D1+8*t+i}, -v{D1+8*t+4+i}")
        a(f"buffer_store_dwordx4 {vr(P+4*t,4)}, v102, s[20:23], s36 offen")
        if t==0: a("s_add_u32 s36, s36, 4096")
    a("s_setpc_b64 s[60:61]")
    a.label("k2_p2_special")
    XCH=K2_COL
    a(f"""
    v_and_b32 v96, 15, v1
    v_lshrrev_b32 v97, 4, v1
    s_lshl_b32 s36, s3, 4
    v_add_u32 v96, s36, v96                 ; k1
    v_lshl_add_u32 v96, v97, 8, v96         ; g0 = k1 + 64*4q
    v_lshlrev_b32 v98, 3, v96
    v_add_u32 v98, {XCH}, v98
    """)
    for tp in range(2):
        for i in range(4):
            off=(i*64+tp*1024)*8
            a(f"ds_write_b32 v98, v{X2+8*tp+i} offset:{off}")
            a(f"ds_write_b32 v98, v{X2+8*tp+4+i} offset:{off+4}")
    a("""
    s_waitcnt lgkmcnt(0)
    s_barrier
    """)
    for tp in range(2):
        for i in range(4):
            e=4*tp+i
            a(f"v_sub_u32 v99, {2048-(i*64+tp*1024)}, v96")
            a(f"v_and_b32 v99, 2047, v99")
            a(f"v_lshlrev_b32 v99, 3, v99")
            a(f"v_add_u32 v99, {XCH}, v99")
            a(f"ds_read_b64 {vr(D1+2*e,2)}, v99")
    a("""
    s_waitcnt lgkmcnt(0)
    s_barrier
    """)
    for tp in range(2):
        for i in range(4):
            e=4*tp+i
            ab=(WG_+4*e) if e<4 else (216+4*(e-4))
            zr,zi=X2+8*tp+i,X2+8*tp+4+i
            pr,pi=D1+2*e,D1+2*e+1
            a(f"v_mul_f32 v96, v{zr}, v{ab}")
            a(f"v_mul_f32 v97, v{zr}, v{ab+1}")
            a(f"v_fma_f32 v96, -v{zi}, v{ab+1}, v96")
            a(f"v_fma_f32 v97, v{zi}, v{ab}, v97")
            a(f"v_fma_f32 v96, v{pr}, v{ab+2}, v96")
            a(f"v_fma_f32 v97, v{pr}, v{ab+3}, v97")
            a(f"v_fma_f32 v96, v{pi}, v{ab+3}, v96")
            a(f"v_fma_f32 v97, -v{pi}, v{ab+2}, v97")
            a(f"v_cvt_pk_bf16_f32 v{P+e}, v96, -v97")
    a("s_branch k2_p2_common")

def build_k2():
    a=Asm()
    a(f"""
    s_cmp_ge_u32 s2, 256
    s_cbranch_scc1 k2_end
    s_load_dwordx4 s[12:15], s[0:1], 32      ; w_r, w_i
    s_load_dwordx2 s[16:17], s[0:1], 64      ; ws
    v_and_b32 v1, 63, v0
    v_lshrrev_b32 v{TMP}, 6, v0
    s_nop 0
    v_readfirstlane_b32 s3, v{TMP}
    s_and_b32 s18, s2, 7
    s_lshr_b32 s19, s2, 3
    s_lshl_b32 s29, s18, 2
    s_and_b32 s30, s19, 3
    s_add_u32 s29, s29, s30                  ; hd
    s_lshr_b32 s30, s19, 2                   ; qb
    s_lshl_b32 s28, s18, 5
    s_add_u32 s28, s28, s19                  ; f
    v_lshlrev_b32 v{TMP}, 4, v1              ; lane*16
    s_lshl_b32 s31, s30, 3
    s_add_u32 s31, s31, s3                   ; q tile
    s_waitcnt lgkmcnt(0)
    """)
    srd(a,20,16,WS_SIZE)
    a(f"""
    s_lshl_b32 s32, s29, 16
    s_lshl_b32 s33, s31, 10
    s_add_u32 s32, s32, s33
    s_add_u32 s32, s32, {OFF_Q}
    buffer_load_dwordx4 {vr(VQ,4)}, v{TMP}, s[20:23], s32 offen
    v_lshlrev_b32 v{TMP+1}, 2, v1
    s_lshl_b32 s32, s29, 8
    s_add_u32 s32, s32, {OFF_KN}
    buffer_load_dword v{TMP+2}, v{TMP+1}, s[20:23], s32 offen
    v_lshrrev_b32 v{TMP+3}, 4, v1
    s_lshl_b32 s32, s3, 2
    v_add_u32 v{TMP+4}, s32, v{TMP+3}        ; n2
    v_and_b32 v{TMP+5}, 15, v{TMP+4}
    v_and_b32 v{TMP+6}, 15, v1
    v_xor_b32 v{TMP+5}, v{TMP+5}, v{TMP+6}
    v_lshlrev_b32 v{TMP+5}, 4, v{TMP+5}
    v_lshl_add_u32 v{TMP+5}, v{TMP+4}, 8, v{TMP+5}
    s_lshl_b32 s32, s28, 13
    s_add_u32 s32, s32, {OFF_Z}
    s_lshl_b32 s34, s3, 10                   ; wave*1024
    s_add_u32 m0, s34, {K2_COL}
    s_mul_i32 s35, s29, {KV_HEAD}
    buffer_load_dwordx4 v{TMP+5}, s[20:23], s32 offen lds
    s_add_u32 s35, s35, s34
    s_add_u32 s35, s35, {OFF_KV}
    """)
    kv_dma(a,0,5)
    a("""
    s_cmp_ge_u32 s3, 4
    s_cbranch_scc1 k2_loadA
    """)
    a(f"s_lshl_b32 s36, s3, 13")
    a(f"s_add_u32 s36, s36, {OFF_T64}")
    for k in range(8):
        a(f"buffer_load_dwordx4 {vr(T64+4*k,4)}, v{TMP}, s[20:23], s36 offen offset:{(k%4)*1024}")
        if k==3: a("s_add_u32 s36, s36, 4096")
    a(f"s_lshl_b32 s36, s3, 12")
    a(f"s_add_u32 s36, s36, {OFF_TW}")
    for k in range(4):
        a(f"buffer_load_dwordx4 {vr(TW+4*k,4)}, v{TMP}, s[20:23], s36 offen offset:{k*1024}")
    a(f"s_mov_b32 s36, {OFF_A32}")
    for k in range(8):
        a(f"buffer_load_dwordx4 {vr(A32+4*k,4)}, v{TMP}, s[20:23], s36 offen offset:{(k%4)*1024}")
        if k==3: a("s_add_u32 s36, s36, 4096")
    kv_dma(a,5,17)
    srd(a,24,12,2048*257*2); srd(a,44,14,2048*257*2)
    a(f"""
    v_and_b32 v{TMP+1}, 15, v1
    v_lshrrev_b32 v{TMP+3}, 4, v1
    s_lshl_b32 s36, s3, 4
    v_add_u32 v{TMP+1}, s36, v{TMP+1}
    v_lshl_add_u32 v{TMP+1}, v{TMP+3}, 8, v{TMP+1}   ; g0
    v_mul_u32_u24 v{TMP+1}, 514, v{TMP+1}
    s_lshl_b32 s36, s28, 1
    v_add_u32 v{TMP+1}, s36, v{TMP+1}
    """)
    for e in range(16): a(f"v_mov_b32 v{WG_+e}, 0")
    a("""
    s_cmp_eq_u32 s28, 0
    s_cbranch_scc1 k2_nogather
    """)
    for e in range(8):
        off=(64*(e&3)+1024*(e>>2))*514
        a(f"s_mov_b32 s36, {off}")
        a(f"buffer_load_short_d16_hi v{WG_+e}, v{TMP+1}, s[24:27], s36 offen")
        a(f"buffer_load_short_d16_hi v{WG_+8+e}, v{TMP+1}, s[44:47], s36 offen")
    a("""
    s_waitcnt vmcnt(48)
    s_branch k2_loaded
    """)
    a.label("k2_nogather")
    a("""
    s_waitcnt vmcnt(32)
    s_branch k2_loaded
    """)
    a.label("k2_loadA")
    kv_dma(a,5,16)
    a("s_waitcnt vmcnt(11)")
    a.label("k2_loaded")
    a(f"""
    v_lshlrev_b32 v{TMP+3}, 16, v{VQ}
    v_and_b32 v{TMP+4}, 0xffff0000, v{VQ}
    v_mul_f32 v{TMP+5}, v{TMP+3}, v{TMP+3}
    v_fmac_f32 v{TMP+5}, v{TMP+4}, v{TMP+4}
    """)
    for k in range(1,4):
        a(f"v_lshlrev_b32 v{TMP+3}, 16, v{VQ+k}")
        a(f"v_and_b32 v{TMP+4}, 0xffff0000, v{VQ+k}")
        a(f"v_fmac_f32 v{TMP+5}, v{TMP+3}, v{TMP+3}")
        a(f"v_fmac_f32 v{TMP+5}, v{TMP+4}, v{TMP+4}")
    a(f"""
    v_mov_b32 v{TMP+6}, v{TMP+5}
    s_nop 1
    v_permlane32_swap_b32 v{TMP+5}, v{TMP+6}
    s_nop 1
    v_add_f32 v{TMP+5}, v{TMP+5}, v{TMP+6}
    """)
    for sh in ("row_shr:1","row_shr:2","row_shr:4","row_shr:8"):
        a("s_nop 0")
        a(f"v_max_f32_dpp v{TMP+2}, v{TMP+2}, v{TMP+2} {sh} row_mask:0xf bank_mask:0xf bound_ctrl:0")
        a(f"v_max_f32_dpp v{TMP+5}, v{TMP+5}, v{TMP+5} {sh} row_mask:0xf bank_mask:0xf bound_ctrl:0")
    for sh in ("row_bcast:15 row_mask:0xa","row_bcast:31 row_mask:0xc"):
        a("s_nop 0")
        a(f"v_max_f32_dpp v{TMP+2}, v{TMP+2}, v{TMP+2} {sh} bank_mask:0xf")
        a(f"v_max_f32_dpp v{TMP+5}, v{TMP+5}, v{TMP+5} {sh} bank_mask:0xf")
    a(f"""
    s_nop 0
    v_mul_f32 v{TMP+2}, v{TMP+2}, v{TMP+5}
    s_nop 0
    v_readlane_b32 s38, v{TMP+2}, 63
    v_and_b32 v{TMP+3}, 31, v1
    v_lshrrev_b32 v{TMP+4}, 5, v1
    v_mul_u32_u24 v{TMP+4}, 1056, v{TMP+4}
    v_lshl_add_u32 v{VADDR}, v{TMP+3}, 4, v{TMP+4}
    v_mov_b32 v{VIDX}, 0xdddd
    """)
    for i in range(16): a(f"v_mov_b32 v{O+i}, 0")
    for i in range(16): a(f"v_mov_b32 v{CI+i}, 0")
    for i in range(8): a(f"v_mov_b32 v{S[1]+8+i}, 0")
    for i in range(4): a(f"v_mov_b32 v{SET[0][2]+i}, 0")
    a("s_barrier")
    a(f"""
    s_cmp_lt_u32 s3, 4
    s_cselect_b32 s40, 10, 4
    s_cselect_b32 s41, 3, 11
    s_cmp_le_u32 s38, {hex(f2u(THRESH2))}
    s_cbranch_scc1 k2_fast
    """)
    a("""
    s_mov_b32 s40, 99
    s_mov_b32 s41, 99
    s_cmp_lt_u32 s3, 4
    s_cbranch_scc0 k2_fbA
    s_call_b64 s[60:61], k2_part1
    s_call_b64 s[60:61], k2_part2
    s_branch k2_fb_pre
    """)
    a.label("k2_fbA")
    a("""
    s_call_b64 s[60:61], k2_hookA1
    s_call_b64 s[60:61], k2_hookA2
    """)
    a.label("k2_fb_pre")
    a(f"""
    v_mov_b32 v{TMP+1}, 0xff800000
    v_mov_b32 v{TMP+2}, v{VADDR}
    s_mov_b32 s42, 64
    """)
    a.label("k2_fb_loop")
    a(f"""
    ds_read_b128 {vr(SET[1][0],4)}, v{TMP+2}
    v_add_u32 v{TMP+2}, {KV_TILE}, v{TMP+2}
    s_waitcnt lgkmcnt(0)
    v_mfma_f32_32x32x16_bf16 {vr(S[0],16)}, {vr(SET[1][0],4)}, {vr(VQ,4)}, 0
    s_nop 15
    """)
    for i in range(0,16,2): a(f"v_max3_f32 v{TMP+1}, v{S[0]+i}, v{S[0]+i+1}, v{TMP+1}")
    a(f"""
    s_sub_u32 s42, s42, 1
    s_cmp_lg_u32 s42, 0
    s_cbranch_scc1 k2_fb_loop
    v_mov_b32 v{TMP+2}, v{TMP+1}
    s_nop 1
    v_permlane32_swap_b32 v{TMP+1}, v{TMP+2}
    s_nop 1
    v_max_f32 v{TMP+1}, v{TMP+1}, v{TMP+2}
    """)
    for i in range(16): a(f"v_sub_f32 v{CI+i}, 0, v{TMP+1}")
    a.label("k2_fast")
    a(f"""
    ds_read_b128 {vr(SET[1][0],4)}, v{VADDR}
    ds_read_b128 {vr(SET[0][0],4)}, v{VADDR} offset:{KV_TILE}
    ds_read_b128 {vr(SET[0][1],4)}, v{VADDR} offset:512
    s_waitcnt lgkmcnt(2)
    v_mfma_f32_32x32x16_bf16 {vr(S[0],16)}, {vr(SET[1][0],4)}, {vr(VQ,4)}, {vr(CI,16)}
    s_mov_b32 s42, 0
    s_nop 11
    """)
    a.label("k2_loop")
    a("""
    s_cmp_eq_u32 s42, s40
    s_cbranch_scc1 k2_tophook
    """)
    a.label("k2_topret")
    for p in range(4): period(a,p)
    a("""
    s_add_u32 s42, s42, 1
    s_cmp_eq_u32 s42, s41
    s_cbranch_scc1 k2_midhook
    """)
    a.label("k2_midret")
    for p in range(4,8): period(a,p)
    a(f"""
    v_add_u32 v{VADDR}, {8*KV_TILE}, v{VADDR}
    s_add_u32 s42, s42, 1
    s_cmp_lt_u32 s42, 16
    s_cbranch_scc1 k2_loop
    """)
    a(f"""
    s_waitcnt lgkmcnt(0)
    v_smfmac_f32_32x32x32_bf16 {vr(O,16)}, {vr(SET[0][2],4)}, {vr(S[1]+8,8)}, v{VIDX}
    v_lshlrev_b32 v{TMP}, 4, v1
    s_lshl_b32 s36, s31, 5
    s_add_u32 s36, s36, s29
    s_lshl_b32 s36, s36, 10
    s_add_u32 s36, s36, {OFF_O}
    s_nop 15
    s_nop 3
    v_mov_b32 v{TMP+1}, v{O+8}
    v_mov_b32 v{TMP+2}, v{O+8}
    s_nop 1
    v_permlane32_swap_b32 v{TMP+1}, v{TMP+2}
    s_nop 1
    v_rcp_f32 v{TMP+1}, v{TMP+1}
    s_nop 0
    """)
    for i in range(8): a(f"v_mul_f32 v{O+i}, v{O+i}, v{TMP+1}")
    for i in range(4): a(f"v_cvt_pk_bf16_f32 v{TMP+4+i}, v{O+2*i}, v{O+2*i+1}")
    a(f"""
    buffer_store_dwordx4 {vr(TMP+4,4)}, v{TMP}, s[20:23], s36 offen
    s_endpgm
    """)
    a.label("k2_tophook")
    a("""
    s_cmp_lt_u32 s3, 4
    s_cbranch_scc1 k2_th_B
    s_call_b64 s[60:61], k2_hookA1
    s_branch k2_topret
    """)
    a.label("k2_th_B")
    a("""
    s_call_b64 s[60:61], k2_part2
    s_branch k2_topret
    """)
    a.label("k2_midhook")
    a("""
    s_cmp_lt_u32 s3, 4
    s_cbranch_scc1 k2_mh_B
    s_call_b64 s[60:61], k2_hookA2
    s_branch k2_midret
    """)
    a.label("k2_mh_B")
    a("""
    s_call_b64 s[60:61], k2_part1
    s_branch k2_midret
    """)
    a.label("k2_hookA1")
    a("""
    s_waitcnt vmcnt(0)
    s_barrier
    s_setpc_b64 s[60:61]
    """)
    a.label("k2_hookA2")
    a("""
    s_cmp_eq_u32 s28, 0
    s_cbranch_scc0 k2_hA2n
    s_barrier
    s_barrier
    """)
    a.label("k2_hA2n")
    a("""
    s_barrier
    s_setpc_b64 s[60:61]
    """)
    b2_part1(a)
    b2_part2(a)
    a.label("k2_end")
    a("s_endpgm")
    return a
```

```python
from asm import *
from layout import *
from k1 import srd, twiddle, gen_consts
K3_PSTR=17408
K3_S=4*K3_PSTR
K3_LDS=98304

def build_k3():
    a=Asm()
    a(f"""
    s_cmp_ge_u32 s2, 256
    s_cbranch_scc1 k3_end
    s_load_dwordx2 s[12:13], s[0:1], 48      ; out
    s_load_dwordx2 s[16:17], s[0:1], 64      ; ws
    v_and_b32 v1, 63, v0
    v_lshrrev_b32 v2, 6, v0
    s_nop 0
    v_readfirstlane_b32 s3, v2
    s_and_b32 s18, s2, 7
    s_lshr_b32 s19, s2, 3
    v_lshlrev_b32 v2, 4, v1                  ; lane*16
    s_cmp_ge_u32 s3, 4
    s_cbranch_scc1 k3_B
    s_lshl_b32 s28, s18, 2
    s_and_b32 s29, s19, 3
    s_add_u32 s28, s28, s29                  ; rt
    s_lshr_b32 s29, s19, 2                   ; ct
    s_lshl_b32 s30, s28, 16
    s_lshl_b32 s31, s3, 13
    s_add_u32 s30, s30, s31
    s_add_u32 s30, s30, {OFF_O}
    s_lshl_b32 s32, s29, 16
    s_add_u32 s32, s32, s31
    s_add_u32 s32, s32, {OFF_WOF}
    s_waitcnt lgkmcnt(0)
    """)
    srd(a,20,16,WS_SIZE)
    L=128
    for hh in range(8):
        b=L+16*hh
        a(f"s_add_u32 s33, s32, {hh*1024}")
        a(f"buffer_load_dwordx4 {vr(b,4)}, v2, s[20:23], s33 offen")
        a(f"s_add_u32 s34, s30, {hh*1024}")
        a(f"buffer_load_dwordx4 {vr(b+8,4)}, v2, s[20:23], s34 offen")
        a(f"s_add_u32 s33, s33, 32768")
        a(f"buffer_load_dwordx4 {vr(b+4,4)}, v2, s[20:23], s33 offen")
        a(f"s_add_u32 s34, s34, 32768")
        a(f"buffer_load_dwordx4 {vr(b+12,4)}, v2, s[20:23], s34 offen")
    a(f"""
    v_and_b32 v3, 31, v1
    v_lshrrev_b32 v4, 5, v1
    v_mul_u32_u24 v3, 272, v3
    v_lshl_add_u32 v3, v4, 4, v3
    s_mul_i32 s33, s3, {K3_PSTR}
    v_add_u32 v3, s33, v3
    v_lshrrev_b32 v4, 3, v1                  ; rl
    v_and_b32 v5, 7, v1                      ; c
    s_lshl_b32 s33, s3, 4
    v_add_u32 v6, s33, v4
    v_mul_u32_u24 v7, 272, v6
    v_lshl_add_u32 v7, v5, 5, v7
    s_lshl_b32 s33, s28, 6
    v_add_u32 v6, s33, v6
    v_lshlrev_b32 v6, 11, v6
    v_lshl_add_u32 v6, v5, 4, v6
    s_lshl_b32 s35, s29, 7
    """)
    srd(a,24,12,2048*1024*2)
    a("s_barrier")
    ACC=64
    for hh in range(8):
        b=L+16*hh
        a(f"s_waitcnt vmcnt({4*(7-hh)})")
        for nl in range(2):
            for st in range(2):
                acc=ACC+(nl*2+st)*16
                a(f"v_mfma_f32_32x32x16_bf16 {vr(acc,16)}, {vr(b+4*nl,4)}, {vr(b+8+4*st,4)}, {'0' if hh==0 else vr(acc,16)}")
    a("s_nop 7")
    for q in range(4):
        nl,st=q>>1,q&1
        if q==2: a("s_nop 3")
        for jj in range(4):
            a(f"ds_write_b128 v3, {vr(ACC+q*16+4*jj,4)} offset:{st*32*272+(32*nl+8*jj)*4}")
    a("""
    s_waitcnt lgkmcnt(0)
    s_barrier
    """)
    R=128
    for e in range(2):
        for w in range(4):
            for hf in range(2):
                a(f"ds_read_b128 {vr(R+32*e+8*w+4*hf,4)}, v7 offset:{w*K3_PSTR+e*8*272+hf*16}")
    for e in range(2):
        a(f"s_waitcnt lgkmcnt({8*(1-e)})")
        b=R+32*e
        for k in range(8):
            a(f"v_add_f32 v{b+k}, v{b+k}, v{b+8+k}")
            a(f"v_add_f32 v{b+16+k}, v{b+16+k}, v{b+24+k}")
        for k in range(8): a(f"v_add_f32 v{b+k}, v{b+k}, v{b+16+k}")
        for k in range(4): a(f"v_cvt_pk_bf16_f32 v{8+4*e+k}, v{b+2*k}, v{b+2*k+1}")
        a(f"s_add_u32 s36, s35, {e*8*2048}")
        a(f"buffer_store_dwordx4 {vr(8+4*e,4)}, v6, s[24:27], s36 offen")
    a("s_endpgm")
    a.label("k3_B")
    VM,VQ,VMF,VQF=3,4,5,6
    R16,TWc,TWs,A32=8,16,24,32
    AB=64
    P=80
    D1=88
    D2=104
    TMP=120
    a(f"""
    s_sub_u32 s28, s3, 4                     ; jv
    s_lshr_b32 s29, s19, 3
    s_lshl_b32 s29, s29, 3
    s_add_u32 s29, s29, s18                  ; n2
    s_and_b32 s30, s19, 7                    ; a
    v_lshrrev_b32 v{TMP}, 1, v1
    v_lshlrev_b32 v{TMP}, 13, v{TMP}         ; (l>>1)*8192
    v_and_b32 v{TMP+1}, 1, v1
    v_lshl_add_u32 v{TMP}, v{TMP+1}, 4, v{TMP}
    s_lshl_b32 s31, s29, 8
    s_lshl_b32 s32, s30, 5
    s_add_u32 s31, s31, s32
    s_lshl_b32 s32, s28, 19                  ; jv*2*32*8192
    s_add_u32 s31, s31, s32
    s_add_u32 s31, s31, {OFF_Y}
    s_lshl_b32 s33, s28, 11
    s_waitcnt lgkmcnt(0)
    """)
    srd(a,20,16,WS_SIZE)
    srd(a,24,12,2048*1024*2)
    a(f"""
    s_add_u32 m0, s33, {K3_S}
    s_nop 0
    buffer_load_dwordx4 v{TMP}, s[20:23], s31 offen lds
    s_add_u32 m0, s33, {K3_S+1024}
    s_add_u32 s31, s31, {32*8192}
    buffer_load_dwordx4 v{TMP}, s[20:23], s31 offen lds
    v_and_b32 v{VM}, 15, v1
    v_lshrrev_b32 v{VQ}, 4, v1
    v_cvt_f32_u32 v{VMF}, v{VM}
    v_lshlrev_b32 v{VQF}, 2, v{VQ}
    v_cvt_f32_u32 v{VQF}, v{VQF}
    """)
    gen_consts(a, True, 2.0**-21, R16, TWc, TWs, A32, TMP, VMF, VQF)
    a(f"""
    v_lshl_add_u32 v{TMP}, v{VQ}, 7, v{VM}           ; 128q + m
    v_sub_u32 v{TMP+1}, 512, v{TMP}
    v_cmp_gt_u32 vcc, 32, v1                         ; q<2 <=> lane<32
    v_mov_b32 v{TMP+2}, -1.0
    v_mov_b32 v{TMP+3}, -512
    v_cndmask_b32 v{TMP}, v{TMP+1}, v{TMP}, vcc
    v_cndmask_b32 v7, v{TMP+2}, 1.0, vcc             ; sigma
    v_mov_b32 v{TMP+4}, 512
    v_cndmask_b32 v{TMP+3}, v{TMP+3}, v{TMP+4}, vcc  ; step
    s_lshl_b32 s33, s28, 3
    s_add_u32 s33, s33, {K3_S}
    v_lshl_add_u32 v{TMP}, v{TMP}, 5, s33            ; base
    v_mov_b32 v{TMP+5}, s33
    v_cmp_eq_u32 vcc, 32, v1
    v_add_u32 v{TMP+7}, v{TMP}, v{TMP+3}             ; addr e=1
    s_nop 0
    v_cndmask_b32 v{TMP+6}, v{TMP}, v{TMP+5}, vcc
    s_mov_b64 s[36:37], vcc
    s_waitcnt vmcnt(0)
    s_barrier
    """)
    a(f"ds_read_b64 {vr(AB,2)}, v{TMP+6}")
    for e in range(1,8):
        i,t=e>>1,e&1
        a(f"ds_read_b64 {vr(AB+2*(4*t+i),2)}, v{TMP+7}")
        if e<7: a(f"v_add_u32 v{TMP+7}, v{TMP+7}, v{TMP+3}")
    a(f"""
    v_cmp_eq_u32 vcc, 0, v1
    s_or_b64 s[38:39], vcc, s[36:37]
    v_cndmask_b32 v{TMP+8}, v7, 0, s[38:39]          ; sigma0
    s_waitcnt lgkmcnt(0)
    """)
    for t in range(2):
        for i in range(4):
            A,B=AB+2*(4*t+i),AB+2*(4*t+i)+1
            ar,ai,br,bi=TMP+10,TMP+11,TMP+12,TMP+13
            a(f"v_lshlrev_b32 v{ar}, 16, v{A}")
            a(f"v_and_b32 v{ai}, 0xffff0000, v{A}")
            a(f"v_lshlrev_b32 v{br}, 16, v{B}")
            a(f"v_and_b32 v{bi}, 0xffff0000, v{B}")
            sg=7
            if t==0 and i==0:
                a(f"v_cndmask_b32 v{ar}, v{ar}, v{ai}, s[36:37]")
                a(f"v_cndmask_b32 v{br}, v{br}, v{bi}, s[36:37]")
                sg=TMP+8
            a(f"v_fma_f32 v{TMP+14}, -v{sg}, v{bi}, v{ar}")
            a(f"v_fma_f32 v{TMP+15}, v{sg}, v{ai}, v{br}")
            a(f"v_cvt_pk_bf16_f32 v{P+4*t+i}, v{TMP+14}, v{TMP+15}")
    a("s_nop 1")
    for t in range(2):
        for part in range(2):
            a(f"v_mfma_f32_16x16x32_bf16 {vr(D1+8*t+4*part,4)}, {vr(P+4*t,4)}, {vr(R16+4*part,4)}, 0")
    a("s_nop 7")
    for t in range(2):
        twiddle(a, D1+8*t, D1+8*t+4, TWc+4*t, TWs+4*t, P+4*t, TMP)
    a("s_nop 1")
    for t in range(2):
        for tp in range(2):
            for part in range(2):
                d=D2+8*tp+4*part
                a(f"v_mfma_f32_16x16x32_bf16 {vr(d,4)}, {vr(P+4*t,4)}, {vr(A32+((tp*2+part)*2+t)*4,4)}, {'0' if t==0 else vr(d,4)}")
    a(f"""
    v_lshlrev_b32 v{TMP}, 5, v{VM}
    v_lshl_add_u32 v{TMP}, v{VQ}, 3, v{TMP}
    s_lshl_b32 s33, s30, 3
    s_lshl_b32 s34, s28, 1
    s_add_u32 s33, s33, s34
    s_lshl_b32 s33, s33, 5
    s_add_u32 s33, s33, s29
    s_lshl_b32 s33, s33, 11
    s_add_u32 s33, s33, 1024
    s_barrier
    """)
    for part in range(2):
        for tp in range(2):
            d=D2+8*tp+4*part
            o=TMP+2+2*(part*2+tp)
            a(f"v_cvt_pk_bf16_f32 v{o}, v{d}, v{d+1}")
            a(f"v_cvt_pk_bf16_f32 v{o+1}, v{d+2}, v{d+3}")
            a(f"s_add_u32 s34, s33, {part*32*2048+tp*512}")
            a(f"buffer_store_dwordx2 {vr(o,2)}, v{TMP}, s[24:27], s34 offen")
    a.label("k3_end")
    a("s_endpgm")
    return a
```

```python
OFF_Q   = 0x0000000
KV_HEAD = 135168
KV_TILE = 2112
OFF_KV  = 0x0200000
OFF_KN  = 0x0620000
OFF_Z   = 0x0630000
OFF_Y   = 0x0830000
OFF_O   = 0x0A30000
OFF_WOF = 0x0C30000
OFF_T64 = 0x0CB0000
OFF_A32 = 0x0CB8000
OFF_TW  = 0x0CBA000
OFF_AB  = 0x0CBE000
OFF_WT  = 0x0D00000
WS_END  = 0x0F00000
WS_SIZE = 268435456
QSCALE = 0.25*1.4426950408889634
```

```python
import sys
from asm import *
from layout import *
import k1
NAME="concat_heads__mha_block__spectral_gfnet__prompt"
def kernel_block(name, body, vgpr, sgpr=102):
    accum=(vgpr+3)//4*4
    return f""".text
.globl {name}
.p2align 8
.type {name},@function
{name}:
{body}
.section .rodata,"a"
.p2align 6
.amdhsa_kernel {name}
  .amdhsa_next_free_vgpr {vgpr}
  .amdhsa_next_free_sgpr {sgpr}
  .amdhsa_accum_offset {accum}
  .amdhsa_group_segment_fixed_size 0
  .amdhsa_kernarg_size 72
  .amdhsa_user_sgpr_count 2
  .amdhsa_user_sgpr_kernarg_segment_ptr 1
  .amdhsa_system_sgpr_workgroup_id_x 1
.end_amdhsa_kernel
"""
def header(launches):
    h=open("cdna_kernels/"+NAME+".s.ref").read().split("\n")
    out=[]
    for l in h:
        if l.startswith("; Override launch") : break
        out.append(l)
    for (k,g,b,lds) in launches:
        out.append(f"; @launch kernel={k} grid=({g},1,1) block=({b},1,1) lds={lds}")
    out.append('.amdgcn_target "amdgcn-amd-amdhsa--gfx950"')
    return "\n".join(out)+"\n"
def build(path, which=("k1","k2","k3")):
    launches=[]; blocks=""
    if "k1" in which:
        launches.append(("qkv_rowfft_kernel",256,512,k1.K1_LDS))
        blocks+=kernel_block("qkv_rowfft_kernel", k1.build_k1().text(), 256)
    if "k2" in which:
        import k2
        launches.append(("attn_colfft_kernel",256,512,k2.K2_LDS))
        blocks+=kernel_block("attn_colfft_kernel", k2.build_k2().text(), 256)
    if "k3" in which:
        import k3
        launches.append(("proj_irowfft_kernel",256,512,k3.K3_LDS))
        blocks+=kernel_block("proj_irowfft_kernel", k3.build_k3().text(), 256)
    open(path,"w").write(header(launches)+blocks)
if __name__=="__main__":
    import asm, os
    if os.environ.get("STAMP"): asm.STAMP=int(os.environ["STAMP"])
    which=sys.argv[2].split(",") if len(sys.argv)>2 else ("k1","k2","k3")
    build(sys.argv[1], which)
```

```python
import struct
def f2u(x): return struct.unpack("<I",struct.pack("<f",x))[0]
class Asm:
    def __init__(self):
        self.lines=[]
    def __call__(self, s):
        for l in s.strip("\n").split("\n"):
            l=l.strip()
            if l: self.lines.append("    "+l)
    def label(self,name): self.lines.append(name+":")
    def comment(self,s): self.lines.append("    ; "+s)
    def raw(self,s): self.lines.append(s)
    def text(self): return "\n".join(self.lines)+"\n"
def vr(b,n=1): return f"v{b}" if n==1 else f"v[{b}:{b+n-1}]"
def sr(b,n=1): return f"s{b}" if n==1 else f"s[{b}:{b+n-1}]"

STAMP=False
OFF_DBG=0x0F00000
def stamp(a,k,real=False):
    if not STAMP: return
    a(f"s_waitcnt lgkmcnt(0)")
    if STAMP==3:
        if k>=8: k=7
        a(f"s_memrealtime s[{70+2*k}:{71+2*k}]")
        a(f"s_memtime s[{86+2*k}:{87+2*k}]")
    else:
        a(f"{'s_memtime' if STAMP==2 else 's_memrealtime'} s[{70+2*k}:{71+2*k}]")
    a(f"s_waitcnt lgkmcnt(0)")
def stamp_dump(a,kid,wsreg=16):
    if not STAMP: return
    a("s_mov_b64 exec, -1")
    a("s_lshl_b32 s68, s2, 3")
    a("s_add_u32 s68, s68, s3")
    a("s_lshl_b32 s68, s68, 7")
    a(f"s_add_u32 s68, s68, {OFF_DBG+kid*0x40000}")
    a(f"s_add_u32 s64, s{wsreg}, s68")
    a(f"s_addc_u32 s65, s{wsreg+1}, 0")
    a("v_mov_b32 v200, 0")
    for k in range(32):
        a(f"v_mov_b32 v201, s{70+k}")
        a(f"global_store_dword v200, v201, s[64:65] offset:{4*k}")
        a("s_nop 1")
    a("s_waitcnt vmcnt(0)")
```

```python
import asm
from asm import *
from layout import *

K1_LDS = 133120

def srd(a, d, base, size):
    a(f"s_mov_b32 s{d}, s{base}")
    a(f"s_and_b32 s{d+1}, s{base+1}, 0xffff")
    a(f"s_mov_b32 s{d+2}, {size}")
    a(f"s_mov_b32 s{d+3}, 0x20000")

def k1_prologue(a):
    a("""
    s_cmp_ge_u32 s2, 256
    s_cbranch_scc1 k1_end
    s_load_dwordx4 s[4:7], s[0:1], 0
    s_load_dwordx2 s[8:9], s[0:1], 16
    s_load_dwordx2 s[10:11], s[0:1], 24
    s_load_dwordx4 s[12:15], s[0:1], 32
    s_load_dwordx2 s[16:17], s[0:1], 64
    v_and_b32 v1, 63, v0
    v_lshrrev_b32 v2, 6, v0
    s_nop 0
    v_readfirstlane_b32 s3, v2
    """)
    stamp(a,0)
    a("""
    s_cmp_ge_u32 s2, 192
    s_cbranch_scc1 k1_B
    s_and_b32 s18, s2, 7
    s_lshr_b32 s19, s2, 3
    s_and_b32 s28, s18, 3
    s_lshl_b32 s28, s28, 2
    s_and_b32 s29, s19, 3
    s_add_u32 s28, s28, s29          ; s28 = rb
    s_lshr_b32 s29, s18, 2
    s_mul_i32 s29, s29, 6
    s_lshr_b32 s30, s19, 2
    s_add_u32 s29, s29, s30          ; s29 = cb
    s_cmp_ge_u32 s3, 4
    s_cbranch_scc0 k1_compute
    """)

def k1_loader(a):
    a.comment("---- loader waves 4..7 ----")
    a("""
    s_sub_u32 s30, s3, 4             ; lw
    v_lshrrev_b32 v2, 3, v1          ; l>>3
    v_lshrrev_b32 v3, 4, v1          ; l>>4
    v_and_b32 v4, 7, v1
    v_xor_b32 v4, v4, v3
    v_lshlrev_b32 v4, 4, v4
    v_lshl_add_u32 v4, v2, 10, v4    ; voffX0
    v_xor_b32 v5, 64, v4             ; voffX1
    v_and_b32 v6, 15, v1
    v_lshlrev_b32 v7, 2, v3
    v_xor_b32 v6, v6, v7
    v_lshlrev_b32 v6, 4, v6
    v_mul_u32_u24 v7, 3072, v3
    v_add_u32 v6, v6, v7             ; voffW
    s_lshl_b32 s31, s28, 17          ; rb*128*1024
    s_lshl_b32 s32, s30, 15          ; lw*32*1024
    s_add_u32 s31, s31, s32          ; sX0
    s_mul_i32 s32, s30, 16*3072
    s_lshl_b32 s33, s29, 8
    s_add_u32 s32, s32, s33          ; sW0
    s_lshl_b32 s33, s30, 12
    s_waitcnt lgkmcnt(0)
    """)
    srd(a,20,4,2097152); srd(a,24,6,1572864)
    def issue(c):
        slot=c&3
        for e in range(4):
            a(f"s_add_u32 m0, s33, {slot*32768+e*1024}")
            a(f"s_add_u32 s34, s31, {e*8192+c*128}")
            a(f"buffer_load_dwordx4 v{4+(e&1)}, s[20:23], s34 offen lds")
        for e in range(4):
            a(f"s_add_u32 m0, s33, {slot*32768+16384+e*1024}")
            a(f"s_add_u32 s34, s32, {(c*64+4*e)*3072}")
            a(f"buffer_load_dwordx4 v6, s[24:27], s34 offen lds")
    for c in range(4): issue(c)
    issued=3
    for c in range(8):
        n=8*(issued-c)
        a(f"s_waitcnt vmcnt({n})")
        a("s_barrier")
        if c>=1 and c+3<=7:
            issue(c+3); issued=c+3
        if c in (0,3,7): stamp(a,{0:1,3:2,7:3}[c])
    stamp_dump(a,0)
    a("s_endpgm")

def k1_compute(a):
    a.label("k1_compute")
    XA,XB,WA,WB=2,6,10,12
    a("""
    s_lshr_b32 s30, s3, 1            ; wm
    s_and_b32 s31, s3, 1             ; wn
    v_and_b32 v14, 31, v1            ; r
    v_lshrrev_b32 v15, 5, v1         ; h
    v_lshrrev_b32 v16, 1, v14
    v_and_b32 v16, 7, v16            ; (r>>1)&7
    v_xor_b32 v16, v16, v15          ; h ^ c
    v_lshlrev_b32 v16, 4, v16
    v_lshl_add_u32 v16, v14, 7, v16  ; r*128 + slot*16
    s_lshl_b32 s32, s30, 13          ; wm*64*128
    v_add_u32 v2, s32, v16
    v_xor_b32 v3, 32, v2
    v_xor_b32 v4, 64, v2
    v_xor_b32 v5, 96, v2
    v_add_u32 v6, 0x10000, v2
    v_add_u32 v7, 0x10000, v3
    v_add_u32 v8, 0x10000, v4
    v_add_u32 v9, 0x10000, v5
    v_and_b32 v16, 15, v1
    v_lshrrev_b32 v16, 2, v16        ; r4
    v_lshl_add_u32 v17, v15, 3, v16  ; 8h + r4
    v_lshlrev_b32 v17, 8, v17        ; *256
    s_lshl_b32 s32, s31, 1
    v_xor_b32 v18, s32, v16          ; nt0 ^ r4
    v_lshl_add_u32 v17, v18, 6, v17
    v_lshrrev_b32 v18, 4, v1
    v_and_b32 v18, 1, v18
    v_lshl_add_u32 v17, v18, 5, v17  ; + cg*32
    v_and_b32 v18, 3, v1
    v_lshl_add_u32 v17, v18, 3, v17  ; + c4*8
    v_add_u32 v10, 16384, v17
    v_xor_b32 v11, 64, v10
    v_add_u32 v12, 0x10000, v10
    v_add_u32 v13, 0x10000, v11
    """)
    for i in range(64): a(f"v_mov_b32 v{64+i}, 0")
    a("s_waitcnt lgkmcnt(0)")
    srd(a,20,16,WS_SIZE)
    a("""
    s_cmp_ge_u32 s29, 8
    s_cbranch_scc1 k1_vloop
    """)
    bufs=[(16,20,24,28),(32,36,40,44)]
    def reads(c,ks,buf):
        slot=c&3
        xa=(XA if slot<2 else XB)+ks; wa=(WA if slot<2 else WB)
        so=(slot&1)*32768
        X0,X1,W0,W1=buf
        a(f"ds_read_b128 {vr(X0,4)}, v{xa} offset:{so}")
        a(f"ds_read_b64_tr_b16 {vr(W0,2)}, v{wa} offset:{so+ks*4096}")
        a(f"ds_read_b64_tr_b16 {vr(W0+2,2)}, v{wa} offset:{so+ks*4096+1024}")
        a(f"ds_read_b128 {vr(X1,4)}, v{xa} offset:{so+4096}")
        a(f"ds_read_b64_tr_b16 {vr(W1,2)}, v{wa+1} offset:{so+ks*4096}")
        a(f"ds_read_b64_tr_b16 {vr(W1+2,2)}, v{wa+1} offset:{so+ks*4096+1024}")
    def loop(vtype):
        a("s_barrier")
        stamp(a,1)
        reads(0,0,bufs[0])
        for c in range(8):
            for ks in range(4):
                j=4*c+ks
                cur=bufs[j&1]; nxt=bufs[(j+1)&1]
                if ks<3:
                    reads(c,ks+1,nxt)
                    a("s_waitcnt lgkmcnt(6)")
                else:
                    a("s_waitcnt lgkmcnt(0)")
                    if c<7:
                        a("s_barrier")
                        reads(c+1,0,nxt)
                X0,X1,W0,W1=cur
                for ntl in range(2):
                    for rt in range(2):
                        acc=64+(ntl*2+rt)*16
                        W=(W0,W1)[ntl]; X=(X0,X1)[rt]
                        if not vtype: a(f"v_mfma_f32_32x32x16_bf16 {vr(acc,16)}, {vr(W,4)}, {vr(X,4)}, {vr(acc,16)}")
                        else:         a(f"v_mfma_f32_32x32x16_bf16 {vr(acc,16)}, {vr(X,4)}, {vr(W,4)}, {vr(acc,16)}")
            if c==3: stamp(a,2)
        stamp(a,3)
    loop(False)
    a("""
    s_and_b32 s33, s29, 3
    s_lshl_b32 s33, s33, 3
    s_lshl_b32 s34, s31, 2
    s_add_u32 s33, s33, s34          ; head0
    s_lshl_b32 s34, s28, 2
    s_lshl_b32 s35, s30, 1
    s_add_u32 s34, s34, s35          ; tile0
    s_cmp_ge_u32 s29, 4
    s_cbranch_scc1 k1_kepi
    """)
    a(f"""
    v_lshlrev_b32 v2, 9, v15
    v_lshl_add_u32 v2, v14, 4, v2    ; h*512 + r*16
    s_lshl_b32 s35, s33, 16
    s_lshl_b32 s36, s34, 10
    s_add_u32 s35, s35, s36
    s_add_u32 s35, s35, {OFF_Q}
    s_mov_b32 s37, {hex(f2u(QSCALE))}
    s_nop 7
    """)
    for ntl in range(2):
        for rt in range(2):
            acc=64+(ntl*2+rt)*16
            for i in range(16): a(f"v_mul_f32 v{acc+i}, s37, v{acc+i}")
            t=16+(ntl*2+rt)*8
            for i in range(8): a(f"v_cvt_pk_bf16_f32 v{t+i}, v{acc+2*i}, v{acc+2*i+1}")
            for hh in range(2):
                a(f"s_add_u32 s36, s35, {(2*ntl+hh)*65536+rt*1024}")
                a(f"buffer_store_dwordx4 {vr(t+4*hh,4)}, v2, s[20:23], s36 offen")
    if asm.STAMP:
        a("s_waitcnt vmcnt(0)"); stamp(a,4); stamp_dump(a,0)
    a("s_endpgm")
    a.label("k1_kepi")
    a(f"""
    v_and_b32 v2, 0x13, v14
    v_and_b32 v3, 4, v14
    v_lshl_or_b32 v2, v3, 1, v2
    v_and_b32 v3, 8, v14
    v_lshrrev_b32 v3, 1, v3
    v_or_b32 v2, v2, v3              ; pi(r)
    v_lshlrev_b32 v2, 4, v2
    v_mul_u32_u24 v3, 1056, v15
    v_add_u32 v2, v2, v3             ; h*1056 + pi(r)*16
    s_mul_i32 s35, s33, {KV_HEAD}
    s_mul_i32 s36, s34, {KV_TILE}
    s_add_u32 s35, s35, s36
    s_add_u32 s35, s35, {OFF_KV}
    s_nop 5
    """)
    for ntl in range(2):
        for rt in range(2):
            acc=64+(ntl*2+rt)*16
            t=16+(ntl*2+rt)*8
            for i in range(8): a(f"v_cvt_pk_bf16_f32 v{t+i}, v{acc+2*i}, v{acc+2*i+1}")
            for hh in range(2):
                a(f"s_add_u32 s36, s35, {(2*ntl+hh)*KV_HEAD+rt*KV_TILE}")
                a(f"buffer_store_dwordx4 {vr(t+4*hh,4)}, v2, s[20:23], s36 offen")
    for q in range(4):
        acc=64+q*16
        for hh in range(2):
            a(f"v_mul_f32 v{48+2*q+hh}, v{acc+8*hh}, v{acc+8*hh}")
        for i in range(1,8):
            for hh in range(2):
                a(f"v_fmac_f32 v{48+2*q+hh}, v{acc+8*hh+i}, v{acc+8*hh+i}")
    a("s_nop 1")
    for q in range(4): a(f"v_permlane32_swap_b32 v{48+2*q}, v{49+2*q}")
    a("s_nop 1")
    for q in range(4): a(f"v_add_f32 v{48+2*q}, v{48+2*q}, v{49+2*q}")
    for sh in ("row_shr:1","row_shr:2","row_shr:4","row_shr:8"):
        for q in range(4): a(f"v_max_f32_dpp v{48+2*q}, v{48+2*q}, v{48+2*q} {sh} row_mask:0xf bank_mask:0xf bound_ctrl:0")
    for q in range(4): a(f"v_max_f32_dpp v{48+2*q}, v{48+2*q}, v{48+2*q} row_bcast:15 row_mask:0xa bank_mask:0xf")
    a(f"""
    v_lshlrev_b32 v3, 8, v15
    s_lshl_b32 s35, s33, 8
    s_lshl_b32 s36, s34, 2
    s_add_u32 s35, s35, s36
    s_add_u32 s35, s35, {OFF_KN}
    s_mov_b32 exec_lo, 0x80000000
    s_mov_b32 exec_hi, 0x80000000
    """)
    for ntl in range(2):
        for rt in range(2):
            q=ntl*2+rt
            a(f"s_add_u32 s36, s35, {2*ntl*256+rt*4}")
            a(f"buffer_store_dword v{48+2*q}, v3, s[20:23], s36 offen")
    if asm.STAMP:
        a("s_waitcnt vmcnt(0)"); stamp(a,4); stamp_dump(a,0)
    a("s_endpgm")
    a.label("k1_vloop")
    loop(True)
    a(f"""
    s_and_b32 s33, s29, 3
    s_lshl_b32 s33, s33, 3
    s_lshl_b32 s34, s31, 2
    s_add_u32 s33, s33, s34          ; head0
    s_lshl_b32 s34, s28, 2
    s_lshl_b32 s35, s30, 1
    s_add_u32 s34, s34, s35          ; tile0
    v_lshrrev_b32 v2, 4, v14         ; n>>4
    s_mov_b32 s36, {KV_HEAD}
    v_mul_lo_u32 v2, v2, s36
    v_mul_u32_u24 v3, 1056, v15
    v_add_u32 v2, v2, v3
    v_and_b32 v3, 15, v14
    v_lshl_add_u32 v2, v3, 4, v2
    s_mul_i32 s35, s33, {KV_HEAD}
    s_mul_i32 s36, s34, {KV_TILE}
    s_add_u32 s35, s35, s36
    s_add_u32 s35, s35, {OFF_KV+512}
    """)
    for ntl in range(2):
        for rt in range(2):
            acc=64+(ntl*2+rt)*16
            t=16+(ntl*2+rt)*8
            for i in range(8): a(f"v_cvt_pk_bf16_f32 v{t+i}, v{acc+2*i}, v{acc+2*i+1}")
            for u in range(2):
                a(f"s_add_u32 s36, s35, {2*ntl*KV_HEAD+rt*KV_TILE+u*272}")
                a(f"buffer_store_dwordx4 {vr(t+4*u,4)}, v2, s[20:23], s36 offen")
    a(f"""
    v_and_b32 v3, 1, v1
    v_mul_u32_u24 v3, 1056, v3
    v_bfe_u32 v4, v1, 1, 1
    v_mul_u32_u24 v4, 272, v4
    v_add_u32 v3, v3, v4
    v_bfe_u32 v4, v1, 2, 1
    v_mul_u32_u24 v4, {KV_TILE}, v4
    v_add_u32 v3, v3, v4
    v_bfe_u32 v4, v1, 3, 2
    s_mov_b32 s36, {KV_HEAD}
    v_mul_lo_u32 v4, v4, s36
    v_add_u32 v3, v3, v4
    v_mov_b32 v4, 0x3f803f80
    v_mov_b32 v5, 0x3f803f80
    v_mov_b32 v6, 0x3f803f80
    v_mov_b32 v7, 0x3f803f80
    s_add_u32 s36, s35, 256
    s_mov_b32 exec_hi, 0
    buffer_store_dwordx4 v[4:7], v3, s[20:23], s36 offen
    """)
    if asm.STAMP:
        a("s_waitcnt vmcnt(0)"); stamp(a,4); stamp_dump(a,0)
    a("s_endpgm")

def gen_consts(a, inv, scale, R16, TWc, TWs, A32, tmp, vm, vq):
    T=tmp
    a(f"v_mul_f32 v{T}, {hex(f2u(1/16.))}, v{vm}")
    for i in range(4):
        a(f"v_add_f32 v{T+1+i}, {float(i)}, v{vq}" if i else f"v_mov_b32 v{T+1}, v{vq}")
    for i in range(4): a(f"v_mul_f32 v{T+1+i}, v{T+1+i}, v{T}")
    for i in range(4):
        a(f"v_cos_f32 v{T+5+i}, v{T+1+i}")
        a(f"v_sin_f32 v{T+9+i}, v{T+1+i}")
    if scale!=1.0:
        a(f"s_mov_b32 s40, {hex(f2u(scale))}")
        for i in range(8): a(f"v_mul_f32 v{T+5+i}, s40, v{T+5+i}")
    else: a("s_nop 0")
    for i in range(4):
        c,s=T+5+i,T+9+i
        if not inv:
            a(f"v_cvt_pk_bf16_f32 v{R16+i}, v{c}, v{s}")
            a(f"v_cvt_pk_bf16_f32 v{R16+4+i}, -v{s}, v{c}")
        else:
            a(f"v_cvt_pk_bf16_f32 v{R16+i}, v{c}, -v{s}")
            a(f"v_cvt_pk_bf16_f32 v{R16+4+i}, v{s}, v{c}")
    a(f"v_mul_f32 v{T}, {hex(f2u(1/512.))}, v{vm}")
    for t in range(2):
        for i in range(4):
            k=16*t+i
            if k==0: a(f"v_mov_b32 v{T+1}, v{vq}")
            else:
                a(f"v_add_f32 v{T+1+4*t+i}, {hex(f2u(float(k)))}, v{vq}")
    for e in range(8): a(f"v_mul_f32 v{T+1+e}, v{T+1+e}, v{T}")
    for e in range(8):
        a(f"v_cos_f32 v{TWc+e}, v{T+1+e}")
        a(f"v_sin_f32 v{TWs+e}, {'-' if inv else ''}v{T+1+e}")
    gen_a32(a, inv, A32, tmp, vm, vq)

def gen_a32(a, inv, A32, tmp, vm, vq):
    T=tmp
    for t in range(2):
        for i in range(4):
            k=16*t+i
            if k==0: a(f"v_mov_b32 v{T+1}, v{vq}")
            else: a(f"v_add_f32 v{T+1+4*t+i}, {hex(f2u(float(k)))}, v{vq}")
    a(f"v_mul_f32 v{T+9}, {hex(f2u(1/32.))}, v{vm}")
    a(f"v_add_f32 v{T+10}, 0.5, v{T+9}")
    for tp in range(2):
        for e in range(8): a(f"v_mul_f32 v{T+11+e}, v{T+1+e}, v{T+9+tp}")
        for e in range(8):
            a(f"v_cos_f32 v{T+19+e}, v{T+11+e}")
            a(f"v_sin_f32 v{T+11+e}, v{T+11+e}")
        a("s_nop 0")
        for t in range(2):
            for i in range(4):
                e=4*t+i; c,s=T+19+e,T+11+e
                re=A32+((tp*2+0)*2+t)*4+i; im=A32+((tp*2+1)*2+t)*4+i
                if not inv:
                    a(f"v_cvt_pk_bf16_f32 v{re}, v{c}, v{s}")
                    a(f"v_cvt_pk_bf16_f32 v{im}, -v{s}, v{c}")
                else:
                    a(f"v_cvt_pk_bf16_f32 v{re}, v{c}, -v{s}")
                    a(f"v_cvt_pk_bf16_f32 v{im}, v{s}, v{c}")

def twiddle(a, re, im, c, s, out, tmp):
    T,U=tmp,tmp+4
    for p in (0,2):
        a(f"v_pk_mul_f32 {vr(T+p,2)}, {vr(re+p,2)}, {vr(c+p,2)}")
        a(f"v_pk_mul_f32 {vr(U+p,2)}, {vr(im+p,2)}, {vr(c+p,2)}")
    for p in (0,2):
        a(f"v_pk_fma_f32 {vr(T+p,2)}, {vr(im+p,2)}, {vr(s+p,2)}, {vr(T+p,2)}")
        a(f"v_pk_fma_f32 {vr(U+p,2)}, {vr(re+p,2)}, {vr(s+p,2)}, {vr(U+p,2)} neg_lo:[1,0,0] neg_hi:[1,0,0]")
    for i in range(4): a(f"v_cvt_pk_bf16_f32 v{out+i}, v{T+i}, v{U+i}")

XR_STRIDE=1056
B1_MB=33792
B1_WTL=66560
B1_MBW=100352

def k1_B(a):
    a.label("k1_B")
    VM,VQ,VMF,VQF=2,3,4,5
    R16,TWc,TWs,A32=8,16,24,32
    PIN=64
    D1=80
    D2=112
    TMP=144
    WOL,WOH=192,196
    ABL=200
    a(f"""
    s_sub_u32 s18, s2, 192           ; b
    s_lshr_b32 s19, s18, 1           ; n2
    s_and_b32 s28, s18, 1            ; hf
    v_and_b32 v{VM}, 15, v1
    v_lshrrev_b32 v{VQ}, 4, v1
    v_lshlrev_b32 v6, 4, v1          ; lane*16
    s_waitcnt lgkmcnt(0)
    """)
    srd(a,20,10,2097152)
    srd(a,24,16,WS_SIZE)
    srd(a,44,8,524288)
    a(f"""
    s_lshl_b32 s29, s28, 5
    s_lshl_b32 s30, s3, 2
    s_add_u32 s29, s29, s30
    s_lshl_b32 s29, s29, 5
    s_add_u32 s29, s29, s19          ; s0
    s_lshl_b32 s29, s29, 10
    s_mul_i32 s30, s3, {4*XR_STRIDE}
    """)
    for e in range(4):
        a(f"s_add_u32 m0, s30, {e*XR_STRIDE}")
        a(f"s_add_u32 s31, s29, {e*32*1024}")
        a(f"buffer_load_dwordx4 v6, s[20:23], s31 offen lds")
    a(f"""
    s_lshl_b32 s32, s18, 3
    s_add_u32 s32, s32, s3           ; idx
    s_lshr_b32 s33, s32, 5
    s_lshl_b32 s33, s33, 6
    s_and_b32 s34, s32, 31
    s_lshl_b32 s34, s34, 14
    s_add_u32 s33, s33, s34
    v_and_b32 v7, 31, v1
    v_lshlrev_b32 v7, 1, v7
    v_lshrrev_b32 v{TMP}, 5, v1
    v_lshl_add_u32 v7, v{TMP}, 12, v7    ; h*4 rows*1024 + n*2
    """)
    for j8 in range(8):
        d=8*(j8>>2)+(j8&3)
        a(f"s_add_u32 s34, s33, {d*1024}")
        dst=(WOL if j8%2==0 else WOH)+j8//2
        a(f"buffer_load_ushort v{dst}, v7, s[44:47], s34 offen")
    a(f"""
    s_and_b32 s35, s18, 7
    s_lshl_b32 s35, s35, 3
    s_add_u32 s35, s35, s3
    s_lshr_b32 s36, s18, 3
    s_and_b32 s37, s36, 3            ; q
    s_lshr_b32 s36, s36, 2           ; tp
    s_lshl_b32 s36, s36, 2
    s_add_u32 s36, s36, s37          ; 4tp+q
    s_lshl_b32 s36, s36, 8           ; *4*64
    s_add_u32 s35, s35, s36          ; g(i=0)
    s_mul_i32 s35, s35, 514
    v_and_b32 v{TMP}, 31, v1
    v_lshlrev_b32 v{TMP}, 4, v{TMP}
    v_add_u32 v{TMP}, s35, v{TMP}
    v_cmp_gt_u32 vcc, 32, v1
    v_mov_b32 v{TMP+2}, s14
    v_mov_b32 v{TMP+3}, s15
    v_mov_b32 v{TMP+4}, s12
    v_mov_b32 v{TMP+5}, s13
    v_cndmask_b32 v{TMP+2}, v{TMP+2}, v{TMP+4}, vcc
    v_cndmask_b32 v{TMP+3}, v{TMP+3}, v{TMP+5}, vcc
    v_add_co_u32 v{TMP+2}, vcc, v{TMP+2}, v{TMP}
    s_mul_i32 s36, s3, {4*XR_STRIDE}
    s_nop 0
    v_addc_co_u32 v{TMP+3}, vcc, 0, v{TMP+3}, vcc
    """)
    for i in range(4):
        a(f"s_add_u32 m0, s36, {B1_WTL+i*XR_STRIDE}")
        a("s_nop 0")
        a(f"global_load_lds_dwordx4 {vr(TMP+2,2)}, off")
        if i<3:
            a(f"v_add_co_u32 v{TMP+2}, vcc, {64*514}, v{TMP+2}")
            a("s_nop 1")
            a(f"v_addc_co_u32 v{TMP+3}, vcc, 0, v{TMP+3}, vcc")
    a(f"""
    s_sub_u32 s35, s18, 32
    s_cmp_lt_u32 s35, 32
    s_cselect_b32 s39, 1, 0
    s_cmp_eq_u32 s3, 7
    s_cselect_b32 s39, s39, 0
    s_cmp_eq_u32 s39, 1
    s_cbranch_scc0 k1_B_noab
    s_lshl_b32 s36, s35, 6
    v_add_u32 v{TMP}, s36, v1        ; g
    v_sub_u32 v{TMP+1}, 2048, v{TMP}
    v_and_b32 v{TMP+1}, 2047, v{TMP+1}   ; -g
    v_mul_u32_u24 v{TMP}, 514, v{TMP}
    v_mul_u32_u24 v{TMP+1}, 514, v{TMP+1}
    """)
    srd(a,48,12,2048*257*2); srd(a,52,14,2048*257*2)
    for k,(arr,val,off) in enumerate([(48,TMP,0),(52,TMP,0),(48,TMP+1,0),(52,TMP+1,0),(48,TMP,512),(52,TMP,512),(48,TMP+1,512),(52,TMP+1,512)]):
        a(f"buffer_load_ushort v{ABL+k}, v{val}, s[{arr}:{arr+3}], 0 offen offset:{off}")
    a.label("k1_B_noab")
    a(f"""
    v_cvt_f32_u32 v{VMF}, v{VM}
    v_lshlrev_b32 v{VQF}, 2, v{VQ}
    v_cvt_f32_u32 v{VQF}, v{VQF}
    """)
    gen_consts(a, False, 1.0, R16, TWc, TWs, A32, TMP, VMF, VQF)
    a(f"""
    s_cmp_lt_u32 s18, 2
    s_cbranch_scc0 k1_B_not64
    s_lshl_b32 s36, s18, 3
    s_add_u32 s36, s36, s3           ; unit
    s_lshr_b32 s37, s36, 2           ; w
    s_and_b32 s38, s36, 3            ; u
    s_lshl_b32 s37, s37, 4
    s_lshl_b32 s38, s38, 4
    v_add_u32 v{TMP}, s37, v{VM}
    v_cvt_f32_u32 v{TMP}, v{TMP}
    v_mul_f32 v{TMP}, {hex(f2u(1/64.))}, v{TMP}
    v_cvt_f32_u32 v{TMP+1}, s38
    v_add_f32 v{TMP+1}, v{TMP+1}, v{VQF}
    v_add_f32 v{TMP+2}, 1.0, v{TMP+1}
    v_add_f32 v{TMP+3}, 2.0, v{TMP+1}
    v_add_f32 v{TMP+4}, 1.0, v{TMP+3}
    """)
    for i in range(4): a(f"v_mul_f32 v{TMP+1+i}, v{TMP+1+i}, v{TMP}")
    for i in range(4):
        a(f"v_cos_f32 v{TMP+5+i}, v{TMP+1+i}")
        a(f"v_sin_f32 v{TMP+9+i}, v{TMP+1+i}")
    a("s_nop 0")
    for i in range(4):
        a(f"v_cvt_pk_bf16_f32 v{TMP+16+i}, v{TMP+5+i}, v{TMP+9+i}")
        a(f"v_cvt_pk_bf16_f32 v{TMP+20+i}, -v{TMP+9+i}, v{TMP+5+i}")
    a(f"""
    s_lshl_b32 s36, s36, 11
    s_add_u32 s36, s36, {OFF_T64}
    buffer_store_dwordx4 {vr(TMP+16,4)}, v6, s[24:27], s36 offen
    buffer_store_dwordx4 {vr(TMP+20,4)}, v6, s[24:27], s36 offen offset:1024
    """)
    a.label("k1_B_not64")
    a(f"""
    s_cmp_eq_u32 s18, 2
    s_cbranch_scc0 k1_B_notw
    s_cmp_lt_u32 s3, 4
    s_cbranch_scc0 k1_B_a32
    s_lshl_b32 s37, s3, 4
    v_add_u32 v{TMP}, s37, v{VM}
    v_cvt_f32_u32 v{TMP}, v{TMP}
    v_mul_f32 v{TMP}, {hex(f2u(1/2048.))}, v{TMP}
    """)
    for t in range(2):
        for i in range(4):
            k=16*t+i
            if k==0: a(f"v_mov_b32 v{TMP+1}, v{VQF}")
            else: a(f"v_add_f32 v{TMP+1+4*t+i}, {hex(f2u(float(k)))}, v{VQF}")
    for e in range(8): a(f"v_mul_f32 v{TMP+1+e}, v{TMP+1+e}, v{TMP}")
    for e in range(8):
        a(f"v_cos_f32 v{TMP+16+e}, v{TMP+1+e}")
        a(f"v_sin_f32 v{TMP+24+e}, v{TMP+1+e}")
    a(f"""
    s_lshl_b32 s36, s3, 12
    s_add_u32 s36, s36, {OFF_TW}
    buffer_store_dwordx4 {vr(TMP+16,4)}, v6, s[24:27], s36 offen
    buffer_store_dwordx4 {vr(TMP+20,4)}, v6, s[24:27], s36 offen offset:1024
    buffer_store_dwordx4 {vr(TMP+24,4)}, v6, s[24:27], s36 offen offset:2048
    buffer_store_dwordx4 {vr(TMP+28,4)}, v6, s[24:27], s36 offen offset:3072
    s_branch k1_B_notw
    """)
    a.label("k1_B_a32")
    a("""
    s_cmp_eq_u32 s3, 4
    s_cbranch_scc0 k1_B_notw
    """)
    for blk in range(8):
        a(f"s_mov_b32 s36, {OFF_A32+blk*1024}")
        a(f"buffer_store_dwordx4 {vr(A32+4*blk,4)}, v6, s[24:27], s36 offen")
    a.label("k1_B_notw")
    a(f"""
    v_bfe_u32 v{TMP}, v1, 2, 2       ; r4
    v_and_b32 v{TMP+1}, 1, v{TMP}
    v_mul_u32_u24 v{TMP+1}, {XR_STRIDE}, v{TMP+1}
    v_lshrrev_b32 v{TMP+2}, 1, v{TMP}
    v_lshl_add_u32 v{TMP+2}, v{VQ}, 2, v{TMP+2}    ; 4q + (r4>>1)
    v_lshl_add_u32 v{TMP+1}, v{TMP+2}, 6, v{TMP+1}
    v_and_b32 v{TMP+2}, 3, v1
    v_lshl_add_u32 v{TMP+1}, v{TMP+2}, 3, v{TMP+1}
    s_mul_i32 s30, s3, {4*XR_STRIDE}
    v_add_u32 v7, s30, v{TMP+1}
    """)
    stamp(a,1)
    a("s_waitcnt vmcnt(0)")
    stamp(a,2)
    for pp in range(2):
        for t in range(2):
            a(f"ds_read_b64_tr_b16 {vr(PIN+8*pp+4*t,2)}, v7 offset:{pp*2*XR_STRIDE+t*32}")
            a(f"ds_read_b64_tr_b16 {vr(PIN+8*pp+4*t+2,2)}, v7 offset:{pp*2*XR_STRIDE+t*32+128}")
    for j in range(4): a(f"v_lshl_or_b32 v{WOL+j}, v{WOH+j}, 16, v{WOL+j}")
    a(f"""
    s_lshl_b32 s32, s32, 10
    s_add_u32 s32, s32, {OFF_WOF}
    buffer_store_dwordx4 {vr(WOL,4)}, v6, s[24:27], s32 offen
    """)
    a(f"""
    s_cmp_eq_u32 s39, 1
    s_cbranch_scc0 k1_B_noab2
    """)
    for k in range(8): a(f"v_lshlrev_b32 v{ABL+k}, 16, v{ABL+k}")
    a(f"""
    v_add_f32 v{TMP}, v{ABL}, v{ABL+2}        ; 2*Wh0.re
    v_sub_f32 v{TMP+1}, v{ABL+1}, v{ABL+3}    ; 2*Wh0.im
    v_add_f32 v{TMP+2}, v{ABL+4}, v{ABL+6}    ; 2*Wh256.re
    v_sub_f32 v{TMP+3}, v{ABL+5}, v{ABL+7}    ; 2*Wh256.im
    v_add_f32 v{TMP+4}, v{TMP}, v{TMP+2}
    v_add_f32 v{TMP+5}, v{TMP+1}, v{TMP+3}
    v_sub_f32 v{TMP+6}, v{TMP}, v{TMP+2}
    v_sub_f32 v{TMP+7}, v{TMP+1}, v{TMP+3}
    v_mul_f32 v{TMP+4}, 0.25, v{TMP+4}
    v_mul_f32 v{TMP+5}, 0.25, v{TMP+5}
    v_mul_f32 v{TMP+6}, 0.25, v{TMP+6}
    v_mul_f32 v{TMP+7}, 0.25, v{TMP+7}
    v_cvt_pk_bf16_f32 v{TMP+4}, v{TMP+4}, v{TMP+5}
    v_cvt_pk_bf16_f32 v{TMP+5}, v{TMP+6}, v{TMP+7}
    s_lshr_b32 s36, s35, 4
    s_lshl_b32 s36, s36, 2
    s_and_b32 s37, s35, 3
    s_add_u32 s36, s36, s37          ; e
    s_and_b32 s38, s36, 1
    s_lshl_b32 s38, s38, 3           ; (e&1)*8
    s_lshr_b32 s36, s36, 1
    s_lshl_b32 s36, s36, 10          ; ep*1024
    s_add_u32 s36, s36, s38
    s_lshr_b32 s37, s35, 2
    s_and_b32 s37, s37, 3
    s_lshl_b32 s37, s37, 8           ; q*16*16
    s_add_u32 s36, s36, s37
    s_add_u32 s36, s36, {OFF_AB}
    v_lshlrev_b32 v{TMP+8}, 12, v{VQ}
    v_lshl_add_u32 v{TMP+8}, v{VM}, 4, v{TMP+8}
    buffer_store_dwordx2 {vr(TMP+4,2)}, v{TMP+8}, s[24:27], s36 offen
    """)
    a.label("k1_B_noab2")
    a("s_waitcnt lgkmcnt(0)")
    for pp in range(2):
        for t in range(2):
            for part in range(2):
                a(f"v_mfma_f32_16x16x32_bf16 {vr(D1+16*pp+8*t+4*part,4)}, {vr(PIN+8*pp+4*t,4)}, {vr(R16+4*part,4)}, 0")
    a("s_nop 4")
    for pp in range(2):
        for t in range(2):
            twiddle(a, D1+16*pp+8*t, D1+16*pp+8*t+4, TWc+4*t, TWs+4*t, PIN+8*pp+4*t, TMP)
    a("s_nop 1")
    for pp in range(2):
        for tp in range(2):
            for part in range(2):
                d=D2+16*pp+8*tp+4*part
                for t in range(2):
                    A=A32+((tp*2+part)*2+t)*4
                    a(f"v_mfma_f32_16x16x32_bf16 {vr(d,4)}, {vr(A,4)}, {vr(PIN+8*pp+4*t,4)}, {'0' if t==0 else vr(d,4)}")
    a(f"""
    v_lshl_add_u32 v{TMP}, v{VQ}, 6, v{VM}         ; m + 64q
    s_mul_i32 s30, s3, {4*XR_STRIDE}
    v_lshl_add_u32 v{TMP+1}, v{TMP}, 3, s30
    v_sub_u32 v{TMP+2}, {256-48}, v{TMP}            ; 256-48-f0
    v_lshl_add_u32 v{TMP+2}, v{TMP+2}, 3, s30
    v_add_u32 v{TMP+3}, 384, v{TMP+2}               ; i=0 address
    v_cmp_eq_u32 vcc, 0, v1
    v_mov_b32 v{TMP+4}, s30
    s_nop 0
    v_cndmask_b32 v{TMP+3}, v{TMP+3}, v{TMP+4}, vcc ; lane0 -> g=0 (Z[256])
    s_nop 1
    """)
    for pp in range(2):
        for i in range(4):
            a(f"ds_write2_b32 v{TMP+1}, v{D2+16*pp+8+i}, v{D2+16*pp+12+i} offset0:{(pp*2048+i*128)//4 if False else i*32} offset1:{i*32+1}" if pp==0 else
              f"ds_write2_b32 v{TMP+5}, v{D2+16*pp+8+i}, v{D2+16*pp+12+i} offset0:{i*32} offset1:{i*32+1}")
        if pp==0: a(f"v_add_u32 v{TMP+5}, 2048, v{TMP+1}")
    a("s_waitcnt lgkmcnt(0)")
    PR=D1
    for pp in range(2):
        a(f"ds_read_b64 {vr(PR+8*pp,2)}, v{TMP+3} offset:{pp*2048}")
        for i in range(1,4):
            a(f"ds_read_b64 {vr(PR+8*pp+2*i,2)}, v{TMP+2} offset:{pp*2048+(3-i)*128}")
    a(f"""
    v_lshrrev_b32 v{TMP+6}, 1, v{VM}               ; (f>>1)&7 = m>>1
    v_xor_b32 v{TMP+6}, s3, v{TMP+6}               ; wave ^ (m>>1)
    v_lshlrev_b32 v{TMP+6}, 4, v{TMP+6}
    v_lshl_add_u32 v{TMP+6}, v{TMP}, 7, v{TMP+6}
    v_add_u32 v{TMP+6}, {B1_MB}, v{TMP+6}
    s_waitcnt lgkmcnt(0)
    """)
    O=TMP+8
    for pp in range(2):
        for i in range(4):
            zr,zi=D2+16*pp+i, D2+16*pp+4+i
            pr,pi=PR+8*pp+2*i, PR+8*pp+2*i+1
            a(f"v_add_f32 v{O}, v{zr}, v{pr}")
            a(f"v_sub_f32 v{O+1}, v{zi}, v{pi}")
            a(f"v_add_f32 v{O+2}, v{zi}, v{pi}")
            a(f"v_sub_f32 v{O+3}, v{pr}, v{zr}")
            if i==0:
                a(f"v_add_f32 v{O+4}, v{zr}, v{zr}")
                a(f"v_add_f32 v{O+5}, v{pr}, v{pr}")
                a(f"v_add_f32 v{O+6}, v{zi}, v{zi}")
                a(f"v_add_f32 v{O+7}, v{pi}, v{pi}")
                for k in range(4): a(f"v_cndmask_b32 v{O+k}, v{O+k}, v{O+4+k}, vcc")
            o2=O+8+2*((pp*4+i)%4)
            a(f"v_cvt_pk_bf16_f32 v{o2}, v{O}, v{O+1}")
            a(f"v_cvt_pk_bf16_f32 v{o2+1}, v{O+2}, v{O+3}")
            a(f"ds_write_b64 v{TMP+6}, {vr(o2,2)} offset:{i*2048+pp*8}")
    a(f"""
    v_bfe_u32 v{TMP}, v1, 2, 2                     ; r4
    v_lshrrev_b32 v{TMP+1}, 1, v{TMP}
    v_mul_u32_u24 v{TMP+1}, {XR_STRIDE}, v{TMP+1}
    v_and_b32 v{TMP+2}, 1, v{TMP}
    v_lshl_add_u32 v{TMP+1}, v{TMP+2}, 9, v{TMP+1}
    v_lshl_add_u32 v{TMP+1}, v{VQ}, 5, v{TMP+1}
    v_and_b32 v{TMP+2}, 3, v1
    v_lshl_add_u32 v{TMP+1}, v{TMP+2}, 3, v{TMP+1} ; + c4*8
    s_mul_i32 s30, s3, {4*XR_STRIDE}
    s_add_u32 s30, s30, {B1_WTL}
    v_add_u32 v{TMP+1}, s30, v{TMP+1}
    """)
    for jj in range(4):
        a(f"ds_read_b64_tr_b16 {vr(D1+4*jj,2)}, v{TMP+1} offset:{jj*128}")
        a(f"ds_read_b64_tr_b16 {vr(D1+4*jj+2,2)}, v{TMP+1} offset:{jj*128+2*XR_STRIDE}")
    a(f"""
    v_and_b32 v{TMP+2}, 7, v1
    v_xor_b32 v{TMP+2}, s3, v{TMP+2}
    v_lshlrev_b32 v{TMP+2}, 4, v{TMP+2}
    v_lshl_add_u32 v{TMP+2}, v1, 7, v{TMP+2}
    v_add_u32 v{TMP+2}, {B1_MBW}, v{TMP+2}
    """)
    for jj in range(4):
        a(f"s_waitcnt lgkmcnt({6-2*jj})")
        a(f"ds_write_b128 v{TMP+2}, {vr(D1+4*jj,4)} offset:{jj*8192}")
    a("""
    s_waitcnt lgkmcnt(0)
    s_barrier
    """)
    a(f"""
    v_lshrrev_b32 v{TMP}, 3, v1
    v_and_b32 v{TMP+1}, 7, v1
    s_lshl_b32 s30, s3, 5
    v_add_u32 v{TMP+2}, s30, v{TMP}                ; f
    v_xor_b32 v{TMP+3}, v{TMP}, v{TMP+1}
    v_lshlrev_b32 v{TMP+3}, 4, v{TMP+3}
    v_lshl_add_u32 v{TMP+3}, v{TMP+2}, 7, v{TMP+3}
    v_add_u32 v{TMP+3}, {B1_MBW}, v{TMP+3}
    v_lshlrev_b32 v{TMP+5}, 13, v{TMP+2}
    v_lshl_add_u32 v{TMP+5}, v{TMP+1}, 4, v{TMP+5} ; f*8192 + c8*16
    s_and_b32 s31, s18, 7
    s_lshr_b32 s32, s31, 1
    s_lshl_b32 s32, s32, 11
    s_and_b32 s31, s31, 1
    s_lshl_b32 s31, s31, 7
    s_add_u32 s32, s32, s31
    s_lshr_b32 s31, s18, 5
    s_lshl_b32 s31, s31, 10
    s_add_u32 s32, s32, s31
    s_lshr_b32 s31, s18, 3
    s_and_b32 s31, s31, 3
    s_lshl_b32 s31, s31, 8
    s_add_u32 s32, s32, s31
    s_add_u32 s32, s32, {OFF_WT}
    """)
    for jj in range(4):
        a(f"ds_read_b128 {vr(D1+4*jj,4)}, v{TMP+3} offset:{jj*1024}")
    for jj in range(4):
        a(f"s_waitcnt lgkmcnt({3-jj})")
        a(f"s_add_u32 s31, s32, {jj*8*8192}")
        a(f"buffer_store_dwordx4 {vr(D1+4*jj,4)}, v{TMP+5}, s[24:27], s31 offen")
    a(f"""
    v_lshrrev_b32 v{TMP}, 3, v1                    ; fl
    v_and_b32 v{TMP+1}, 7, v1                      ; c8
    s_lshl_b32 s30, s3, 5
    v_add_u32 v{TMP+2}, s30, v{TMP}                ; f (jj=0)
    v_lshrrev_b32 v{TMP+3}, 1, v{TMP}
    v_xor_b32 v{TMP+3}, v{TMP+3}, v{TMP+1}
    v_lshlrev_b32 v{TMP+3}, 4, v{TMP+3}
    v_lshl_add_u32 v{TMP+3}, v{TMP+2}, 7, v{TMP+3}
    v_add_u32 v{TMP+3}, {B1_MB}, v{TMP+3}
    v_xor_b32 v{TMP+4}, 64, v{TMP+3}
    v_lshlrev_b32 v{TMP+5}, 13, v{TMP+2}
    v_lshl_add_u32 v{TMP+5}, v{TMP+1}, 4, v{TMP+5} ; f*8192 + c8*16
    s_lshl_b32 s31, s19, 8
    s_lshl_b32 s32, s28, 7
    s_add_u32 s31, s31, s32
    s_add_u32 s31, s31, {OFF_Z}
    """)
    for jj in range(4):
        a(f"ds_read_b128 {vr(D2+4*jj,4)}, v{TMP+3+(jj&1)} offset:{jj*1024}")
    for jj in range(4):
        a(f"s_waitcnt lgkmcnt({3-jj})")
        a(f"s_add_u32 s32, s31, {jj*8*8192}")
        a(f"buffer_store_dwordx4 {vr(D2+4*jj,4)}, v{TMP+5}, s[24:27], s32 offen")
    if asm.STAMP:
        stamp(a,3); a("s_waitcnt vmcnt(0)"); stamp(a,4); stamp_dump(a,0)
    a("s_endpgm")

def build_k1():
    a=Asm()
    k1_prologue(a)
    k1_loader(a)
    k1_compute(a)
    k1_B(a)
    a.label("k1_end")
    a("s_endpgm")
    return a
```

```python
import asm
from asm import *
from layout import *
from k1 import srd, twiddle
import os
VAR=set(os.environ.get("VAR","").split(","))
def opt(name,default):
    for v in VAR:
        if v.startswith(name+"="): return int(v.split("=")[1])
    return default
K2_COL=135168
K2_E=K2_COL+8192
K2_LDS=163840
K2_CNT=163840-64
THRESH2=4096.0/1.03
NB=opt("NB",30)
NA=64-NB
XB=opt("XB",12)

VK,VV,VIDX=2,3,4
Q=[8,12]; S=[16,32]; O=[48,64]
F=[(80,84,88),(92,96,100)]
TMP=104
T64,A32,TW,WT,BUF,D1,P=112,144,176,192,200,232,248
X2=200
CI=[112,128]
VM,VQd=108,109

def expo(a,r): a(f"v_exp_f32 v{r}, v{r}")

def unit(a,tp,qt,fb):
    Sc,Sn=S[qt],S[1-qt]
    def pv(Ob,V,B): a(f"v_smfmac_f32_32x32x32_bf16 {vr(Ob,16)}, {vr(V,4)}, {vr(B,8)}, v{VIDX}")
    def qk(Sd,K,qq): a(f"v_mfma_f32_32x32x16_bf16 {vr(Sd,16)}, {vr(K,4)}, {vr(Q[qq],4)}, {vr(CI[qq],16) if fb else '0'}")
    if qt==0:
        Kc,V0c,V1c=F[tp]; Kn,V0n,V1n=F[1-tp]
        expo(a,Sc); expo(a,Sc+1)
        pv(O[1],V1n,Sn+8)
        a(f"ds_read_b128 {vr(Kn,4)}, v{VK} offset:{(tp+1)*KV_TILE}")
        expo(a,Sc+2)
        a(f"ds_read_b128 {vr(V0n,4)}, v{VV} offset:{(tp+1)*KV_TILE+512}")
        expo(a,Sc+3)
        a(f"ds_read_b128 {vr(V1n,4)}, v{VV} offset:{(tp+1)*KV_TILE+784}")
        expo(a,Sc+4); expo(a,Sc+5)
        qk(Sn,Kc,1)
        for i in range(6,12): expo(a,Sc+i)
        pv(O[0],V0c,Sc)
        for i in range(12,16): expo(a,Sc+i)
    else:
        Kc,V0c,V1c=F[tp]; Kn,V0n,V1n=F[1-tp]
        expo(a,Sc); expo(a,Sc+1)
        pv(O[0],V1c,Sn+8)
        for i in range(2,6): expo(a,Sc+i)
        a("s_waitcnt lgkmcnt(0)")
        qk(Sn,Kn,0)
        for i in range(6,12): expo(a,Sc+i)
        pv(O[1],V0c,Sc)
        for i in range(12,16): expo(a,Sc+i)

def bbar(a,tag):
    a(f"""
    v_mov_b32 v111, {K2_CNT}
    v_mov_b32 v110, 1
    s_waitcnt lgkmcnt(0)
    s_mov_b64 exec, 1
    ds_add_u32 v111, v110
    s_mov_b64 exec, -1
    s_add_u32 s47, s47, 4
    """)
    a.label(f"k2_bbar_{tag}")
    a(f"""
    ds_read_b32 v109, v111
    s_waitcnt lgkmcnt(0)
    v_readfirstlane_b32 s48, v109
    s_nop 0
    s_cmp_lt_u32 s48, s47
    s_cbranch_scc1 k2_bbar_{tag}
    """)

def dma_arrive(a):
    a(f"""
    s_waitcnt vmcnt(0)
    v_mov_b32 v{TMP}, {K2_CNT+4}
    v_mov_b32 v{TMP+1}, 1
    s_mov_b64 exec, 1
    ds_add_u32 v{TMP}, v{TMP+1}
    s_mov_b64 exec, -1
    """)
def dma_wait(a,tag):
    a(f"v_mov_b32 v{TMP}, {K2_CNT+4}")
    a.label(f"k2_dwait_{tag}")
    a(f"""
    ds_read_b32 v{TMP+1}, v{TMP}
    s_waitcnt lgkmcnt(0)
    v_readfirstlane_b32 s48, v{TMP+1}
    s_nop 0
    s_cmp_lt_u32 s48, 8
    s_cbranch_scc1 k2_dwait_{tag}
    """)

def kv_dma(a, ns):
    for n in ns:
        a(f"s_add_u32 m0, s34, {n*1024}")
        a(f"s_add_u32 s36, s35, {n*1024}")
        a(f"buffer_load_dwordx4 v{TMP}, s[20:23], s36 offen lds")

def b2_part1(a):
    dma_arrive(a)
    a(f"""
    v_and_b32 v{VM}, 15, v1
    v_lshrrev_b32 v{VQd}, 4, v1
    v_xor_b32 v104, v{VM}, v{VQd}
    v_lshlrev_b32 v104, 4, v104
    v_lshl_add_u32 v104, v{VM}, 8, v104
    v_add_u32 v104, {K2_COL}, v104
    v_xor_b32 v105, 64, v104
    v_xor_b32 v106, 128, v104
    v_xor_b32 v107, 192, v104
    """)
    for u in range(4):
        for t in range(2):
            a(f"ds_read_b128 {vr(BUF+16*t+4*u,4)}, v{104+u} offset:{t*4096}")
    for u in range(4):
        a(f"s_waitcnt lgkmcnt({6-2*u})")
        for t in range(2):
            for part in range(2):
                d=D1+8*t+4*part
                a(f"v_mfma_f32_16x16x32_bf16 {vr(d,4)}, {vr(BUF+16*t+4*u,4)}, {vr(T64+8*u+4*part,4)}, {'0' if u==0 else vr(d,4)}")
    a("""
    s_cmp_eq_u32 s28, 0
    s_cbranch_scc0 k2_p1_noab
    """)
    a(f"v_lshlrev_b32 v110, 4, v1")
    a(f"s_lshl_b32 s36, s3, 12")
    a(f"s_add_u32 s36, s36, {OFF_AB}")
    for ep in range(4):
        a(f"buffer_load_dwordx4 {vr(216+4*ep,4)}, v110, s[20:23], s36 offen offset:{ep*1024}")
    a.label("k2_p1_noab")
    a("s_nop 6")
    for t in range(2):
        twiddle(a, D1+8*t, D1+8*t+4, TW+4*t, TW+8+4*t, P+4*t, 104)
    a("s_nop 1")
    for t in range(2):
        for tp in range(2):
            for part in range(2):
                d=X2+8*tp+4*part
                a(f"v_mfma_f32_16x16x32_bf16 {vr(d,4)}, {vr(A32+((tp*2+part)*2+t)*4,4)}, {vr(P+4*t,4)}, {'0' if t==0 else vr(d,4)}")

def b2_part2(a):
    a("s_waitcnt vmcnt(0)")
    a("""
    s_cmp_eq_u32 s28, 0
    s_cbranch_scc1 k2_p2_special
    """)
    for tp in range(2):
        xr,xi=X2+8*tp,X2+8*tp+4
        wr,wi=D1+8*tp,D1+8*tp+4
        for i in range(4):
            a(f"v_lshlrev_b32 v{wr+i}, 16, v{WT+4*tp+i}")
            a(f"v_and_b32 v{wi+i}, 0xffff0000, v{WT+4*tp+i}")
        for p in (0,2):
            a(f"v_pk_mul_f32 {vr(104+p,2)}, {vr(xr+p,2)}, {vr(wr+p,2)}")
            a(f"v_pk_mul_f32 {vr(108+p,2)}, {vr(xr+p,2)}, {vr(wi+p,2)}")
        for p in (0,2):
            a(f"v_pk_fma_f32 {vr(104+p,2)}, {vr(xi+p,2)}, {vr(wi+p,2)}, {vr(104+p,2)} neg_lo:[1,0,0] neg_hi:[1,0,0]")
            a(f"v_pk_fma_f32 {vr(108+p,2)}, {vr(xi+p,2)}, {vr(wr+p,2)}, {vr(108+p,2)}")
        for i in range(4): a(f"v_cvt_pk_bf16_f32 v{P+4*tp+i}, v{104+i}, -v{108+i}")
    a.label("k2_p2_common")
    a("s_nop 1")
    for tp in range(2):
        for t in range(2):
            for part in range(2):
                d=D1+8*t+4*part
                a(f"v_mfma_f32_16x16x32_bf16 {vr(d,4)}, {vr(A32+((t*2+part)*2+tp)*4,4)}, {vr(P+4*tp,4)}, {'0' if tp==0 else vr(d,4)}")
    t0=X2
    a(f"""
    v_and_b32 v{t0}, 15, v1                 ; m
    v_lshrrev_b32 v{t0+1}, 4, v1            ; q
    v_lshrrev_b32 v{t0+2}, 2, v{t0}         ; m>>2
    s_lshl_b32 s36, s3, 2
    v_add_u32 v{t0+2}, s36, v{t0+2}         ; 4w + (m>>2)
    v_lshlrev_b32 v{t0+3}, 2, v{t0+1}       ; 4q
    v_xor_b32 v{t0+2}, v{t0+2}, v{t0+3}
    v_lshlrev_b32 v{t0+2}, 4, v{t0+2}
    v_lshl_add_u32 v{t0+2}, v{t0+3}, 8, v{t0+2}
    v_and_b32 v{t0+4}, 3, v{t0}
    v_lshl_add_u32 v{t0+2}, v{t0+4}, 2, v{t0+2}
    v_add_u32 v{t0+8}, {K2_E}, v{t0+2}
    v_xor_b32 v{t0+9}, 16, v{t0+8}
    v_xor_b32 v{t0+10}, 32, v{t0+8}
    v_xor_b32 v{t0+11}, 48, v{t0+8}
    """)
    for t in range(2):
        twiddle(a, D1+8*t, D1+8*t+4, TW+4*t, TW+8+4*t, P+4*t, 104)
    for t in range(2):
        for i in range(4):
            a(f"ds_write_b32 v{t0+8+i}, v{P+4*t+i} offset:{t*4096+i*256}")
    bbar(a,"e")
    a(f"""
    v_and_b32 v{VM}, 15, v1
    v_lshrrev_b32 v{VQd}, 4, v1
    v_xor_b32 v104, v{VM}, v{VQd}
    v_lshlrev_b32 v104, 4, v104
    v_lshl_add_u32 v104, v{VM}, 8, v104
    v_add_u32 v104, {K2_E}, v104
    v_xor_b32 v105, 64, v104
    v_xor_b32 v106, 128, v104
    v_xor_b32 v107, 192, v104
    """)
    for u in range(4):
        for t in range(2):
            a(f"ds_read_b128 {vr(BUF+16*t+4*u,4)}, v{104+u} offset:{t*4096}")
    a(f"""
    v_lshlrev_b32 v110, 8, v{VM}
    v_lshl_add_u32 v110, v{VQd}, 4, v110
    s_lshl_b32 s36, s28, 13
    s_lshl_b32 s37, s3, 6
    s_add_u32 s36, s36, s37
    s_add_u32 s36, s36, {OFF_Y}
    """)
    for u in range(4):
        a(f"s_waitcnt lgkmcnt({6-2*u})")
        for t in range(2):
            for part in range(2):
                d=D1+8*t+4*part
                a(f"v_mfma_f32_16x16x32_bf16 {vr(d,4)}, {vr(T64+8*u+4*part,4)}, {vr(BUF+16*t+4*u,4)}, {'0' if u==0 else vr(d,4)}")
    a("s_nop 7")
    for t in range(2):
        for i in range(4): a(f"v_cvt_pk_bf16_f32 v{P+4*t+i}, v{D1+8*t+i}, -v{D1+8*t+4+i}")
        a(f"buffer_store_dwordx4 {vr(P+4*t,4)}, v110, s[20:23], s36 offen")
        if t==0: a("s_add_u32 s36, s36, 4096")
    dma_wait(a,"b2")
    a("s_setpc_b64 s[60:61]")
    a.label("k2_p2_special")
    bbar(a,"s0")
    XCH=K2_COL
    a(f"""
    v_and_b32 v104, 15, v1
    v_lshrrev_b32 v105, 4, v1
    s_lshl_b32 s36, s3, 4
    v_add_u32 v104, s36, v104                 ; k1
    v_lshl_add_u32 v104, v105, 8, v104         ; g0 = k1 + 64*4q
    v_lshlrev_b32 v106, 3, v104
    v_add_u32 v106, {XCH}, v106
    """)
    for tp in range(2):
        for i in range(4):
            off=(i*64+tp*1024)*8
            a(f"ds_write_b32 v106, v{X2+8*tp+i} offset:{off}")
            a(f"ds_write_b32 v106, v{X2+8*tp+4+i} offset:{off+4}")
    bbar(a,"s1")
    for tp in range(2):
        for i in range(4):
            e=4*tp+i
            a(f"v_sub_u32 v107, {2048-(i*64+tp*1024)}, v104")
            a(f"v_and_b32 v107, 2047, v107")
            a(f"v_lshlrev_b32 v107, 3, v107")
            a(f"v_add_u32 v107, {XCH}, v107")
            a(f"ds_read_b64 {vr(D1+2*e,2)}, v107")
    bbar(a,"s2")
    for tp in range(2):
        for i in range(4):
            e=4*tp+i
            src=216+2*e
            ab=WT
            a(f"v_lshlrev_b32 v{ab}, 16, v{src}")
            a(f"v_and_b32 v{ab+1}, 0xffff0000, v{src}")
            a(f"v_lshlrev_b32 v{ab+2}, 16, v{src+1}")
            a(f"v_and_b32 v{ab+3}, 0xffff0000, v{src+1}")
            zr,zi=X2+8*tp+i,X2+8*tp+4+i
            pr,pi=D1+2*e,D1+2*e+1
            a(f"v_mul_f32 v104, v{zr}, v{ab}")
            a(f"v_mul_f32 v105, v{zr}, v{ab+1}")
            a(f"v_fma_f32 v104, -v{zi}, v{ab+1}, v104")
            a(f"v_fma_f32 v105, v{zi}, v{ab}, v105")
            a(f"v_fma_f32 v104, v{pr}, v{ab+2}, v104")
            a(f"v_fma_f32 v105, v{pr}, v{ab+3}, v105")
            a(f"v_fma_f32 v104, v{pi}, v{ab+3}, v104")
            a(f"v_fma_f32 v105, -v{pi}, v{ab+2}, v105")
            a(f"v_cvt_pk_bf16_f32 v{P+e}, v104, -v105")
    a("s_branch k2_p2_common")


def rounds():
    nA0=NB*KV_TILE//1024
    st1=[0,nA0,8,nA0+8]
    rest=[]
    n=16
    while n<nA0:
        rest.append(min(n,nA0-8) if n+8>nA0 else n); n+=8
    n=nA0+16
    while n<132:
        rest.append(min(n,124)); n+=8
    lo=[r for r in rest if r<nA0]; hi=[r for r in rest if r>=nA0]
    out=[]
    while lo or hi:
        if lo: out.append(lo.pop(0))
        if hi: out.append(hi.pop(0))
    return st1,out

def attn_loop(a,fb):
    sfx="_fb" if fb else ""
    a.label("k2_loop"+sfx)
    if not fb:
        a("""
        s_cmp_eq_u32 s42, s40
        s_cbranch_scc1 k2_hook
        """)
        a.label("k2_hookret")
    unit(a,0,0,fb); unit(a,0,1,fb); unit(a,1,0,fb); unit(a,1,1,fb)
    a(f"""
    v_add_u32 v{VK}, {2*KV_TILE}, v{VK}
    v_add_u32 v{VV}, {2*KV_TILE}, v{VV}
    s_add_u32 s42, s42, 1
    s_cmp_lt_u32 s42, s43
    s_cbranch_scc1 k2_loop{sfx}
    """)

def pipe_prologue(a,fb):
    K,V0,V1=F[0]
    a(f"""
    ds_read_b128 {vr(K,4)}, v{VK}
    ds_read_b128 {vr(V0,4)}, v{VV} offset:512
    ds_read_b128 {vr(V1,4)}, v{VV} offset:784
    s_waitcnt lgkmcnt(2)
    v_mfma_f32_32x32x16_bf16 {vr(S[0],16)}, {vr(K,4)}, {vr(Q[0],4)}, {vr(CI[0],16) if fb else '0'}
    s_mov_b32 s42, 0
    s_waitcnt lgkmcnt(0)
    s_nop 11
    """)

def build_k2():
    a=Asm()
    st1,rest=rounds()
    R=len(rest)
    a(f"""
    s_cmp_ge_u32 s2, 256
    s_cbranch_scc1 k2_end
    s_load_dwordx2 s[16:17], s[0:1], 64      ; ws
    v_and_b32 v1, 63, v0
    v_lshrrev_b32 v{TMP}, 6, v0
    s_nop 0
    v_readfirstlane_b32 s3, v{TMP}
    """)
    stamp(a,0)
    a(f"""
    s_and_b32 s18, s2, 7
    s_lshr_b32 s19, s2, 3
    s_lshl_b32 s29, s18, 2
    s_and_b32 s30, s19, 3
    s_add_u32 s29, s29, s30                  ; hd
    s_lshr_b32 s30, s19, 2                   ; qb
    s_lshl_b32 s28, s18, 5
    s_add_u32 s28, s28, s19                  ; f
    v_lshlrev_b32 v{TMP}, 4, v1              ; lane*16
    s_and_b32 s33, s3, 3                     ; qg
    s_lshl_b32 s31, s30, 3
    s_lshl_b32 s33, s33, 1
    s_add_u32 s31, s31, s33
    s_waitcnt lgkmcnt(0)
    """)
    srd(a,20,16,WS_SIZE)
    a(f"""
    s_lshl_b32 s32, s29, 16
    s_lshl_b32 s33, s31, 10
    s_add_u32 s32, s32, s33
    s_add_u32 s32, s32, {OFF_Q}
    buffer_load_dwordx4 {vr(Q[0],4)}, v{TMP}, s[20:23], s32 offen
    buffer_load_dwordx4 {vr(Q[1],4)}, v{TMP}, s[20:23], s32 offen offset:1024
    v_lshlrev_b32 v{TMP+1}, 2, v1
    s_lshl_b32 s32, s29, 8
    s_add_u32 s32, s32, {OFF_KN}
    buffer_load_dword v{TMP+2}, v{TMP+1}, s[20:23], s32 offen
    v_lshrrev_b32 v{TMP+3}, 4, v1
    s_lshl_b32 s32, s3, 2
    v_add_u32 v{TMP+4}, s32, v{TMP+3}        ; n2
    v_and_b32 v{TMP+5}, 15, v{TMP+4}
    v_and_b32 v{TMP+6}, 15, v1
    v_xor_b32 v{TMP+5}, v{TMP+5}, v{TMP+6}
    v_lshlrev_b32 v{TMP+5}, 4, v{TMP+5}
    v_lshl_add_u32 v{TMP+5}, v{TMP+4}, 8, v{TMP+5}
    s_lshl_b32 s34, s3, 10                   ; wave*1024
    s_mul_i32 s35, s29, {KV_HEAD}
    s_add_u32 s35, s35, s34
    s_add_u32 s35, s35, {OFF_KV}
    """)
    kv_dma(a,st1[:2])
    a(f"""
    s_lshl_b32 s32, s28, 13
    s_add_u32 s32, s32, {OFF_Z}
    s_add_u32 m0, s34, {K2_COL}
    s_nop 0
    buffer_load_dwordx4 v{TMP+5}, s[20:23], s32 offen lds
    """)
    kv_dma(a,st1[2:])
    a("""
    s_cmp_ge_u32 s3, 4
    s_cbranch_scc1 k2_loadA
    """)
    a(f"s_lshl_b32 s36, s3, 13")
    a(f"s_add_u32 s36, s36, {OFF_T64}")
    for k in range(8):
        a(f"buffer_load_dwordx4 {vr(T64+4*k,4)}, v{TMP}, s[20:23], s36 offen offset:{(k%4)*1024}")
        if k==3: a("s_add_u32 s36, s36, 4096")
    a(f"s_lshl_b32 s36, s3, 12")
    a(f"s_add_u32 s36, s36, {OFF_TW}")
    for k in range(4):
        a(f"buffer_load_dwordx4 {vr(TW+4*k,4)}, v{TMP}, s[20:23], s36 offen offset:{k*1024}")
    a(f"s_mov_b32 s36, {OFF_A32}")
    for k in range(8):
        a(f"buffer_load_dwordx4 {vr(A32+4*k,4)}, v{TMP}, s[20:23], s36 offen offset:{(k%4)*1024}")
        if k==3: a("s_add_u32 s36, s36, 4096")
    a(f"""
    s_lshl_b32 s36, s28, 13
    s_lshl_b32 s37, s3, 11
    s_add_u32 s36, s36, s37
    s_add_u32 s36, s36, {OFF_WT}
    buffer_load_dwordx4 {vr(WT,4)}, v{TMP}, s[20:23], s36 offen
    buffer_load_dwordx4 {vr(WT+4,4)}, v{TMP}, s[20:23], s36 offen offset:1024
    """)
    kv_dma(a,rest)
    a(f"""
    s_waitcnt vmcnt({22+R})
    s_branch k2_loaded
    """)
    a.label("k2_loadA")
    kv_dma(a,rest)
    a(f"s_waitcnt vmcnt({R})")
    a.label("k2_loaded")
    for qq in range(2):
        acc=TMP+5+qq
        for k in range(4):
            a(f"v_lshlrev_b32 v{TMP+3}, 16, v{Q[qq]+k}")
            a(f"v_and_b32 v{TMP+4}, 0xffff0000, v{Q[qq]+k}")
            a(f"v_mul_f32 v{acc}, v{TMP+3}, v{TMP+3}" if k==0 else f"v_fmac_f32 v{acc}, v{TMP+3}, v{TMP+3}")
            a(f"v_fmac_f32 v{acc}, v{TMP+4}, v{TMP+4}")
    a(f"""
    s_nop 1
    v_permlane32_swap_b32 v{TMP+5}, v{TMP+6}
    s_nop 1
    v_add_f32 v{TMP+5}, v{TMP+5}, v{TMP+6}
    """)
    for sh in ("row_shr:1","row_shr:2","row_shr:4","row_shr:8"):
        a("s_nop 0")
        a(f"v_max_f32_dpp v{TMP+2}, v{TMP+2}, v{TMP+2} {sh} row_mask:0xf bank_mask:0xf bound_ctrl:0")
        a(f"v_max_f32_dpp v{TMP+5}, v{TMP+5}, v{TMP+5} {sh} row_mask:0xf bank_mask:0xf bound_ctrl:0")
    for sh in ("row_bcast:15 row_mask:0xa","row_bcast:31 row_mask:0xc"):
        a("s_nop 0")
        a(f"v_max_f32_dpp v{TMP+2}, v{TMP+2}, v{TMP+2} {sh} bank_mask:0xf")
        a(f"v_max_f32_dpp v{TMP+5}, v{TMP+5}, v{TMP+5} {sh} bank_mask:0xf")
    a(f"""
    s_nop 0
    v_mul_f32 v{TMP+2}, v{TMP+2}, v{TMP+5}
    s_nop 0
    v_readlane_b32 s38, v{TMP+2}, 63
    v_and_b32 v{TMP+3}, 31, v1
    v_lshrrev_b32 v{TMP+4}, 5, v1
    v_mul_u32_u24 v{TMP+4}, 1056, v{TMP+4}
    v_lshl_add_u32 v{VK}, v{TMP+3}, 4, v{TMP+4}
    s_cmp_lt_u32 s3, 4
    s_cselect_b32 s36, 0, {NB*KV_TILE}
    s_cselect_b32 s43, {NB//2}, {NA//2}       ; iterations
    s_mov_b32 s40, 2
    v_add_u32 v{VK}, s36, v{VK}
    v_cmp_gt_u32 vcc, 17, v{TMP+3}
    v_mov_b32 v{TMP+4}, 0x40000
    v_mov_b32 v{VIDX}, 0xdddd
    v_cndmask_b32 v{VV}, v{TMP+4}, v{VK}, vcc
    """)
    for qq in range(2):
        for i in range(16): a(f"v_mov_b32 v{O[qq]+i}, 0")
    for i in range(8): a(f"v_mov_b32 v{S[1]+8+i}, 0")
    for i in range(4): a(f"v_mov_b32 v{F[1][2]+i}, 0")
    if "nohook" in VAR:
        a("s_waitcnt vmcnt(0)"); a("s_mov_b32 s40, 99")
    a(f"""
    v_mov_b32 v{TMP+3}, {K2_CNT}
    v_mov_b32 v{TMP+4}, 0
    v_mov_b32 v{TMP+5}, 0
    s_mov_b32 s47, 0
    s_cmp_eq_u32 s3, 0
    s_cbranch_scc0 k2_noinit
    ds_write_b64 v{TMP+3}, {vr(TMP+4,2)}
    s_waitcnt lgkmcnt(0)
    """)
    a.label("k2_noinit")
    stamp(a,1)
    a("s_barrier")
    a("""
    s_cmp_lt_u32 s3, 4
    s_cbranch_scc1 k2_prioB
    s_setprio 1
    s_branch k2_priodone
    """)
    a.label("k2_prioB")
    a("s_setprio 2" if "noprio" not in VAR else "s_setprio 0")
    a.label("k2_priodone")
    if "soloA" in VAR:
        a("s_cmp_lt_u32 s3, 4"); a("s_cbranch_scc1 k2_end")
    stamp(a,2)
    a(f"""
    s_cmp_le_u32 s38, {hex(f2u(THRESH2))}
    s_cbranch_scc0 k2_fallback
    """)
    pipe_prologue(a,False)
    attn_loop(a,False)
    a.label("k2_tail")
    stamp(a,6)
    a(f"""
    s_nop 1
    v_smfmac_f32_32x32x32_bf16 {vr(O[1],16)}, {vr(F[1][2],4)}, {vr(S[1]+8,8)}, v{VIDX}
    s_setprio 0
    s_mul_i32 s36, s3, 2304
    s_add_u32 s37, s36, {K2_E+8192-3*2304}
    s_add_u32 s36, s36, {K2_COL}
    s_cmp_lt_u32 s3, 3
    s_cselect_b32 s36, s36, s37
    s_xor_b32 s44, s3, 4
    s_mul_i32 s45, s44, 2304
    s_add_u32 s46, s45, {K2_E+8192-3*2304}
    s_add_u32 s45, s45, {K2_COL}
    s_cmp_lt_u32 s44, 3
    s_cselect_b32 s45, s45, s46
    v_lshlrev_b32 v{TMP}, 4, v1
    v_lshlrev_b32 v{TMP+1}, 2, v1
    v_add_u32 v{TMP+2}, s36, v{TMP}
    v_add_u32 v{TMP+3}, s36, v{TMP+1}
    v_add_u32 v{TMP+4}, s45, v{TMP}
    v_add_u32 v{TMP+5}, s45, v{TMP+1}
    s_cmp_lt_u32 s3, 4
    s_cbranch_scc1 k2_tailB
    """)
    a(f"""
    s_nop 9
    ds_write_b128 v{TMP+2}, {vr(O[0],4)}
    ds_write_b128 v{TMP+2}, {vr(O[0]+4,4)} offset:1024
    ds_write_b32 v{TMP+3}, v{O[0]+8} offset:2048
    s_nop 7
    """)
    for i in range(9): a(f"v_mov_b32 v{O[0]+i}, v{O[1]+i}")
    a("""
    s_add_u32 s31, s31, 1
    s_branch k2_tail2
    """)
    a.label("k2_tailB")
    a(f"""
    s_nop 15
    s_nop 3
    ds_write_b128 v{TMP+2}, {vr(O[1],4)}
    ds_write_b128 v{TMP+2}, {vr(O[1]+4,4)} offset:1024
    ds_write_b32 v{TMP+3}, v{O[1]+8} offset:2048
    """)
    a.label("k2_tail2")
    a(f"""
    s_waitcnt lgkmcnt(0)
    {"" if "soloA" in VAR else "s_barrier"}
    ds_read_b128 {vr(S[0],4)}, v{TMP+4}
    ds_read_b128 {vr(S[0]+4,4)}, v{TMP+4} offset:1024
    ds_read_b32 v{S[0]+8}, v{TMP+5} offset:2048
    s_lshl_b32 s36, s31, 5
    s_add_u32 s36, s36, s29
    s_lshl_b32 s36, s36, 10
    s_add_u32 s36, s36, {OFF_O}
    s_waitcnt lgkmcnt(0)
    """)
    for i in range(9): a(f"v_add_f32 v{O[0]+i}, v{O[0]+i}, v{S[0]+i}")
    a(f"""
    v_mov_b32 v{TMP+1}, v{O[0]+8}
    v_mov_b32 v{TMP+2}, v{O[0]+8}
    s_nop 1
    v_permlane32_swap_b32 v{TMP+1}, v{TMP+2}
    s_nop 1
    v_rcp_f32 v{TMP+1}, v{TMP+1}
    s_nop 0
    """)
    for i in range(8): a(f"v_mul_f32 v{O[0]+i}, v{O[0]+i}, v{TMP+1}")
    for i in range(4): a(f"v_cvt_pk_bf16_f32 v{TMP+4+i}, v{O[0]+2*i}, v{O[0]+2*i+1}")
    a(f"buffer_store_dwordx4 {vr(TMP+4,4)}, v{TMP}, s[20:23], s36 offen")
    if asm.STAMP:
        a("s_waitcnt vmcnt(0)"); stamp(a,8); stamp_dump(a,1)
    a("s_endpgm")
    a.label("k2_hook")
    a("""
    s_cmp_lt_u32 s3, 4
    s_cbranch_scc0 k2_hookA
    s_cmp_eq_u32 s40, 2
    s_cbranch_scc0 k2_hookB2
    """)
    stamp(a,3)
    a("s_call_b64 s[60:61], k2_b2")
    a(f"s_mov_b32 s40, {XB}")
    stamp(a,4)
    a("s_branch k2_hookret")
    a.label("k2_hookB2")
    a("""
    s_setprio 0
    s_mov_b32 s40, 99
    s_branch k2_hookret
    """)
    a.label("k2_hookA")
    a("""
    s_cmp_eq_u32 s40, 2
    s_cbranch_scc0 k2_hookA_2
    """)
    stamp(a,3)
    dma_arrive(a)
    a("""
    s_mov_b32 s40, 3
    s_branch k2_hookret
    """)
    a.label("k2_hookA_2")
    dma_wait(a,"a")
    a("s_mov_b32 s40, 99")
    stamp(a,4)
    a("s_branch k2_hookret")
    a.label("k2_fallback")
    a("""
    s_cmp_lt_u32 s3, 4
    s_cbranch_scc0 k2_fbA
    s_call_b64 s[60:61], k2_b2
    s_branch k2_fb_pre
    """)
    a.label("k2_fbA")
    dma_arrive(a)
    dma_wait(a,"fb")
    a.label("k2_fb_pre")
    a(f"""
    v_mov_b32 v{TMP+1}, 0xff800000
    v_mov_b32 v{TMP+2}, 0xff800000
    v_and_b32 v{TMP+3}, 31, v1
    v_lshrrev_b32 v{TMP+4}, 5, v1
    v_mul_u32_u24 v{TMP+4}, 1056, v{TMP+4}
    v_lshl_add_u32 v{TMP+3}, v{TMP+3}, 4, v{TMP+4}
    s_mov_b32 s42, 64
    """)
    a.label("k2_fb_max")
    a(f"""
    ds_read_b128 {vr(F[0][0],4)}, v{TMP+3}
    v_add_u32 v{TMP+3}, {KV_TILE}, v{TMP+3}
    s_waitcnt lgkmcnt(0)
    v_mfma_f32_32x32x16_bf16 {vr(S[0],16)}, {vr(F[0][0],4)}, {vr(Q[0],4)}, 0
    v_mfma_f32_32x32x16_bf16 {vr(CI[0],16)}, {vr(F[0][0],4)}, {vr(Q[1],4)}, 0
    s_nop 15
    """)
    for i in range(0,16,2): a(f"v_max3_f32 v{TMP+1}, v{S[0]+i}, v{S[0]+i+1}, v{TMP+1}")
    for i in range(0,16,2): a(f"v_max3_f32 v{TMP+2}, v{CI[0]+i}, v{CI[0]+i+1}, v{TMP+2}")
    a(f"""
    s_sub_u32 s42, s42, 1
    s_cmp_lg_u32 s42, 0
    s_cbranch_scc1 k2_fb_max
    v_mov_b32 v{TMP+3}, v{TMP+1}
    v_mov_b32 v{TMP+4}, v{TMP+2}
    s_nop 1
    v_permlane32_swap_b32 v{TMP+1}, v{TMP+3}
    v_permlane32_swap_b32 v{TMP+2}, v{TMP+4}
    s_nop 1
    v_max_f32 v{TMP+1}, v{TMP+1}, v{TMP+3}
    v_max_f32 v{TMP+2}, v{TMP+2}, v{TMP+4}
    """)
    for qq in range(2):
        for i in range(16): a(f"v_sub_f32 v{CI[qq]+i}, 0, v{TMP+1+qq}")
    a("s_nop 1")
    pipe_prologue(a,True)
    attn_loop(a,True)
    a("s_branch k2_tail")
    a.label("k2_b2")
    b2_part1(a)
    b2_part2(a)
    a.label("k2_end")
    a("s_endpgm")
    return a
```

```python
import asm
from asm import *
from layout import *
from k1 import srd, twiddle, gen_consts
K3_PSTR=17408
K3_S=4*K3_PSTR
K3_LDS=98304

def build_k3():
    a=Asm()
    a(f"""
    s_cmp_ge_u32 s2, 256
    s_cbranch_scc1 k3_end
    s_load_dwordx2 s[12:13], s[0:1], 48      ; out
    s_load_dwordx2 s[16:17], s[0:1], 64      ; ws
    v_and_b32 v1, 63, v0
    v_lshrrev_b32 v2, 6, v0
    s_nop 0
    v_readfirstlane_b32 s3, v2
    """)
    stamp(a,0)
    a(f"""
    s_and_b32 s18, s2, 7
    s_lshr_b32 s19, s2, 3
    v_lshlrev_b32 v2, 4, v1                  ; lane*16
    s_cmp_ge_u32 s3, 4
    s_cbranch_scc1 k3_B
    s_lshl_b32 s28, s18, 2
    s_and_b32 s29, s19, 3
    s_add_u32 s28, s28, s29                  ; rt
    s_lshr_b32 s29, s19, 2                   ; ct
    s_lshl_b32 s30, s28, 16
    s_lshl_b32 s31, s3, 13
    s_add_u32 s30, s30, s31
    s_add_u32 s30, s30, {OFF_O}
    s_lshl_b32 s32, s29, 16
    s_add_u32 s32, s32, s31
    s_add_u32 s32, s32, {OFF_WOF}
    s_waitcnt lgkmcnt(0)
    """)
    srd(a,20,16,WS_SIZE)
    L=128
    for hh in range(8):
        b=L+16*hh
        a(f"s_add_u32 s33, s32, {hh*1024}")
        a(f"buffer_load_dwordx4 {vr(b,4)}, v2, s[20:23], s33 offen")
        a(f"s_add_u32 s34, s30, {hh*1024}")
        a(f"buffer_load_dwordx4 {vr(b+8,4)}, v2, s[20:23], s34 offen")
        a(f"s_add_u32 s33, s33, 32768")
        a(f"buffer_load_dwordx4 {vr(b+4,4)}, v2, s[20:23], s33 offen")
        a(f"s_add_u32 s34, s34, 32768")
        a(f"buffer_load_dwordx4 {vr(b+12,4)}, v2, s[20:23], s34 offen")
    a(f"""
    v_and_b32 v3, 31, v1
    v_lshrrev_b32 v4, 5, v1
    v_mul_u32_u24 v3, 272, v3
    v_lshl_add_u32 v3, v4, 4, v3
    s_mul_i32 s33, s3, {K3_PSTR}
    v_add_u32 v3, s33, v3
    v_lshrrev_b32 v4, 3, v1                  ; rl
    v_and_b32 v5, 7, v1                      ; c
    s_lshl_b32 s33, s3, 4
    v_add_u32 v6, s33, v4
    v_mul_u32_u24 v7, 272, v6
    v_lshl_add_u32 v7, v5, 5, v7
    s_lshl_b32 s33, s28, 6
    v_add_u32 v6, s33, v6
    v_lshlrev_b32 v6, 11, v6
    v_lshl_add_u32 v6, v5, 4, v6
    s_lshl_b32 s35, s29, 7
    """)
    srd(a,24,12,2048*1024*2)
    a("s_barrier")
    stamp(a,1)
    ACC=64
    for hh in range(8):
        b=L+16*hh
        a(f"s_waitcnt vmcnt({4*(7-hh)})")
        for nl in range(2):
            for st in range(2):
                acc=ACC+(nl*2+st)*16
                a(f"v_mfma_f32_32x32x16_bf16 {vr(acc,16)}, {vr(b+4*nl,4)}, {vr(b+8+4*st,4)}, {'0' if hh==0 else vr(acc,16)}")
    stamp(a,2)
    a("s_nop 7")
    for q in range(4):
        nl,st=q>>1,q&1
        if q==2: a("s_nop 3")
        for jj in range(4):
            a(f"ds_write_b128 v3, {vr(ACC+q*16+4*jj,4)} offset:{st*32*272+(32*nl+8*jj)*4}")
    a("""
    s_waitcnt lgkmcnt(0)
    s_barrier
    """)
    stamp(a,3)
    R=128
    for e in range(2):
        for w in range(4):
            for hf in range(2):
                a(f"ds_read_b128 {vr(R+32*e+8*w+4*hf,4)}, v7 offset:{w*K3_PSTR+e*8*272+hf*16}")
    for e in range(2):
        a(f"s_waitcnt lgkmcnt({8*(1-e)})")
        b=R+32*e
        for k in range(8):
            a(f"v_add_f32 v{b+k}, v{b+k}, v{b+8+k}")
            a(f"v_add_f32 v{b+16+k}, v{b+16+k}, v{b+24+k}")
        for k in range(8): a(f"v_add_f32 v{b+k}, v{b+k}, v{b+16+k}")
        for k in range(4): a(f"v_cvt_pk_bf16_f32 v{8+4*e+k}, v{b+2*k}, v{b+2*k+1}")
        a(f"s_add_u32 s36, s35, {e*8*2048}")
        a(f"buffer_store_dwordx4 {vr(8+4*e,4)}, v6, s[24:27], s36 offen")
    if asm.STAMP:
        a("s_waitcnt vmcnt(0)"); stamp(a,4); stamp_dump(a,2)
    a("s_endpgm")
    a.label("k3_B")
    VM,VQ,VMF,VQF=3,4,5,6
    R16,TWc,TWs,A32=8,16,24,32
    AB=64
    P=80
    D1=88
    D2=104
    TMP=120
    a(f"""
    s_sub_u32 s28, s3, 4                     ; jv
    s_lshr_b32 s29, s19, 3
    s_lshl_b32 s29, s29, 3
    s_add_u32 s29, s29, s18                  ; n2
    s_and_b32 s30, s19, 7                    ; a
    v_lshrrev_b32 v{TMP}, 1, v1
    v_lshlrev_b32 v{TMP}, 13, v{TMP}         ; (l>>1)*8192
    v_and_b32 v{TMP+1}, 1, v1
    v_lshl_add_u32 v{TMP}, v{TMP+1}, 4, v{TMP}
    s_lshl_b32 s31, s29, 8
    s_lshl_b32 s32, s30, 5
    s_add_u32 s31, s31, s32
    s_lshl_b32 s32, s28, 19                  ; jv*2*32*8192
    s_add_u32 s31, s31, s32
    s_add_u32 s31, s31, {OFF_Y}
    s_lshl_b32 s33, s28, 11
    s_waitcnt lgkmcnt(0)
    """)
    srd(a,20,16,WS_SIZE)
    srd(a,24,12,2048*1024*2)
    a(f"""
    s_add_u32 m0, s33, {K3_S}
    s_nop 0
    buffer_load_dwordx4 v{TMP}, s[20:23], s31 offen lds
    s_add_u32 m0, s33, {K3_S+1024}
    s_add_u32 s31, s31, {32*8192}
    buffer_load_dwordx4 v{TMP}, s[20:23], s31 offen lds
    v_and_b32 v{VM}, 15, v1
    v_lshrrev_b32 v{VQ}, 4, v1
    v_cvt_f32_u32 v{VMF}, v{VM}
    v_lshlrev_b32 v{VQF}, 2, v{VQ}
    v_cvt_f32_u32 v{VQF}, v{VQF}
    """)
    gen_consts(a, True, 2.0**-21, R16, TWc, TWs, A32, TMP, VMF, VQF)
    a(f"""
    v_lshl_add_u32 v{TMP}, v{VQ}, 7, v{VM}           ; 128q + m
    v_sub_u32 v{TMP+1}, 512, v{TMP}
    v_cmp_gt_u32 vcc, 32, v1                         ; q<2 <=> lane<32
    v_mov_b32 v{TMP+2}, -1.0
    v_mov_b32 v{TMP+3}, -512
    v_cndmask_b32 v{TMP}, v{TMP+1}, v{TMP}, vcc
    v_cndmask_b32 v7, v{TMP+2}, 1.0, vcc             ; sigma
    v_mov_b32 v{TMP+4}, 512
    v_cndmask_b32 v{TMP+3}, v{TMP+3}, v{TMP+4}, vcc  ; step
    s_lshl_b32 s33, s28, 3
    s_add_u32 s33, s33, {K3_S}
    v_lshl_add_u32 v{TMP}, v{TMP}, 5, s33            ; base
    v_mov_b32 v{TMP+5}, s33
    v_cmp_eq_u32 vcc, 32, v1
    v_add_u32 v{TMP+7}, v{TMP}, v{TMP+3}             ; addr e=1
    s_nop 0
    v_cndmask_b32 v{TMP+6}, v{TMP}, v{TMP+5}, vcc
    s_mov_b64 s[36:37], vcc
    s_waitcnt vmcnt(0)
    s_barrier
    """)
    stamp(a,1)
    a(f"ds_read_b64 {vr(AB,2)}, v{TMP+6}")
    for e in range(1,8):
        i,t=e>>1,e&1
        a(f"ds_read_b64 {vr(AB+2*(4*t+i),2)}, v{TMP+7}")
        if e<7: a(f"v_add_u32 v{TMP+7}, v{TMP+7}, v{TMP+3}")
    a(f"""
    v_cmp_eq_u32 vcc, 0, v1
    s_or_b64 s[38:39], vcc, s[36:37]
    v_cndmask_b32 v{TMP+8}, v7, 0, s[38:39]          ; sigma0
    s_waitcnt lgkmcnt(0)
    """)
    for t in range(2):
        for i in range(4):
            A,B=AB+2*(4*t+i),AB+2*(4*t+i)+1
            ar,ai,br,bi=TMP+10,TMP+11,TMP+12,TMP+13
            a(f"v_lshlrev_b32 v{ar}, 16, v{A}")
            a(f"v_and_b32 v{ai}, 0xffff0000, v{A}")
            a(f"v_lshlrev_b32 v{br}, 16, v{B}")
            a(f"v_and_b32 v{bi}, 0xffff0000, v{B}")
            sg=7
            if t==0 and i==0:
                a(f"v_cndmask_b32 v{ar}, v{ar}, v{ai}, s[36:37]")
                a(f"v_cndmask_b32 v{br}, v{br}, v{bi}, s[36:37]")
                sg=TMP+8
            a(f"v_fma_f32 v{TMP+14}, -v{sg}, v{bi}, v{ar}")
            a(f"v_fma_f32 v{TMP+15}, v{sg}, v{ai}, v{br}")
            a(f"v_cvt_pk_bf16_f32 v{P+4*t+i}, v{TMP+14}, v{TMP+15}")
    a("s_nop 1")
    for t in range(2):
        for part in range(2):
            a(f"v_mfma_f32_16x16x32_bf16 {vr(D1+8*t+4*part,4)}, {vr(P+4*t,4)}, {vr(R16+4*part,4)}, 0")
    a("s_nop 7")
    for t in range(2):
        twiddle(a, D1+8*t, D1+8*t+4, TWc+4*t, TWs+4*t, P+4*t, TMP)
    a("s_nop 1")
    for t in range(2):
        for tp in range(2):
            for part in range(2):
                d=D2+8*tp+4*part
                a(f"v_mfma_f32_16x16x32_bf16 {vr(d,4)}, {vr(P+4*t,4)}, {vr(A32+((tp*2+part)*2+t)*4,4)}, {'0' if t==0 else vr(d,4)}")
    a(f"""
    v_lshlrev_b32 v{TMP}, 5, v{VM}
    v_lshl_add_u32 v{TMP}, v{VQ}, 3, v{TMP}
    s_lshl_b32 s33, s30, 3
    s_lshl_b32 s34, s28, 1
    s_add_u32 s33, s33, s34
    s_lshl_b32 s33, s33, 5
    s_add_u32 s33, s33, s29
    s_lshl_b32 s33, s33, 11
    s_add_u32 s33, s33, 1024
    s_barrier
    """)
    for part in range(2):
        for tp in range(2):
            d=D2+8*tp+4*part
            o=TMP+2+2*(part*2+tp)
            a(f"v_cvt_pk_bf16_f32 v{o}, v{d}, v{d+1}")
            a(f"v_cvt_pk_bf16_f32 v{o+1}, v{d+2}, v{d+3}")
            a(f"s_add_u32 s34, s33, {part*32*2048+tp*512}")
            a(f"buffer_store_dwordx2 {vr(o,2)}, v{TMP}, s[24:27], s34 offen")
    if asm.STAMP:
        a("s_waitcnt vmcnt(0)"); stamp(a,4); stamp_dump(a,2)
    a.label("k3_end")
    a("s_endpgm")
    return a
```

```python
import struct
def f2u(x): return struct.unpack("<I",struct.pack("<f",x))[0]
FUSED=False
F12=False
F23=False
class Asm:
    def __init__(self):
        self.lines=[]
        self.sc_srd=None
    def __call__(self, s):
        for l in s.strip("\n").split("\n"):
            l=l.strip()
            if not l: continue
            if FUSED and self.sc_srd and l.startswith("buffer_") and self.sc_srd in l:
                code,_,cm=l.partition(";")
                code=code.rstrip()
                if code.endswith(" lds"): code=code[:-4]+" sc1 lds"
                else: code+=" sc1"
                l=code
            self.lines.append("    "+l)
    def label(self,name): self.lines.append(name+":")
    def comment(self,s): self.lines.append("    ; "+s)
    def raw(self,s): self.lines.append(s)
    def text(self): return "\n".join(self.lines)+"\n"
def vr(b,n=1): return f"v{b}" if n==1 else f"v[{b}:{b+n-1}]"
def sr(b,n=1): return f"s{b}" if n==1 else f"s[{b}:{b+n-1}]"

STAMP=False
OFF_DBG=0x0F00000
SMAP=None
def stamp(a,k,real=False):
    if not STAMP: return
    if SMAP is not None:
        if k not in SMAP: return
        k=SMAP[k]
    a(f"s_waitcnt lgkmcnt(0)")
    if STAMP==3:
        if k>=8: k=7
        a(f"s_memrealtime s[{70+2*k}:{71+2*k}]")
        a(f"s_memtime s[{86+2*k}:{87+2*k}]")
    else:
        a(f"{'s_memtime' if STAMP==2 else 's_memrealtime'} s[{70+2*k}:{71+2*k}]")
    a(f"s_waitcnt lgkmcnt(0)")
def stamp_dump(a,kid,wsreg=16):
    if not STAMP: return
    a("s_mov_b64 exec, -1")
    a("s_lshl_b32 s68, s2, 3")
    a("s_add_u32 s68, s68, s3")
    a("s_lshl_b32 s68, s68, 7")
    a(f"s_add_u32 s68, s68, {OFF_DBG+kid*0x40000}")
    a(f"s_add_u32 s64, s{wsreg}, s68")
    a(f"s_addc_u32 s65, s{wsreg+1}, 0")
    a("v_mov_b32 v200, 0")
    for k in range(32):
        a(f"v_mov_b32 v201, s{70+k}")
        a(f"global_store_dword v200, v201, s[64:65] offset:{4*k}")
        a("s_nop 1")
    a("s_waitcnt vmcnt(0)")
```

```python
import asm
from asm import *
from layout import *

K1_LDS = 133120

def srd(a, d, base, size):
    a(f"s_mov_b32 s{d}, s{base}")
    a(f"s_and_b32 s{d+1}, s{base+1}, 0xffff")
    a(f"s_mov_b32 s{d+2}, {size}")
    a(f"s_mov_b32 s{d+3}, 0x20000")

def fin(a, restore_exec=False):
    if asm.FUSED:
        if restore_exec: a("s_mov_b64 exec, -1")
        a("s_waitcnt vmcnt(0)")
        a("s_branch ph1_end")
    else: a("s_endpgm")

def k1_prologue(a):
    a("""
    s_cmp_ge_u32 s2, 256
    s_cbranch_scc1 k1_end
    s_load_dwordx4 s[4:7], s[0:1], 0
    s_load_dwordx2 s[8:9], s[0:1], 16
    s_load_dwordx2 s[10:11], s[0:1], 24
    s_load_dwordx4 s[12:15], s[0:1], 32
    s_load_dwordx2 s[16:17], s[0:1], 64
    """)
    if asm.FUSED:
        a("""
        s_load_dwordx4 s[52:55], s[0:1], 48
        """)
    a("""
    v_and_b32 v1, 63, v0
    v_lshrrev_b32 v2, 6, v0
    s_nop 0
    v_readfirstlane_b32 s3, v2
    """)
    if asm.FUSED:
        a("""
        s_or_b32 s57, s2, s3
        s_cmp_eq_u32 s57, 0
        s_cbranch_scc0 kf_nononce
        s_memrealtime s[56:57]
        s_waitcnt lgkmcnt(0)
        s_or_b32 s56, s56, 1
        v_mov_b32 v2, 0
        v_mov_b32 v3, s56
        s_mov_b64 exec, 1
        global_store_dword v2, v3, s[54:55] sc1
        s_mov_b64 exec, -1
        """)
        a.label("kf_nononce")
    stamp(a,0)
    a("""
    s_cmp_ge_u32 s2, 192
    s_cbranch_scc1 k1_B
    s_and_b32 s18, s2, 7
    s_lshr_b32 s19, s2, 3
    s_and_b32 s28, s18, 3
    s_lshl_b32 s28, s28, 2
    s_and_b32 s29, s19, 3
    s_add_u32 s28, s28, s29          ; s28 = rb
    s_lshr_b32 s29, s18, 2
    s_mul_i32 s29, s29, 6
    s_lshr_b32 s30, s19, 2
    s_add_u32 s29, s29, s30          ; s29 = cb
    s_cmp_ge_u32 s3, 4
    s_cbranch_scc0 k1_compute
    """)

def k1_loader(a):
    a.comment("---- loader waves 4..7 ----")
    a("""
    s_sub_u32 s30, s3, 4             ; lw
    v_lshrrev_b32 v2, 3, v1          ; l>>3
    v_lshrrev_b32 v3, 4, v1          ; l>>4
    v_and_b32 v4, 7, v1
    v_xor_b32 v4, v4, v3
    v_lshlrev_b32 v4, 4, v4
    v_lshl_add_u32 v4, v2, 10, v4    ; voffX0
    v_xor_b32 v5, 64, v4             ; voffX1
    v_and_b32 v6, 15, v1
    v_lshlrev_b32 v7, 2, v3
    v_xor_b32 v6, v6, v7
    v_lshlrev_b32 v6, 4, v6
    v_mul_u32_u24 v7, 3072, v3
    v_add_u32 v6, v6, v7             ; voffW
    s_lshl_b32 s31, s28, 17          ; rb*128*1024
    s_lshl_b32 s32, s30, 15          ; lw*32*1024
    s_add_u32 s31, s31, s32          ; sX0
    s_mul_i32 s32, s30, 16*3072
    s_lshl_b32 s33, s29, 8
    s_add_u32 s32, s32, s33          ; sW0
    s_lshl_b32 s33, s30, 12
    s_waitcnt lgkmcnt(0)
    """)
    stamp(a,4)
    srd(a,20,4,2097152); srd(a,24,6,1572864)
    import os
    ROT=int(os.environ.get("K1ROT","1"))
    if ROT:
        a("""
        s_lshr_b32 s35, s19, 2
        s_and_b32 s36, s19, 3
        s_lshl_b32 s36, s36, 1
        s_add_u32 s35, s35, s36
        """)
    else: a("s_mov_b32 s35, 0")
    def issue(c):
        slot=c&3
        a(f"s_add_u32 s36, s35, {c}")
        a("s_and_b32 s36, s36, 7")
        a("s_lshl_b32 s37, s36, 7")
        a("s_add_u32 s37, s37, s31")
        a(f"s_mul_i32 s38, s36, {64*3072}")
        a("s_add_u32 s38, s38, s32")
        for e in range(4):
            a(f"s_add_u32 m0, s33, {slot*32768+e*1024}")
            a(f"s_add_u32 s34, s37, {e*8192}")
            a(f"buffer_load_dwordx4 v{4+(e&1)}, s[20:23], s34 offen lds")
        for e in range(4):
            a(f"s_add_u32 m0, s33, {slot*32768+16384+e*1024}")
            a(f"s_add_u32 s34, s38, {4*e*3072}")
            a(f"buffer_load_dwordx4 v6, s[24:27], s34 offen lds")
    import os
    LA=int(os.environ.get("K1LA","2"))
    issued=-1
    for c in range(min(LA,4)):
        issue(c); issued=c
        if c==0: stamp(a,5)
    stamp(a,6)
    for c in range(8):
        n=8*(issued-c)
        a(f"s_waitcnt vmcnt({n})")
        a("s_barrier")
        if c in (0,3,7): stamp(a,{0:1,3:2,7:3}[c])
        while issued<min(7,c+LA,c+3):
            issued+=1; issue(issued)
    if not asm.FUSED: stamp_dump(a,0)
    fin(a)

def k1_compute(a):
    a.label("k1_compute")
    a.sc_srd="s[20:23]"
    XA,XB,WA,WB=2,6,10,12
    a("""
    s_lshr_b32 s30, s3, 1            ; wm
    s_and_b32 s31, s3, 1             ; wn
    v_and_b32 v14, 31, v1            ; r
    v_lshrrev_b32 v15, 5, v1         ; h
    v_lshrrev_b32 v16, 1, v14
    v_and_b32 v16, 7, v16            ; (r>>1)&7
    v_xor_b32 v16, v16, v15          ; h ^ c
    v_lshlrev_b32 v16, 4, v16
    v_lshl_add_u32 v16, v14, 7, v16  ; r*128 + slot*16
    s_lshl_b32 s32, s30, 13          ; wm*64*128
    v_add_u32 v2, s32, v16
    v_xor_b32 v3, 32, v2
    v_xor_b32 v4, 64, v2
    v_xor_b32 v5, 96, v2
    v_add_u32 v6, 0x10000, v2
    v_add_u32 v7, 0x10000, v3
    v_add_u32 v8, 0x10000, v4
    v_add_u32 v9, 0x10000, v5
    v_and_b32 v16, 15, v1
    v_lshrrev_b32 v16, 2, v16        ; r4
    v_lshl_add_u32 v17, v15, 3, v16  ; 8h + r4
    v_lshlrev_b32 v17, 8, v17        ; *256
    s_lshl_b32 s32, s31, 1
    v_xor_b32 v18, s32, v16          ; nt0 ^ r4
    v_lshl_add_u32 v17, v18, 6, v17
    v_lshrrev_b32 v18, 4, v1
    v_and_b32 v18, 1, v18
    v_lshl_add_u32 v17, v18, 5, v17  ; + cg*32
    v_and_b32 v18, 3, v1
    v_lshl_add_u32 v17, v18, 3, v17  ; + c4*8
    v_add_u32 v10, 16384, v17
    v_xor_b32 v11, 64, v10
    v_add_u32 v12, 0x10000, v10
    v_add_u32 v13, 0x10000, v11
    """)
    for i in range(64): a(f"v_mov_b32 v{64+i}, 0")
    a("s_waitcnt lgkmcnt(0)")
    srd(a,20,16,WS_SIZE)
    a("""
    s_cmp_ge_u32 s29, 8
    s_cbranch_scc1 k1_vloop
    """)
    bufs=[(16,20,24,28),(32,36,40,44)]
    def reads(c,ks,buf):
        slot=c&3
        xa=(XA if slot<2 else XB)+ks; wa=(WA if slot<2 else WB)
        so=(slot&1)*32768
        X0,X1,W0,W1=buf
        a(f"ds_read_b128 {vr(X0,4)}, v{xa} offset:{so}")
        a(f"ds_read_b64_tr_b16 {vr(W0,2)}, v{wa} offset:{so+ks*4096}")
        a(f"ds_read_b64_tr_b16 {vr(W0+2,2)}, v{wa} offset:{so+ks*4096+1024}")
        a(f"ds_read_b128 {vr(X1,4)}, v{xa} offset:{so+4096}")
        a(f"ds_read_b64_tr_b16 {vr(W1,2)}, v{wa+1} offset:{so+ks*4096}")
        a(f"ds_read_b64_tr_b16 {vr(W1+2,2)}, v{wa+1} offset:{so+ks*4096+1024}")
    def loop(vtype):
        a("s_barrier")
        stamp(a,1)
        reads(0,0,bufs[0])
        for c in range(8):
            for ks in range(4):
                j=4*c+ks
                cur=bufs[j&1]; nxt=bufs[(j+1)&1]
                if ks<3:
                    reads(c,ks+1,nxt)
                    a("s_waitcnt lgkmcnt(6)")
                else:
                    a("s_waitcnt lgkmcnt(0)")
                    if c<7:
                        a("s_barrier")
                        reads(c+1,0,nxt)
                X0,X1,W0,W1=cur
                for ntl in range(2):
                    for rt in range(2):
                        acc=64+(ntl*2+rt)*16
                        W=(W0,W1)[ntl]; X=(X0,X1)[rt]
                        if not vtype: a(f"v_mfma_f32_32x32x16_bf16 {vr(acc,16)}, {vr(W,4)}, {vr(X,4)}, {vr(acc,16)}")
                        else:         a(f"v_mfma_f32_32x32x16_bf16 {vr(acc,16)}, {vr(X,4)}, {vr(W,4)}, {vr(acc,16)}")
            if c==3: stamp(a,2)
        stamp(a,3)
    loop(False)
    a("""
    s_and_b32 s33, s29, 3
    s_lshl_b32 s33, s33, 3
    s_lshl_b32 s34, s31, 2
    s_add_u32 s33, s33, s34          ; head0
    s_lshl_b32 s34, s28, 2
    s_lshl_b32 s35, s30, 1
    s_add_u32 s34, s34, s35          ; tile0
    s_cmp_ge_u32 s29, 4
    s_cbranch_scc1 k1_kepi
    """)
    a(f"""
    v_lshlrev_b32 v2, 9, v15
    v_lshl_add_u32 v2, v14, 4, v2    ; h*512 + r*16
    s_lshl_b32 s35, s33, 16
    s_lshl_b32 s36, s34, 10
    s_add_u32 s35, s35, s36
    s_add_u32 s35, s35, {OFF_Q}
    s_mov_b32 s37, {hex(f2u(QSCALE))}
    s_nop 7
    """)
    for ntl in range(2):
        for rt in range(2):
            acc=64+(ntl*2+rt)*16
            for i in range(16): a(f"v_mul_f32 v{acc+i}, s37, v{acc+i}")
            t=16+(ntl*2+rt)*8
            for i in range(8): a(f"v_cvt_pk_bf16_f32 v{t+i}, v{acc+2*i}, v{acc+2*i+1}")
            for hh in range(2):
                a(f"s_add_u32 s36, s35, {(2*ntl+hh)*65536+rt*1024}")
                a(f"buffer_store_dwordx4 {vr(t+4*hh,4)}, v2, s[20:23], s36 offen")
    if asm.STAMP and not asm.FUSED:
        a("s_waitcnt vmcnt(0)"); stamp(a,4); stamp_dump(a,0)
    fin(a)
    a.label("k1_kepi")
    a(f"""
    v_and_b32 v2, 0x13, v14
    v_and_b32 v3, 4, v14
    v_lshl_or_b32 v2, v3, 1, v2
    v_and_b32 v3, 8, v14
    v_lshrrev_b32 v3, 1, v3
    v_or_b32 v2, v2, v3              ; pi(r)
    v_lshlrev_b32 v2, 4, v2
    v_mul_u32_u24 v3, 1056, v15
    v_add_u32 v2, v2, v3             ; h*1056 + pi(r)*16
    s_mul_i32 s35, s33, {KV_HEAD}
    s_mul_i32 s36, s34, {KV_TILE}
    s_add_u32 s35, s35, s36
    s_add_u32 s35, s35, {OFF_KV}
    s_nop 5
    """)
    for ntl in range(2):
        for rt in range(2):
            acc=64+(ntl*2+rt)*16
            t=16+(ntl*2+rt)*8
            for i in range(8): a(f"v_cvt_pk_bf16_f32 v{t+i}, v{acc+2*i}, v{acc+2*i+1}")
            for hh in range(2):
                a(f"s_add_u32 s36, s35, {(2*ntl+hh)*KV_HEAD+rt*KV_TILE}")
                a(f"buffer_store_dwordx4 {vr(t+4*hh,4)}, v2, s[20:23], s36 offen")
    for q in range(4):
        acc=64+q*16
        for hh in range(2):
            a(f"v_mul_f32 v{48+2*q+hh}, v{acc+8*hh}, v{acc+8*hh}")
        for i in range(1,8):
            for hh in range(2):
                a(f"v_fmac_f32 v{48+2*q+hh}, v{acc+8*hh+i}, v{acc+8*hh+i}")
    a("s_nop 1")
    for q in range(4): a(f"v_permlane32_swap_b32 v{48+2*q}, v{49+2*q}")
    a("s_nop 1")
    for q in range(4): a(f"v_add_f32 v{48+2*q}, v{48+2*q}, v{49+2*q}")
    for sh in ("row_shr:1","row_shr:2","row_shr:4","row_shr:8"):
        for q in range(4): a(f"v_max_f32_dpp v{48+2*q}, v{48+2*q}, v{48+2*q} {sh} row_mask:0xf bank_mask:0xf bound_ctrl:0")
    for q in range(4): a(f"v_max_f32_dpp v{48+2*q}, v{48+2*q}, v{48+2*q} row_bcast:15 row_mask:0xa bank_mask:0xf")
    a(f"""
    v_lshlrev_b32 v3, 8, v15
    s_lshl_b32 s35, s33, 8
    s_lshl_b32 s36, s34, 2
    s_add_u32 s35, s35, s36
    s_add_u32 s35, s35, {OFF_KN}
    s_mov_b32 exec_lo, 0x80000000
    s_mov_b32 exec_hi, 0x80000000
    """)
    for ntl in range(2):
        for rt in range(2):
            q=ntl*2+rt
            a(f"s_add_u32 s36, s35, {2*ntl*256+rt*4}")
            a(f"buffer_store_dword v{48+2*q}, v3, s[20:23], s36 offen")
    if asm.STAMP and not asm.FUSED:
        a("s_waitcnt vmcnt(0)"); stamp(a,4); stamp_dump(a,0)
    fin(a,True)
    a.label("k1_vloop")
    loop(True)
    a(f"""
    s_and_b32 s33, s29, 3
    s_lshl_b32 s33, s33, 3
    s_lshl_b32 s34, s31, 2
    s_add_u32 s33, s33, s34          ; head0
    s_lshl_b32 s34, s28, 2
    s_lshl_b32 s35, s30, 1
    s_add_u32 s34, s34, s35          ; tile0
    v_lshrrev_b32 v2, 4, v14         ; n>>4
    s_mov_b32 s36, {KV_HEAD}
    v_mul_lo_u32 v2, v2, s36
    v_mul_u32_u24 v3, 1056, v15
    v_add_u32 v2, v2, v3
    v_and_b32 v3, 15, v14
    v_lshl_add_u32 v2, v3, 4, v2
    s_mul_i32 s35, s33, {KV_HEAD}
    s_mul_i32 s36, s34, {KV_TILE}
    s_add_u32 s35, s35, s36
    s_add_u32 s35, s35, {OFF_KV+512}
    """)
    for ntl in range(2):
        for rt in range(2):
            acc=64+(ntl*2+rt)*16
            t=16+(ntl*2+rt)*8
            for i in range(8): a(f"v_cvt_pk_bf16_f32 v{t+i}, v{acc+2*i}, v{acc+2*i+1}")
            for u in range(2):
                a(f"s_add_u32 s36, s35, {2*ntl*KV_HEAD+rt*KV_TILE+u*272}")
                a(f"buffer_store_dwordx4 {vr(t+4*u,4)}, v2, s[20:23], s36 offen")
    a(f"""
    v_and_b32 v3, 1, v1
    v_mul_u32_u24 v3, 1056, v3
    v_bfe_u32 v4, v1, 1, 1
    v_mul_u32_u24 v4, 272, v4
    v_add_u32 v3, v3, v4
    v_bfe_u32 v4, v1, 2, 1
    v_mul_u32_u24 v4, {KV_TILE}, v4
    v_add_u32 v3, v3, v4
    v_bfe_u32 v4, v1, 3, 2
    s_mov_b32 s36, {KV_HEAD}
    v_mul_lo_u32 v4, v4, s36
    v_add_u32 v3, v3, v4
    v_mov_b32 v4, 0x3f803f80
    v_mov_b32 v5, 0x3f803f80
    v_mov_b32 v6, 0x3f803f80
    v_mov_b32 v7, 0x3f803f80
    s_add_u32 s36, s35, 256
    s_mov_b32 exec_hi, 0
    buffer_store_dwordx4 v[4:7], v3, s[20:23], s36 offen
    """)
    if asm.STAMP and not asm.FUSED:
        a("s_waitcnt vmcnt(0)"); stamp(a,4); stamp_dump(a,0)
    fin(a,True)

def gen_consts(a, inv, scale, R16, TWc, TWs, A32, tmp, vm, vq):
    T=tmp
    a(f"v_mul_f32 v{T}, {hex(f2u(1/16.))}, v{vm}")
    for i in range(4):
        a(f"v_add_f32 v{T+1+i}, {float(i)}, v{vq}" if i else f"v_mov_b32 v{T+1}, v{vq}")
    for i in range(4): a(f"v_mul_f32 v{T+1+i}, v{T+1+i}, v{T}")
    for i in range(4):
        a(f"v_cos_f32 v{T+5+i}, v{T+1+i}")
        a(f"v_sin_f32 v{T+9+i}, v{T+1+i}")
    if scale!=1.0:
        a(f"s_mov_b32 s40, {hex(f2u(scale))}")
        for i in range(8): a(f"v_mul_f32 v{T+5+i}, s40, v{T+5+i}")
    else: a("s_nop 0")
    for i in range(4):
        c,s=T+5+i,T+9+i
        if not inv:
            a(f"v_cvt_pk_bf16_f32 v{R16+i}, v{c}, v{s}")
            a(f"v_cvt_pk_bf16_f32 v{R16+4+i}, -v{s}, v{c}")
        else:
            a(f"v_cvt_pk_bf16_f32 v{R16+i}, v{c}, -v{s}")
            a(f"v_cvt_pk_bf16_f32 v{R16+4+i}, v{s}, v{c}")
    a(f"v_mul_f32 v{T}, {hex(f2u(1/512.))}, v{vm}")
    for t in range(2):
        for i in range(4):
            k=16*t+i
            if k==0: a(f"v_mov_b32 v{T+1}, v{vq}")
            else:
                a(f"v_add_f32 v{T+1+4*t+i}, {hex(f2u(float(k)))}, v{vq}")
    for e in range(8): a(f"v_mul_f32 v{T+1+e}, v{T+1+e}, v{T}")
    for e in range(8):
        a(f"v_cos_f32 v{TWc+e}, v{T+1+e}")
        a(f"v_sin_f32 v{TWs+e}, {'-' if inv else ''}v{T+1+e}")
    gen_a32(a, inv, A32, tmp, vm, vq)

def gen_a32(a, inv, A32, tmp, vm, vq):
    T=tmp
    for t in range(2):
        for i in range(4):
            k=16*t+i
            if k==0: a(f"v_mov_b32 v{T+1}, v{vq}")
            else: a(f"v_add_f32 v{T+1+4*t+i}, {hex(f2u(float(k)))}, v{vq}")
    a(f"v_mul_f32 v{T+9}, {hex(f2u(1/32.))}, v{vm}")
    a(f"v_add_f32 v{T+10}, 0.5, v{T+9}")
    for tp in range(2):
        for e in range(8): a(f"v_mul_f32 v{T+11+e}, v{T+1+e}, v{T+9+tp}")
        for e in range(8):
            a(f"v_cos_f32 v{T+19+e}, v{T+11+e}")
            a(f"v_sin_f32 v{T+11+e}, v{T+11+e}")
        a("s_nop 0")
        for t in range(2):
            for i in range(4):
                e=4*t+i; c,s=T+19+e,T+11+e
                re=A32+((tp*2+0)*2+t)*4+i; im=A32+((tp*2+1)*2+t)*4+i
                if not inv:
                    a(f"v_cvt_pk_bf16_f32 v{re}, v{c}, v{s}")
                    a(f"v_cvt_pk_bf16_f32 v{im}, -v{s}, v{c}")
                else:
                    a(f"v_cvt_pk_bf16_f32 v{re}, v{c}, -v{s}")
                    a(f"v_cvt_pk_bf16_f32 v{im}, v{s}, v{c}")

def twiddle(a, re, im, c, s, out, tmp):
    T,U=tmp,tmp+4
    for p in (0,2):
        a(f"v_pk_mul_f32 {vr(T+p,2)}, {vr(re+p,2)}, {vr(c+p,2)}")
        a(f"v_pk_mul_f32 {vr(U+p,2)}, {vr(im+p,2)}, {vr(c+p,2)}")
    for p in (0,2):
        a(f"v_pk_fma_f32 {vr(T+p,2)}, {vr(im+p,2)}, {vr(s+p,2)}, {vr(T+p,2)}")
        a(f"v_pk_fma_f32 {vr(U+p,2)}, {vr(re+p,2)}, {vr(s+p,2)}, {vr(U+p,2)} neg_lo:[1,0,0] neg_hi:[1,0,0]")
    for i in range(4): a(f"v_cvt_pk_bf16_f32 v{out+i}, v{T+i}, v{U+i}")

XR_STRIDE=1056
B1_MB=33792
B1_WTL=66560
B1_MBW=100352

def k1_B(a):
    a.label("k1_B")
    a.sc_srd="s[24:27]"
    VM,VQ,VMF,VQF=2,3,4,5
    R16,TWc,TWs,A32=8,16,24,32
    PIN=64
    D1=80
    D2=112
    TMP=144
    WOL,WOH=192,196
    ABL=200
    a(f"""
    s_sub_u32 s18, s2, 192           ; b
    s_lshr_b32 s19, s18, 1           ; n2
    s_and_b32 s28, s18, 1            ; hf
    v_and_b32 v{VM}, 15, v1
    v_lshrrev_b32 v{VQ}, 4, v1
    v_lshlrev_b32 v6, 4, v1          ; lane*16
    s_waitcnt lgkmcnt(0)
    """)
    srd(a,20,10,2097152)
    srd(a,24,16,WS_SIZE)
    srd(a,44,8,524288)
    a(f"""
    s_lshl_b32 s29, s28, 5
    s_lshl_b32 s30, s3, 2
    s_add_u32 s29, s29, s30
    s_lshl_b32 s29, s29, 5
    s_add_u32 s29, s29, s19          ; s0
    s_lshl_b32 s29, s29, 10
    s_mul_i32 s30, s3, {4*XR_STRIDE}
    """)
    for e in range(4):
        a(f"s_add_u32 m0, s30, {e*XR_STRIDE}")
        a(f"s_add_u32 s31, s29, {e*32*1024}")
        a(f"buffer_load_dwordx4 v6, s[20:23], s31 offen lds")
    a(f"""
    s_lshl_b32 s32, s18, 3
    s_add_u32 s32, s32, s3           ; idx
    s_lshr_b32 s33, s32, 5
    s_lshl_b32 s33, s33, 6
    s_and_b32 s34, s32, 31
    s_lshl_b32 s34, s34, 14
    s_add_u32 s33, s33, s34
    v_and_b32 v7, 31, v1
    v_lshlrev_b32 v7, 1, v7
    v_lshrrev_b32 v{TMP}, 5, v1
    v_lshl_add_u32 v7, v{TMP}, 12, v7    ; h*4 rows*1024 + n*2
    """)
    for j8 in range(8):
        d=8*(j8>>2)+(j8&3)
        a(f"s_add_u32 s34, s33, {d*1024}")
        dst=(WOL if j8%2==0 else WOH)+j8//2
        a(f"buffer_load_ushort v{dst}, v7, s[44:47], s34 offen")
    a(f"""
    s_and_b32 s35, s18, 7
    s_lshl_b32 s35, s35, 3
    s_add_u32 s35, s35, s3
    s_lshr_b32 s36, s18, 3
    s_and_b32 s37, s36, 3            ; q
    s_lshr_b32 s36, s36, 2           ; tp
    s_lshl_b32 s36, s36, 2
    s_add_u32 s36, s36, s37          ; 4tp+q
    s_lshl_b32 s36, s36, 8           ; *4*64
    s_add_u32 s35, s35, s36          ; g(i=0)
    s_mul_i32 s35, s35, 514
    v_and_b32 v{TMP}, 31, v1
    v_lshlrev_b32 v{TMP}, 4, v{TMP}
    v_add_u32 v{TMP}, s35, v{TMP}
    v_cmp_gt_u32 vcc, 32, v1
    v_mov_b32 v{TMP+2}, s14
    v_mov_b32 v{TMP+3}, s15
    v_mov_b32 v{TMP+4}, s12
    v_mov_b32 v{TMP+5}, s13
    v_cndmask_b32 v{TMP+2}, v{TMP+2}, v{TMP+4}, vcc
    v_cndmask_b32 v{TMP+3}, v{TMP+3}, v{TMP+5}, vcc
    v_add_co_u32 v{TMP+2}, vcc, v{TMP+2}, v{TMP}
    s_mul_i32 s36, s3, {4*XR_STRIDE}
    s_nop 0
    v_addc_co_u32 v{TMP+3}, vcc, 0, v{TMP+3}, vcc
    """)
    for i in range(4):
        a(f"s_add_u32 m0, s36, {B1_WTL+i*XR_STRIDE}")
        a("s_nop 0")
        a(f"global_load_lds_dwordx4 {vr(TMP+2,2)}, off")
        if i<3:
            a(f"v_add_co_u32 v{TMP+2}, vcc, {64*514}, v{TMP+2}")
            a("s_nop 1")
            a(f"v_addc_co_u32 v{TMP+3}, vcc, 0, v{TMP+3}, vcc")
    a(f"""
    s_sub_u32 s35, s18, 32
    s_cmp_lt_u32 s35, 32
    s_cselect_b32 s39, 1, 0
    s_cmp_eq_u32 s3, 7
    s_cselect_b32 s39, s39, 0
    s_cmp_eq_u32 s39, 1
    s_cbranch_scc0 k1_B_noab
    s_lshl_b32 s36, s35, 6
    v_add_u32 v{TMP}, s36, v1        ; g
    v_sub_u32 v{TMP+1}, 2048, v{TMP}
    v_and_b32 v{TMP+1}, 2047, v{TMP+1}   ; -g
    v_mul_u32_u24 v{TMP}, 514, v{TMP}
    v_mul_u32_u24 v{TMP+1}, 514, v{TMP+1}
    """)
    srd(a,48,12,2048*257*2); srd(a,40,14,2048*257*2)
    for k,(arr,val,off) in enumerate([(48,TMP,0),(40,TMP,0),(48,TMP+1,0),(40,TMP+1,0),(48,TMP,512),(40,TMP,512),(48,TMP+1,512),(40,TMP+1,512)]):
        a(f"buffer_load_ushort v{ABL+k}, v{val}, s[{arr}:{arr+3}], 0 offen offset:{off}")
    a.label("k1_B_noab")
    a(f"""
    v_cvt_f32_u32 v{VMF}, v{VM}
    v_lshlrev_b32 v{VQF}, 2, v{VQ}
    v_cvt_f32_u32 v{VQF}, v{VQF}
    """)
    gen_consts(a, False, 1.0, R16, TWc, TWs, A32, TMP, VMF, VQF)
    a(f"""
    s_cmp_lt_u32 s18, 2
    s_cbranch_scc0 k1_B_not64
    s_lshl_b32 s36, s18, 3
    s_add_u32 s36, s36, s3           ; unit
    s_lshr_b32 s37, s36, 2           ; w
    s_and_b32 s38, s36, 3            ; u
    s_lshl_b32 s37, s37, 4
    s_lshl_b32 s38, s38, 4
    v_add_u32 v{TMP}, s37, v{VM}
    v_cvt_f32_u32 v{TMP}, v{TMP}
    v_mul_f32 v{TMP}, {hex(f2u(1/64.))}, v{TMP}
    v_cvt_f32_u32 v{TMP+1}, s38
    v_add_f32 v{TMP+1}, v{TMP+1}, v{VQF}
    v_add_f32 v{TMP+2}, 1.0, v{TMP+1}
    v_add_f32 v{TMP+3}, 2.0, v{TMP+1}
    v_add_f32 v{TMP+4}, 1.0, v{TMP+3}
    """)
    for i in range(4): a(f"v_mul_f32 v{TMP+1+i}, v{TMP+1+i}, v{TMP}")
    for i in range(4):
        a(f"v_cos_f32 v{TMP+5+i}, v{TMP+1+i}")
        a(f"v_sin_f32 v{TMP+9+i}, v{TMP+1+i}")
    a("s_nop 0")
    for i in range(4):
        a(f"v_cvt_pk_bf16_f32 v{TMP+16+i}, v{TMP+5+i}, v{TMP+9+i}")
        a(f"v_cvt_pk_bf16_f32 v{TMP+20+i}, -v{TMP+9+i}, v{TMP+5+i}")
    a(f"""
    s_lshl_b32 s36, s36, 11
    s_add_u32 s36, s36, {OFF_T64}
    buffer_store_dwordx4 {vr(TMP+16,4)}, v6, s[24:27], s36 offen
    buffer_store_dwordx4 {vr(TMP+20,4)}, v6, s[24:27], s36 offen offset:1024
    """)
    a.label("k1_B_not64")
    a(f"""
    s_cmp_eq_u32 s18, 2
    s_cbranch_scc0 k1_B_notw
    s_cmp_lt_u32 s3, 4
    s_cbranch_scc0 k1_B_a32
    s_lshl_b32 s37, s3, 4
    v_add_u32 v{TMP}, s37, v{VM}
    v_cvt_f32_u32 v{TMP}, v{TMP}
    v_mul_f32 v{TMP}, {hex(f2u(1/2048.))}, v{TMP}
    """)
    for t in range(2):
        for i in range(4):
            k=16*t+i
            if k==0: a(f"v_mov_b32 v{TMP+1}, v{VQF}")
            else: a(f"v_add_f32 v{TMP+1+4*t+i}, {hex(f2u(float(k)))}, v{VQF}")
    for e in range(8): a(f"v_mul_f32 v{TMP+1+e}, v{TMP+1+e}, v{TMP}")
    for e in range(8):
        a(f"v_cos_f32 v{TMP+16+e}, v{TMP+1+e}")
        a(f"v_sin_f32 v{TMP+24+e}, v{TMP+1+e}")
    a(f"""
    s_lshl_b32 s36, s3, 12
    s_add_u32 s36, s36, {OFF_TW}
    buffer_store_dwordx4 {vr(TMP+16,4)}, v6, s[24:27], s36 offen
    buffer_store_dwordx4 {vr(TMP+20,4)}, v6, s[24:27], s36 offen offset:1024
    buffer_store_dwordx4 {vr(TMP+24,4)}, v6, s[24:27], s36 offen offset:2048
    buffer_store_dwordx4 {vr(TMP+28,4)}, v6, s[24:27], s36 offen offset:3072
    s_branch k1_B_notw
    """)
    a.label("k1_B_a32")
    a("""
    s_cmp_eq_u32 s3, 4
    s_cbranch_scc0 k1_B_notw
    """)
    for blk in range(8):
        a(f"s_mov_b32 s36, {OFF_A32+blk*1024}")
        a(f"buffer_store_dwordx4 {vr(A32+4*blk,4)}, v6, s[24:27], s36 offen")
    a.label("k1_B_notw")
    a(f"""
    v_bfe_u32 v{TMP}, v1, 2, 2       ; r4
    v_and_b32 v{TMP+1}, 1, v{TMP}
    v_mul_u32_u24 v{TMP+1}, {XR_STRIDE}, v{TMP+1}
    v_lshrrev_b32 v{TMP+2}, 1, v{TMP}
    v_lshl_add_u32 v{TMP+2}, v{VQ}, 2, v{TMP+2}    ; 4q + (r4>>1)
    v_lshl_add_u32 v{TMP+1}, v{TMP+2}, 6, v{TMP+1}
    v_and_b32 v{TMP+2}, 3, v1
    v_lshl_add_u32 v{TMP+1}, v{TMP+2}, 3, v{TMP+1}
    s_mul_i32 s30, s3, {4*XR_STRIDE}
    v_add_u32 v7, s30, v{TMP+1}
    """)
    stamp(a,1)
    a("s_waitcnt vmcnt(0)")
    stamp(a,2)
    for pp in range(2):
        for t in range(2):
            a(f"ds_read_b64_tr_b16 {vr(PIN+8*pp+4*t,2)}, v7 offset:{pp*2*XR_STRIDE+t*32}")
            a(f"ds_read_b64_tr_b16 {vr(PIN+8*pp+4*t+2,2)}, v7 offset:{pp*2*XR_STRIDE+t*32+128}")
    for j in range(4): a(f"v_lshl_or_b32 v{WOL+j}, v{WOH+j}, 16, v{WOL+j}")
    a(f"""
    s_lshl_b32 s32, s32, 10
    s_add_u32 s32, s32, {OFF_WOF}
    buffer_store_dwordx4 {vr(WOL,4)}, v6, s[24:27], s32 offen
    """)
    a(f"""
    s_cmp_eq_u32 s39, 1
    s_cbranch_scc0 k1_B_noab2
    """)
    for k in range(8): a(f"v_lshlrev_b32 v{ABL+k}, 16, v{ABL+k}")
    a(f"""
    v_add_f32 v{TMP}, v{ABL}, v{ABL+2}        ; 2*Wh0.re
    v_sub_f32 v{TMP+1}, v{ABL+1}, v{ABL+3}    ; 2*Wh0.im
    v_add_f32 v{TMP+2}, v{ABL+4}, v{ABL+6}    ; 2*Wh256.re
    v_sub_f32 v{TMP+3}, v{ABL+5}, v{ABL+7}    ; 2*Wh256.im
    v_add_f32 v{TMP+4}, v{TMP}, v{TMP+2}
    v_add_f32 v{TMP+5}, v{TMP+1}, v{TMP+3}
    v_sub_f32 v{TMP+6}, v{TMP}, v{TMP+2}
    v_sub_f32 v{TMP+7}, v{TMP+1}, v{TMP+3}
    v_mul_f32 v{TMP+4}, 0.25, v{TMP+4}
    v_mul_f32 v{TMP+5}, 0.25, v{TMP+5}
    v_mul_f32 v{TMP+6}, 0.25, v{TMP+6}
    v_mul_f32 v{TMP+7}, 0.25, v{TMP+7}
    v_cvt_pk_bf16_f32 v{TMP+4}, v{TMP+4}, v{TMP+5}
    v_cvt_pk_bf16_f32 v{TMP+5}, v{TMP+6}, v{TMP+7}
    s_lshr_b32 s36, s35, 4
    s_lshl_b32 s36, s36, 2
    s_and_b32 s37, s35, 3
    s_add_u32 s36, s36, s37          ; e
    s_and_b32 s38, s36, 1
    s_lshl_b32 s38, s38, 3           ; (e&1)*8
    s_lshr_b32 s36, s36, 1
    s_lshl_b32 s36, s36, 10          ; ep*1024
    s_add_u32 s36, s36, s38
    s_lshr_b32 s37, s35, 2
    s_and_b32 s37, s37, 3
    s_lshl_b32 s37, s37, 8           ; q*16*16
    s_add_u32 s36, s36, s37
    s_add_u32 s36, s36, {OFF_AB}
    v_lshlrev_b32 v{TMP+8}, 12, v{VQ}
    v_lshl_add_u32 v{TMP+8}, v{VM}, 4, v{TMP+8}
    buffer_store_dwordx2 {vr(TMP+4,2)}, v{TMP+8}, s[24:27], s36 offen
    """)
    a.label("k1_B_noab2")
    a("s_waitcnt lgkmcnt(0)")
    for pp in range(2):
        for t in range(2):
            for part in range(2):
                a(f"v_mfma_f32_16x16x32_bf16 {vr(D1+16*pp+8*t+4*part,4)}, {vr(PIN+8*pp+4*t,4)}, {vr(R16+4*part,4)}, 0")
    a("s_nop 4")
    for pp in range(2):
        for t in range(2):
            twiddle(a, D1+16*pp+8*t, D1+16*pp+8*t+4, TWc+4*t, TWs+4*t, PIN+8*pp+4*t, TMP)
    a("s_nop 1")
    for pp in range(2):
        for tp in range(2):
            for part in range(2):
                d=D2+16*pp+8*tp+4*part
                for t in range(2):
                    A=A32+((tp*2+part)*2+t)*4
                    a(f"v_mfma_f32_16x16x32_bf16 {vr(d,4)}, {vr(A,4)}, {vr(PIN+8*pp+4*t,4)}, {'0' if t==0 else vr(d,4)}")
    a(f"""
    v_lshl_add_u32 v{TMP}, v{VQ}, 6, v{VM}         ; m + 64q
    s_mul_i32 s30, s3, {4*XR_STRIDE}
    v_lshl_add_u32 v{TMP+1}, v{TMP}, 3, s30
    v_sub_u32 v{TMP+2}, {256-48}, v{TMP}            ; 256-48-f0
    v_lshl_add_u32 v{TMP+2}, v{TMP+2}, 3, s30
    v_add_u32 v{TMP+3}, 384, v{TMP+2}               ; i=0 address
    v_cmp_eq_u32 vcc, 0, v1
    v_mov_b32 v{TMP+4}, s30
    s_nop 0
    v_cndmask_b32 v{TMP+3}, v{TMP+3}, v{TMP+4}, vcc ; lane0 -> g=0 (Z[256])
    s_nop 1
    """)
    for pp in range(2):
        for i in range(4):
            a(f"ds_write2_b32 v{TMP+1}, v{D2+16*pp+8+i}, v{D2+16*pp+12+i} offset0:{(pp*2048+i*128)//4 if False else i*32} offset1:{i*32+1}" if pp==0 else
              f"ds_write2_b32 v{TMP+5}, v{D2+16*pp+8+i}, v{D2+16*pp+12+i} offset0:{i*32} offset1:{i*32+1}")
        if pp==0: a(f"v_add_u32 v{TMP+5}, 2048, v{TMP+1}")
    a("s_waitcnt lgkmcnt(0)")
    PR=D1
    for pp in range(2):
        a(f"ds_read_b64 {vr(PR+8*pp,2)}, v{TMP+3} offset:{pp*2048}")
        for i in range(1,4):
            a(f"ds_read_b64 {vr(PR+8*pp+2*i,2)}, v{TMP+2} offset:{pp*2048+(3-i)*128}")
    a(f"""
    v_lshrrev_b32 v{TMP+6}, 1, v{VM}               ; (f>>1)&7 = m>>1
    v_xor_b32 v{TMP+6}, s3, v{TMP+6}               ; wave ^ (m>>1)
    v_lshlrev_b32 v{TMP+6}, 4, v{TMP+6}
    v_lshl_add_u32 v{TMP+6}, v{TMP}, 7, v{TMP+6}
    v_add_u32 v{TMP+6}, {B1_MB}, v{TMP+6}
    s_waitcnt lgkmcnt(0)
    """)
    O=TMP+8
    for pp in range(2):
        for i in range(4):
            zr,zi=D2+16*pp+i, D2+16*pp+4+i
            pr,pi=PR+8*pp+2*i, PR+8*pp+2*i+1
            a(f"v_add_f32 v{O}, v{zr}, v{pr}")
            a(f"v_sub_f32 v{O+1}, v{zi}, v{pi}")
            a(f"v_add_f32 v{O+2}, v{zi}, v{pi}")
            a(f"v_sub_f32 v{O+3}, v{pr}, v{zr}")
            if i==0:
                a(f"v_add_f32 v{O+4}, v{zr}, v{zr}")
                a(f"v_add_f32 v{O+5}, v{pr}, v{pr}")
                a(f"v_add_f32 v{O+6}, v{zi}, v{zi}")
                a(f"v_add_f32 v{O+7}, v{pi}, v{pi}")
                for k in range(4): a(f"v_cndmask_b32 v{O+k}, v{O+k}, v{O+4+k}, vcc")
            o2=O+8+2*((pp*4+i)%4)
            a(f"v_cvt_pk_bf16_f32 v{o2}, v{O}, v{O+1}")
            a(f"v_cvt_pk_bf16_f32 v{o2+1}, v{O+2}, v{O+3}")
            a(f"ds_write_b64 v{TMP+6}, {vr(o2,2)} offset:{i*2048+pp*8}")
    a(f"""
    v_bfe_u32 v{TMP}, v1, 2, 2                     ; r4
    v_lshrrev_b32 v{TMP+1}, 1, v{TMP}
    v_mul_u32_u24 v{TMP+1}, {XR_STRIDE}, v{TMP+1}
    v_and_b32 v{TMP+2}, 1, v{TMP}
    v_lshl_add_u32 v{TMP+1}, v{TMP+2}, 9, v{TMP+1}
    v_lshl_add_u32 v{TMP+1}, v{VQ}, 5, v{TMP+1}
    v_and_b32 v{TMP+2}, 3, v1
    v_lshl_add_u32 v{TMP+1}, v{TMP+2}, 3, v{TMP+1} ; + c4*8
    s_mul_i32 s30, s3, {4*XR_STRIDE}
    s_add_u32 s30, s30, {B1_WTL}
    v_add_u32 v{TMP+1}, s30, v{TMP+1}
    """)
    for jj in range(4):
        a(f"ds_read_b64_tr_b16 {vr(D1+4*jj,2)}, v{TMP+1} offset:{jj*128}")
        a(f"ds_read_b64_tr_b16 {vr(D1+4*jj+2,2)}, v{TMP+1} offset:{jj*128+2*XR_STRIDE}")
    a(f"""
    v_and_b32 v{TMP+2}, 7, v1
    v_xor_b32 v{TMP+2}, s3, v{TMP+2}
    v_lshlrev_b32 v{TMP+2}, 4, v{TMP+2}
    v_lshl_add_u32 v{TMP+2}, v1, 7, v{TMP+2}
    v_add_u32 v{TMP+2}, {B1_MBW}, v{TMP+2}
    """)
    for jj in range(4):
        a(f"s_waitcnt lgkmcnt({6-2*jj})")
        a(f"ds_write_b128 v{TMP+2}, {vr(D1+4*jj,4)} offset:{jj*8192}")
    a("""
    s_waitcnt lgkmcnt(0)
    s_barrier
    """)
    a(f"""
    v_lshrrev_b32 v{TMP}, 3, v1
    v_and_b32 v{TMP+1}, 7, v1
    s_lshl_b32 s30, s3, 5
    v_add_u32 v{TMP+2}, s30, v{TMP}                ; f
    v_xor_b32 v{TMP+3}, v{TMP}, v{TMP+1}
    v_lshlrev_b32 v{TMP+3}, 4, v{TMP+3}
    v_lshl_add_u32 v{TMP+3}, v{TMP+2}, 7, v{TMP+3}
    v_add_u32 v{TMP+3}, {B1_MBW}, v{TMP+3}
    v_lshlrev_b32 v{TMP+5}, 13, v{TMP+2}
    v_lshl_add_u32 v{TMP+5}, v{TMP+1}, 4, v{TMP+5} ; f*8192 + c8*16
    s_and_b32 s31, s18, 7
    s_lshr_b32 s32, s31, 1
    s_lshl_b32 s32, s32, 11
    s_and_b32 s31, s31, 1
    s_lshl_b32 s31, s31, 7
    s_add_u32 s32, s32, s31
    s_lshr_b32 s31, s18, 5
    s_lshl_b32 s31, s31, 10
    s_add_u32 s32, s32, s31
    s_lshr_b32 s31, s18, 3
    s_and_b32 s31, s31, 3
    s_lshl_b32 s31, s31, 8
    s_add_u32 s32, s32, s31
    s_add_u32 s32, s32, {OFF_WT}
    """)
    for jj in range(4):
        a(f"ds_read_b128 {vr(D1+4*jj,4)}, v{TMP+3} offset:{jj*1024}")
    for jj in range(4):
        a(f"s_waitcnt lgkmcnt({3-jj})")
        a(f"s_add_u32 s31, s32, {jj*8*8192}")
        a(f"buffer_store_dwordx4 {vr(D1+4*jj,4)}, v{TMP+5}, s[24:27], s31 offen")
    a(f"""
    v_lshrrev_b32 v{TMP}, 3, v1                    ; fl
    v_and_b32 v{TMP+1}, 7, v1                      ; c8
    s_lshl_b32 s30, s3, 5
    v_add_u32 v{TMP+2}, s30, v{TMP}                ; f (jj=0)
    v_lshrrev_b32 v{TMP+3}, 1, v{TMP}
    v_xor_b32 v{TMP+3}, v{TMP+3}, v{TMP+1}
    v_lshlrev_b32 v{TMP+3}, 4, v{TMP+3}
    v_lshl_add_u32 v{TMP+3}, v{TMP+2}, 7, v{TMP+3}
    v_add_u32 v{TMP+3}, {B1_MB}, v{TMP+3}
    v_xor_b32 v{TMP+4}, 64, v{TMP+3}
    v_lshlrev_b32 v{TMP+5}, 13, v{TMP+2}
    v_lshl_add_u32 v{TMP+5}, v{TMP+1}, 4, v{TMP+5} ; f*8192 + c8*16
    s_lshl_b32 s31, s19, 8
    s_lshl_b32 s32, s28, 7
    s_add_u32 s31, s31, s32
    s_add_u32 s31, s31, {OFF_Z}
    """)
    for jj in range(4):
        a(f"ds_read_b128 {vr(D2+4*jj,4)}, v{TMP+3+(jj&1)} offset:{jj*1024}")
    for jj in range(4):
        a(f"s_waitcnt lgkmcnt({3-jj})")
        a(f"s_add_u32 s32, s31, {jj*8*8192}")
        a(f"buffer_store_dwordx4 {vr(D2+4*jj,4)}, v{TMP+5}, s[24:27], s32 offen")
    if asm.STAMP and not asm.FUSED:
        stamp(a,3); a("s_waitcnt vmcnt(0)"); stamp(a,4); stamp_dump(a,0)
    fin(a)

def build_k1(a=None):
    own = a is None
    if own: a=Asm()
    k1_prologue(a)
    k1_loader(a)
    k1_compute(a)
    k1_B(a)
    a.sc_srd=None
    if own:
        a.label("k1_end")
        a("s_endpgm")
    return a
```

```python
import asm
from asm import *
from layout import *
from k1 import srd, twiddle
import os
VAR=set(os.environ.get("VAR","").split(","))
def opt(name,default):
    for v in VAR:
        if v.startswith(name+"="): return int(v.split("=")[1])
    return default
K2_COL=135168
K2_E=K2_COL+8192
K2_LDS=163840
K2_CNT=163840-64
THRESH2=4096.0/1.03
NB=opt("NB",30)
NA=64-NB
PUBIT=opt("PUBIT",4)
XB=opt("XB",12)

VK,VV,VIDX=2,3,4
Q=[8,12]; S=[16,32]; O=[48,64]
F=[(80,84,88),(92,96,100)]
TMP=104
T64,A32,TW,WT,BUF,D1,P=112,144,176,192,200,232,248
X2=200
CI=[112,128]
VM,VQd=108,109
WOR=144

def expo(a,r): a(f"v_exp_f32 v{r}, v{r}")

def unit(a,tp,qt,fb):
    Sc,Sn=S[qt],S[1-qt]
    def pv(Ob,V,B): a(f"v_smfmac_f32_32x32x32_bf16 {vr(Ob,16)}, {vr(V,4)}, {vr(B,8)}, v{VIDX}")
    def qk(Sd,K,qq): a(f"v_mfma_f32_32x32x16_bf16 {vr(Sd,16)}, {vr(K,4)}, {vr(Q[qq],4)}, {vr(CI[qq],16) if fb else '0'}")
    if qt==0:
        Kc,V0c,V1c=F[tp]; Kn,V0n,V1n=F[1-tp]
        expo(a,Sc); expo(a,Sc+1)
        pv(O[1],V1n,Sn+8)
        a(f"ds_read_b128 {vr(Kn,4)}, v{VK} offset:{(tp+1)*KV_TILE}")
        expo(a,Sc+2)
        a(f"ds_read_b128 {vr(V0n,4)}, v{VV} offset:{(tp+1)*KV_TILE+512}")
        expo(a,Sc+3)
        a(f"ds_read_b128 {vr(V1n,4)}, v{VV} offset:{(tp+1)*KV_TILE+784}")
        expo(a,Sc+4); expo(a,Sc+5)
        qk(Sn,Kc,1)
        for i in range(6,12): expo(a,Sc+i)
        pv(O[0],V0c,Sc)
        for i in range(12,16): expo(a,Sc+i)
    else:
        Kc,V0c,V1c=F[tp]; Kn,V0n,V1n=F[1-tp]
        expo(a,Sc); expo(a,Sc+1)
        pv(O[0],V1c,Sn+8)
        for i in range(2,6): expo(a,Sc+i)
        a("s_waitcnt lgkmcnt(0)")
        qk(Sn,Kn,0)
        for i in range(6,12): expo(a,Sc+i)
        pv(O[1],V0c,Sc)
        for i in range(12,16): expo(a,Sc+i)

def bbar(a,tag,cnt=0):
    a(f"""
    v_mov_b32 v111, {K2_CNT+cnt}
    v_mov_b32 v110, 1
    s_waitcnt lgkmcnt(0)
    s_mov_b64 exec, 1
    ds_add_u32 v111, v110
    s_mov_b64 exec, -1
    s_add_u32 s47, s47, 4
    """)
    a.label(f"k2_bbar_{tag}")
    a(f"""
    ds_read_b32 v109, v111
    s_waitcnt lgkmcnt(0)
    v_readfirstlane_b32 s48, v109
    s_nop 0
    s_cmp_lt_u32 s48, s47
    s_cbranch_scc1 k2_bbar_{tag}
    """)

def dma_arrive(a):
    a(f"""
    s_waitcnt vmcnt(0)
    v_mov_b32 v{TMP}, {K2_CNT+4}
    v_mov_b32 v{TMP+1}, 1
    s_mov_b64 exec, 1
    ds_add_u32 v{TMP}, v{TMP+1}
    s_mov_b64 exec, -1
    """)
def dma_wait(a,tag):
    a(f"v_mov_b32 v{TMP}, {K2_CNT+4}")
    a.label(f"k2_dwait_{tag}")
    a(f"""
    ds_read_b32 v{TMP+1}, v{TMP}
    s_waitcnt lgkmcnt(0)
    v_readfirstlane_b32 s48, v{TMP+1}
    s_nop 0
    s_cmp_lt_u32 s48, 8
    s_cbranch_scc1 k2_dwait_{tag}
    """)

def kv_dma(a, ns):
    for n in ns:
        a(f"s_add_u32 m0, s34, {n*1024}")
        a(f"s_add_u32 s36, s35, {n*1024}")
        a(f"buffer_load_dwordx4 v{TMP}, s[20:23], s36 offen lds")

def b2_part1(a):
    dma_arrive(a)
    a(f"""
    v_and_b32 v{VM}, 15, v1
    v_lshrrev_b32 v{VQd}, 4, v1
    v_xor_b32 v104, v{VM}, v{VQd}
    v_lshlrev_b32 v104, 4, v104
    v_lshl_add_u32 v104, v{VM}, 8, v104
    v_add_u32 v104, {K2_COL}, v104
    v_xor_b32 v105, 64, v104
    v_xor_b32 v106, 128, v104
    v_xor_b32 v107, 192, v104
    """)
    for u in range(4):
        for t in range(2):
            a(f"ds_read_b128 {vr(BUF+16*t+4*u,4)}, v{104+u} offset:{t*4096}")
    for u in range(4):
        a(f"s_waitcnt lgkmcnt({6-2*u})")
        for t in range(2):
            for part in range(2):
                d=D1+8*t+4*part
                a(f"v_mfma_f32_16x16x32_bf16 {vr(d,4)}, {vr(BUF+16*t+4*u,4)}, {vr(T64+8*u+4*part,4)}, {'0' if u==0 else vr(d,4)}")
    a("""
    s_cmp_eq_u32 s28, 0
    s_cbranch_scc0 k2_p1_noab
    """)
    a(f"v_lshlrev_b32 v110, 4, v1")
    a(f"s_lshl_b32 s36, s3, 12")
    a(f"s_add_u32 s36, s36, {OFF_AB}")
    for ep in range(4):
        a(f"buffer_load_dwordx4 {vr(216+4*ep,4)}, v110, s[20:23], s36 offen offset:{ep*1024}")
    a.label("k2_p1_noab")
    a("s_nop 6")
    for t in range(2):
        twiddle(a, D1+8*t, D1+8*t+4, TW+4*t, TW+8+4*t, P+4*t, 104)
    a("s_nop 1")
    for t in range(2):
        for tp in range(2):
            for part in range(2):
                d=X2+8*tp+4*part
                a(f"v_mfma_f32_16x16x32_bf16 {vr(d,4)}, {vr(A32+((tp*2+part)*2+t)*4,4)}, {vr(P+4*t,4)}, {'0' if t==0 else vr(d,4)}")

def b2_part2(a):
    a("s_waitcnt vmcnt(0)")
    a("""
    s_cmp_eq_u32 s28, 0
    s_cbranch_scc1 k2_p2_special
    """)
    for tp in range(2):
        xr,xi=X2+8*tp,X2+8*tp+4
        wr,wi=D1+8*tp,D1+8*tp+4
        for i in range(4):
            a(f"v_lshlrev_b32 v{wr+i}, 16, v{WT+4*tp+i}")
            a(f"v_and_b32 v{wi+i}, 0xffff0000, v{WT+4*tp+i}")
        for p in (0,2):
            a(f"v_pk_mul_f32 {vr(104+p,2)}, {vr(xr+p,2)}, {vr(wr+p,2)}")
            a(f"v_pk_mul_f32 {vr(108+p,2)}, {vr(xr+p,2)}, {vr(wi+p,2)}")
        for p in (0,2):
            a(f"v_pk_fma_f32 {vr(104+p,2)}, {vr(xi+p,2)}, {vr(wi+p,2)}, {vr(104+p,2)} neg_lo:[1,0,0] neg_hi:[1,0,0]")
            a(f"v_pk_fma_f32 {vr(108+p,2)}, {vr(xi+p,2)}, {vr(wr+p,2)}, {vr(108+p,2)}")
        for i in range(4): a(f"v_cvt_pk_bf16_f32 v{P+4*tp+i}, v{104+i}, -v{108+i}")
    a.label("k2_p2_common")
    a("s_nop 1")
    for tp in range(2):
        for t in range(2):
            for part in range(2):
                d=D1+8*t+4*part
                a(f"v_mfma_f32_16x16x32_bf16 {vr(d,4)}, {vr(A32+((t*2+part)*2+tp)*4,4)}, {vr(P+4*tp,4)}, {'0' if tp==0 else vr(d,4)}")
    t0=X2
    a(f"""
    v_and_b32 v{t0}, 15, v1                 ; m
    v_lshrrev_b32 v{t0+1}, 4, v1            ; q
    v_lshrrev_b32 v{t0+2}, 2, v{t0}         ; m>>2
    s_lshl_b32 s36, s3, 2
    v_add_u32 v{t0+2}, s36, v{t0+2}         ; 4w + (m>>2)
    v_lshlrev_b32 v{t0+3}, 2, v{t0+1}       ; 4q
    v_xor_b32 v{t0+2}, v{t0+2}, v{t0+3}
    v_lshlrev_b32 v{t0+2}, 4, v{t0+2}
    v_lshl_add_u32 v{t0+2}, v{t0+3}, 8, v{t0+2}
    v_and_b32 v{t0+4}, 3, v{t0}
    v_lshl_add_u32 v{t0+2}, v{t0+4}, 2, v{t0+2}
    v_add_u32 v{t0+8}, {K2_E}, v{t0+2}
    v_xor_b32 v{t0+9}, 16, v{t0+8}
    v_xor_b32 v{t0+10}, 32, v{t0+8}
    v_xor_b32 v{t0+11}, 48, v{t0+8}
    """)
    for t in range(2):
        twiddle(a, D1+8*t, D1+8*t+4, TW+4*t, TW+8+4*t, P+4*t, 104)
    for t in range(2):
        for i in range(4):
            a(f"ds_write_b32 v{t0+8+i}, v{P+4*t+i} offset:{t*4096+i*256}")
    bbar(a,"e")
    a(f"""
    v_and_b32 v{VM}, 15, v1
    v_lshrrev_b32 v{VQd}, 4, v1
    v_xor_b32 v104, v{VM}, v{VQd}
    v_lshlrev_b32 v104, 4, v104
    v_lshl_add_u32 v104, v{VM}, 8, v104
    v_add_u32 v104, {K2_E}, v104
    v_xor_b32 v105, 64, v104
    v_xor_b32 v106, 128, v104
    v_xor_b32 v107, 192, v104
    """)
    for u in range(4):
        for t in range(2):
            a(f"ds_read_b128 {vr(BUF+16*t+4*u,4)}, v{104+u} offset:{t*4096}")
    a(f"""
    v_lshlrev_b32 v110, 8, v{VM}
    v_lshl_add_u32 v110, v{VQd}, 4, v110
    s_lshl_b32 s36, s28, 13
    s_lshl_b32 s37, s3, 6
    s_add_u32 s36, s36, s37
    s_add_u32 s36, s36, {OFF_Y}
    """)
    for u in range(4):
        a(f"s_waitcnt lgkmcnt({6-2*u})")
        for t in range(2):
            for part in range(2):
                d=D1+8*t+4*part
                a(f"v_mfma_f32_16x16x32_bf16 {vr(d,4)}, {vr(T64+8*u+4*part,4)}, {vr(BUF+16*t+4*u,4)}, {'0' if u==0 else vr(d,4)}")
    a("s_nop 7")
    for t in range(2):
        for i in range(4): a(f"v_cvt_pk_bf16_f32 v{P+4*t+i}, v{D1+8*t+i}, -v{D1+8*t+4+i}")
        a(f"buffer_store_dwordx4 {vr(P+4*t,4)}, v110, s[20:23], s36 offen")
        if t==0: a("s_add_u32 s36, s36, 4096")
    dma_wait(a,"b2")
    a("s_setpc_b64 s[60:61]")
    a.label("k2_p2_special")
    bbar(a,"s0")
    XCH=K2_COL
    a(f"""
    v_and_b32 v104, 15, v1
    v_lshrrev_b32 v105, 4, v1
    s_lshl_b32 s36, s3, 4
    v_add_u32 v104, s36, v104                 ; k1
    v_lshl_add_u32 v104, v105, 8, v104         ; g0 = k1 + 64*4q
    v_lshlrev_b32 v106, 3, v104
    v_add_u32 v106, {XCH}, v106
    """)
    for tp in range(2):
        for i in range(4):
            off=(i*64+tp*1024)*8
            a(f"ds_write_b32 v106, v{X2+8*tp+i} offset:{off}")
            a(f"ds_write_b32 v106, v{X2+8*tp+4+i} offset:{off+4}")
    bbar(a,"s1")
    for tp in range(2):
        for i in range(4):
            e=4*tp+i
            a(f"v_sub_u32 v107, {2048-(i*64+tp*1024)}, v104")
            a(f"v_and_b32 v107, 2047, v107")
            a(f"v_lshlrev_b32 v107, 3, v107")
            a(f"v_add_u32 v107, {XCH}, v107")
            a(f"ds_read_b64 {vr(D1+2*e,2)}, v107")
    bbar(a,"s2")
    for tp in range(2):
        for i in range(4):
            e=4*tp+i
            src=216+2*e
            ab=WT
            a(f"v_lshlrev_b32 v{ab}, 16, v{src}")
            a(f"v_and_b32 v{ab+1}, 0xffff0000, v{src}")
            a(f"v_lshlrev_b32 v{ab+2}, 16, v{src+1}")
            a(f"v_and_b32 v{ab+3}, 0xffff0000, v{src+1}")
            zr,zi=X2+8*tp+i,X2+8*tp+4+i
            pr,pi=D1+2*e,D1+2*e+1
            a(f"v_mul_f32 v104, v{zr}, v{ab}")
            a(f"v_mul_f32 v105, v{zr}, v{ab+1}")
            a(f"v_fma_f32 v104, -v{zi}, v{ab+1}, v104")
            a(f"v_fma_f32 v105, v{zi}, v{ab}, v105")
            a(f"v_fma_f32 v104, v{pr}, v{ab+2}, v104")
            a(f"v_fma_f32 v105, v{pr}, v{ab+3}, v105")
            a(f"v_fma_f32 v104, v{pi}, v{ab+3}, v104")
            a(f"v_fma_f32 v105, -v{pi}, v{ab+2}, v105")
            a(f"v_cvt_pk_bf16_f32 v{P+e}, v104, -v105")
    a("s_branch k2_p2_common")


def rounds():
    nA0=NB*KV_TILE//1024
    st1=[0,nA0,8,nA0+8]
    rest=[]
    n=16
    while n<nA0:
        rest.append(min(n,nA0-8) if n+8>nA0 else n); n+=8
    n=nA0+16
    while n<132:
        rest.append(min(n,124)); n+=8
    lo=[r for r in rest if r<nA0]; hi=[r for r in rest if r>=nA0]
    out=[]
    while lo or hi:
        if lo: out.append(lo.pop(0))
        if hi: out.append(hi.pop(0))
    return st1,out

def attn_loop(a,fb):
    sfx="_fb" if fb else ""
    a.label("k2_loop"+sfx)
    if not fb:
        a("""
        s_cmp_eq_u32 s42, s40
        s_cbranch_scc1 k2_hook
        """)
        a.label("k2_hookret")
    unit(a,0,0,fb); unit(a,0,1,fb); unit(a,1,0,fb); unit(a,1,1,fb)
    a(f"""
    v_add_u32 v{VK}, {2*KV_TILE}, v{VK}
    v_add_u32 v{VV}, {2*KV_TILE}, v{VV}
    s_add_u32 s42, s42, 1
    s_cmp_lt_u32 s42, s43
    s_cbranch_scc1 k2_loop{sfx}
    """)

def pipe_prologue(a,fb):
    K,V0,V1=F[0]
    a(f"""
    ds_read_b128 {vr(K,4)}, v{VK}
    ds_read_b128 {vr(V0,4)}, v{VV} offset:512
    ds_read_b128 {vr(V1,4)}, v{VV} offset:784
    s_waitcnt lgkmcnt(2)
    v_mfma_f32_32x32x16_bf16 {vr(S[0],16)}, {vr(K,4)}, {vr(Q[0],4)}, {vr(CI[0],16) if fb else '0'}
    s_mov_b32 s42, 0
    s_waitcnt lgkmcnt(0)
    s_nop 11
    """)

def poll(a,tag,nloads,addr_regs,srdreg="s[20:23]",soff="0"):
    a(f"s_mov_b32 s49, 0x20000")
    a.label(f"poll_{tag}")
    for k in range(nloads):
        a(f"buffer_load_dword v{addr_regs[k][1]}, v{addr_regs[k][0]}, {srdreg}, {soff} offen")
    a("s_waitcnt vmcnt(0)")
    for k in range(nloads):
        a(f"v_cmp_eq_u32 {'vcc' if k==0 else 's[50:51]'}, s56, v{addr_regs[k][1]}")
        if k>0:
            a("s_nop 1"); a("s_and_b64 vcc, vcc, s[50:51]")
    a(f"""
    s_nop 1
    s_cmp_eq_u64 vcc, -1
    s_cbranch_scc1 poll_{tag}_done
    s_sub_u32 s49, s49, 1
    s_cmp_eq_u32 s49, 0
    s_cbranch_scc1 poll_{tag}_done
    s_sleep 1
    s_branch poll_{tag}
    """)
    a.label(f"poll_{tag}_done")

def flag_store(a, soff_expr_reg, vtmp):
    a(f"""
    v_mov_b32 v{vtmp}, 0
    v_mov_b32 v{vtmp+1}, s56
    s_mov_b64 exec, 1
    buffer_store_dword v{vtmp+1}, v{vtmp}, s[20:23], s{soff_expr_reg} offen
    s_mov_b64 exec, -1
    """)

def build_k2(a=None):
    own = a is None
    if own: a=Asm()
    a.sc_srd="s[20:23]"
    st1,rest=rounds()
    R=len(rest)
    if not asm.FUSED:
        a(f"""
        s_cmp_ge_u32 s2, 256
        s_cbranch_scc1 k2_end
        s_load_dwordx2 s[16:17], s[0:1], 64      ; ws
        v_and_b32 v1, 63, v0
        v_lshrrev_b32 v{TMP}, 6, v0
        s_nop 0
        v_readfirstlane_b32 s3, v{TMP}
        """)
    stamp(a,0)
    a(f"""
    s_and_b32 s18, s2, 7
    s_lshr_b32 s19, s2, 3
    s_lshl_b32 s29, s18, 2
    s_and_b32 s30, s19, 3
    s_add_u32 s29, s29, s30                  ; hd
    s_lshr_b32 s30, s19, 2                   ; qb
    s_lshl_b32 s28, s18, 5
    s_add_u32 s28, s28, s19                  ; f
    v_lshlrev_b32 v{TMP}, 4, v1              ; lane*16
    s_and_b32 s33, s3, 3                     ; qg
    s_lshl_b32 s31, s30, 3
    s_lshl_b32 s33, s33, 1
    s_add_u32 s31, s31, s33
    s_waitcnt lgkmcnt(0)
    """)
    srd(a,20,16,WS_SIZE)
    if asm.FUSED:
        a(f"""
        s_cmp_eq_u32 s3, 0
        s_cbranch_scc0 k2_nopoll
        s_lshr_b32 s32, s29, 3                   ; hd>>3
        v_and_b32 v{TMP+1}, 15, v1
        v_lshrrev_b32 v{TMP+2}, 4, v1            ; group 0:K 1:V 2,3:Q
        v_and_b32 v{TMP+3}, 1, v1
        s_lshl_b32 s33, s30, 1
        v_add_u32 v{TMP+3}, s33, v{TMP+3}
        v_cmp_gt_u32 vcc, 2, v{TMP+2}
        v_mov_b32 v{TMP+4}, 4
        v_mov_b32 v{TMP+5}, 8
        v_cndmask_b32 v{TMP+1}, v{TMP+3}, v{TMP+1}, vcc   ; rb
        v_cmp_eq_u32 vcc, 0, v{TMP+2}
        v_mov_b32 v{TMP+6}, 0
        s_nop 0
        v_cndmask_b32 v{TMP+6}, v{TMP+6}, v{TMP+4}, vcc
        v_cmp_eq_u32 vcc, 1, v{TMP+2}
        s_nop 1
        v_cndmask_b32 v{TMP+6}, v{TMP+6}, v{TMP+5}, vcc   ; type*4
        v_add_u32 v{TMP+6}, s32, v{TMP+6}        ; cb
        v_lshl_add_u32 v{TMP+1}, v{TMP+6}, 4, v{TMP+1}
        v_lshlrev_b32 v{TMP+1}, 2, v{TMP+1}
        v_add_u32 v{TMP+1}, {OFF_F1Q}, v{TMP+1}
        v_lshlrev_b32 v{TMP+2}, 2, v1
        v_add_u32 v{TMP+2}, {OFF_F1B}, v{TMP+2}
        """)
        poll(a,"p1",2,[(TMP+1,TMP+3),(TMP+2,TMP+4)])
        a.label("k2_nopoll")
        a("s_barrier")
        stamp(a,9)
    a(f"""
    s_lshl_b32 s32, s29, 16
    s_lshl_b32 s33, s31, 10
    s_add_u32 s32, s32, s33
    s_add_u32 s32, s32, {OFF_Q}
    buffer_load_dwordx4 {vr(Q[0],4)}, v{TMP}, s[20:23], s32 offen
    buffer_load_dwordx4 {vr(Q[1],4)}, v{TMP}, s[20:23], s32 offen offset:1024
    v_lshlrev_b32 v{TMP+1}, 2, v1
    s_lshl_b32 s32, s29, 8
    s_add_u32 s32, s32, {OFF_KN}
    buffer_load_dword v{TMP+2}, v{TMP+1}, s[20:23], s32 offen
    v_lshrrev_b32 v{TMP+3}, 4, v1
    s_lshl_b32 s32, s3, 2
    v_add_u32 v{TMP+4}, s32, v{TMP+3}        ; n2
    v_and_b32 v{TMP+5}, 15, v{TMP+4}
    v_and_b32 v{TMP+6}, 15, v1
    v_xor_b32 v{TMP+5}, v{TMP+5}, v{TMP+6}
    v_lshlrev_b32 v{TMP+5}, 4, v{TMP+5}
    v_lshl_add_u32 v{TMP+5}, v{TMP+4}, 8, v{TMP+5}
    s_lshl_b32 s34, s3, 10                   ; wave*1024
    s_mul_i32 s35, s29, {KV_HEAD}
    s_add_u32 s35, s35, s34
    s_add_u32 s35, s35, {OFF_KV}
    """)
    kv_dma(a,st1[:2])
    a(f"""
    s_lshl_b32 s32, s28, 13
    s_add_u32 s32, s32, {OFF_Z}
    s_add_u32 m0, s34, {K2_COL}
    s_nop 0
    buffer_load_dwordx4 v{TMP+5}, s[20:23], s32 offen lds
    """)
    kv_dma(a,st1[2:])
    a("""
    s_cmp_ge_u32 s3, 4
    s_cbranch_scc1 k2_loadA
    """)
    a(f"s_lshl_b32 s36, s3, 13")
    a(f"s_add_u32 s36, s36, {OFF_T64}")
    for k in range(8):
        a(f"buffer_load_dwordx4 {vr(T64+4*k,4)}, v{TMP}, s[20:23], s36 offen offset:{(k%4)*1024}")
        if k==3: a("s_add_u32 s36, s36, 4096")
    a(f"s_lshl_b32 s36, s3, 12")
    a(f"s_add_u32 s36, s36, {OFF_TW}")
    for k in range(4):
        a(f"buffer_load_dwordx4 {vr(TW+4*k,4)}, v{TMP}, s[20:23], s36 offen offset:{k*1024}")
    a(f"s_mov_b32 s36, {OFF_A32}")
    for k in range(8):
        a(f"buffer_load_dwordx4 {vr(A32+4*k,4)}, v{TMP}, s[20:23], s36 offen offset:{(k%4)*1024}")
        if k==3: a("s_add_u32 s36, s36, 4096")
    a(f"""
    s_lshl_b32 s36, s28, 13
    s_lshl_b32 s37, s3, 11
    s_add_u32 s36, s36, s37
    s_add_u32 s36, s36, {OFF_WT}
    buffer_load_dwordx4 {vr(WT,4)}, v{TMP}, s[20:23], s36 offen
    buffer_load_dwordx4 {vr(WT+4,4)}, v{TMP}, s[20:23], s36 offen offset:1024
    """)
    kv_dma(a,rest)
    a(f"""
    s_waitcnt vmcnt({22+R})
    s_branch k2_loaded
    """)
    a.label("k2_loadA")
    kv_dma(a,rest)
    a(f"s_waitcnt vmcnt({R})")
    a.label("k2_loaded")
    for qq in range(2):
        acc=TMP+5+qq
        for k in range(4):
            a(f"v_lshlrev_b32 v{TMP+3}, 16, v{Q[qq]+k}")
            a(f"v_and_b32 v{TMP+4}, 0xffff0000, v{Q[qq]+k}")
            a(f"v_mul_f32 v{acc}, v{TMP+3}, v{TMP+3}" if k==0 else f"v_fmac_f32 v{acc}, v{TMP+3}, v{TMP+3}")
            a(f"v_fmac_f32 v{acc}, v{TMP+4}, v{TMP+4}")
    a(f"""
    s_nop 1
    v_permlane32_swap_b32 v{TMP+5}, v{TMP+6}
    s_nop 1
    v_add_f32 v{TMP+5}, v{TMP+5}, v{TMP+6}
    """)
    for sh in ("row_shr:1","row_shr:2","row_shr:4","row_shr:8"):
        a("s_nop 0")
        a(f"v_max_f32_dpp v{TMP+2}, v{TMP+2}, v{TMP+2} {sh} row_mask:0xf bank_mask:0xf bound_ctrl:0")
        a(f"v_max_f32_dpp v{TMP+5}, v{TMP+5}, v{TMP+5} {sh} row_mask:0xf bank_mask:0xf bound_ctrl:0")
    for sh in ("row_bcast:15 row_mask:0xa","row_bcast:31 row_mask:0xc"):
        a("s_nop 0")
        a(f"v_max_f32_dpp v{TMP+2}, v{TMP+2}, v{TMP+2} {sh} bank_mask:0xf")
        a(f"v_max_f32_dpp v{TMP+5}, v{TMP+5}, v{TMP+5} {sh} bank_mask:0xf")
    a(f"""
    s_nop 0
    v_mul_f32 v{TMP+2}, v{TMP+2}, v{TMP+5}
    s_nop 0
    v_readlane_b32 s38, v{TMP+2}, 63
    v_and_b32 v{TMP+3}, 31, v1
    v_lshrrev_b32 v{TMP+4}, 5, v1
    v_mul_u32_u24 v{TMP+4}, 1056, v{TMP+4}
    v_lshl_add_u32 v{VK}, v{TMP+3}, 4, v{TMP+4}
    s_cmp_lt_u32 s3, 4
    s_cselect_b32 s36, 0, {NB*KV_TILE}
    s_cselect_b32 s43, {NB//2}, {NA//2}       ; iterations
    s_mov_b32 s40, 2
    v_add_u32 v{VK}, s36, v{VK}
    v_cmp_gt_u32 vcc, 17, v{TMP+3}
    v_mov_b32 v{TMP+4}, 0x40000
    v_mov_b32 v{VIDX}, 0xdddd
    v_cndmask_b32 v{VV}, v{TMP+4}, v{VK}, vcc
    """)
    for qq in range(2):
        for i in range(16): a(f"v_mov_b32 v{O[qq]+i}, 0")
    for i in range(8): a(f"v_mov_b32 v{S[1]+8+i}, 0")
    for i in range(4): a(f"v_mov_b32 v{F[1][2]+i}, 0")
    if "nohook" in VAR:
        a("s_waitcnt vmcnt(0)"); a("s_mov_b32 s40, 99")
    a(f"""
    v_mov_b32 v{TMP+3}, {K2_CNT}
    v_mov_b32 v{TMP+4}, 0
    v_mov_b32 v{TMP+5}, 0
    v_mov_b32 v{TMP+6}, 0
    v_mov_b32 v{TMP+7}, 0
    s_mov_b32 s47, 0
    s_cmp_eq_u32 s3, 0
    s_cbranch_scc0 k2_noinit
    ds_write_b128 v{TMP+3}, {vr(TMP+4,4)}
    s_waitcnt lgkmcnt(0)
    """)
    a.label("k2_noinit")
    stamp(a,1)
    a("s_barrier")
    a("""
    s_cmp_lt_u32 s3, 4
    s_cbranch_scc1 k2_prioB
    s_setprio 1
    s_branch k2_priodone
    """)
    a.label("k2_prioB")
    a("s_setprio 2" if "noprio" not in VAR else "s_setprio 0")
    a.label("k2_priodone")
    if "soloA" in VAR:
        a("s_cmp_lt_u32 s3, 4"); a("s_cbranch_scc1 k2_end")
    stamp(a,2)
    a(f"""
    s_cmp_le_u32 s38, {hex(f2u(THRESH2))}
    s_cbranch_scc0 k2_fallback
    """)
    pipe_prologue(a,False)
    attn_loop(a,False)
    a.label("k2_tail")
    stamp(a,6)
    a(f"""
    s_nop 1
    v_smfmac_f32_32x32x32_bf16 {vr(O[1],16)}, {vr(F[1][2],4)}, {vr(S[1]+8,8)}, v{VIDX}
    s_setprio 0
    s_mul_i32 s36, s3, 2304
    s_add_u32 s37, s36, {K2_E+8192-3*2304}
    s_add_u32 s36, s36, {K2_COL}
    s_cmp_lt_u32 s3, 3
    s_cselect_b32 s36, s36, s37
    s_xor_b32 s44, s3, 4
    s_mul_i32 s45, s44, 2304
    s_add_u32 s46, s45, {K2_E+8192-3*2304}
    s_add_u32 s45, s45, {K2_COL}
    s_cmp_lt_u32 s44, 3
    s_cselect_b32 s45, s45, s46
    v_lshlrev_b32 v{TMP}, 4, v1
    v_lshlrev_b32 v{TMP+1}, 2, v1
    v_add_u32 v{TMP+2}, s36, v{TMP}
    v_add_u32 v{TMP+3}, s36, v{TMP+1}
    v_add_u32 v{TMP+4}, s45, v{TMP}
    v_add_u32 v{TMP+5}, s45, v{TMP+1}
    s_cmp_lt_u32 s3, 4
    s_cbranch_scc1 k2_tailB
    """)
    a(f"""
    s_nop 9
    ds_write_b128 v{TMP+2}, {vr(O[0],4)}
    ds_write_b128 v{TMP+2}, {vr(O[0]+4,4)} offset:1024
    ds_write_b32 v{TMP+3}, v{O[0]+8} offset:2048
    s_nop 7
    """)
    for i in range(9): a(f"v_mov_b32 v{O[0]+i}, v{O[1]+i}")
    a("""
    s_add_u32 s31, s31, 1
    s_branch k2_tail2
    """)
    a.label("k2_tailB")
    a(f"""
    s_nop 15
    s_nop 3
    ds_write_b128 v{TMP+2}, {vr(O[1],4)}
    ds_write_b128 v{TMP+2}, {vr(O[1]+4,4)} offset:1024
    ds_write_b32 v{TMP+3}, v{O[1]+8} offset:2048
    """)
    a.label("k2_tail2")
    a(f"""
    s_waitcnt lgkmcnt(0)
    {"" if "soloA" in VAR else "s_barrier"}
    ds_read_b128 {vr(S[0],4)}, v{TMP+4}
    ds_read_b128 {vr(S[0]+4,4)}, v{TMP+4} offset:1024
    ds_read_b32 v{S[0]+8}, v{TMP+5} offset:2048
    s_lshl_b32 s36, s31, 5
    s_add_u32 s36, s36, s29
    s_lshl_b32 s36, s36, 10
    s_add_u32 s36, s36, {OFF_O}
    s_waitcnt lgkmcnt(0)
    """)
    for i in range(9): a(f"v_add_f32 v{O[0]+i}, v{O[0]+i}, v{S[0]+i}")
    a(f"""
    v_mov_b32 v{TMP+1}, v{O[0]+8}
    v_mov_b32 v{TMP+2}, v{O[0]+8}
    s_nop 1
    v_permlane32_swap_b32 v{TMP+1}, v{TMP+2}
    s_nop 1
    v_rcp_f32 v{TMP+1}, v{TMP+1}
    s_nop 0
    """)
    for i in range(8): a(f"v_mul_f32 v{O[0]+i}, v{O[0]+i}, v{TMP+1}")
    for i in range(4): a(f"v_cvt_pk_bf16_f32 v{TMP+4+i}, v{O[0]+2*i}, v{O[0]+2*i+1}")
    a(f"buffer_store_dwordx4 {vr(TMP+4,4)}, v{TMP}, s[20:23], s36 offen")
    if asm.FUSED:
        a("""
        s_waitcnt vmcnt(0)
        s_barrier
        """)
        stamp(a,8)
        a(f"""
        s_cmp_eq_u32 s3, 0
        s_cbranch_scc0 ph3_start
        s_lshl_b32 s36, s30, 5
        s_add_u32 s36, s36, s29
        s_lshl_b32 s36, s36, 2
        s_add_u32 s36, s36, {OFF_F2}
        """)
        flag_store(a,36,TMP)
        a("s_branch ph3_start")
    else:
        if asm.STAMP:
            a("s_waitcnt vmcnt(0)"); stamp(a,8); stamp_dump(a,1)
        a("s_endpgm")
    a.label("k2_hook")
    a("""
    s_cmp_lt_u32 s3, 4
    s_cbranch_scc0 k2_hookA
    s_cmp_eq_u32 s40, 2
    s_cbranch_scc0 k2_hookB2
    """)
    stamp(a,3)
    a("s_call_b64 s[60:61], k2_b2")
    a(f"s_mov_b32 s40, {PUBIT if asm.FUSED else XB}")
    stamp(a,4)
    a("s_branch k2_hookret")
    a.label("k2_hookB2")
    if asm.FUSED:
        a("""
        s_cmp_eq_u32 s40, """+str(PUBIT)+"""
        s_cbranch_scc0 k2_hookB3
        s_call_b64 s[60:61], k2_pub
        """)
        a(f"s_mov_b32 s40, {XB}")
        a("s_branch k2_hookret")
        a.label("k2_hookB3")
    a("""
    s_setprio 0
    s_mov_b32 s40, 99
    s_branch k2_hookret
    """)
    a.label("k2_hookA")
    a("""
    s_cmp_eq_u32 s40, 2
    s_cbranch_scc0 k2_hookA_2
    """)
    stamp(a,3)
    dma_arrive(a)
    a("""
    s_mov_b32 s40, 3
    s_branch k2_hookret
    """)
    a.label("k2_hookA_2")
    dma_wait(a,"a")
    a("s_mov_b32 s40, 99")
    stamp(a,4)
    a("s_branch k2_hookret")
    a.label("k2_fallback")
    a("""
    s_cmp_lt_u32 s3, 4
    s_cbranch_scc0 k2_fbA
    s_call_b64 s[60:61], k2_b2
    """)
    if asm.FUSED: a("s_call_b64 s[60:61], k2_pub")
    a("""
    s_branch k2_fb_pre
    """)
    a.label("k2_fbA")
    dma_arrive(a)
    dma_wait(a,"fb")
    a.label("k2_fb_pre")
    a(f"""
    v_mov_b32 v{TMP+1}, 0xff800000
    v_mov_b32 v{TMP+2}, 0xff800000
    v_and_b32 v{TMP+3}, 31, v1
    v_lshrrev_b32 v{TMP+4}, 5, v1
    v_mul_u32_u24 v{TMP+4}, 1056, v{TMP+4}
    v_lshl_add_u32 v{TMP+3}, v{TMP+3}, 4, v{TMP+4}
    s_mov_b32 s42, 64
    """)
    a.label("k2_fb_max")
    a(f"""
    ds_read_b128 {vr(F[0][0],4)}, v{TMP+3}
    v_add_u32 v{TMP+3}, {KV_TILE}, v{TMP+3}
    s_waitcnt lgkmcnt(0)
    v_mfma_f32_32x32x16_bf16 {vr(S[0],16)}, {vr(F[0][0],4)}, {vr(Q[0],4)}, 0
    v_mfma_f32_32x32x16_bf16 {vr(CI[0],16)}, {vr(F[0][0],4)}, {vr(Q[1],4)}, 0
    s_nop 15
    """)
    for i in range(0,16,2): a(f"v_max3_f32 v{TMP+1}, v{S[0]+i}, v{S[0]+i+1}, v{TMP+1}")
    for i in range(0,16,2): a(f"v_max3_f32 v{TMP+2}, v{CI[0]+i}, v{CI[0]+i+1}, v{TMP+2}")
    a(f"""
    s_sub_u32 s42, s42, 1
    s_cmp_lg_u32 s42, 0
    s_cbranch_scc1 k2_fb_max
    v_mov_b32 v{TMP+3}, v{TMP+1}
    v_mov_b32 v{TMP+4}, v{TMP+2}
    s_nop 1
    v_permlane32_swap_b32 v{TMP+1}, v{TMP+3}
    v_permlane32_swap_b32 v{TMP+2}, v{TMP+4}
    s_nop 1
    v_max_f32 v{TMP+1}, v{TMP+1}, v{TMP+3}
    v_max_f32 v{TMP+2}, v{TMP+2}, v{TMP+4}
    """)
    for qq in range(2):
        for i in range(16): a(f"v_sub_f32 v{CI[qq]+i}, 0, v{TMP+1+qq}")
    a("s_nop 1")
    pipe_prologue(a,True)
    attn_loop(a,True)
    a("s_branch k2_tail")
    a.label("k2_b2")
    b2_part1(a)
    b2_part2(a)
    if asm.FUSED:
        a.label("k2_pub")
        a("s_waitcnt vmcnt(0)")
        bbar(a,"pub")
        a(f"""
        s_cmp_eq_u32 s3, 0
        s_cbranch_scc0 k2_pub1
        s_lshl_b32 s36, s28, 2
        s_add_u32 s36, s36, {OFF_F2B}
        """)
        flag_store(a,36,TMP)
        a.label("k2_pub1")
        a(f"""
        s_lshr_b32 s36, s19, 2                   ; ct
        s_lshl_b32 s36, s36, 16
        s_lshl_b32 s37, s3, 13
        s_add_u32 s36, s36, s37
        s_add_u32 s36, s36, {OFF_WOF}
        v_lshlrev_b32 v{TMP}, 4, v1
        """)
        for hh in range(8):
            a(f"s_add_u32 s37, s36, {hh*1024}")
            a(f"buffer_load_dwordx4 {vr(WOR+8*hh,4)}, v{TMP}, s[20:23], s37 offen")
            a(f"s_add_u32 s37, s37, 32768")
            a(f"buffer_load_dwordx4 {vr(WOR+8*hh+4,4)}, v{TMP}, s[20:23], s37 offen")
        a("s_setpc_b64 s[60:61]")
    a.sc_srd=None
    if own:
        a.label("k2_end")
        a("s_endpgm")
    return a
```

```python
import asm
from asm import *
from layout import *
import k1, k2
from k1 import srd, twiddle, gen_consts
from k2 import bbar, poll, flag_store, WOR, TMP as T2
KF_LDS=163840
PSTR=17408
S3=4*PSTR

def ph1_end(a):
    a.label("ph1_end")
    a("s_barrier")
    stamp(a,20)
    a("""
    v_mov_b32 v2, 0
    s_mov_b32 s49, 0x20000
    """)
    a.label("kf_tag")
    a("""
    global_load_dword v3, v2, s[54:55] sc1
    s_waitcnt vmcnt(0)
    v_readfirstlane_b32 s56, v3
    s_sub_u32 s49, s49, 1
    s_cmp_eq_u32 s49, 0
    s_cbranch_scc1 kf_tag_done
    s_cmp_eq_u32 s56, 0
    s_cbranch_scc0 kf_tag_done
    s_sleep 1
    s_branch kf_tag
    """)
    a.label("kf_tag_done")
    srd(a,20,16,WS_SIZE)
    a(f"""
    s_cmp_eq_u32 s3, 0
    s_cbranch_scc0 kf_noflag1
    s_cmp_ge_u32 s2, 192
    s_cbranch_scc1 kf_flagB
    s_lshl_b32 s36, s29, 4
    s_add_u32 s36, s36, s28
    s_lshl_b32 s36, s36, 2
    s_add_u32 s36, s36, {OFF_F1Q}
    s_branch kf_flag1
    """)
    a.label("kf_flagB")
    a(f"""
    s_sub_u32 s36, s2, 192
    s_lshl_b32 s36, s36, 2
    s_add_u32 s36, s36, {OFF_F1B}
    """)
    a.label("kf_flag1")
    a.sc_srd="s[20:23]"
    flag_store(a,36,4)
    a.sc_srd=None
    a.label("kf_noflag1")

def phase3(a):
    a.label("ph3_start")
    a.sc_srd="s[20:23]"
    a(f"""
    v_lshlrev_b32 v2, 4, v1                  ; lane*16
    s_cmp_ge_u32 s3, 4
    s_cbranch_scc1 ph3_B
    s_lshl_b32 s28, s18, 2
    s_and_b32 s29, s19, 3
    s_add_u32 s28, s28, s29                  ; rt
    s_lshr_b32 s29, s19, 2                   ; ct
    s_lshl_b32 s30, s28, 16
    s_lshl_b32 s31, s3, 13
    s_add_u32 s30, s30, s31
    s_add_u32 s30, s30, {OFF_O}
    s_cmp_eq_u32 s3, 0
    s_cbranch_scc0 ph3_nopoll
    s_lshr_b32 s32, s28, 2
    s_lshl_b32 s32, s32, 7
    s_add_u32 s32, s32, {OFF_F2}
    v_and_b32 v3, 31, v1
    v_lshlrev_b32 v3, 2, v3
    v_add_u32 v3, s32, v3
    """)
    poll(a,"p2",1,[(3,4)])
    a.label("ph3_nopoll")
    bbar(a,"p3a")
    stamp(a,21)
    OL=8; ACCS=[72,88,112,128]
    for hh in range(8):
        a(f"s_add_u32 s34, s30, {hh*1024}")
        a(f"buffer_load_dwordx4 {vr(OL+8*hh,4)}, v2, s[20:23], s34 offen")
        a(f"s_add_u32 s34, s34, 32768")
        a(f"buffer_load_dwordx4 {vr(OL+8*hh+4,4)}, v2, s[20:23], s34 offen")
    a(f"""
    v_and_b32 v3, 31, v1
    v_lshrrev_b32 v4, 5, v1
    v_mul_u32_u24 v3, 272, v3
    v_lshl_add_u32 v3, v4, 4, v3
    s_mul_i32 s33, s3, {PSTR}
    v_add_u32 v3, s33, v3
    v_lshrrev_b32 v4, 3, v1                  ; rl
    v_and_b32 v5, 7, v1                      ; c
    s_lshl_b32 s33, s3, 4
    v_add_u32 v6, s33, v4
    v_mul_u32_u24 v7, 272, v6
    v_lshl_add_u32 v7, v5, 5, v7
    s_lshl_b32 s33, s28, 6
    v_add_u32 v6, s33, v6
    v_lshlrev_b32 v6, 11, v6
    v_lshl_add_u32 v6, v5, 4, v6
    s_lshl_b32 s35, s29, 7
    """)
    srd(a,24,52,2048*1024*2)
    for hh in range(8):
        a(f"s_waitcnt vmcnt({2*(7-hh)})")
        for nl in range(2):
            for st in range(2):
                acc=ACCS[nl*2+st]
                a(f"v_mfma_f32_32x32x16_bf16 {vr(acc,16)}, {vr(WOR+8*hh+4*nl,4)}, {vr(OL+8*hh+4*st,4)}, {'0' if hh==0 else vr(acc,16)}")
    a("s_nop 7")
    for q in range(4):
        nl,st=q>>1,q&1
        if q==2: a("s_nop 3")
        for jj in range(4):
            a(f"ds_write_b128 v3, {vr(ACCS[q]+4*jj,4)} offset:{st*32*272+(32*nl+8*jj)*4}")
    bbar(a,"p3b")
    stamp(a,22)
    R=8
    for e in range(2):
        for w in range(4):
            for hf in range(2):
                a(f"ds_read_b128 {vr(R+32*e+8*w+4*hf,4)}, v7 offset:{w*PSTR+e*8*272+hf*16}")
    for e in range(2):
        a(f"s_waitcnt lgkmcnt({8*(1-e)})")
        b=R+32*e
        for k in range(8):
            a(f"v_add_f32 v{b+k}, v{b+k}, v{b+8+k}")
            a(f"v_add_f32 v{b+16+k}, v{b+16+k}, v{b+24+k}")
        for k in range(8): a(f"v_add_f32 v{b+k}, v{b+k}, v{b+16+k}")
        for k in range(4): a(f"v_cvt_pk_bf16_f32 v{80+4*e+k}, v{b+2*k}, v{b+2*k+1}")
        a(f"s_add_u32 s36, s35, {e*8*2048}")
        a(f"buffer_store_dwordx4 {vr(80+4*e,4)}, v6, s[24:27], s36 offen")
    if asm.STAMP:
        a("s_waitcnt vmcnt(0)"); stamp(a,23); stamp_dump(a,0)
    a("s_endpgm")
    a.label("ph3_B")
    VM,VQ,VMF,VQF=3,4,5,6
    R16,TWc,TWs,A32=8,16,24,32
    AB=64; P=80; D1=88; D2=112; TMP=128
    a(f"""
    s_sub_u32 s28, s3, 4                     ; jv
    s_lshr_b32 s29, s19, 3
    s_lshl_b32 s29, s29, 3
    s_add_u32 s29, s29, s18                  ; n2
    s_and_b32 s30, s19, 7                    ; a
    s_cmp_eq_u32 s3, 4
    s_cbranch_scc0 ph3_nopollB
    v_lshlrev_b32 v{TMP}, 2, v1
    v_add_u32 v{TMP}, {OFF_F2B}, v{TMP}
    v_add_u32 v{TMP+1}, 256, v{TMP}
    v_add_u32 v{TMP+2}, 512, v{TMP}
    v_add_u32 v{TMP+3}, 768, v{TMP}
    """)
    poll(a,"p2b",4,[(TMP+k,TMP+4+k) for k in range(4)])
    a.label("ph3_nopollB")
    bbar(a,"p3c",8)
    a(f"""
    v_lshrrev_b32 v{TMP}, 1, v1
    v_lshlrev_b32 v{TMP}, 13, v{TMP}         ; (l>>1)*8192
    v_and_b32 v{TMP+1}, 1, v1
    v_lshl_add_u32 v{TMP}, v{TMP+1}, 4, v{TMP}
    s_lshl_b32 s31, s29, 8
    s_lshl_b32 s32, s30, 5
    s_add_u32 s31, s31, s32
    s_lshl_b32 s32, s28, 19                  ; jv*2*32*8192
    s_add_u32 s31, s31, s32
    s_add_u32 s31, s31, {OFF_Y}
    s_lshl_b32 s33, s28, 11
    s_add_u32 m0, s33, {S3}
    s_nop 0
    buffer_load_dwordx4 v{TMP}, s[20:23], s31 offen lds
    s_add_u32 m0, s33, {S3+1024}
    s_add_u32 s31, s31, {32*8192}
    buffer_load_dwordx4 v{TMP}, s[20:23], s31 offen lds
    v_and_b32 v{VM}, 15, v1
    v_lshrrev_b32 v{VQ}, 4, v1
    v_cvt_f32_u32 v{VMF}, v{VM}
    v_lshlrev_b32 v{VQF}, 2, v{VQ}
    v_cvt_f32_u32 v{VQF}, v{VQF}
    """)
    srd(a,24,52,2048*1024*2)
    gen_consts(a, True, 2.0**-21, R16, TWc, TWs, A32, TMP, VMF, VQF)
    a(f"""
    v_lshl_add_u32 v{TMP}, v{VQ}, 7, v{VM}           ; 128q + m
    v_sub_u32 v{TMP+1}, 512, v{TMP}
    v_cmp_gt_u32 vcc, 32, v1                         ; q<2 <=> lane<32
    v_mov_b32 v{TMP+2}, -1.0
    v_mov_b32 v{TMP+3}, -512
    v_cndmask_b32 v{TMP}, v{TMP+1}, v{TMP}, vcc
    v_cndmask_b32 v7, v{TMP+2}, 1.0, vcc             ; sigma
    v_mov_b32 v{TMP+4}, 512
    v_cndmask_b32 v{TMP+3}, v{TMP+3}, v{TMP+4}, vcc  ; step
    s_lshl_b32 s33, s28, 3
    s_add_u32 s33, s33, {S3}
    v_lshl_add_u32 v{TMP}, v{TMP}, 5, s33            ; base
    v_mov_b32 v{TMP+5}, s33
    v_cmp_eq_u32 vcc, 32, v1
    v_add_u32 v{TMP+7}, v{TMP}, v{TMP+3}             ; addr e=1
    s_nop 0
    v_cndmask_b32 v{TMP+6}, v{TMP}, v{TMP+5}, vcc
    s_mov_b64 s[36:37], vcc
    s_waitcnt vmcnt(0)
    """)
    bbar(a,"p3d",8)
    stamp(a,21)
    a(f"ds_read_b64 {vr(AB,2)}, v{TMP+6}")
    for e in range(1,8):
        i,t=e>>1,e&1
        a(f"ds_read_b64 {vr(AB+2*(4*t+i),2)}, v{TMP+7}")
        if e<7: a(f"v_add_u32 v{TMP+7}, v{TMP+7}, v{TMP+3}")
    a(f"""
    v_cmp_eq_u32 vcc, 0, v1
    s_nop 1
    s_or_b64 s[38:39], vcc, s[36:37]
    v_cndmask_b32 v{TMP+8}, v7, 0, s[38:39]          ; sigma0
    s_waitcnt lgkmcnt(0)
    """)
    for t in range(2):
        for i in range(4):
            A,B=AB+2*(4*t+i),AB+2*(4*t+i)+1
            ar,ai,br,bi=TMP+10,TMP+11,TMP+12,TMP+13
            a(f"v_lshlrev_b32 v{ar}, 16, v{A}")
            a(f"v_and_b32 v{ai}, 0xffff0000, v{A}")
            a(f"v_lshlrev_b32 v{br}, 16, v{B}")
            a(f"v_and_b32 v{bi}, 0xffff0000, v{B}")
            sg=7
            if t==0 and i==0:
                a(f"v_cndmask_b32 v{ar}, v{ar}, v{ai}, s[36:37]")
                a(f"v_cndmask_b32 v{br}, v{br}, v{bi}, s[36:37]")
                sg=TMP+8
            a(f"v_fma_f32 v{TMP+14}, -v{sg}, v{bi}, v{ar}")
            a(f"v_fma_f32 v{TMP+15}, v{sg}, v{ai}, v{br}")
            a(f"v_cvt_pk_bf16_f32 v{P+4*t+i}, v{TMP+14}, v{TMP+15}")
    a("s_nop 1")
    for t in range(2):
        for part in range(2):
            a(f"v_mfma_f32_16x16x32_bf16 {vr(D1+8*t+4*part,4)}, {vr(P+4*t,4)}, {vr(R16+4*part,4)}, 0")
    a("s_nop 7")
    for t in range(2):
        twiddle(a, D1+8*t, D1+8*t+4, TWc+4*t, TWs+4*t, P+4*t, TMP)
    a("s_nop 1")
    for t in range(2):
        for tp in range(2):
            for part in range(2):
                d=D2+8*tp+4*part
                a(f"v_mfma_f32_16x16x32_bf16 {vr(d,4)}, {vr(P+4*t,4)}, {vr(A32+((tp*2+part)*2+t)*4,4)}, {'0' if t==0 else vr(d,4)}")
    a(f"""
    v_lshlrev_b32 v{TMP}, 5, v{VM}
    v_lshl_add_u32 v{TMP}, v{VQ}, 3, v{TMP}
    s_lshl_b32 s33, s30, 3
    s_lshl_b32 s34, s28, 1
    s_add_u32 s33, s33, s34
    s_lshl_b32 s33, s33, 5
    s_add_u32 s33, s33, s29
    s_lshl_b32 s33, s33, 11
    s_add_u32 s33, s33, 1024
    s_nop 3
    """)
    for part in range(2):
        for tp in range(2):
            d=D2+8*tp+4*part
            o=TMP+2+2*(part*2+tp)
            a(f"v_cvt_pk_bf16_f32 v{o}, v{d}, v{d+1}")
            a(f"v_cvt_pk_bf16_f32 v{o+1}, v{d+2}, v{d+3}")
            a(f"s_add_u32 s34, s33, {part*32*2048+tp*512}")
            a(f"buffer_store_dwordx2 {vr(o,2)}, v{TMP}, s[24:27], s34 offen")
    if asm.STAMP:
        a("s_waitcnt vmcnt(0)"); stamp(a,23); stamp_dump(a,0)
    a.sc_srd=None

def build_fused():
    asm.FUSED=True
    a=Asm()
    asm.SMAP={0:0,1:1,3:2,20:3}
    k1.build_k1(a)
    ph1_end(a)
    asm.SMAP={9:4,2:5,3:6,4:7,6:8,8:9,21:10,22:11,23:12}
    k2.build_k2(a)
    phase3(a)
    a.label("k1_end")
    a.label("k2_end")
    a("s_endpgm")
    return a
```

```python
OFF_Q   = 0x0000000
KV_HEAD = 131072
KV_TILE = 2048
OFF_KV  = 0x0200000
OFF_KN  = 0x0620000
OFF_Z   = 0x0630000
OFF_Y   = 0x0830000
OFF_O   = 0x0A30000
OFF_WOF = 0x0C30000
OFF_T64 = 0x0CB0000
OFF_A32 = 0x0CB8000
OFF_TW  = 0x0CBA000
OFF_AB  = 0x0CBE000
OFF_WT  = 0x0D00000
OFF_FLG = 0x0CC6000
OFF_F1Q = OFF_FLG
OFF_F1B = OFF_FLG+1024
OFF_F2B = OFF_FLG+2048
OFF_F2  = OFF_FLG+4096
WS_END  = 0x0F00000
WS_SIZE = 268435456
QSCALE = 0.25*1.4426950408889634
```

```python
import sys
from asm import *
from layout import *
import k1
NAME="concat_heads__mha_block__spectral_gfnet__prompt"
def kernel_block(name, body, vgpr, sgpr=102):
    accum=(vgpr+3)//4*4
    return f""".text
.globl {name}
.p2align 8
.type {name},@function
{name}:
{body}
.section .rodata,"a"
.p2align 6
.amdhsa_kernel {name}
  .amdhsa_next_free_vgpr {vgpr}
  .amdhsa_next_free_sgpr {sgpr}
  .amdhsa_accum_offset {accum}
  .amdhsa_group_segment_fixed_size 0
  .amdhsa_kernarg_size 72
  .amdhsa_user_sgpr_count 2
  .amdhsa_user_sgpr_kernarg_segment_ptr 1
  .amdhsa_system_sgpr_workgroup_id_x 1
.end_amdhsa_kernel
"""
def header(launches):
    h=open("cdna_kernels/"+NAME+".s.ref").read().split("\n")
    out=[]
    for l in h:
        if l.startswith("; Override launch") : break
        out.append(l)
    for (k,g,b,lds) in launches:
        out.append(f"; @launch kernel={k} grid=({g},1,1) block=({b},1,1) lds={lds}")
    out.append('.amdgcn_target "amdgcn-amd-amdhsa--gfx950"')
    return "\n".join(out)+"\n"
def build(path, which=("k1","k2","k3")):
    launches=[]; blocks=""
    if "k1" in which:
        launches.append(("qkv_rowfft_kernel",256,512,k1.K1_LDS))
        blocks+=kernel_block("qkv_rowfft_kernel", k1.build_k1().text(), 256)
    if "k2" in which:
        import k2
        launches.append(("attn_colfft_kernel",256,512,k2.K2_LDS))
        blocks+=kernel_block("attn_colfft_kernel", k2.build_k2().text(), 256)
    if "k3" in which:
        import k3
        launches.append(("proj_irowfft_kernel",256,512,k3.K3_LDS))
        blocks+=kernel_block("proj_irowfft_kernel", k3.build_k3().text(), 256)
    open(path,"w").write(header(launches)+blocks)
def build_fused(path):
    import kf
    h=open("cdna_kernels/"+NAME+".s.ref").read().split("\n")
    out=[]
    for l in h:
        if l.startswith("; Override launch") : break
        out.append(l)
    out.append(f"; @launch grid=(256,1,1) block=(512,1,1) lds={kf.KF_LDS}")
    out.append('.amdgcn_target "amdgcn-amd-amdhsa--gfx950"')
    body=kf.build_fused().text()
    open(path,"w").write("\n".join(out)+"\n"+kernel_block(NAME+"_kernel", body, 256))
if __name__=="__main__":
    import asm, os
    if os.environ.get("STAMP"): asm.STAMP=int(os.environ["STAMP"])
    which=sys.argv[2].split(",") if len(sys.argv)>2 else ("k1","k2","k3")
    if which==["fused"]: build_fused(sys.argv[1])
    else: build(sys.argv[1], which)
```

```python
import asm
from asm import *
from layout import *

K1_LDS = 133120

def srd(a, d, base, size):
    a(f"s_mov_b32 s{d}, s{base}")
    a(f"s_and_b32 s{d+1}, s{base+1}, 0xffff")
    a(f"s_mov_b32 s{d+2}, {size}")
    a(f"s_mov_b32 s{d+3}, 0x20000")

def fin(a, restore_exec=False):
    if asm.F12:
        if restore_exec: a("s_mov_b64 exec, -1")
        a("s_waitcnt vmcnt(0)")
        a("s_branch ph1_end")
    else: a("s_endpgm")

def k1_prologue(a):
    a("""
    s_cmp_ge_u32 s2, 256
    s_cbranch_scc1 k1_end
    s_load_dwordx4 s[4:7], s[0:1], 0
    s_load_dwordx2 s[8:9], s[0:1], 16
    s_load_dwordx2 s[10:11], s[0:1], 24
    s_load_dwordx4 s[12:15], s[0:1], 32
    s_load_dwordx2 s[16:17], s[0:1], 64
    """)
    if asm.F12:
        a("""
        s_load_dwordx4 s[52:55], s[0:1], 48
        """)
    a("""
    v_and_b32 v1, 63, v0
    v_lshrrev_b32 v2, 6, v0
    s_nop 0
    v_readfirstlane_b32 s3, v2
    """)
    if asm.F12:
        a("""
        s_or_b32 s57, s2, s3
        s_cmp_eq_u32 s57, 0
        s_cbranch_scc0 kf_nononce
        s_memrealtime s[56:57]
        s_waitcnt lgkmcnt(0)
        s_or_b32 s56, s56, 1
        v_mov_b32 v2, 0
        v_mov_b32 v3, s56
        s_mov_b64 exec, 1
        global_store_dword v2, v3, s[54:55] sc1
        s_mov_b64 exec, -1
        """)
        a.label("kf_nononce")
    stamp(a,0)
    a("""
    s_cmp_ge_u32 s2, 192
    s_cbranch_scc1 k1_B
    s_and_b32 s18, s2, 7
    s_lshr_b32 s19, s2, 3
    s_and_b32 s28, s18, 3
    s_lshl_b32 s28, s28, 2
    s_and_b32 s29, s19, 3
    s_add_u32 s28, s28, s29          ; s28 = rb
    s_lshr_b32 s29, s18, 2
    s_mul_i32 s29, s29, 6
    s_lshr_b32 s30, s19, 2
    s_add_u32 s29, s29, s30          ; s29 = cb
    s_cmp_ge_u32 s3, 4
    s_cbranch_scc0 k1_compute
    """)

def k1_loader(a):
    a.comment("---- loader waves 4..7 ----")
    a("""
    s_sub_u32 s30, s3, 4             ; lw
    v_lshrrev_b32 v2, 3, v1          ; l>>3
    v_lshrrev_b32 v3, 4, v1          ; l>>4
    v_and_b32 v4, 7, v1
    v_xor_b32 v4, v4, v3
    v_lshlrev_b32 v4, 4, v4
    v_lshl_add_u32 v4, v2, 10, v4    ; voffX0
    v_xor_b32 v5, 64, v4             ; voffX1
    v_and_b32 v6, 15, v1
    v_lshlrev_b32 v7, 2, v3
    v_xor_b32 v6, v6, v7
    v_lshlrev_b32 v6, 4, v6
    v_mul_u32_u24 v7, 3072, v3
    v_add_u32 v6, v6, v7             ; voffW
    s_lshl_b32 s31, s28, 17          ; rb*128*1024
    s_lshl_b32 s32, s30, 15          ; lw*32*1024
    s_add_u32 s31, s31, s32          ; sX0
    s_mul_i32 s32, s30, 16*3072
    s_lshl_b32 s33, s29, 8
    s_add_u32 s32, s32, s33          ; sW0
    s_lshl_b32 s33, s30, 12
    s_waitcnt lgkmcnt(0)
    """)
    stamp(a,4)
    srd(a,20,4,2097152); srd(a,24,6,1572864)
    import os
    ROT=int(os.environ.get("K1ROT","1"))
    if ROT:
        a("""
        s_lshr_b32 s35, s19, 2
        s_and_b32 s36, s19, 3
        s_lshl_b32 s36, s36, 1
        s_add_u32 s35, s35, s36
        """)
    else: a("s_mov_b32 s35, 0")
    def issue(c):
        slot=c&3
        a(f"s_add_u32 s36, s35, {c}")
        a("s_and_b32 s36, s36, 7")
        a("s_lshl_b32 s37, s36, 7")
        a("s_add_u32 s37, s37, s31")
        a(f"s_mul_i32 s38, s36, {64*3072}")
        a("s_add_u32 s38, s38, s32")
        for e in range(4):
            a(f"s_add_u32 m0, s33, {slot*32768+e*1024}")
            a(f"s_add_u32 s34, s37, {e*8192}")
            a(f"buffer_load_dwordx4 v{4+(e&1)}, s[20:23], s34 offen lds")
        for e in range(4):
            a(f"s_add_u32 m0, s33, {slot*32768+16384+e*1024}")
            a(f"s_add_u32 s34, s38, {4*e*3072}")
            a(f"buffer_load_dwordx4 v6, s[24:27], s34 offen lds")
    import os
    LA=int(os.environ.get("K1LA","2"))
    issued=-1
    for c in range(min(LA,4)):
        issue(c); issued=c
        if c==0: stamp(a,5)
    stamp(a,6)
    for c in range(8):
        n=8*(issued-c)
        a(f"s_waitcnt vmcnt({n})")
        a("s_barrier")
        if c in (0,3,7): stamp(a,{0:1,3:2,7:3}[c])
        while issued<min(7,c+LA,c+3):
            issued+=1; issue(issued)
    if not asm.F12: stamp_dump(a,0)
    fin(a)

def k1_compute(a):
    a.label("k1_compute")
    a.sc_srd="s[20:23]" if asm.F12 else None
    XA,XB,WA,WB=2,6,10,12
    a("""
    s_lshr_b32 s30, s3, 1            ; wm
    s_and_b32 s31, s3, 1             ; wn
    v_and_b32 v14, 31, v1            ; r
    v_lshrrev_b32 v15, 5, v1         ; h
    v_lshrrev_b32 v16, 1, v14
    v_and_b32 v16, 7, v16            ; (r>>1)&7
    v_xor_b32 v16, v16, v15          ; h ^ c
    v_lshlrev_b32 v16, 4, v16
    v_lshl_add_u32 v16, v14, 7, v16  ; r*128 + slot*16
    s_lshl_b32 s32, s30, 13          ; wm*64*128
    v_add_u32 v2, s32, v16
    v_xor_b32 v3, 32, v2
    v_xor_b32 v4, 64, v2
    v_xor_b32 v5, 96, v2
    v_add_u32 v6, 0x10000, v2
    v_add_u32 v7, 0x10000, v3
    v_add_u32 v8, 0x10000, v4
    v_add_u32 v9, 0x10000, v5
    v_and_b32 v16, 15, v1
    v_lshrrev_b32 v16, 2, v16        ; r4
    v_lshl_add_u32 v17, v15, 3, v16  ; 8h + r4
    v_lshlrev_b32 v17, 8, v17        ; *256
    s_lshl_b32 s32, s31, 1
    v_xor_b32 v18, s32, v16          ; nt0 ^ r4
    v_lshl_add_u32 v17, v18, 6, v17
    v_lshrrev_b32 v18, 4, v1
    v_and_b32 v18, 1, v18
    v_lshl_add_u32 v17, v18, 5, v17  ; + cg*32
    v_and_b32 v18, 3, v1
    v_lshl_add_u32 v17, v18, 3, v17  ; + c4*8
    v_add_u32 v10, 16384, v17
    v_xor_b32 v11, 64, v10
    v_add_u32 v12, 0x10000, v10
    v_add_u32 v13, 0x10000, v11
    """)
    for i in range(64): a(f"v_mov_b32 v{64+i}, 0")
    a("s_waitcnt lgkmcnt(0)")
    srd(a,20,16,WS_SIZE)
    a("""
    s_cmp_ge_u32 s29, 8
    s_cbranch_scc1 k1_vloop
    """)
    bufs=[(16,20,24,28),(32,36,40,44)]
    def reads(c,ks,buf):
        slot=c&3
        xa=(XA if slot<2 else XB)+ks; wa=(WA if slot<2 else WB)
        so=(slot&1)*32768
        X0,X1,W0,W1=buf
        a(f"ds_read_b128 {vr(X0,4)}, v{xa} offset:{so}")
        a(f"ds_read_b64_tr_b16 {vr(W0,2)}, v{wa} offset:{so+ks*4096}")
        a(f"ds_read_b64_tr_b16 {vr(W0+2,2)}, v{wa} offset:{so+ks*4096+1024}")
        a(f"ds_read_b128 {vr(X1,4)}, v{xa} offset:{so+4096}")
        a(f"ds_read_b64_tr_b16 {vr(W1,2)}, v{wa+1} offset:{so+ks*4096}")
        a(f"ds_read_b64_tr_b16 {vr(W1+2,2)}, v{wa+1} offset:{so+ks*4096+1024}")
    def loop(vtype):
        a("s_barrier")
        stamp(a,1)
        reads(0,0,bufs[0])
        for c in range(8):
            for ks in range(4):
                j=4*c+ks
                cur=bufs[j&1]; nxt=bufs[(j+1)&1]
                if ks<3:
                    reads(c,ks+1,nxt)
                    a("s_waitcnt lgkmcnt(6)")
                else:
                    a("s_waitcnt lgkmcnt(0)")
                    if c<7:
                        a("s_barrier")
                        reads(c+1,0,nxt)
                X0,X1,W0,W1=cur
                for ntl in range(2):
                    for rt in range(2):
                        acc=64+(ntl*2+rt)*16
                        W=(W0,W1)[ntl]; X=(X0,X1)[rt]
                        if not vtype: a(f"v_mfma_f32_32x32x16_bf16 {vr(acc,16)}, {vr(W,4)}, {vr(X,4)}, {vr(acc,16)}")
                        else:         a(f"v_mfma_f32_32x32x16_bf16 {vr(acc,16)}, {vr(X,4)}, {vr(W,4)}, {vr(acc,16)}")
            if c==3: stamp(a,2)
        stamp(a,3)
    loop(False)
    a("""
    s_and_b32 s33, s29, 3
    s_lshl_b32 s33, s33, 3
    s_lshl_b32 s34, s31, 2
    s_add_u32 s33, s33, s34          ; head0
    s_lshl_b32 s34, s28, 2
    s_lshl_b32 s35, s30, 1
    s_add_u32 s34, s34, s35          ; tile0
    s_cmp_ge_u32 s29, 4
    s_cbranch_scc1 k1_kepi
    """)
    a(f"""
    v_lshlrev_b32 v2, 9, v15
    v_lshl_add_u32 v2, v14, 4, v2    ; h*512 + r*16
    s_lshl_b32 s35, s33, 16
    s_lshl_b32 s36, s34, 10
    s_add_u32 s35, s35, s36
    s_add_u32 s35, s35, {OFF_Q}
    s_mov_b32 s37, {hex(f2u(QSCALE))}
    s_nop 7
    """)
    for ntl in range(2):
        for rt in range(2):
            acc=64+(ntl*2+rt)*16
            for i in range(16): a(f"v_mul_f32 v{acc+i}, s37, v{acc+i}")
            t=16+(ntl*2+rt)*8
            for i in range(8): a(f"v_cvt_pk_bf16_f32 v{t+i}, v{acc+2*i}, v{acc+2*i+1}")
            for hh in range(2):
                a(f"s_add_u32 s36, s35, {(2*ntl+hh)*65536+rt*1024}")
                a(f"buffer_store_dwordx4 {vr(t+4*hh,4)}, v2, s[20:23], s36 offen")
    if asm.STAMP and not asm.F12:
        a("s_waitcnt vmcnt(0)"); stamp(a,4); stamp_dump(a,0)
    fin(a)
    a.label("k1_kepi")
    a(f"""
    v_and_b32 v2, 0x13, v14
    v_and_b32 v3, 4, v14
    v_lshl_or_b32 v2, v3, 1, v2
    v_and_b32 v3, 8, v14
    v_lshrrev_b32 v3, 1, v3
    v_or_b32 v2, v2, v3              ; pi(r)
    v_lshlrev_b32 v2, 4, v2
    v_mul_u32_u24 v3, 1056, v15
    v_add_u32 v2, v2, v3             ; h*1056 + pi(r)*16
    s_mul_i32 s35, s33, {KV_HEAD}
    s_mul_i32 s36, s34, {KV_TILE}
    s_add_u32 s35, s35, s36
    s_add_u32 s35, s35, {OFF_KV}
    s_nop 5
    """)
    for ntl in range(2):
        for rt in range(2):
            acc=64+(ntl*2+rt)*16
            t=16+(ntl*2+rt)*8
            for i in range(8): a(f"v_cvt_pk_bf16_f32 v{t+i}, v{acc+2*i}, v{acc+2*i+1}")
            for hh in range(2):
                a(f"s_add_u32 s36, s35, {(2*ntl+hh)*KV_HEAD+rt*KV_TILE}")
                a(f"buffer_store_dwordx4 {vr(t+4*hh,4)}, v2, s[20:23], s36 offen")
    for q in range(4):
        acc=64+q*16
        for hh in range(2):
            a(f"v_mul_f32 v{48+2*q+hh}, v{acc+8*hh}, v{acc+8*hh}")
        for i in range(1,8):
            for hh in range(2):
                a(f"v_fmac_f32 v{48+2*q+hh}, v{acc+8*hh+i}, v{acc+8*hh+i}")
    a("s_nop 1")
    for q in range(4): a(f"v_permlane32_swap_b32 v{48+2*q}, v{49+2*q}")
    a("s_nop 1")
    for q in range(4): a(f"v_add_f32 v{48+2*q}, v{48+2*q}, v{49+2*q}")
    for sh in ("row_shr:1","row_shr:2","row_shr:4","row_shr:8"):
        for q in range(4): a(f"v_max_f32_dpp v{48+2*q}, v{48+2*q}, v{48+2*q} {sh} row_mask:0xf bank_mask:0xf bound_ctrl:0")
    for q in range(4): a(f"v_max_f32_dpp v{48+2*q}, v{48+2*q}, v{48+2*q} row_bcast:15 row_mask:0xa bank_mask:0xf")
    a(f"""
    v_lshlrev_b32 v3, 8, v15
    s_lshl_b32 s35, s33, 8
    s_lshl_b32 s36, s34, 2
    s_add_u32 s35, s35, s36
    s_add_u32 s35, s35, {OFF_KN}
    s_mov_b32 exec_lo, 0x80000000
    s_mov_b32 exec_hi, 0x80000000
    """)
    for ntl in range(2):
        for rt in range(2):
            q=ntl*2+rt
            a(f"s_add_u32 s36, s35, {2*ntl*256+rt*4}")
            a(f"buffer_store_dword v{48+2*q}, v3, s[20:23], s36 offen")
    if asm.STAMP and not asm.F12:
        a("s_waitcnt vmcnt(0)"); stamp(a,4); stamp_dump(a,0)
    fin(a,True)
    a.label("k1_vloop")
    loop(True)
    a(f"""
    s_and_b32 s33, s29, 3
    s_lshl_b32 s33, s33, 3
    s_lshl_b32 s34, s31, 2
    s_add_u32 s33, s33, s34          ; head0
    s_lshl_b32 s34, s28, 2
    s_lshl_b32 s35, s30, 1
    s_add_u32 s34, s34, s35          ; tile0
    v_lshrrev_b32 v2, 4, v14         ; n>>4
    s_mov_b32 s36, {KV_HEAD}
    v_mul_lo_u32 v2, v2, s36
    v_mul_u32_u24 v3, 1056, v15
    v_add_u32 v2, v2, v3
    v_and_b32 v3, 15, v14
    v_lshl_add_u32 v2, v3, 4, v2
    s_mul_i32 s35, s33, {KV_HEAD}
    s_mul_i32 s36, s34, {KV_TILE}
    s_add_u32 s35, s35, s36
    s_add_u32 s35, s35, {OFF_KV+512}
    """)
    for ntl in range(2):
        for rt in range(2):
            acc=64+(ntl*2+rt)*16
            t=16+(ntl*2+rt)*8
            for i in range(8): a(f"v_cvt_pk_bf16_f32 v{t+i}, v{acc+2*i}, v{acc+2*i+1}")
            for u in range(2):
                a(f"s_add_u32 s36, s35, {2*ntl*KV_HEAD+rt*KV_TILE+u*272}")
                a(f"buffer_store_dwordx4 {vr(t+4*u,4)}, v2, s[20:23], s36 offen")
    a(f"""
    v_and_b32 v3, 1, v1
    v_mul_u32_u24 v3, 1056, v3
    v_bfe_u32 v4, v1, 1, 1
    v_mul_u32_u24 v4, 272, v4
    v_add_u32 v3, v3, v4
    v_bfe_u32 v4, v1, 2, 1
    v_mul_u32_u24 v4, {KV_TILE}, v4
    v_add_u32 v3, v3, v4
    v_bfe_u32 v4, v1, 3, 2
    s_mov_b32 s36, {KV_HEAD}
    v_mul_lo_u32 v4, v4, s36
    v_add_u32 v3, v3, v4
    v_mov_b32 v4, 0x3f803f80
    v_mov_b32 v5, 0x3f803f80
    v_mov_b32 v6, 0x3f803f80
    v_mov_b32 v7, 0x3f803f80
    s_add_u32 s36, s35, 256
    s_mov_b32 exec_hi, 0
    buffer_store_dwordx4 v[4:7], v3, s[20:23], s36 offen
    """)
    if asm.STAMP and not asm.F12:
        a("s_waitcnt vmcnt(0)"); stamp(a,4); stamp_dump(a,0)
    fin(a,True)

def gen_consts(a, inv, scale, R16, TWc, TWs, A32, tmp, vm, vq):
    T=tmp
    a(f"v_mul_f32 v{T}, {hex(f2u(1/16.))}, v{vm}")
    for i in range(4):
        a(f"v_add_f32 v{T+1+i}, {float(i)}, v{vq}" if i else f"v_mov_b32 v{T+1}, v{vq}")
    for i in range(4): a(f"v_mul_f32 v{T+1+i}, v{T+1+i}, v{T}")
    for i in range(4):
        a(f"v_cos_f32 v{T+5+i}, v{T+1+i}")
        a(f"v_sin_f32 v{T+9+i}, v{T+1+i}")
    if scale!=1.0:
        a(f"s_mov_b32 s40, {hex(f2u(scale))}")
        for i in range(8): a(f"v_mul_f32 v{T+5+i}, s40, v{T+5+i}")
    else: a("s_nop 0")
    for i in range(4):
        c,s=T+5+i,T+9+i
        if not inv:
            a(f"v_cvt_pk_bf16_f32 v{R16+i}, v{c}, v{s}")
            a(f"v_cvt_pk_bf16_f32 v{R16+4+i}, -v{s}, v{c}")
        else:
            a(f"v_cvt_pk_bf16_f32 v{R16+i}, v{c}, -v{s}")
            a(f"v_cvt_pk_bf16_f32 v{R16+4+i}, v{s}, v{c}")
    a(f"v_mul_f32 v{T}, {hex(f2u(1/512.))}, v{vm}")
    for t in range(2):
        for i in range(4):
            k=16*t+i
            if k==0: a(f"v_mov_b32 v{T+1}, v{vq}")
            else:
                a(f"v_add_f32 v{T+1+4*t+i}, {hex(f2u(float(k)))}, v{vq}")
    for e in range(8): a(f"v_mul_f32 v{T+1+e}, v{T+1+e}, v{T}")
    for e in range(8):
        a(f"v_cos_f32 v{TWc+e}, v{T+1+e}")
        a(f"v_sin_f32 v{TWs+e}, {'-' if inv else ''}v{T+1+e}")
    gen_a32(a, inv, A32, tmp, vm, vq)

def gen_a32(a, inv, A32, tmp, vm, vq):
    T=tmp
    for t in range(2):
        for i in range(4):
            k=16*t+i
            if k==0: a(f"v_mov_b32 v{T+1}, v{vq}")
            else: a(f"v_add_f32 v{T+1+4*t+i}, {hex(f2u(float(k)))}, v{vq}")
    a(f"v_mul_f32 v{T+9}, {hex(f2u(1/32.))}, v{vm}")
    a(f"v_add_f32 v{T+10}, 0.5, v{T+9}")
    for tp in range(2):
        for e in range(8): a(f"v_mul_f32 v{T+11+e}, v{T+1+e}, v{T+9+tp}")
        for e in range(8):
            a(f"v_cos_f32 v{T+19+e}, v{T+11+e}")
            a(f"v_sin_f32 v{T+11+e}, v{T+11+e}")
        a("s_nop 0")
        for t in range(2):
            for i in range(4):
                e=4*t+i; c,s=T+19+e,T+11+e
                re=A32+((tp*2+0)*2+t)*4+i; im=A32+((tp*2+1)*2+t)*4+i
                if not inv:
                    a(f"v_cvt_pk_bf16_f32 v{re}, v{c}, v{s}")
                    a(f"v_cvt_pk_bf16_f32 v{im}, -v{s}, v{c}")
                else:
                    a(f"v_cvt_pk_bf16_f32 v{re}, v{c}, -v{s}")
                    a(f"v_cvt_pk_bf16_f32 v{im}, v{s}, v{c}")

def twiddle(a, re, im, c, s, out, tmp):
    T,U=tmp,tmp+4
    for p in (0,2):
        a(f"v_pk_mul_f32 {vr(T+p,2)}, {vr(re+p,2)}, {vr(c+p,2)}")
        a(f"v_pk_mul_f32 {vr(U+p,2)}, {vr(im+p,2)}, {vr(c+p,2)}")
    for p in (0,2):
        a(f"v_pk_fma_f32 {vr(T+p,2)}, {vr(im+p,2)}, {vr(s+p,2)}, {vr(T+p,2)}")
        a(f"v_pk_fma_f32 {vr(U+p,2)}, {vr(re+p,2)}, {vr(s+p,2)}, {vr(U+p,2)} neg_lo:[1,0,0] neg_hi:[1,0,0]")
    for i in range(4): a(f"v_cvt_pk_bf16_f32 v{out+i}, v{T+i}, v{U+i}")

XR_STRIDE=1056
B1_MB=33792
B1_WTL=66560
B1_MBW=100352

def k1_B(a):
    a.label("k1_B")
    a.sc_srd="s[24:27]" if asm.F12 else None
    VM,VQ,VMF,VQF=2,3,4,5
    R16,TWc,TWs,A32=8,16,24,32
    PIN=64
    D1=80
    D2=112
    TMP=144
    WOL,WOH=192,196
    ABL=200
    a(f"""
    s_sub_u32 s18, s2, 192           ; b
    s_lshr_b32 s19, s18, 1           ; n2
    s_and_b32 s28, s18, 1            ; hf
    v_and_b32 v{VM}, 15, v1
    v_lshrrev_b32 v{VQ}, 4, v1
    v_lshlrev_b32 v6, 4, v1          ; lane*16
    s_waitcnt lgkmcnt(0)
    """)
    srd(a,20,10,2097152)
    srd(a,24,16,WS_SIZE)
    srd(a,44,8,524288)
    a(f"""
    s_lshl_b32 s29, s28, 5
    s_lshl_b32 s30, s3, 2
    s_add_u32 s29, s29, s30
    s_lshl_b32 s29, s29, 5
    s_add_u32 s29, s29, s19          ; s0
    s_lshl_b32 s29, s29, 10
    s_mul_i32 s30, s3, {4*XR_STRIDE}
    """)
    for e in range(4):
        a(f"s_add_u32 m0, s30, {e*XR_STRIDE}")
        a(f"s_add_u32 s31, s29, {e*32*1024}")
        a(f"buffer_load_dwordx4 v6, s[20:23], s31 offen lds")
    a(f"""
    s_lshl_b32 s32, s18, 3
    s_add_u32 s32, s32, s3           ; idx
    s_lshr_b32 s33, s32, 5
    s_lshl_b32 s33, s33, 6
    s_and_b32 s34, s32, 31
    s_lshl_b32 s34, s34, 14
    s_add_u32 s33, s33, s34
    v_and_b32 v7, 31, v1
    v_lshlrev_b32 v7, 1, v7
    v_lshrrev_b32 v{TMP}, 5, v1
    v_lshl_add_u32 v7, v{TMP}, 12, v7    ; h*4 rows*1024 + n*2
    """)
    for j8 in range(8):
        d=8*(j8>>2)+(j8&3)
        a(f"s_add_u32 s34, s33, {d*1024}")
        dst=(WOL if j8%2==0 else WOH)+j8//2
        a(f"buffer_load_ushort v{dst}, v7, s[44:47], s34 offen")
    a(f"""
    s_and_b32 s35, s18, 7
    s_lshl_b32 s35, s35, 3
    s_add_u32 s35, s35, s3
    s_lshr_b32 s36, s18, 3
    s_and_b32 s37, s36, 3            ; q
    s_lshr_b32 s36, s36, 2           ; tp
    s_lshl_b32 s36, s36, 2
    s_add_u32 s36, s36, s37          ; 4tp+q
    s_lshl_b32 s36, s36, 8           ; *4*64
    s_add_u32 s35, s35, s36          ; g(i=0)
    s_mul_i32 s35, s35, 514
    v_and_b32 v{TMP}, 31, v1
    v_lshlrev_b32 v{TMP}, 4, v{TMP}
    v_add_u32 v{TMP}, s35, v{TMP}
    v_cmp_gt_u32 vcc, 32, v1
    v_mov_b32 v{TMP+2}, s14
    v_mov_b32 v{TMP+3}, s15
    v_mov_b32 v{TMP+4}, s12
    v_mov_b32 v{TMP+5}, s13
    v_cndmask_b32 v{TMP+2}, v{TMP+2}, v{TMP+4}, vcc
    v_cndmask_b32 v{TMP+3}, v{TMP+3}, v{TMP+5}, vcc
    v_add_co_u32 v{TMP+2}, vcc, v{TMP+2}, v{TMP}
    s_mul_i32 s36, s3, {4*XR_STRIDE}
    s_nop 0
    v_addc_co_u32 v{TMP+3}, vcc, 0, v{TMP+3}, vcc
    """)
    for i in range(4):
        a(f"s_add_u32 m0, s36, {B1_WTL+i*XR_STRIDE}")
        a("s_nop 0")
        a(f"global_load_lds_dwordx4 {vr(TMP+2,2)}, off")
        if i<3:
            a(f"v_add_co_u32 v{TMP+2}, vcc, {64*514}, v{TMP+2}")
            a("s_nop 1")
            a(f"v_addc_co_u32 v{TMP+3}, vcc, 0, v{TMP+3}, vcc")
    a(f"""
    s_sub_u32 s35, s18, 32
    s_cmp_lt_u32 s35, 32
    s_cselect_b32 s39, 1, 0
    s_cmp_eq_u32 s3, 7
    s_cselect_b32 s39, s39, 0
    s_cmp_eq_u32 s39, 1
    s_cbranch_scc0 k1_B_noab
    s_lshl_b32 s36, s35, 6
    v_add_u32 v{TMP}, s36, v1        ; g
    v_sub_u32 v{TMP+1}, 2048, v{TMP}
    v_and_b32 v{TMP+1}, 2047, v{TMP+1}   ; -g
    v_mul_u32_u24 v{TMP}, 514, v{TMP}
    v_mul_u32_u24 v{TMP+1}, 514, v{TMP+1}
    """)
    srd(a,48,12,2048*257*2); srd(a,40,14,2048*257*2)
    for k,(arr,val,off) in enumerate([(48,TMP,0),(40,TMP,0),(48,TMP+1,0),(40,TMP+1,0),(48,TMP,512),(40,TMP,512),(48,TMP+1,512),(40,TMP+1,512)]):
        a(f"buffer_load_ushort v{ABL+k}, v{val}, s[{arr}:{arr+3}], 0 offen offset:{off}")
    a.label("k1_B_noab")
    a(f"""
    v_cvt_f32_u32 v{VMF}, v{VM}
    v_lshlrev_b32 v{VQF}, 2, v{VQ}
    v_cvt_f32_u32 v{VQF}, v{VQF}
    """)
    gen_consts(a, False, 1.0, R16, TWc, TWs, A32, TMP, VMF, VQF)
    a(f"""
    s_cmp_lt_u32 s18, 2
    s_cbranch_scc0 k1_B_not64
    s_lshl_b32 s36, s18, 3
    s_add_u32 s36, s36, s3           ; unit
    s_lshr_b32 s37, s36, 2           ; w
    s_and_b32 s38, s36, 3            ; u
    s_lshl_b32 s37, s37, 4
    s_lshl_b32 s38, s38, 4
    v_add_u32 v{TMP}, s37, v{VM}
    v_cvt_f32_u32 v{TMP}, v{TMP}
    v_mul_f32 v{TMP}, {hex(f2u(1/64.))}, v{TMP}
    v_cvt_f32_u32 v{TMP+1}, s38
    v_add_f32 v{TMP+1}, v{TMP+1}, v{VQF}
    v_add_f32 v{TMP+2}, 1.0, v{TMP+1}
    v_add_f32 v{TMP+3}, 2.0, v{TMP+1}
    v_add_f32 v{TMP+4}, 1.0, v{TMP+3}
    """)
    for i in range(4): a(f"v_mul_f32 v{TMP+1+i}, v{TMP+1+i}, v{TMP}")
    for i in range(4):
        a(f"v_cos_f32 v{TMP+5+i}, v{TMP+1+i}")
        a(f"v_sin_f32 v{TMP+9+i}, v{TMP+1+i}")
    a("s_nop 0")
    for i in range(4):
        a(f"v_cvt_pk_bf16_f32 v{TMP+16+i}, v{TMP+5+i}, v{TMP+9+i}")
        a(f"v_cvt_pk_bf16_f32 v{TMP+20+i}, -v{TMP+9+i}, v{TMP+5+i}")
    a(f"""
    s_lshl_b32 s36, s36, 11
    s_add_u32 s36, s36, {OFF_T64}
    buffer_store_dwordx4 {vr(TMP+16,4)}, v6, s[24:27], s36 offen
    buffer_store_dwordx4 {vr(TMP+20,4)}, v6, s[24:27], s36 offen offset:1024
    """)
    a.label("k1_B_not64")
    a(f"""
    s_cmp_eq_u32 s18, 2
    s_cbranch_scc0 k1_B_notw
    s_cmp_lt_u32 s3, 4
    s_cbranch_scc0 k1_B_a32
    s_lshl_b32 s37, s3, 4
    v_add_u32 v{TMP}, s37, v{VM}
    v_cvt_f32_u32 v{TMP}, v{TMP}
    v_mul_f32 v{TMP}, {hex(f2u(1/2048.))}, v{TMP}
    """)
    for t in range(2):
        for i in range(4):
            k=16*t+i
            if k==0: a(f"v_mov_b32 v{TMP+1}, v{VQF}")
            else: a(f"v_add_f32 v{TMP+1+4*t+i}, {hex(f2u(float(k)))}, v{VQF}")
    for e in range(8): a(f"v_mul_f32 v{TMP+1+e}, v{TMP+1+e}, v{TMP}")
    for e in range(8):
        a(f"v_cos_f32 v{TMP+16+e}, v{TMP+1+e}")
        a(f"v_sin_f32 v{TMP+24+e}, v{TMP+1+e}")
    a(f"""
    s_lshl_b32 s36, s3, 12
    s_add_u32 s36, s36, {OFF_TW}
    buffer_store_dwordx4 {vr(TMP+16,4)}, v6, s[24:27], s36 offen
    buffer_store_dwordx4 {vr(TMP+20,4)}, v6, s[24:27], s36 offen offset:1024
    buffer_store_dwordx4 {vr(TMP+24,4)}, v6, s[24:27], s36 offen offset:2048
    buffer_store_dwordx4 {vr(TMP+28,4)}, v6, s[24:27], s36 offen offset:3072
    s_branch k1_B_notw
    """)
    a.label("k1_B_a32")
    a("""
    s_cmp_eq_u32 s3, 4
    s_cbranch_scc0 k1_B_notw
    """)
    for blk in range(8):
        a(f"s_mov_b32 s36, {OFF_A32+blk*1024}")
        a(f"buffer_store_dwordx4 {vr(A32+4*blk,4)}, v6, s[24:27], s36 offen")
    a.label("k1_B_notw")
    a(f"""
    v_bfe_u32 v{TMP}, v1, 2, 2       ; r4
    v_and_b32 v{TMP+1}, 1, v{TMP}
    v_mul_u32_u24 v{TMP+1}, {XR_STRIDE}, v{TMP+1}
    v_lshrrev_b32 v{TMP+2}, 1, v{TMP}
    v_lshl_add_u32 v{TMP+2}, v{VQ}, 2, v{TMP+2}    ; 4q + (r4>>1)
    v_lshl_add_u32 v{TMP+1}, v{TMP+2}, 6, v{TMP+1}
    v_and_b32 v{TMP+2}, 3, v1
    v_lshl_add_u32 v{TMP+1}, v{TMP+2}, 3, v{TMP+1}
    s_mul_i32 s30, s3, {4*XR_STRIDE}
    v_add_u32 v7, s30, v{TMP+1}
    """)
    stamp(a,1)
    a("s_waitcnt vmcnt(0)")
    stamp(a,2)
    for pp in range(2):
        for t in range(2):
            a(f"ds_read_b64_tr_b16 {vr(PIN+8*pp+4*t,2)}, v7 offset:{pp*2*XR_STRIDE+t*32}")
            a(f"ds_read_b64_tr_b16 {vr(PIN+8*pp+4*t+2,2)}, v7 offset:{pp*2*XR_STRIDE+t*32+128}")
    for j in range(4): a(f"v_lshl_or_b32 v{WOL+j}, v{WOH+j}, 16, v{WOL+j}")
    a(f"""
    s_lshl_b32 s32, s32, 10
    s_add_u32 s32, s32, {OFF_WOF}
    buffer_store_dwordx4 {vr(WOL,4)}, v6, s[24:27], s32 offen
    """)
    a(f"""
    s_cmp_eq_u32 s39, 1
    s_cbranch_scc0 k1_B_noab2
    """)
    for k in range(8): a(f"v_lshlrev_b32 v{ABL+k}, 16, v{ABL+k}")
    a(f"""
    v_add_f32 v{TMP}, v{ABL}, v{ABL+2}        ; 2*Wh0.re
    v_sub_f32 v{TMP+1}, v{ABL+1}, v{ABL+3}    ; 2*Wh0.im
    v_add_f32 v{TMP+2}, v{ABL+4}, v{ABL+6}    ; 2*Wh256.re
    v_sub_f32 v{TMP+3}, v{ABL+5}, v{ABL+7}    ; 2*Wh256.im
    v_add_f32 v{TMP+4}, v{TMP}, v{TMP+2}
    v_add_f32 v{TMP+5}, v{TMP+1}, v{TMP+3}
    v_sub_f32 v{TMP+6}, v{TMP}, v{TMP+2}
    v_sub_f32 v{TMP+7}, v{TMP+1}, v{TMP+3}
    v_mul_f32 v{TMP+4}, 0.25, v{TMP+4}
    v_mul_f32 v{TMP+5}, 0.25, v{TMP+5}
    v_mul_f32 v{TMP+6}, 0.25, v{TMP+6}
    v_mul_f32 v{TMP+7}, 0.25, v{TMP+7}
    v_cvt_pk_bf16_f32 v{TMP+4}, v{TMP+4}, v{TMP+5}
    v_cvt_pk_bf16_f32 v{TMP+5}, v{TMP+6}, v{TMP+7}
    s_lshr_b32 s36, s35, 4
    s_lshl_b32 s36, s36, 2
    s_and_b32 s37, s35, 3
    s_add_u32 s36, s36, s37          ; e
    s_and_b32 s38, s36, 1
    s_lshl_b32 s38, s38, 3           ; (e&1)*8
    s_lshr_b32 s36, s36, 1
    s_lshl_b32 s36, s36, 10          ; ep*1024
    s_add_u32 s36, s36, s38
    s_lshr_b32 s37, s35, 2
    s_and_b32 s37, s37, 3
    s_lshl_b32 s37, s37, 8           ; q*16*16
    s_add_u32 s36, s36, s37
    s_add_u32 s36, s36, {OFF_AB}
    v_lshlrev_b32 v{TMP+8}, 12, v{VQ}
    v_lshl_add_u32 v{TMP+8}, v{VM}, 4, v{TMP+8}
    buffer_store_dwordx2 {vr(TMP+4,2)}, v{TMP+8}, s[24:27], s36 offen
    """)
    a.label("k1_B_noab2")
    a("s_waitcnt lgkmcnt(0)")
    for pp in range(2):
        for t in range(2):
            for part in range(2):
                a(f"v_mfma_f32_16x16x32_bf16 {vr(D1+16*pp+8*t+4*part,4)}, {vr(PIN+8*pp+4*t,4)}, {vr(R16+4*part,4)}, 0")
    a("s_nop 4")
    for pp in range(2):
        for t in range(2):
            twiddle(a, D1+16*pp+8*t, D1+16*pp+8*t+4, TWc+4*t, TWs+4*t, PIN+8*pp+4*t, TMP)
    a("s_nop 1")
    for pp in range(2):
        for tp in range(2):
            for part in range(2):
                d=D2+16*pp+8*tp+4*part
                for t in range(2):
                    A=A32+((tp*2+part)*2+t)*4
                    a(f"v_mfma_f32_16x16x32_bf16 {vr(d,4)}, {vr(A,4)}, {vr(PIN+8*pp+4*t,4)}, {'0' if t==0 else vr(d,4)}")
    a(f"""
    v_lshl_add_u32 v{TMP}, v{VQ}, 6, v{VM}         ; m + 64q
    s_mul_i32 s30, s3, {4*XR_STRIDE}
    v_lshl_add_u32 v{TMP+1}, v{TMP}, 3, s30
    v_sub_u32 v{TMP+2}, {256-48}, v{TMP}            ; 256-48-f0
    v_lshl_add_u32 v{TMP+2}, v{TMP+2}, 3, s30
    v_add_u32 v{TMP+3}, 384, v{TMP+2}               ; i=0 address
    v_cmp_eq_u32 vcc, 0, v1
    v_mov_b32 v{TMP+4}, s30
    s_nop 0
    v_cndmask_b32 v{TMP+3}, v{TMP+3}, v{TMP+4}, vcc ; lane0 -> g=0 (Z[256])
    s_nop 1
    """)
    for pp in range(2):
        for i in range(4):
            a(f"ds_write2_b32 v{TMP+1}, v{D2+16*pp+8+i}, v{D2+16*pp+12+i} offset0:{(pp*2048+i*128)//4 if False else i*32} offset1:{i*32+1}" if pp==0 else
              f"ds_write2_b32 v{TMP+5}, v{D2+16*pp+8+i}, v{D2+16*pp+12+i} offset0:{i*32} offset1:{i*32+1}")
        if pp==0: a(f"v_add_u32 v{TMP+5}, 2048, v{TMP+1}")
    a("s_waitcnt lgkmcnt(0)")
    PR=D1
    for pp in range(2):
        a(f"ds_read_b64 {vr(PR+8*pp,2)}, v{TMP+3} offset:{pp*2048}")
        for i in range(1,4):
            a(f"ds_read_b64 {vr(PR+8*pp+2*i,2)}, v{TMP+2} offset:{pp*2048+(3-i)*128}")
    a(f"""
    v_lshrrev_b32 v{TMP+6}, 1, v{VM}               ; (f>>1)&7 = m>>1
    v_xor_b32 v{TMP+6}, s3, v{TMP+6}               ; wave ^ (m>>1)
    v_lshlrev_b32 v{TMP+6}, 4, v{TMP+6}
    v_lshl_add_u32 v{TMP+6}, v{TMP}, 7, v{TMP+6}
    v_add_u32 v{TMP+6}, {B1_MB}, v{TMP+6}
    s_waitcnt lgkmcnt(0)
    """)
    O=TMP+8
    for pp in range(2):
        for i in range(4):
            zr,zi=D2+16*pp+i, D2+16*pp+4+i
            pr,pi=PR+8*pp+2*i, PR+8*pp+2*i+1
            a(f"v_add_f32 v{O}, v{zr}, v{pr}")
            a(f"v_sub_f32 v{O+1}, v{zi}, v{pi}")
            a(f"v_add_f32 v{O+2}, v{zi}, v{pi}")
            a(f"v_sub_f32 v{O+3}, v{pr}, v{zr}")
            if i==0:
                a(f"v_add_f32 v{O+4}, v{zr}, v{zr}")
                a(f"v_add_f32 v{O+5}, v{pr}, v{pr}")
                a(f"v_add_f32 v{O+6}, v{zi}, v{zi}")
                a(f"v_add_f32 v{O+7}, v{pi}, v{pi}")
                for k in range(4): a(f"v_cndmask_b32 v{O+k}, v{O+k}, v{O+4+k}, vcc")
            o2=O+8+2*((pp*4+i)%4)
            a(f"v_cvt_pk_bf16_f32 v{o2}, v{O}, v{O+1}")
            a(f"v_cvt_pk_bf16_f32 v{o2+1}, v{O+2}, v{O+3}")
            a(f"ds_write_b64 v{TMP+6}, {vr(o2,2)} offset:{i*2048+pp*8}")
    a(f"""
    v_bfe_u32 v{TMP}, v1, 2, 2                     ; r4
    v_lshrrev_b32 v{TMP+1}, 1, v{TMP}
    v_mul_u32_u24 v{TMP+1}, {XR_STRIDE}, v{TMP+1}
    v_and_b32 v{TMP+2}, 1, v{TMP}
    v_lshl_add_u32 v{TMP+1}, v{TMP+2}, 9, v{TMP+1}
    v_lshl_add_u32 v{TMP+1}, v{VQ}, 5, v{TMP+1}
    v_and_b32 v{TMP+2}, 3, v1
    v_lshl_add_u32 v{TMP+1}, v{TMP+2}, 3, v{TMP+1} ; + c4*8
    s_mul_i32 s30, s3, {4*XR_STRIDE}
    s_add_u32 s30, s30, {B1_WTL}
    v_add_u32 v{TMP+1}, s30, v{TMP+1}
    """)
    for jj in range(4):
        a(f"ds_read_b64_tr_b16 {vr(D1+4*jj,2)}, v{TMP+1} offset:{jj*128}")
        a(f"ds_read_b64_tr_b16 {vr(D1+4*jj+2,2)}, v{TMP+1} offset:{jj*128+2*XR_STRIDE}")
    a(f"""
    v_and_b32 v{TMP+2}, 7, v1
    v_xor_b32 v{TMP+2}, s3, v{TMP+2}
    v_lshlrev_b32 v{TMP+2}, 4, v{TMP+2}
    v_lshl_add_u32 v{TMP+2}, v1, 7, v{TMP+2}
    v_add_u32 v{TMP+2}, {B1_MBW}, v{TMP+2}
    """)
    for jj in range(4):
        a(f"s_waitcnt lgkmcnt({6-2*jj})")
        a(f"ds_write_b128 v{TMP+2}, {vr(D1+4*jj,4)} offset:{jj*8192}")
    a("""
    s_waitcnt lgkmcnt(0)
    s_barrier
    """)
    a(f"""
    v_lshrrev_b32 v{TMP}, 3, v1
    v_and_b32 v{TMP+1}, 7, v1
    s_lshl_b32 s30, s3, 5
    v_add_u32 v{TMP+2}, s30, v{TMP}                ; f
    v_xor_b32 v{TMP+3}, v{TMP}, v{TMP+1}
    v_lshlrev_b32 v{TMP+3}, 4, v{TMP+3}
    v_lshl_add_u32 v{TMP+3}, v{TMP+2}, 7, v{TMP+3}
    v_add_u32 v{TMP+3}, {B1_MBW}, v{TMP+3}
    v_lshlrev_b32 v{TMP+5}, 13, v{TMP+2}
    v_lshl_add_u32 v{TMP+5}, v{TMP+1}, 4, v{TMP+5} ; f*8192 + c8*16
    s_and_b32 s31, s18, 7
    s_lshr_b32 s32, s31, 1
    s_lshl_b32 s32, s32, 11
    s_and_b32 s31, s31, 1
    s_lshl_b32 s31, s31, 7
    s_add_u32 s32, s32, s31
    s_lshr_b32 s31, s18, 5
    s_lshl_b32 s31, s31, 10
    s_add_u32 s32, s32, s31
    s_lshr_b32 s31, s18, 3
    s_and_b32 s31, s31, 3
    s_lshl_b32 s31, s31, 8
    s_add_u32 s32, s32, s31
    s_add_u32 s32, s32, {OFF_WT}
    """)
    for jj in range(4):
        a(f"ds_read_b128 {vr(D1+4*jj,4)}, v{TMP+3} offset:{jj*1024}")
    for jj in range(4):
        a(f"s_waitcnt lgkmcnt({3-jj})")
        a(f"s_add_u32 s31, s32, {jj*8*8192}")
        a(f"buffer_store_dwordx4 {vr(D1+4*jj,4)}, v{TMP+5}, s[24:27], s31 offen")
    a(f"""
    v_lshrrev_b32 v{TMP}, 3, v1                    ; fl
    v_and_b32 v{TMP+1}, 7, v1                      ; c8
    s_lshl_b32 s30, s3, 5
    v_add_u32 v{TMP+2}, s30, v{TMP}                ; f (jj=0)
    v_lshrrev_b32 v{TMP+3}, 1, v{TMP}
    v_xor_b32 v{TMP+3}, v{TMP+3}, v{TMP+1}
    v_lshlrev_b32 v{TMP+3}, 4, v{TMP+3}
    v_lshl_add_u32 v{TMP+3}, v{TMP+2}, 7, v{TMP+3}
    v_add_u32 v{TMP+3}, {B1_MB}, v{TMP+3}
    v_xor_b32 v{TMP+4}, 64, v{TMP+3}
    v_lshlrev_b32 v{TMP+5}, 13, v{TMP+2}
    v_lshl_add_u32 v{TMP+5}, v{TMP+1}, 4, v{TMP+5} ; f*8192 + c8*16
    s_lshl_b32 s31, s19, 8
    s_lshl_b32 s32, s28, 7
    s_add_u32 s31, s31, s32
    s_add_u32 s31, s31, {OFF_Z}
    """)
    for jj in range(4):
        a(f"ds_read_b128 {vr(D2+4*jj,4)}, v{TMP+3+(jj&1)} offset:{jj*1024}")
    for jj in range(4):
        a(f"s_waitcnt lgkmcnt({3-jj})")
        a(f"s_add_u32 s32, s31, {jj*8*8192}")
        a(f"buffer_store_dwordx4 {vr(D2+4*jj,4)}, v{TMP+5}, s[24:27], s32 offen")
    if asm.STAMP and not asm.F12:
        stamp(a,3); a("s_waitcnt vmcnt(0)"); stamp(a,4); stamp_dump(a,0)
    fin(a)

def build_k1(a=None):
    own = a is None
    if own: a=Asm()
    k1_prologue(a)
    k1_loader(a)
    k1_compute(a)
    k1_B(a)
    a.sc_srd=None
    if own:
        a.label("k1_end")
        a("s_endpgm")
    return a
```

```python
import asm
from asm import *
from layout import *
from k1 import srd, twiddle
import os
VAR=set(os.environ.get("VAR","").split(","))
def opt(name,default):
    for v in VAR:
        if v.startswith(name+"="): return int(v.split("=")[1])
    return default
K2_COL=135168
K2_E=K2_COL+8192
K2_LDS=163840
K2_CNT=163840-64
THRESH2=4096.0/1.03
NB=opt("NB",30)
NA=64-NB
PUBIT=opt("PUBIT",4)
XB=opt("XB",12)

VK,VV,VIDX=2,3,4
Q=[8,12]; S=[16,32]; O=[48,64]
F=[(80,84,88),(92,96,100)]
TMP=104
T64,A32,TW,WT,BUF,D1,P=112,144,176,192,200,232,248
X2=200
CI=[112,128]
VM,VQd=108,109
WOR=144

def expo(a,r): a(f"v_exp_f32 v{r}, v{r}")

def unit(a,tp,qt,fb):
    Sc,Sn=S[qt],S[1-qt]
    def pv(Ob,V,B): a(f"v_smfmac_f32_32x32x32_bf16 {vr(Ob,16)}, {vr(V,4)}, {vr(B,8)}, v{VIDX}")
    def qk(Sd,K,qq): a(f"v_mfma_f32_32x32x16_bf16 {vr(Sd,16)}, {vr(K,4)}, {vr(Q[qq],4)}, {vr(CI[qq],16) if fb else '0'}")
    if qt==0:
        Kc,V0c,V1c=F[tp]; Kn,V0n,V1n=F[1-tp]
        expo(a,Sc); expo(a,Sc+1)
        pv(O[1],V1n,Sn+8)
        a(f"ds_read_b128 {vr(Kn,4)}, v{VK} offset:{(tp+1)*KV_TILE}")
        expo(a,Sc+2)
        a(f"ds_read_b128 {vr(V0n,4)}, v{VV} offset:{(tp+1)*KV_TILE+512}")
        expo(a,Sc+3)
        a(f"ds_read_b128 {vr(V1n,4)}, v{VV} offset:{(tp+1)*KV_TILE+784}")
        expo(a,Sc+4); expo(a,Sc+5)
        qk(Sn,Kc,1)
        for i in range(6,12): expo(a,Sc+i)
        pv(O[0],V0c,Sc)
        for i in range(12,16): expo(a,Sc+i)
    else:
        Kc,V0c,V1c=F[tp]; Kn,V0n,V1n=F[1-tp]
        expo(a,Sc); expo(a,Sc+1)
        pv(O[0],V1c,Sn+8)
        for i in range(2,6): expo(a,Sc+i)
        a("s_waitcnt lgkmcnt(0)")
        qk(Sn,Kn,0)
        for i in range(6,12): expo(a,Sc+i)
        pv(O[1],V0c,Sc)
        for i in range(12,16): expo(a,Sc+i)

def bbar(a,tag,cnt=0):
    a(f"""
    v_mov_b32 v111, {K2_CNT+cnt}
    v_mov_b32 v110, 1
    s_waitcnt lgkmcnt(0)
    s_mov_b64 exec, 1
    ds_add_u32 v111, v110
    s_mov_b64 exec, -1
    s_add_u32 s47, s47, 4
    """)
    a.label(f"k2_bbar_{tag}")
    a(f"""
    ds_read_b32 v109, v111
    s_waitcnt lgkmcnt(0)
    v_readfirstlane_b32 s48, v109
    s_nop 0
    s_cmp_lt_u32 s48, s47
    s_cbranch_scc1 k2_bbar_{tag}
    """)

def dma_arrive(a):
    a(f"""
    s_waitcnt vmcnt(0)
    v_mov_b32 v{TMP}, {K2_CNT+4}
    v_mov_b32 v{TMP+1}, 1
    s_mov_b64 exec, 1
    ds_add_u32 v{TMP}, v{TMP+1}
    s_mov_b64 exec, -1
    """)
def dma_wait(a,tag):
    a(f"v_mov_b32 v{TMP}, {K2_CNT+4}")
    a.label(f"k2_dwait_{tag}")
    a(f"""
    ds_read_b32 v{TMP+1}, v{TMP}
    s_waitcnt lgkmcnt(0)
    v_readfirstlane_b32 s48, v{TMP+1}
    s_nop 0
    s_cmp_lt_u32 s48, 8
    s_cbranch_scc1 k2_dwait_{tag}
    """)

def kv_dma(a, ns):
    for n in ns:
        a(f"s_add_u32 m0, s34, {n*1024}")
        a(f"s_add_u32 s36, s35, {n*1024}")
        a(f"buffer_load_dwordx4 v{TMP}, s[20:23], s36 offen lds")

def b2_part1(a):
    dma_arrive(a)
    a(f"""
    v_and_b32 v{VM}, 15, v1
    v_lshrrev_b32 v{VQd}, 4, v1
    v_xor_b32 v104, v{VM}, v{VQd}
    v_lshlrev_b32 v104, 4, v104
    v_lshl_add_u32 v104, v{VM}, 8, v104
    v_add_u32 v104, {K2_COL}, v104
    v_xor_b32 v105, 64, v104
    v_xor_b32 v106, 128, v104
    v_xor_b32 v107, 192, v104
    """)
    for u in range(4):
        for t in range(2):
            a(f"ds_read_b128 {vr(BUF+16*t+4*u,4)}, v{104+u} offset:{t*4096}")
    for u in range(4):
        a(f"s_waitcnt lgkmcnt({6-2*u})")
        for t in range(2):
            for part in range(2):
                d=D1+8*t+4*part
                a(f"v_mfma_f32_16x16x32_bf16 {vr(d,4)}, {vr(BUF+16*t+4*u,4)}, {vr(T64+8*u+4*part,4)}, {'0' if u==0 else vr(d,4)}")
    a("""
    s_cmp_eq_u32 s28, 0
    s_cbranch_scc0 k2_p1_noab
    """)
    a(f"v_lshlrev_b32 v110, 4, v1")
    a(f"s_lshl_b32 s36, s3, 12")
    a(f"s_add_u32 s36, s36, {OFF_AB}")
    for ep in range(4):
        a(f"buffer_load_dwordx4 {vr(216+4*ep,4)}, v110, s[20:23], s36 offen offset:{ep*1024}")
    a.label("k2_p1_noab")
    a("s_nop 6")
    for t in range(2):
        twiddle(a, D1+8*t, D1+8*t+4, TW+4*t, TW+8+4*t, P+4*t, 104)
    a("s_nop 1")
    for t in range(2):
        for tp in range(2):
            for part in range(2):
                d=X2+8*tp+4*part
                a(f"v_mfma_f32_16x16x32_bf16 {vr(d,4)}, {vr(A32+((tp*2+part)*2+t)*4,4)}, {vr(P+4*t,4)}, {'0' if t==0 else vr(d,4)}")

def b2_part2(a):
    a("s_waitcnt vmcnt(0)")
    a("""
    s_cmp_eq_u32 s28, 0
    s_cbranch_scc1 k2_p2_special
    """)
    for tp in range(2):
        xr,xi=X2+8*tp,X2+8*tp+4
        wr,wi=D1+8*tp,D1+8*tp+4
        for i in range(4):
            a(f"v_lshlrev_b32 v{wr+i}, 16, v{WT+4*tp+i}")
            a(f"v_and_b32 v{wi+i}, 0xffff0000, v{WT+4*tp+i}")
        for p in (0,2):
            a(f"v_pk_mul_f32 {vr(104+p,2)}, {vr(xr+p,2)}, {vr(wr+p,2)}")
            a(f"v_pk_mul_f32 {vr(108+p,2)}, {vr(xr+p,2)}, {vr(wi+p,2)}")
        for p in (0,2):
            a(f"v_pk_fma_f32 {vr(104+p,2)}, {vr(xi+p,2)}, {vr(wi+p,2)}, {vr(104+p,2)} neg_lo:[1,0,0] neg_hi:[1,0,0]")
            a(f"v_pk_fma_f32 {vr(108+p,2)}, {vr(xi+p,2)}, {vr(wr+p,2)}, {vr(108+p,2)}")
        for i in range(4): a(f"v_cvt_pk_bf16_f32 v{P+4*tp+i}, v{104+i}, -v{108+i}")
    a.label("k2_p2_common")
    a("s_nop 1")
    for tp in range(2):
        for t in range(2):
            for part in range(2):
                d=D1+8*t+4*part
                a(f"v_mfma_f32_16x16x32_bf16 {vr(d,4)}, {vr(A32+((t*2+part)*2+tp)*4,4)}, {vr(P+4*tp,4)}, {'0' if tp==0 else vr(d,4)}")
    t0=X2
    a(f"""
    v_and_b32 v{t0}, 15, v1                 ; m
    v_lshrrev_b32 v{t0+1}, 4, v1            ; q
    v_lshrrev_b32 v{t0+2}, 2, v{t0}         ; m>>2
    s_lshl_b32 s36, s3, 2
    v_add_u32 v{t0+2}, s36, v{t0+2}         ; 4w + (m>>2)
    v_lshlrev_b32 v{t0+3}, 2, v{t0+1}       ; 4q
    v_xor_b32 v{t0+2}, v{t0+2}, v{t0+3}
    v_lshlrev_b32 v{t0+2}, 4, v{t0+2}
    v_lshl_add_u32 v{t0+2}, v{t0+3}, 8, v{t0+2}
    v_and_b32 v{t0+4}, 3, v{t0}
    v_lshl_add_u32 v{t0+2}, v{t0+4}, 2, v{t0+2}
    v_add_u32 v{t0+8}, {K2_E}, v{t0+2}
    v_xor_b32 v{t0+9}, 16, v{t0+8}
    v_xor_b32 v{t0+10}, 32, v{t0+8}
    v_xor_b32 v{t0+11}, 48, v{t0+8}
    """)
    for t in range(2):
        twiddle(a, D1+8*t, D1+8*t+4, TW+4*t, TW+8+4*t, P+4*t, 104)
    for t in range(2):
        for i in range(4):
            a(f"ds_write_b32 v{t0+8+i}, v{P+4*t+i} offset:{t*4096+i*256}")
    bbar(a,"e")
    a(f"""
    v_and_b32 v{VM}, 15, v1
    v_lshrrev_b32 v{VQd}, 4, v1
    v_xor_b32 v104, v{VM}, v{VQd}
    v_lshlrev_b32 v104, 4, v104
    v_lshl_add_u32 v104, v{VM}, 8, v104
    v_add_u32 v104, {K2_E}, v104
    v_xor_b32 v105, 64, v104
    v_xor_b32 v106, 128, v104
    v_xor_b32 v107, 192, v104
    """)
    for u in range(4):
        for t in range(2):
            a(f"ds_read_b128 {vr(BUF+16*t+4*u,4)}, v{104+u} offset:{t*4096}")
    a(f"""
    v_lshlrev_b32 v110, 8, v{VM}
    v_lshl_add_u32 v110, v{VQd}, 4, v110
    s_lshl_b32 s36, s28, 13
    s_lshl_b32 s37, s3, 6
    s_add_u32 s36, s36, s37
    s_add_u32 s36, s36, {OFF_Y}
    """)
    for u in range(4):
        a(f"s_waitcnt lgkmcnt({6-2*u})")
        for t in range(2):
            for part in range(2):
                d=D1+8*t+4*part
                a(f"v_mfma_f32_16x16x32_bf16 {vr(d,4)}, {vr(T64+8*u+4*part,4)}, {vr(BUF+16*t+4*u,4)}, {'0' if u==0 else vr(d,4)}")
    a("s_nop 7")
    for t in range(2):
        for i in range(4): a(f"v_cvt_pk_bf16_f32 v{P+4*t+i}, v{D1+8*t+i}, -v{D1+8*t+4+i}")
        a.sc_srd="s[20:23]"
        a(f"buffer_store_dwordx4 {vr(P+4*t,4)}, v110, s[20:23], s36 offen")
        a.sc_srd=a.p1
        if t==0: a("s_add_u32 s36, s36, 4096")
    dma_wait(a,"b2")
    a("s_setpc_b64 s[60:61]")
    a.label("k2_p2_special")
    bbar(a,"s0")
    XCH=K2_COL
    a(f"""
    v_and_b32 v104, 15, v1
    v_lshrrev_b32 v105, 4, v1
    s_lshl_b32 s36, s3, 4
    v_add_u32 v104, s36, v104                 ; k1
    v_lshl_add_u32 v104, v105, 8, v104         ; g0 = k1 + 64*4q
    v_lshlrev_b32 v106, 3, v104
    v_add_u32 v106, {XCH}, v106
    """)
    for tp in range(2):
        for i in range(4):
            off=(i*64+tp*1024)*8
            a(f"ds_write_b32 v106, v{X2+8*tp+i} offset:{off}")
            a(f"ds_write_b32 v106, v{X2+8*tp+4+i} offset:{off+4}")
    bbar(a,"s1")
    for tp in range(2):
        for i in range(4):
            e=4*tp+i
            a(f"v_sub_u32 v107, {2048-(i*64+tp*1024)}, v104")
            a(f"v_and_b32 v107, 2047, v107")
            a(f"v_lshlrev_b32 v107, 3, v107")
            a(f"v_add_u32 v107, {XCH}, v107")
            a(f"ds_read_b64 {vr(D1+2*e,2)}, v107")
    bbar(a,"s2")
    for tp in range(2):
        for i in range(4):
            e=4*tp+i
            src=216+2*e
            ab=WT
            a(f"v_lshlrev_b32 v{ab}, 16, v{src}")
            a(f"v_and_b32 v{ab+1}, 0xffff0000, v{src}")
            a(f"v_lshlrev_b32 v{ab+2}, 16, v{src+1}")
            a(f"v_and_b32 v{ab+3}, 0xffff0000, v{src+1}")
            zr,zi=X2+8*tp+i,X2+8*tp+4+i
            pr,pi=D1+2*e,D1+2*e+1
            a(f"v_mul_f32 v104, v{zr}, v{ab}")
            a(f"v_mul_f32 v105, v{zr}, v{ab+1}")
            a(f"v_fma_f32 v104, -v{zi}, v{ab+1}, v104")
            a(f"v_fma_f32 v105, v{zi}, v{ab}, v105")
            a(f"v_fma_f32 v104, v{pr}, v{ab+2}, v104")
            a(f"v_fma_f32 v105, v{pr}, v{ab+3}, v105")
            a(f"v_fma_f32 v104, v{pi}, v{ab+3}, v104")
            a(f"v_fma_f32 v105, -v{pi}, v{ab+2}, v105")
            a(f"v_cvt_pk_bf16_f32 v{P+e}, v104, -v105")
    a("s_branch k2_p2_common")


def rounds():
    nA0=NB*KV_TILE//1024
    st1=[0,nA0,8,nA0+8]
    rest=[]
    n=16
    while n<nA0:
        rest.append(min(n,nA0-8) if n+8>nA0 else n); n+=8
    n=nA0+16
    while n<132:
        rest.append(min(n,124)); n+=8
    lo=[r for r in rest if r<nA0]; hi=[r for r in rest if r>=nA0]
    out=[]
    while lo or hi:
        if lo: out.append(lo.pop(0))
        if hi: out.append(hi.pop(0))
    return st1,out

def attn_loop(a,fb):
    sfx="_fb" if fb else ""
    a.label("k2_loop"+sfx)
    if not fb:
        a("""
        s_cmp_eq_u32 s42, s40
        s_cbranch_scc1 k2_hook
        """)
        a.label("k2_hookret")
    unit(a,0,0,fb); unit(a,0,1,fb); unit(a,1,0,fb); unit(a,1,1,fb)
    a(f"""
    v_add_u32 v{VK}, {2*KV_TILE}, v{VK}
    v_add_u32 v{VV}, {2*KV_TILE}, v{VV}
    s_add_u32 s42, s42, 1
    s_cmp_lt_u32 s42, s43
    s_cbranch_scc1 k2_loop{sfx}
    """)

def pipe_prologue(a,fb):
    K,V0,V1=F[0]
    a(f"""
    ds_read_b128 {vr(K,4)}, v{VK}
    ds_read_b128 {vr(V0,4)}, v{VV} offset:512
    ds_read_b128 {vr(V1,4)}, v{VV} offset:784
    s_waitcnt lgkmcnt(2)
    v_mfma_f32_32x32x16_bf16 {vr(S[0],16)}, {vr(K,4)}, {vr(Q[0],4)}, {vr(CI[0],16) if fb else '0'}
    s_mov_b32 s42, 0
    s_waitcnt lgkmcnt(0)
    s_nop 11
    """)

def poll(a,tag,nloads,addr_regs,srdreg="s[20:23]",soff="0"):
    a(f"s_mov_b32 s49, 0x20000")
    a.label(f"poll_{tag}")
    for k in range(nloads):
        a(f"buffer_load_dword v{addr_regs[k][1]}, v{addr_regs[k][0]}, {srdreg}, {soff} offen")
    a("s_waitcnt vmcnt(0)")
    for k in range(nloads):
        a(f"v_cmp_eq_u32 {'vcc' if k==0 else 's[50:51]'}, s56, v{addr_regs[k][1]}")
        if k>0:
            a("s_nop 1"); a("s_and_b64 vcc, vcc, s[50:51]")
    a(f"""
    s_nop 1
    s_cmp_eq_u64 vcc, -1
    s_cbranch_scc1 poll_{tag}_done
    s_sub_u32 s49, s49, 1
    s_cmp_eq_u32 s49, 0
    s_cbranch_scc1 poll_{tag}_done
    s_sleep 1
    s_branch poll_{tag}
    """)
    a.label(f"poll_{tag}_done")

def get_tag(a,tagname):
    a(f"""
    v_mov_b32 v{TMP}, 0
    s_mov_b32 s49, 0x20000
    """)
    a.label(f"kf_tag_{tagname}")
    a(f"""
    global_load_dword v{TMP+1}, v{TMP}, s[54:55] sc1
    s_waitcnt vmcnt(0)
    v_readfirstlane_b32 s56, v{TMP+1}
    s_sub_u32 s49, s49, 1
    s_cmp_eq_u32 s49, 0
    s_cbranch_scc1 kf_tag_{tagname}_done
    s_cmp_eq_u32 s56, 0
    s_cbranch_scc0 kf_tag_{tagname}_done
    s_sleep 1
    s_branch kf_tag_{tagname}
    """)
    a.label(f"kf_tag_{tagname}_done")

def flag_store(a, soff_expr_reg, vtmp):
    a(f"""
    v_mov_b32 v{vtmp}, 0
    v_mov_b32 v{vtmp+1}, s56
    s_mov_b64 exec, 1
    buffer_store_dword v{vtmp+1}, v{vtmp}, s[20:23], s{soff_expr_reg} offen
    s_mov_b64 exec, -1
    """)

def build_k2(a=None):
    own = a is None
    if own: a=Asm()
    P1="s[20:23]" if asm.F12 else None
    a.sc_srd=P1
    st1,rest=rounds()
    R=len(rest)
    if not asm.F12:
        a(f"""
        s_cmp_ge_u32 s2, 256
        s_cbranch_scc1 k2_end
        s_load_dwordx2 s[16:17], s[0:1], 64      ; ws
        {"s_load_dwordx4 s[52:55], s[0:1], 48      ; out, debug" if asm.F23 else ""}
        v_and_b32 v1, 63, v0
        v_lshrrev_b32 v{TMP}, 6, v0
        s_nop 0
        v_readfirstlane_b32 s3, v{TMP}
        """)
        if asm.F23:
            a("""
            s_or_b32 s57, s2, s3
            s_cmp_eq_u32 s57, 0
            s_cbranch_scc0 kf_nononce
            s_memrealtime s[56:57]
            s_waitcnt lgkmcnt(0)
            s_or_b32 s56, s56, 1
            v_mov_b32 v2, 0
            v_mov_b32 v3, s56
            s_mov_b64 exec, 1
            global_store_dword v2, v3, s[54:55] sc1
            s_mov_b64 exec, -1
            """)
            a.label("kf_nononce")
    stamp(a,0)
    a(f"""
    s_and_b32 s18, s2, 7
    s_lshr_b32 s19, s2, 3
    s_lshl_b32 s29, s18, 2
    s_and_b32 s30, s19, 3
    s_add_u32 s29, s29, s30                  ; hd
    s_lshr_b32 s30, s19, 2                   ; qb
    s_lshl_b32 s28, s18, 5
    s_add_u32 s28, s28, s19                  ; f
    v_lshlrev_b32 v{TMP}, 4, v1              ; lane*16
    s_and_b32 s33, s3, 3                     ; qg
    s_lshl_b32 s31, s30, 3
    s_lshl_b32 s33, s33, 1
    s_add_u32 s31, s31, s33
    s_waitcnt lgkmcnt(0)
    """)
    srd(a,20,16,WS_SIZE)
    if asm.F12:
        a(f"""
        s_cmp_eq_u32 s3, 0
        s_cbranch_scc0 k2_nopoll
        s_lshr_b32 s32, s29, 3                   ; hd>>3
        v_and_b32 v{TMP+1}, 15, v1
        v_lshrrev_b32 v{TMP+2}, 4, v1            ; group 0:K 1:V 2,3:Q
        v_and_b32 v{TMP+3}, 1, v1
        s_lshl_b32 s33, s30, 1
        v_add_u32 v{TMP+3}, s33, v{TMP+3}
        v_cmp_gt_u32 vcc, 2, v{TMP+2}
        v_mov_b32 v{TMP+4}, 4
        v_mov_b32 v{TMP+5}, 8
        v_cndmask_b32 v{TMP+1}, v{TMP+3}, v{TMP+1}, vcc   ; rb
        v_cmp_eq_u32 vcc, 0, v{TMP+2}
        v_mov_b32 v{TMP+6}, 0
        s_nop 0
        v_cndmask_b32 v{TMP+6}, v{TMP+6}, v{TMP+4}, vcc
        v_cmp_eq_u32 vcc, 1, v{TMP+2}
        s_nop 1
        v_cndmask_b32 v{TMP+6}, v{TMP+6}, v{TMP+5}, vcc   ; type*4
        v_add_u32 v{TMP+6}, s32, v{TMP+6}        ; cb
        v_lshl_add_u32 v{TMP+1}, v{TMP+6}, 4, v{TMP+1}
        v_lshlrev_b32 v{TMP+1}, 2, v{TMP+1}
        v_add_u32 v{TMP+1}, {OFF_F1Q}, v{TMP+1}
        v_lshlrev_b32 v{TMP+2}, 2, v1
        v_add_u32 v{TMP+2}, {OFF_F1B}, v{TMP+2}
        """)
        poll(a,"p1",2,[(TMP+1,TMP+3),(TMP+2,TMP+4)])
        a.label("k2_nopoll")
        a("s_barrier")
        stamp(a,9)
    a(f"""
    s_lshl_b32 s32, s29, 16
    s_lshl_b32 s33, s31, 10
    s_add_u32 s32, s32, s33
    s_add_u32 s32, s32, {OFF_Q}
    buffer_load_dwordx4 {vr(Q[0],4)}, v{TMP}, s[20:23], s32 offen
    buffer_load_dwordx4 {vr(Q[1],4)}, v{TMP}, s[20:23], s32 offen offset:1024
    v_lshlrev_b32 v{TMP+1}, 2, v1
    s_lshl_b32 s32, s29, 8
    s_add_u32 s32, s32, {OFF_KN}
    buffer_load_dword v{TMP+2}, v{TMP+1}, s[20:23], s32 offen
    v_lshrrev_b32 v{TMP+3}, 4, v1
    s_lshl_b32 s32, s3, 2
    v_add_u32 v{TMP+4}, s32, v{TMP+3}        ; n2
    v_and_b32 v{TMP+5}, 15, v{TMP+4}
    v_and_b32 v{TMP+6}, 15, v1
    v_xor_b32 v{TMP+5}, v{TMP+5}, v{TMP+6}
    v_lshlrev_b32 v{TMP+5}, 4, v{TMP+5}
    v_lshl_add_u32 v{TMP+5}, v{TMP+4}, 8, v{TMP+5}
    s_lshl_b32 s34, s3, 10                   ; wave*1024
    s_mul_i32 s35, s29, {KV_HEAD}
    s_add_u32 s35, s35, s34
    s_add_u32 s35, s35, {OFF_KV}
    """)
    kv_dma(a,st1[:2])
    a(f"""
    s_lshl_b32 s32, s28, 13
    s_add_u32 s32, s32, {OFF_Z}
    s_add_u32 m0, s34, {K2_COL}
    s_nop 0
    buffer_load_dwordx4 v{TMP+5}, s[20:23], s32 offen lds
    """)
    kv_dma(a,st1[2:])
    a("""
    s_cmp_ge_u32 s3, 4
    s_cbranch_scc1 k2_loadA
    """)
    a(f"s_lshl_b32 s36, s3, 13")
    a(f"s_add_u32 s36, s36, {OFF_T64}")
    for k in range(8):
        a(f"buffer_load_dwordx4 {vr(T64+4*k,4)}, v{TMP}, s[20:23], s36 offen offset:{(k%4)*1024}")
        if k==3: a("s_add_u32 s36, s36, 4096")
    a(f"s_lshl_b32 s36, s3, 12")
    a(f"s_add_u32 s36, s36, {OFF_TW}")
    for k in range(4):
        a(f"buffer_load_dwordx4 {vr(TW+4*k,4)}, v{TMP}, s[20:23], s36 offen offset:{k*1024}")
    a(f"s_mov_b32 s36, {OFF_A32}")
    for k in range(8):
        a(f"buffer_load_dwordx4 {vr(A32+4*k,4)}, v{TMP}, s[20:23], s36 offen offset:{(k%4)*1024}")
        if k==3: a("s_add_u32 s36, s36, 4096")
    a(f"""
    s_lshl_b32 s36, s28, 13
    s_lshl_b32 s37, s3, 11
    s_add_u32 s36, s36, s37
    s_add_u32 s36, s36, {OFF_WT}
    buffer_load_dwordx4 {vr(WT,4)}, v{TMP}, s[20:23], s36 offen
    buffer_load_dwordx4 {vr(WT+4,4)}, v{TMP}, s[20:23], s36 offen offset:1024
    """)
    kv_dma(a,rest)
    a(f"""
    s_waitcnt vmcnt({22+R})
    s_branch k2_loaded
    """)
    a.label("k2_loadA")
    kv_dma(a,rest)
    a(f"s_waitcnt vmcnt({R})")
    a.label("k2_loaded")
    for qq in range(2):
        acc=TMP+5+qq
        for k in range(4):
            a(f"v_lshlrev_b32 v{TMP+3}, 16, v{Q[qq]+k}")
            a(f"v_and_b32 v{TMP+4}, 0xffff0000, v{Q[qq]+k}")
            a(f"v_mul_f32 v{acc}, v{TMP+3}, v{TMP+3}" if k==0 else f"v_fmac_f32 v{acc}, v{TMP+3}, v{TMP+3}")
            a(f"v_fmac_f32 v{acc}, v{TMP+4}, v{TMP+4}")
    a(f"""
    s_nop 1
    v_permlane32_swap_b32 v{TMP+5}, v{TMP+6}
    s_nop 1
    v_add_f32 v{TMP+5}, v{TMP+5}, v{TMP+6}
    """)
    for sh in ("row_shr:1","row_shr:2","row_shr:4","row_shr:8"):
        a("s_nop 0")
        a(f"v_max_f32_dpp v{TMP+2}, v{TMP+2}, v{TMP+2} {sh} row_mask:0xf bank_mask:0xf bound_ctrl:0")
        a(f"v_max_f32_dpp v{TMP+5}, v{TMP+5}, v{TMP+5} {sh} row_mask:0xf bank_mask:0xf bound_ctrl:0")
    for sh in ("row_bcast:15 row_mask:0xa","row_bcast:31 row_mask:0xc"):
        a("s_nop 0")
        a(f"v_max_f32_dpp v{TMP+2}, v{TMP+2}, v{TMP+2} {sh} bank_mask:0xf")
        a(f"v_max_f32_dpp v{TMP+5}, v{TMP+5}, v{TMP+5} {sh} bank_mask:0xf")
    a(f"""
    s_nop 0
    v_mul_f32 v{TMP+2}, v{TMP+2}, v{TMP+5}
    s_nop 0
    v_readlane_b32 s38, v{TMP+2}, 63
    v_and_b32 v{TMP+3}, 31, v1
    v_lshrrev_b32 v{TMP+4}, 5, v1
    v_mul_u32_u24 v{TMP+4}, 1056, v{TMP+4}
    v_lshl_add_u32 v{VK}, v{TMP+3}, 4, v{TMP+4}
    s_cmp_lt_u32 s3, 4
    s_cselect_b32 s36, 0, {NB*KV_TILE}
    s_cselect_b32 s43, {NB//2}, {NA//2}       ; iterations
    s_mov_b32 s40, 2
    v_add_u32 v{VK}, s36, v{VK}
    v_cmp_gt_u32 vcc, 17, v{TMP+3}
    v_mov_b32 v{TMP+4}, 0x40000
    v_mov_b32 v{VIDX}, 0xdddd
    v_cndmask_b32 v{VV}, v{TMP+4}, v{VK}, vcc
    """)
    for qq in range(2):
        for i in range(16): a(f"v_mov_b32 v{O[qq]+i}, 0")
    for i in range(8): a(f"v_mov_b32 v{S[1]+8+i}, 0")
    for i in range(4): a(f"v_mov_b32 v{F[1][2]+i}, 0")
    if "nohook" in VAR:
        a("s_waitcnt vmcnt(0)"); a("s_mov_b32 s40, 99")
    a(f"""
    v_mov_b32 v{TMP+3}, {K2_CNT}
    v_mov_b32 v{TMP+4}, 0
    v_mov_b32 v{TMP+5}, 0
    v_mov_b32 v{TMP+6}, 0
    v_mov_b32 v{TMP+7}, 0
    s_mov_b32 s47, 0
    s_cmp_eq_u32 s3, 0
    s_cbranch_scc0 k2_noinit
    ds_write_b128 v{TMP+3}, {vr(TMP+4,4)}
    s_waitcnt lgkmcnt(0)
    """)
    a.label("k2_noinit")
    stamp(a,1)
    a("s_barrier")
    a("""
    s_cmp_lt_u32 s3, 4
    s_cbranch_scc1 k2_prioB
    s_setprio 1
    s_branch k2_priodone
    """)
    a.label("k2_prioB")
    a("s_setprio 2" if "noprio" not in VAR else "s_setprio 0")
    a.label("k2_priodone")
    if "soloA" in VAR:
        a("s_cmp_lt_u32 s3, 4"); a("s_cbranch_scc1 k2_end")
    stamp(a,2)
    a(f"""
    s_cmp_le_u32 s38, {hex(f2u(THRESH2))}
    s_cbranch_scc0 k2_fallback
    """)
    pipe_prologue(a,False)
    attn_loop(a,False)
    a.label("k2_tail")
    stamp(a,6)
    a(f"""
    s_nop 1
    v_smfmac_f32_32x32x32_bf16 {vr(O[1],16)}, {vr(F[1][2],4)}, {vr(S[1]+8,8)}, v{VIDX}
    s_setprio 0
    s_mul_i32 s36, s3, 2304
    s_add_u32 s37, s36, {K2_E+8192-3*2304}
    s_add_u32 s36, s36, {K2_COL}
    s_cmp_lt_u32 s3, 3
    s_cselect_b32 s36, s36, s37
    s_xor_b32 s44, s3, 4
    s_mul_i32 s45, s44, 2304
    s_add_u32 s46, s45, {K2_E+8192-3*2304}
    s_add_u32 s45, s45, {K2_COL}
    s_cmp_lt_u32 s44, 3
    s_cselect_b32 s45, s45, s46
    v_lshlrev_b32 v{TMP}, 4, v1
    v_lshlrev_b32 v{TMP+1}, 2, v1
    v_add_u32 v{TMP+2}, s36, v{TMP}
    v_add_u32 v{TMP+3}, s36, v{TMP+1}
    v_add_u32 v{TMP+4}, s45, v{TMP}
    v_add_u32 v{TMP+5}, s45, v{TMP+1}
    s_cmp_lt_u32 s3, 4
    s_cbranch_scc1 k2_tailB
    """)
    a(f"""
    s_nop 9
    ds_write_b128 v{TMP+2}, {vr(O[0],4)}
    ds_write_b128 v{TMP+2}, {vr(O[0]+4,4)} offset:1024
    ds_write_b32 v{TMP+3}, v{O[0]+8} offset:2048
    s_nop 7
    """)
    for i in range(9): a(f"v_mov_b32 v{O[0]+i}, v{O[1]+i}")
    a("""
    s_add_u32 s31, s31, 1
    s_branch k2_tail2
    """)
    a.label("k2_tailB")
    a(f"""
    s_nop 15
    s_nop 3
    ds_write_b128 v{TMP+2}, {vr(O[1],4)}
    ds_write_b128 v{TMP+2}, {vr(O[1]+4,4)} offset:1024
    ds_write_b32 v{TMP+3}, v{O[1]+8} offset:2048
    """)
    a.label("k2_tail2")
    a(f"""
    s_waitcnt lgkmcnt(0)
    {"" if "soloA" in VAR else "s_barrier"}
    ds_read_b128 {vr(S[0],4)}, v{TMP+4}
    ds_read_b128 {vr(S[0]+4,4)}, v{TMP+4} offset:1024
    ds_read_b32 v{S[0]+8}, v{TMP+5} offset:2048
    s_lshl_b32 s36, s31, 5
    s_add_u32 s36, s36, s29
    s_lshl_b32 s36, s36, 10
    s_add_u32 s36, s36, {OFF_O}
    s_waitcnt lgkmcnt(0)
    """)
    for i in range(9): a(f"v_add_f32 v{O[0]+i}, v{O[0]+i}, v{S[0]+i}")
    a(f"""
    v_mov_b32 v{TMP+1}, v{O[0]+8}
    v_mov_b32 v{TMP+2}, v{O[0]+8}
    s_nop 1
    v_permlane32_swap_b32 v{TMP+1}, v{TMP+2}
    s_nop 1
    v_rcp_f32 v{TMP+1}, v{TMP+1}
    s_nop 0
    """)
    for i in range(8): a(f"v_mul_f32 v{O[0]+i}, v{O[0]+i}, v{TMP+1}")
    for i in range(4): a(f"v_cvt_pk_bf16_f32 v{TMP+4+i}, v{O[0]+2*i}, v{O[0]+2*i+1}")
    a.sc_srd="s[20:23]"
    a(f"buffer_store_dwordx4 {vr(TMP+4,4)}, v{TMP}, s[20:23], s36 offen")
    if asm.F23:
        a("""
        s_waitcnt vmcnt(0)
        s_barrier
        """)
        stamp(a,8)
        a(f"""
        s_cmp_eq_u32 s3, 0
        s_cbranch_scc0 ph3_start
        s_lshl_b32 s36, s30, 5
        s_add_u32 s36, s36, s29
        s_lshl_b32 s36, s36, 2
        s_add_u32 s36, s36, {OFF_F2}
        """)
        flag_store(a,36,TMP)
        a("s_branch ph3_start")
    else:
        if asm.STAMP:
            a("s_waitcnt vmcnt(0)"); stamp(a,8); stamp_dump(a,1)
        a("s_endpgm")
    a.label("k2_hook")
    a("""
    s_cmp_lt_u32 s3, 4
    s_cbranch_scc0 k2_hookA
    s_cmp_eq_u32 s40, 2
    s_cbranch_scc0 k2_hookB2
    """)
    stamp(a,3)
    a("s_call_b64 s[60:61], k2_b2")
    a(f"s_mov_b32 s40, {PUBIT if asm.F23 else XB}")
    stamp(a,4)
    a("s_branch k2_hookret")
    a.label("k2_hookB2")
    if asm.F23:
        a("""
        s_cmp_eq_u32 s40, """+str(PUBIT)+"""
        s_cbranch_scc0 k2_hookB3
        s_call_b64 s[60:61], k2_pub
        """)
        a(f"s_mov_b32 s40, {XB}")
        a("s_branch k2_hookret")
        a.label("k2_hookB3")
    a("""
    s_setprio 0
    s_mov_b32 s40, 99
    s_branch k2_hookret
    """)
    a.label("k2_hookA")
    a("""
    s_cmp_eq_u32 s40, 2
    s_cbranch_scc0 k2_hookA_2
    """)
    stamp(a,3)
    dma_arrive(a)
    a("""
    s_mov_b32 s40, 3
    s_branch k2_hookret
    """)
    a.label("k2_hookA_2")
    dma_wait(a,"a")
    a("s_mov_b32 s40, 99")
    stamp(a,4)
    a("s_branch k2_hookret")
    a.label("k2_fallback")
    a("""
    s_cmp_lt_u32 s3, 4
    s_cbranch_scc0 k2_fbA
    s_call_b64 s[60:61], k2_b2
    """)
    if asm.F23: a("s_call_b64 s[60:61], k2_pub")
    a("""
    s_branch k2_fb_pre
    """)
    a.label("k2_fbA")
    dma_arrive(a)
    dma_wait(a,"fb")
    a.label("k2_fb_pre")
    a(f"""
    v_mov_b32 v{TMP+1}, 0xff800000
    v_mov_b32 v{TMP+2}, 0xff800000
    v_and_b32 v{TMP+3}, 31, v1
    v_lshrrev_b32 v{TMP+4}, 5, v1
    v_mul_u32_u24 v{TMP+4}, 1056, v{TMP+4}
    v_lshl_add_u32 v{TMP+3}, v{TMP+3}, 4, v{TMP+4}
    s_mov_b32 s42, 64
    """)
    a.label("k2_fb_max")
    a(f"""
    ds_read_b128 {vr(F[0][0],4)}, v{TMP+3}
    v_add_u32 v{TMP+3}, {KV_TILE}, v{TMP+3}
    s_waitcnt lgkmcnt(0)
    v_mfma_f32_32x32x16_bf16 {vr(S[0],16)}, {vr(F[0][0],4)}, {vr(Q[0],4)}, 0
    v_mfma_f32_32x32x16_bf16 {vr(CI[0],16)}, {vr(F[0][0],4)}, {vr(Q[1],4)}, 0
    s_nop 15
    """)
    for i in range(0,16,2): a(f"v_max3_f32 v{TMP+1}, v{S[0]+i}, v{S[0]+i+1}, v{TMP+1}")
    for i in range(0,16,2): a(f"v_max3_f32 v{TMP+2}, v{CI[0]+i}, v{CI[0]+i+1}, v{TMP+2}")
    a(f"""
    s_sub_u32 s42, s42, 1
    s_cmp_lg_u32 s42, 0
    s_cbranch_scc1 k2_fb_max
    v_mov_b32 v{TMP+3}, v{TMP+1}
    v_mov_b32 v{TMP+4}, v{TMP+2}
    s_nop 1
    v_permlane32_swap_b32 v{TMP+1}, v{TMP+3}
    v_permlane32_swap_b32 v{TMP+2}, v{TMP+4}
    s_nop 1
    v_max_f32 v{TMP+1}, v{TMP+1}, v{TMP+3}
    v_max_f32 v{TMP+2}, v{TMP+2}, v{TMP+4}
    """)
    for qq in range(2):
        for i in range(16): a(f"v_sub_f32 v{CI[qq]+i}, 0, v{TMP+1+qq}")
    a("s_nop 1")
    pipe_prologue(a,True)
    attn_loop(a,True)
    a("s_branch k2_tail")
    a.label("k2_b2")
    a.sc_srd=P1
    a.p1=P1
    b2_part1(a)
    b2_part2(a)
    if asm.F23:
        a.label("k2_pub")
        if not asm.F12: get_tag(a,"b")
        a.sc_srd="s[20:23]"
        a("s_waitcnt vmcnt(0)")
        bbar(a,"pub")
        a(f"""
        s_cmp_eq_u32 s3, 0
        s_cbranch_scc0 k2_pub1
        s_lshl_b32 s36, s28, 2
        s_add_u32 s36, s36, {OFF_F2B}
        """)
        flag_store(a,36,TMP)
        a.label("k2_pub1")
        a.sc_srd=P1
        a(f"""
        s_lshr_b32 s36, s19, 2                   ; ct
        s_lshl_b32 s36, s36, 16
        s_lshl_b32 s37, s3, 13
        s_add_u32 s36, s36, s37
        s_add_u32 s36, s36, {OFF_WOF}
        v_lshlrev_b32 v{TMP}, 4, v1
        """)
        for hh in range(8):
            a(f"s_add_u32 s37, s36, {hh*1024}")
            a(f"buffer_load_dwordx4 {vr(WOR+8*hh,4)}, v{TMP}, s[20:23], s37 offen")
            a(f"s_add_u32 s37, s37, 32768")
            a(f"buffer_load_dwordx4 {vr(WOR+8*hh+4,4)}, v{TMP}, s[20:23], s37 offen")
        a("s_setpc_b64 s[60:61]")
    a.sc_srd=None
    if own:
        a.label("k2_end")
        a("s_endpgm")
    return a
```

```python
import asm
from asm import *
from layout import *
import k1, k2
from k1 import srd, twiddle, gen_consts
from k2 import bbar, poll, flag_store, get_tag, WOR, TMP as T2
KF_LDS=163840
PSTR=17408
S3=4*PSTR

def ph1_end(a):
    a.label("ph1_end")
    a("s_barrier")
    stamp(a,20)
    a("""
    v_mov_b32 v2, 0
    s_mov_b32 s49, 0x20000
    """)
    a.label("kf_tag")
    a("""
    global_load_dword v3, v2, s[54:55] sc1
    s_waitcnt vmcnt(0)
    v_readfirstlane_b32 s56, v3
    s_sub_u32 s49, s49, 1
    s_cmp_eq_u32 s49, 0
    s_cbranch_scc1 kf_tag_done
    s_cmp_eq_u32 s56, 0
    s_cbranch_scc0 kf_tag_done
    s_sleep 1
    s_branch kf_tag
    """)
    a.label("kf_tag_done")
    srd(a,20,16,WS_SIZE)
    a(f"""
    s_cmp_eq_u32 s3, 0
    s_cbranch_scc0 kf_noflag1
    s_cmp_ge_u32 s2, 192
    s_cbranch_scc1 kf_flagB
    s_lshl_b32 s36, s29, 4
    s_add_u32 s36, s36, s28
    s_lshl_b32 s36, s36, 2
    s_add_u32 s36, s36, {OFF_F1Q}
    s_branch kf_flag1
    """)
    a.label("kf_flagB")
    a(f"""
    s_sub_u32 s36, s2, 192
    s_lshl_b32 s36, s36, 2
    s_add_u32 s36, s36, {OFF_F1B}
    """)
    a.label("kf_flag1")
    a.sc_srd="s[20:23]"
    flag_store(a,36,4)
    a.sc_srd=None
    a.label("kf_noflag1")

def phase3(a):
    a.label("ph3_start")
    a.sc_srd="s[20:23]"
    a(f"""
    v_lshlrev_b32 v2, 4, v1                  ; lane*16
    s_cmp_ge_u32 s3, 4
    s_cbranch_scc1 ph3_B
    s_lshl_b32 s28, s18, 2
    s_and_b32 s29, s19, 3
    s_add_u32 s28, s28, s29                  ; rt
    s_lshr_b32 s29, s19, 2                   ; ct
    s_lshl_b32 s30, s28, 16
    s_lshl_b32 s31, s3, 13
    s_add_u32 s30, s30, s31
    s_add_u32 s30, s30, {OFF_O}
    s_cmp_eq_u32 s3, 0
    s_cbranch_scc0 ph3_nopoll
    s_lshr_b32 s32, s28, 2
    s_lshl_b32 s32, s32, 7
    s_add_u32 s32, s32, {OFF_F2}
    v_and_b32 v3, 31, v1
    v_lshlrev_b32 v3, 2, v3
    v_add_u32 v3, s32, v3
    """)
    poll(a,"p2",1,[(3,4)])
    a.label("ph3_nopoll")
    bbar(a,"p3a")
    stamp(a,21)
    OL=8; ACCS=[72,88,112,128]
    for hh in range(8):
        a(f"s_add_u32 s34, s30, {hh*1024}")
        a(f"buffer_load_dwordx4 {vr(OL+8*hh,4)}, v2, s[20:23], s34 offen")
        a(f"s_add_u32 s34, s34, 32768")
        a(f"buffer_load_dwordx4 {vr(OL+8*hh+4,4)}, v2, s[20:23], s34 offen")
    a(f"""
    v_and_b32 v3, 31, v1
    v_lshrrev_b32 v4, 5, v1
    v_mul_u32_u24 v3, 272, v3
    v_lshl_add_u32 v3, v4, 4, v3
    s_mul_i32 s33, s3, {PSTR}
    v_add_u32 v3, s33, v3
    v_lshrrev_b32 v4, 3, v1                  ; rl
    v_and_b32 v5, 7, v1                      ; c
    s_lshl_b32 s33, s3, 4
    v_add_u32 v6, s33, v4
    v_mul_u32_u24 v7, 272, v6
    v_lshl_add_u32 v7, v5, 5, v7
    s_lshl_b32 s33, s28, 6
    v_add_u32 v6, s33, v6
    v_lshlrev_b32 v6, 11, v6
    v_lshl_add_u32 v6, v5, 4, v6
    s_lshl_b32 s35, s29, 7
    """)
    srd(a,24,52,2048*1024*2)
    for hh in range(8):
        a(f"s_waitcnt vmcnt({2*(7-hh)})")
        for nl in range(2):
            for st in range(2):
                acc=ACCS[nl*2+st]
                a(f"v_mfma_f32_32x32x16_bf16 {vr(acc,16)}, {vr(WOR+8*hh+4*nl,4)}, {vr(OL+8*hh+4*st,4)}, {'0' if hh==0 else vr(acc,16)}")
    a("s_nop 7")
    for q in range(4):
        nl,st=q>>1,q&1
        if q==2: a("s_nop 3")
        for jj in range(4):
            a(f"ds_write_b128 v3, {vr(ACCS[q]+4*jj,4)} offset:{st*32*272+(32*nl+8*jj)*4}")
    bbar(a,"p3b")
    stamp(a,22)
    R=8
    for e in range(2):
        for w in range(4):
            for hf in range(2):
                a(f"ds_read_b128 {vr(R+32*e+8*w+4*hf,4)}, v7 offset:{w*PSTR+e*8*272+hf*16}")
    for e in range(2):
        a(f"s_waitcnt lgkmcnt({8*(1-e)})")
        b=R+32*e
        for k in range(8):
            a(f"v_add_f32 v{b+k}, v{b+k}, v{b+8+k}")
            a(f"v_add_f32 v{b+16+k}, v{b+16+k}, v{b+24+k}")
        for k in range(8): a(f"v_add_f32 v{b+k}, v{b+k}, v{b+16+k}")
        for k in range(4): a(f"v_cvt_pk_bf16_f32 v{80+4*e+k}, v{b+2*k}, v{b+2*k+1}")
        a(f"s_add_u32 s36, s35, {e*8*2048}")
        a(f"buffer_store_dwordx4 {vr(80+4*e,4)}, v6, s[24:27], s36 offen")
    if asm.STAMP:
        a("s_waitcnt vmcnt(0)"); stamp(a,23); stamp_dump(a,0 if asm.F12 else 1)
    a("s_endpgm")
    a.label("ph3_B")
    VM,VQ,VMF,VQF=3,4,5,6
    R16,TWc,TWs,A32=8,16,24,32
    AB=64; P=80; D1=88; D2=112; TMP=128
    a(f"""
    s_sub_u32 s28, s3, 4                     ; jv
    s_lshr_b32 s29, s19, 3
    s_lshl_b32 s29, s29, 3
    s_add_u32 s29, s29, s18                  ; n2
    s_and_b32 s30, s19, 7                    ; a
    """)
    if not asm.F12: get_tag(a,"a")
    a(f"""
    s_cmp_eq_u32 s3, 4
    s_cbranch_scc0 ph3_nopollB
    v_lshlrev_b32 v{TMP}, 2, v1
    v_add_u32 v{TMP}, {OFF_F2B}, v{TMP}
    v_add_u32 v{TMP+1}, 256, v{TMP}
    v_add_u32 v{TMP+2}, 512, v{TMP}
    v_add_u32 v{TMP+3}, 768, v{TMP}
    """)
    poll(a,"p2b",4,[(TMP+k,TMP+4+k) for k in range(4)])
    a.label("ph3_nopollB")
    bbar(a,"p3c",8)
    a(f"""
    v_lshrrev_b32 v{TMP}, 1, v1
    v_lshlrev_b32 v{TMP}, 13, v{TMP}         ; (l>>1)*8192
    v_and_b32 v{TMP+1}, 1, v1
    v_lshl_add_u32 v{TMP}, v{TMP+1}, 4, v{TMP}
    s_lshl_b32 s31, s29, 8
    s_lshl_b32 s32, s30, 5
    s_add_u32 s31, s31, s32
    s_lshl_b32 s32, s28, 19                  ; jv*2*32*8192
    s_add_u32 s31, s31, s32
    s_add_u32 s31, s31, {OFF_Y}
    s_lshl_b32 s33, s28, 11
    s_add_u32 m0, s33, {S3}
    s_nop 0
    buffer_load_dwordx4 v{TMP}, s[20:23], s31 offen lds
    s_add_u32 m0, s33, {S3+1024}
    s_add_u32 s31, s31, {32*8192}
    buffer_load_dwordx4 v{TMP}, s[20:23], s31 offen lds
    v_and_b32 v{VM}, 15, v1
    v_lshrrev_b32 v{VQ}, 4, v1
    v_cvt_f32_u32 v{VMF}, v{VM}
    v_lshlrev_b32 v{VQF}, 2, v{VQ}
    v_cvt_f32_u32 v{VQF}, v{VQF}
    """)
    srd(a,24,52,2048*1024*2)
    gen_consts(a, True, 2.0**-21, R16, TWc, TWs, A32, TMP, VMF, VQF)
    a(f"""
    v_lshl_add_u32 v{TMP}, v{VQ}, 7, v{VM}           ; 128q + m
    v_sub_u32 v{TMP+1}, 512, v{TMP}
    v_cmp_gt_u32 vcc, 32, v1                         ; q<2 <=> lane<32
    v_mov_b32 v{TMP+2}, -1.0
    v_mov_b32 v{TMP+3}, -512
    v_cndmask_b32 v{TMP}, v{TMP+1}, v{TMP}, vcc
    v_cndmask_b32 v7, v{TMP+2}, 1.0, vcc             ; sigma
    v_mov_b32 v{TMP+4}, 512
    v_cndmask_b32 v{TMP+3}, v{TMP+3}, v{TMP+4}, vcc  ; step
    s_lshl_b32 s33, s28, 3
    s_add_u32 s33, s33, {S3}
    v_lshl_add_u32 v{TMP}, v{TMP}, 5, s33            ; base
    v_mov_b32 v{TMP+5}, s33
    v_cmp_eq_u32 vcc, 32, v1
    v_add_u32 v{TMP+7}, v{TMP}, v{TMP+3}             ; addr e=1
    s_nop 0
    v_cndmask_b32 v{TMP+6}, v{TMP}, v{TMP+5}, vcc
    s_mov_b64 s[36:37], vcc
    s_waitcnt vmcnt(0)
    """)
    bbar(a,"p3d",8)
    stamp(a,21)
    a(f"ds_read_b64 {vr(AB,2)}, v{TMP+6}")
    for e in range(1,8):
        i,t=e>>1,e&1
        a(f"ds_read_b64 {vr(AB+2*(4*t+i),2)}, v{TMP+7}")
        if e<7: a(f"v_add_u32 v{TMP+7}, v{TMP+7}, v{TMP+3}")
    a(f"""
    v_cmp_eq_u32 vcc, 0, v1
    s_nop 1
    s_or_b64 s[38:39], vcc, s[36:37]
    v_cndmask_b32 v{TMP+8}, v7, 0, s[38:39]          ; sigma0
    s_waitcnt lgkmcnt(0)
    """)
    for t in range(2):
        for i in range(4):
            A,B=AB+2*(4*t+i),AB+2*(4*t+i)+1
            ar,ai,br,bi=TMP+10,TMP+11,TMP+12,TMP+13
            a(f"v_lshlrev_b32 v{ar}, 16, v{A}")
            a(f"v_and_b32 v{ai}, 0xffff0000, v{A}")
            a(f"v_lshlrev_b32 v{br}, 16, v{B}")
            a(f"v_and_b32 v{bi}, 0xffff0000, v{B}")
            sg=7
            if t==0 and i==0:
                a(f"v_cndmask_b32 v{ar}, v{ar}, v{ai}, s[36:37]")
                a(f"v_cndmask_b32 v{br}, v{br}, v{bi}, s[36:37]")
                sg=TMP+8
            a(f"v_fma_f32 v{TMP+14}, -v{sg}, v{bi}, v{ar}")
            a(f"v_fma_f32 v{TMP+15}, v{sg}, v{ai}, v{br}")
            a(f"v_cvt_pk_bf16_f32 v{P+4*t+i}, v{TMP+14}, v{TMP+15}")
    a("s_nop 1")
    for t in range(2):
        for part in range(2):
            a(f"v_mfma_f32_16x16x32_bf16 {vr(D1+8*t+4*part,4)}, {vr(P+4*t,4)}, {vr(R16+4*part,4)}, 0")
    a("s_nop 7")
    for t in range(2):
        twiddle(a, D1+8*t, D1+8*t+4, TWc+4*t, TWs+4*t, P+4*t, TMP)
    a("s_nop 1")
    for t in range(2):
        for tp in range(2):
            for part in range(2):
                d=D2+8*tp+4*part
                a(f"v_mfma_f32_16x16x32_bf16 {vr(d,4)}, {vr(P+4*t,4)}, {vr(A32+((tp*2+part)*2+t)*4,4)}, {'0' if t==0 else vr(d,4)}")
    a(f"""
    v_lshlrev_b32 v{TMP}, 5, v{VM}
    v_lshl_add_u32 v{TMP}, v{VQ}, 3, v{TMP}
    s_lshl_b32 s33, s30, 3
    s_lshl_b32 s34, s28, 1
    s_add_u32 s33, s33, s34
    s_lshl_b32 s33, s33, 5
    s_add_u32 s33, s33, s29
    s_lshl_b32 s33, s33, 11
    s_add_u32 s33, s33, 1024
    s_nop 3
    """)
    for part in range(2):
        for tp in range(2):
            d=D2+8*tp+4*part
            o=TMP+2+2*(part*2+tp)
            a(f"v_cvt_pk_bf16_f32 v{o}, v{d}, v{d+1}")
            a(f"v_cvt_pk_bf16_f32 v{o+1}, v{d+2}, v{d+3}")
            a(f"s_add_u32 s34, s33, {part*32*2048+tp*512}")
            a(f"buffer_store_dwordx2 {vr(o,2)}, v{TMP}, s[24:27], s34 offen")
    if asm.STAMP:
        a("s_waitcnt vmcnt(0)"); stamp(a,23); stamp_dump(a,0 if asm.F12 else 1)
    a.sc_srd=None

def build_k23():
    asm.FUSED=True; asm.F12=False; asm.F23=True
    a=Asm()
    asm.SMAP={0:0,1:4,2:5,3:6,4:7,6:8,8:9,21:10,22:11,23:12}
    if asm.STAMP==3: asm.SMAP={0:0,2:1,3:2,4:3,6:4,8:5,21:6,23:7}
    k2.build_k2(a)
    phase3(a)
    a.label("k2_end")
    a("s_endpgm")
    asm.FUSED=False; asm.F23=False; asm.SMAP=None
    return a

def build_fused():
    asm.FUSED=True; asm.F12=True; asm.F23=True
    a=Asm()
    asm.SMAP={0:0,1:1,3:2,20:3}
    k1.build_k1(a)
    ph1_end(a)
    asm.SMAP={9:4,2:5,3:6,4:7,6:8,8:9,21:10,22:11,23:12}
    k2.build_k2(a)
    phase3(a)
    a.label("k1_end")
    a.label("k2_end")
    a("s_endpgm")
    return a
```

```python
import sys
from asm import *
from layout import *
import k1
NAME="concat_heads__mha_block__spectral_gfnet__prompt"
def kernel_block(name, body, vgpr, sgpr=102):
    accum=(vgpr+3)//4*4
    return f""".text
.globl {name}
.p2align 8
.type {name},@function
{name}:
{body}
.section .rodata,"a"
.p2align 6
.amdhsa_kernel {name}
  .amdhsa_next_free_vgpr {vgpr}
  .amdhsa_next_free_sgpr {sgpr}
  .amdhsa_accum_offset {accum}
  .amdhsa_group_segment_fixed_size 0
  .amdhsa_kernarg_size 72
  .amdhsa_user_sgpr_count 2
  .amdhsa_user_sgpr_kernarg_segment_ptr 1
  .amdhsa_system_sgpr_workgroup_id_x 1
.end_amdhsa_kernel
"""
def header(launches):
    h=open("cdna_kernels/"+NAME+".s.ref").read().split("\n")
    out=[]
    for l in h:
        if l.startswith("; Override launch") : break
        out.append(l)
    for (k,g,b,lds) in launches:
        out.append(f"; @launch kernel={k} grid=({g},1,1) block=({b},1,1) lds={lds}")
    out.append('.amdgcn_target "amdgcn-amd-amdhsa--gfx950"')
    return "\n".join(out)+"\n"
def build(path, which=("k1","k2","k3")):
    launches=[]; blocks=""
    if "k1" in which:
        launches.append(("qkv_rowfft_kernel",256,512,k1.K1_LDS))
        blocks+=kernel_block("qkv_rowfft_kernel", k1.build_k1().text(), 256)
    if "k2" in which:
        import k2
        launches.append(("attn_colfft_kernel",256,512,k2.K2_LDS))
        blocks+=kernel_block("attn_colfft_kernel", k2.build_k2().text(), 256)
    if "k3" in which:
        import k3
        launches.append(("proj_irowfft_kernel",256,512,k3.K3_LDS))
        blocks+=kernel_block("proj_irowfft_kernel", k3.build_k3().text(), 256)
    open(path,"w").write(header(launches)+blocks)
def build_fused(path):
    import kf
    h=open("cdna_kernels/"+NAME+".s.ref").read().split("\n")
    out=[]
    for l in h:
        if l.startswith("; Override launch") : break
        out.append(l)
    out.append(f"; @launch grid=(256,1,1) block=(512,1,1) lds={kf.KF_LDS}")
    out.append('.amdgcn_target "amdgcn-amd-amdhsa--gfx950"')
    body=kf.build_fused().text()
    open(path,"w").write("\n".join(out)+"\n"+kernel_block(NAME+"_kernel", body, 256))
if __name__=="__main__":
    import asm, os
    if os.environ.get("STAMP"): asm.STAMP=int(os.environ["STAMP"])
    which=sys.argv[2].split(",") if len(sys.argv)>2 else ("k1","k2","k3")
    if which==["fused"]: build_fused(sys.argv[1])
    elif which==["hyb"]:
        import kf
        launches=[("qkv_rowfft_kernel",256,512,k1.K1_LDS),("attn_proj_kernel",256,512,kf.KF_LDS)]
        import asm; asm.NEXT_KERNEL="attn_proj_kernel"
        blocks=kernel_block("qkv_rowfft_kernel", k1.build_k1().text(), 256)+kernel_block("attn_proj_kernel", kf.build_k23().text(), 256)
        open(sys.argv[1],"w").write(header(launches)+blocks)
    else: build(sys.argv[1], which)
```

```python
import struct
def f2u(x): return struct.unpack("<I",struct.pack("<f",x))[0]
FUSED=False
F12=False
F23=False
class Asm:
    def __init__(self):
        self.lines=[]
        self.sc_srd=None
    def __call__(self, s):
        for l in s.strip("\n").split("\n"):
            l=l.strip()
            if not l: continue
            if FUSED and self.sc_srd and l.startswith("buffer_") and self.sc_srd in l:
                code,_,cm=l.partition(";")
                code=code.rstrip()
                if code.endswith(" lds"): code=code[:-4]+" sc1 lds"
                else: code+=" sc1"
                l=code
            self.lines.append("    "+l)
    def label(self,name): self.lines.append(name+":")
    def comment(self,s): self.lines.append("    ; "+s)
    def raw(self,s): self.lines.append(s)
    def text(self): return "\n".join(self.lines)+"\n"
def vr(b,n=1): return f"v{b}" if n==1 else f"v[{b}:{b+n-1}]"
def sr(b,n=1): return f"s{b}" if n==1 else f"s[{b}:{b+n-1}]"

STAMP=False
OFF_DBG=0x0F00000
SMAP=None
def stamp(a,k,real=False):
    if not STAMP: return
    if SMAP is not None:
        if k not in SMAP: return
        k=SMAP[k]
    a(f"s_waitcnt lgkmcnt(0)")
    if STAMP==3:
        if k>=8: k=7
        a(f"s_memrealtime s[{70+2*k}:{71+2*k}]")
        a(f"s_memtime s[{86+2*k}:{87+2*k}]")
    else:
        a(f"{'s_memtime' if STAMP==2 else 's_memrealtime'} s[{70+2*k}:{71+2*k}]")
    a(f"s_waitcnt lgkmcnt(0)")
_dumpn=[0]
def stamp_dump(a,kid,wsreg=16):
    if not STAMP: return
    if STAMP==4:
        _dumpn[0]+=1; n=_dumpn[0]
        a("s_mov_b64 exec, -1")
        a("s_or_b32 s68, s2, s3")
        a("s_cmp_eq_u32 s68, 0")
        a(f"s_cbranch_scc0 dbgdump_skip{n}")
        a("v_mov_b32 v200, 0")
        for k in range(1,14):
            a(f"s_sub_u32 s68, s{70+2*k}, s70")
            a(f"v_mov_b32 v201, s68")
            a(f"global_store_dword v200, v201, s[54:55] offset:{4*k}")
            a("s_nop 1")
        a("s_waitcnt vmcnt(0)")
        a.label(f"dbgdump_skip{n}")
        return
    a("s_mov_b64 exec, -1")
    a("s_lshl_b32 s68, s2, 3")
    a("s_add_u32 s68, s68, s3")
    a("s_lshl_b32 s68, s68, 7")
    a(f"s_add_u32 s68, s68, {OFF_DBG+kid*0x40000}")
    a(f"s_add_u32 s64, s{wsreg}, s68")
    a(f"s_addc_u32 s65, s{wsreg+1}, 0")
    a("v_mov_b32 v200, 0")
    for k in range(32):
        a(f"v_mov_b32 v201, s{70+k}")
        a(f"global_store_dword v200, v201, s[64:65] offset:{4*k}")
        a("s_nop 1")
    a("s_waitcnt vmcnt(0)")
```

```python
import struct
def f2u(x): return struct.unpack("<I",struct.pack("<f",x))[0]
FUSED=False
F12=False
F23=False
class Asm:
    def __init__(self):
        self.lines=[]
        self.sc_srd=None
    def __call__(self, s):
        for l in s.strip("\n").split("\n"):
            l=l.strip()
            if not l: continue
            if (FUSED or getattr(self,'force_sc',False)) and self.sc_srd and l.startswith("buffer_") and self.sc_srd in l:
                code,_,cm=l.partition(";")
                code=code.rstrip()
                sfx=getattr(self,'sc_sfx'," sc1")
                if code.endswith(" lds"): code=code[:-4]+sfx+" lds"
                else: code+=sfx
                l=code
            self.lines.append("    "+l)
    def label(self,name): self.lines.append(name+":")
    def comment(self,s): self.lines.append("    ; "+s)
    def raw(self,s): self.lines.append(s)
    def text(self): return "\n".join(self.lines)+"\n"
def vr(b,n=1): return f"v{b}" if n==1 else f"v[{b}:{b+n-1}]"
def sr(b,n=1): return f"s{b}" if n==1 else f"s[{b}:{b+n-1}]"

STAMP=False
OFF_DBG=0x0F00000
SMAP=None
def stamp(a,k,real=False):
    if not STAMP: return
    if SMAP is not None:
        if k not in SMAP: return
        k=SMAP[k]
    a(f"s_waitcnt lgkmcnt(0)")
    if STAMP==3:
        if k>=8: k=7
        a(f"s_memrealtime s[{70+2*k}:{71+2*k}]")
        a(f"s_memtime s[{86+2*k}:{87+2*k}]")
    else:
        a(f"{'s_memtime' if STAMP==2 else 's_memrealtime'} s[{70+2*k}:{71+2*k}]")
    a(f"s_waitcnt lgkmcnt(0)")
_dumpn=[0]
def stamp_dump(a,kid,wsreg=16):
    if not STAMP: return
    if STAMP==4:
        _dumpn[0]+=1; n=_dumpn[0]
        a("s_mov_b64 exec, -1")
        a("s_or_b32 s68, s2, s3")
        a("s_cmp_eq_u32 s68, 0")
        a(f"s_cbranch_scc0 dbgdump_skip{n}")
        a("v_mov_b32 v200, 0")
        for k in range(1,14):
            a(f"s_sub_u32 s68, s{70+2*k}, s70")
            a(f"v_mov_b32 v201, s68")
            a(f"global_store_dword v200, v201, s[54:55] offset:{4*k}")
            a("s_nop 1")
        a("s_waitcnt vmcnt(0)")
        a.label(f"dbgdump_skip{n}")
        return
    a("s_mov_b64 exec, -1")
    a("s_lshl_b32 s68, s2, 3")
    a("s_add_u32 s68, s68, s3")
    a("s_lshl_b32 s68, s68, 7")
    a(f"s_add_u32 s68, s68, {OFF_DBG+kid*0x40000}")
    a(f"s_add_u32 s64, s{wsreg}, s68")
    a(f"s_addc_u32 s65, s{wsreg+1}, 0")
    a("v_mov_b32 v200, 0")
    for k in range(32):
        a(f"v_mov_b32 v201, s{70+k}")
        a(f"global_store_dword v200, v201, s[64:65] offset:{4*k}")
        a("s_nop 1")
    a("s_waitcnt vmcnt(0)")
```

```python
import asm
from asm import *
from layout import *

K1_LDS = 133120

def srd(a, d, base, size):
    a(f"s_mov_b32 s{d}, s{base}")
    a(f"s_and_b32 s{d+1}, s{base+1}, 0xffff")
    a(f"s_mov_b32 s{d+2}, {size}")
    a(f"s_mov_b32 s{d+3}, 0x20000")

def fin(a, restore_exec=False):
    if asm.F12:
        if restore_exec: a("s_mov_b64 exec, -1")
        a("s_waitcnt vmcnt(0)")
        a("s_branch ph1_end")
    else: a("s_endpgm")

def k1_prologue(a):
    a("""
    s_cmp_ge_u32 s2, 256
    s_cbranch_scc1 k1_end
    s_load_dwordx4 s[4:7], s[0:1], 0
    s_load_dwordx2 s[8:9], s[0:1], 16
    s_load_dwordx2 s[10:11], s[0:1], 24
    s_load_dwordx4 s[12:15], s[0:1], 32
    s_load_dwordx2 s[16:17], s[0:1], 64
    """)
    if asm.F12:
        a("""
        s_load_dwordx4 s[52:55], s[0:1], 48
        """)
    a("""
    v_and_b32 v1, 63, v0
    v_lshrrev_b32 v2, 6, v0
    s_nop 0
    v_readfirstlane_b32 s3, v2
    """)
    if asm.F12:
        a("""
        s_or_b32 s57, s2, s3
        s_cmp_eq_u32 s57, 0
        s_cbranch_scc0 kf_nononce
        s_memrealtime s[56:57]
        s_waitcnt lgkmcnt(0)
        s_or_b32 s56, s56, 1
        v_mov_b32 v2, 0
        v_mov_b32 v3, s56
        s_mov_b64 exec, 1
        global_store_dword v2, v3, s[54:55] sc1
        s_mov_b64 exec, -1
        """)
        a.label("kf_nononce")
    stamp(a,0)
    a("""
    s_cmp_ge_u32 s2, 192
    s_cbranch_scc1 k1_B
    s_and_b32 s18, s2, 7
    s_lshr_b32 s19, s2, 3
    s_and_b32 s28, s18, 3
    s_lshl_b32 s28, s28, 2
    s_and_b32 s29, s19, 3
    s_add_u32 s28, s28, s29          ; s28 = rb
    s_lshr_b32 s29, s18, 2
    s_mul_i32 s29, s29, 6
    s_lshr_b32 s30, s19, 2
    s_add_u32 s29, s29, s30          ; s29 = cb
    s_cmp_ge_u32 s3, 4
    s_cbranch_scc0 k1_compute
    """)

def k1_loader(a):
    a.comment("---- loader waves 4..7 ----")
    a("""
    s_sub_u32 s30, s3, 4             ; lw
    v_lshrrev_b32 v2, 3, v1          ; l>>3
    v_lshrrev_b32 v3, 4, v1          ; l>>4
    v_and_b32 v4, 7, v1
    v_xor_b32 v4, v4, v3
    v_lshlrev_b32 v4, 4, v4
    v_lshl_add_u32 v4, v2, 10, v4    ; voffX0
    v_xor_b32 v5, 64, v4             ; voffX1
    v_and_b32 v6, 15, v1
    v_lshlrev_b32 v7, 2, v3
    v_xor_b32 v6, v6, v7
    v_lshlrev_b32 v6, 4, v6
    v_mul_u32_u24 v7, 3072, v3
    v_add_u32 v6, v6, v7             ; voffW
    s_lshl_b32 s31, s28, 17          ; rb*128*1024
    s_lshl_b32 s32, s30, 15          ; lw*32*1024
    s_add_u32 s31, s31, s32          ; sX0
    s_mul_i32 s32, s30, 16*3072
    s_lshl_b32 s33, s29, 8
    s_add_u32 s32, s32, s33          ; sW0
    s_lshl_b32 s33, s30, 12
    s_waitcnt lgkmcnt(0)
    """)
    stamp(a,4)
    srd(a,20,4,2097152); srd(a,24,6,1572864)
    import os
    ROT=int(os.environ.get("K1ROT","1"))
    if ROT:
        a("""
        s_lshr_b32 s35, s19, 2
        s_and_b32 s36, s19, 3
        s_lshl_b32 s36, s36, 1
        s_add_u32 s35, s35, s36
        """)
    else: a("s_mov_b32 s35, 0")
    def issue(c):
        slot=c&3
        a(f"s_add_u32 s36, s35, {c}")
        a("s_and_b32 s36, s36, 7")
        a("s_lshl_b32 s37, s36, 7")
        a("s_add_u32 s37, s37, s31")
        a(f"s_mul_i32 s38, s36, {64*3072}")
        a("s_add_u32 s38, s38, s32")
        for e in range(4):
            a(f"s_add_u32 m0, s33, {slot*32768+e*1024}")
            a(f"s_add_u32 s34, s37, {e*8192}")
            a(f"buffer_load_dwordx4 v{4+(e&1)}, s[20:23], s34 offen lds")
        for e in range(4):
            a(f"s_add_u32 m0, s33, {slot*32768+16384+e*1024}")
            a(f"s_add_u32 s34, s38, {4*e*3072}")
            a(f"buffer_load_dwordx4 v6, s[24:27], s34 offen lds")
    import os
    LA=int(os.environ.get("K1LA","2"))
    issued=-1
    for c in range(min(LA,4)):
        issue(c); issued=c
        if c==0: stamp(a,5)
    stamp(a,6)
    for c in range(8):
        n=8*(issued-c)
        a(f"s_waitcnt vmcnt({n})")
        a("s_barrier")
        if c in (0,3,7): stamp(a,{0:1,3:2,7:3}[c])
        while issued<min(7,c+LA,c+3):
            issued+=1; issue(issued)
    if not asm.F12: stamp_dump(a,0)
    fin(a)

def k1_compute(a):
    a.label("k1_compute")
    import os
    qsc=os.environ.get("K1QSC","sc1")
    a.sc_srd="s[20:23]" if (asm.F12 or qsc!="none") else None
    if qsc!="none" and not asm.F12:
        a.force_sc=True; a.sc_sfx=" "+qsc.replace("_"," ")
    XA,XB,WA,WB=2,6,10,12
    a("""
    s_lshr_b32 s30, s3, 1            ; wm
    s_and_b32 s31, s3, 1             ; wn
    v_and_b32 v14, 31, v1            ; r
    v_lshrrev_b32 v15, 5, v1         ; h
    v_lshrrev_b32 v16, 1, v14
    v_and_b32 v16, 7, v16            ; (r>>1)&7
    v_xor_b32 v16, v16, v15          ; h ^ c
    v_lshlrev_b32 v16, 4, v16
    v_lshl_add_u32 v16, v14, 7, v16  ; r*128 + slot*16
    s_lshl_b32 s32, s30, 13          ; wm*64*128
    v_add_u32 v2, s32, v16
    v_xor_b32 v3, 32, v2
    v_xor_b32 v4, 64, v2
    v_xor_b32 v5, 96, v2
    v_add_u32 v6, 0x10000, v2
    v_add_u32 v7, 0x10000, v3
    v_add_u32 v8, 0x10000, v4
    v_add_u32 v9, 0x10000, v5
    v_and_b32 v16, 15, v1
    v_lshrrev_b32 v16, 2, v16        ; r4
    v_lshl_add_u32 v17, v15, 3, v16  ; 8h + r4
    v_lshlrev_b32 v17, 8, v17        ; *256
    s_lshl_b32 s32, s31, 1
    v_xor_b32 v18, s32, v16          ; nt0 ^ r4
    v_lshl_add_u32 v17, v18, 6, v17
    v_lshrrev_b32 v18, 4, v1
    v_and_b32 v18, 1, v18
    v_lshl_add_u32 v17, v18, 5, v17  ; + cg*32
    v_and_b32 v18, 3, v1
    v_lshl_add_u32 v17, v18, 3, v17  ; + c4*8
    v_add_u32 v10, 16384, v17
    v_xor_b32 v11, 64, v10
    v_add_u32 v12, 0x10000, v10
    v_add_u32 v13, 0x10000, v11
    """)
    for i in range(64): a(f"v_mov_b32 v{64+i}, 0")
    a("s_waitcnt lgkmcnt(0)")
    srd(a,20,16,WS_SIZE)
    a("""
    s_cmp_ge_u32 s29, 8
    s_cbranch_scc1 k1_vloop
    """)
    bufs=[(16,20,24,28),(32,36,40,44)]
    def reads(c,ks,buf):
        slot=c&3
        xa=(XA if slot<2 else XB)+ks; wa=(WA if slot<2 else WB)
        so=(slot&1)*32768
        X0,X1,W0,W1=buf
        a(f"ds_read_b128 {vr(X0,4)}, v{xa} offset:{so}")
        a(f"ds_read_b64_tr_b16 {vr(W0,2)}, v{wa} offset:{so+ks*4096}")
        a(f"ds_read_b64_tr_b16 {vr(W0+2,2)}, v{wa} offset:{so+ks*4096+1024}")
        a(f"ds_read_b128 {vr(X1,4)}, v{xa} offset:{so+4096}")
        a(f"ds_read_b64_tr_b16 {vr(W1,2)}, v{wa+1} offset:{so+ks*4096}")
        a(f"ds_read_b64_tr_b16 {vr(W1+2,2)}, v{wa+1} offset:{so+ks*4096+1024}")
    def loop(vtype):
        a("s_barrier")
        stamp(a,1)
        reads(0,0,bufs[0])
        for c in range(8):
            for ks in range(4):
                j=4*c+ks
                cur=bufs[j&1]; nxt=bufs[(j+1)&1]
                if ks<3:
                    reads(c,ks+1,nxt)
                    a("s_waitcnt lgkmcnt(6)")
                else:
                    a("s_waitcnt lgkmcnt(0)")
                    if c<7:
                        a("s_barrier")
                        reads(c+1,0,nxt)
                X0,X1,W0,W1=cur
                for ntl in range(2):
                    for rt in range(2):
                        acc=64+(ntl*2+rt)*16
                        W=(W0,W1)[ntl]; X=(X0,X1)[rt]
                        if not vtype: a(f"v_mfma_f32_32x32x16_bf16 {vr(acc,16)}, {vr(W,4)}, {vr(X,4)}, {vr(acc,16)}")
                        else:         a(f"v_mfma_f32_32x32x16_bf16 {vr(acc,16)}, {vr(X,4)}, {vr(W,4)}, {vr(acc,16)}")
            if c==3: stamp(a,2)
        stamp(a,3)
    loop(False)
    a("""
    s_and_b32 s33, s29, 3
    s_lshl_b32 s33, s33, 3
    s_lshl_b32 s34, s31, 2
    s_add_u32 s33, s33, s34          ; head0
    s_lshl_b32 s34, s28, 2
    s_lshl_b32 s35, s30, 1
    s_add_u32 s34, s34, s35          ; tile0
    s_cmp_ge_u32 s29, 4
    s_cbranch_scc1 k1_kepi
    """)
    a(f"""
    v_lshlrev_b32 v2, 9, v15
    v_lshl_add_u32 v2, v14, 4, v2    ; h*512 + r*16
    s_lshl_b32 s35, s33, 16
    s_lshl_b32 s36, s34, 10
    s_add_u32 s35, s35, s36
    s_add_u32 s35, s35, {OFF_Q}
    s_mov_b32 s37, {hex(f2u(QSCALE))}
    s_nop 7
    """)
    for ntl in range(2):
        for rt in range(2):
            acc=64+(ntl*2+rt)*16
            for i in range(16): a(f"v_mul_f32 v{acc+i}, s37, v{acc+i}")
            t=16+(ntl*2+rt)*8
            for i in range(8): a(f"v_cvt_pk_bf16_f32 v{t+i}, v{acc+2*i}, v{acc+2*i+1}")
            for hh in range(2):
                a(f"s_add_u32 s36, s35, {(2*ntl+hh)*65536+rt*1024}")
                a(f"buffer_store_dwordx4 {vr(t+4*hh,4)}, v2, s[20:23], s36 offen")
    if asm.STAMP and not asm.F12:
        a("s_waitcnt vmcnt(0)"); stamp(a,4); stamp_dump(a,0)
    fin(a)
    a.label("k1_kepi")
    a(f"""
    v_and_b32 v2, 0x13, v14
    v_and_b32 v3, 4, v14
    v_lshl_or_b32 v2, v3, 1, v2
    v_and_b32 v3, 8, v14
    v_lshrrev_b32 v3, 1, v3
    v_or_b32 v2, v2, v3              ; pi(r)
    v_lshlrev_b32 v2, 4, v2
    v_mul_u32_u24 v3, 1056, v15
    v_add_u32 v2, v2, v3             ; h*1056 + pi(r)*16
    s_mul_i32 s35, s33, {KV_HEAD}
    s_mul_i32 s36, s34, {KV_TILE}
    s_add_u32 s35, s35, s36
    s_add_u32 s35, s35, {OFF_KV}
    s_nop 5
    """)
    for ntl in range(2):
        for rt in range(2):
            acc=64+(ntl*2+rt)*16
            t=16+(ntl*2+rt)*8
            for i in range(8): a(f"v_cvt_pk_bf16_f32 v{t+i}, v{acc+2*i}, v{acc+2*i+1}")
            for hh in range(2):
                a(f"s_add_u32 s36, s35, {(2*ntl+hh)*KV_HEAD+rt*KV_TILE}")
                a(f"buffer_store_dwordx4 {vr(t+4*hh,4)}, v2, s[20:23], s36 offen")
    for q in range(4):
        acc=64+q*16
        for hh in range(2):
            a(f"v_mul_f32 v{48+2*q+hh}, v{acc+8*hh}, v{acc+8*hh}")
        for i in range(1,8):
            for hh in range(2):
                a(f"v_fmac_f32 v{48+2*q+hh}, v{acc+8*hh+i}, v{acc+8*hh+i}")
    a("s_nop 1")
    for q in range(4): a(f"v_permlane32_swap_b32 v{48+2*q}, v{49+2*q}")
    a("s_nop 1")
    for q in range(4): a(f"v_add_f32 v{48+2*q}, v{48+2*q}, v{49+2*q}")
    for sh in ("row_shr:1","row_shr:2","row_shr:4","row_shr:8"):
        for q in range(4): a(f"v_max_f32_dpp v{48+2*q}, v{48+2*q}, v{48+2*q} {sh} row_mask:0xf bank_mask:0xf bound_ctrl:0")
    for q in range(4): a(f"v_max_f32_dpp v{48+2*q}, v{48+2*q}, v{48+2*q} row_bcast:15 row_mask:0xa bank_mask:0xf")
    a(f"""
    v_lshlrev_b32 v3, 8, v15
    s_lshl_b32 s35, s33, 8
    s_lshl_b32 s36, s34, 2
    s_add_u32 s35, s35, s36
    s_add_u32 s35, s35, {OFF_KN}
    s_mov_b32 exec_lo, 0x80000000
    s_mov_b32 exec_hi, 0x80000000
    """)
    for ntl in range(2):
        for rt in range(2):
            q=ntl*2+rt
            a(f"s_add_u32 s36, s35, {2*ntl*256+rt*4}")
            a(f"buffer_store_dword v{48+2*q}, v3, s[20:23], s36 offen")
    if asm.STAMP and not asm.F12:
        a("s_waitcnt vmcnt(0)"); stamp(a,4); stamp_dump(a,0)
    fin(a,True)
    a.label("k1_vloop")
    loop(True)
    a(f"""
    s_and_b32 s33, s29, 3
    s_lshl_b32 s33, s33, 3
    s_lshl_b32 s34, s31, 2
    s_add_u32 s33, s33, s34          ; head0
    s_lshl_b32 s34, s28, 2
    s_lshl_b32 s35, s30, 1
    s_add_u32 s34, s34, s35          ; tile0
    v_lshrrev_b32 v2, 4, v14         ; n>>4
    s_mov_b32 s36, {KV_HEAD}
    v_mul_lo_u32 v2, v2, s36
    v_mul_u32_u24 v3, 1056, v15
    v_add_u32 v2, v2, v3
    v_and_b32 v3, 15, v14
    v_lshl_add_u32 v2, v3, 4, v2
    s_mul_i32 s35, s33, {KV_HEAD}
    s_mul_i32 s36, s34, {KV_TILE}
    s_add_u32 s35, s35, s36
    s_add_u32 s35, s35, {OFF_KV+512}
    """)
    for ntl in range(2):
        for rt in range(2):
            acc=64+(ntl*2+rt)*16
            t=16+(ntl*2+rt)*8
            for i in range(8): a(f"v_cvt_pk_bf16_f32 v{t+i}, v{acc+2*i}, v{acc+2*i+1}")
            for u in range(2):
                a(f"s_add_u32 s36, s35, {2*ntl*KV_HEAD+rt*KV_TILE+u*272}")
                a(f"buffer_store_dwordx4 {vr(t+4*u,4)}, v2, s[20:23], s36 offen")
    a(f"""
    v_and_b32 v3, 1, v1
    v_mul_u32_u24 v3, 1056, v3
    v_bfe_u32 v4, v1, 1, 1
    v_mul_u32_u24 v4, 272, v4
    v_add_u32 v3, v3, v4
    v_bfe_u32 v4, v1, 2, 1
    v_mul_u32_u24 v4, {KV_TILE}, v4
    v_add_u32 v3, v3, v4
    v_bfe_u32 v4, v1, 3, 2
    s_mov_b32 s36, {KV_HEAD}
    v_mul_lo_u32 v4, v4, s36
    v_add_u32 v3, v3, v4
    v_mov_b32 v4, 0x3f803f80
    v_mov_b32 v5, 0x3f803f80
    v_mov_b32 v6, 0x3f803f80
    v_mov_b32 v7, 0x3f803f80
    s_add_u32 s36, s35, 256
    s_mov_b32 exec_hi, 0
    buffer_store_dwordx4 v[4:7], v3, s[20:23], s36 offen
    """)
    if asm.STAMP and not asm.F12:
        a("s_waitcnt vmcnt(0)"); stamp(a,4); stamp_dump(a,0)
    fin(a,True)

def gen_consts(a, inv, scale, R16, TWc, TWs, A32, tmp, vm, vq):
    T=tmp
    a(f"v_mul_f32 v{T}, {hex(f2u(1/16.))}, v{vm}")
    for i in range(4):
        a(f"v_add_f32 v{T+1+i}, {float(i)}, v{vq}" if i else f"v_mov_b32 v{T+1}, v{vq}")
    for i in range(4): a(f"v_mul_f32 v{T+1+i}, v{T+1+i}, v{T}")
    for i in range(4):
        a(f"v_cos_f32 v{T+5+i}, v{T+1+i}")
        a(f"v_sin_f32 v{T+9+i}, v{T+1+i}")
    if scale!=1.0:
        a(f"s_mov_b32 s40, {hex(f2u(scale))}")
        for i in range(8): a(f"v_mul_f32 v{T+5+i}, s40, v{T+5+i}")
    else: a("s_nop 0")
    for i in range(4):
        c,s=T+5+i,T+9+i
        if not inv:
            a(f"v_cvt_pk_bf16_f32 v{R16+i}, v{c}, v{s}")
            a(f"v_cvt_pk_bf16_f32 v{R16+4+i}, -v{s}, v{c}")
        else:
            a(f"v_cvt_pk_bf16_f32 v{R16+i}, v{c}, -v{s}")
            a(f"v_cvt_pk_bf16_f32 v{R16+4+i}, v{s}, v{c}")
    a(f"v_mul_f32 v{T}, {hex(f2u(1/512.))}, v{vm}")
    for t in range(2):
        for i in range(4):
            k=16*t+i
            if k==0: a(f"v_mov_b32 v{T+1}, v{vq}")
            else:
                a(f"v_add_f32 v{T+1+4*t+i}, {hex(f2u(float(k)))}, v{vq}")
    for e in range(8): a(f"v_mul_f32 v{T+1+e}, v{T+1+e}, v{T}")
    for e in range(8):
        a(f"v_cos_f32 v{TWc+e}, v{T+1+e}")
        a(f"v_sin_f32 v{TWs+e}, {'-' if inv else ''}v{T+1+e}")
    gen_a32(a, inv, A32, tmp, vm, vq)

def gen_a32(a, inv, A32, tmp, vm, vq):
    T=tmp
    for t in range(2):
        for i in range(4):
            k=16*t+i
            if k==0: a(f"v_mov_b32 v{T+1}, v{vq}")
            else: a(f"v_add_f32 v{T+1+4*t+i}, {hex(f2u(float(k)))}, v{vq}")
    a(f"v_mul_f32 v{T+9}, {hex(f2u(1/32.))}, v{vm}")
    a(f"v_add_f32 v{T+10}, 0.5, v{T+9}")
    for tp in range(2):
        for e in range(8): a(f"v_mul_f32 v{T+11+e}, v{T+1+e}, v{T+9+tp}")
        for e in range(8):
            a(f"v_cos_f32 v{T+19+e}, v{T+11+e}")
            a(f"v_sin_f32 v{T+11+e}, v{T+11+e}")
        a("s_nop 0")
        for t in range(2):
            for i in range(4):
                e=4*t+i; c,s=T+19+e,T+11+e
                re=A32+((tp*2+0)*2+t)*4+i; im=A32+((tp*2+1)*2+t)*4+i
                if not inv:
                    a(f"v_cvt_pk_bf16_f32 v{re}, v{c}, v{s}")
                    a(f"v_cvt_pk_bf16_f32 v{im}, -v{s}, v{c}")
                else:
                    a(f"v_cvt_pk_bf16_f32 v{re}, v{c}, -v{s}")
                    a(f"v_cvt_pk_bf16_f32 v{im}, v{s}, v{c}")

def twiddle(a, re, im, c, s, out, tmp):
    T,U=tmp,tmp+4
    for p in (0,2):
        a(f"v_pk_mul_f32 {vr(T+p,2)}, {vr(re+p,2)}, {vr(c+p,2)}")
        a(f"v_pk_mul_f32 {vr(U+p,2)}, {vr(im+p,2)}, {vr(c+p,2)}")
    for p in (0,2):
        a(f"v_pk_fma_f32 {vr(T+p,2)}, {vr(im+p,2)}, {vr(s+p,2)}, {vr(T+p,2)}")
        a(f"v_pk_fma_f32 {vr(U+p,2)}, {vr(re+p,2)}, {vr(s+p,2)}, {vr(U+p,2)} neg_lo:[1,0,0] neg_hi:[1,0,0]")
    for i in range(4): a(f"v_cvt_pk_bf16_f32 v{out+i}, v{T+i}, v{U+i}")

XR_STRIDE=1056
B1_MB=33792
B1_WTL=66560
B1_MBW=100352

def k1_B(a):
    a.label("k1_B")
    import os
    a.sc_srd="s[24:27]" if (asm.F12 or os.environ.get("K1BSC","1")=="1") else None
    a.force_sc=True; a.sc_sfx=" sc1"
    VM,VQ,VMF,VQF=2,3,4,5
    R16,TWc,TWs,A32=8,16,24,32
    PIN=64
    D1=80
    D2=112
    TMP=144
    WOL,WOH=192,196
    ABL=200
    a(f"""
    s_sub_u32 s18, s2, 192           ; b
    s_lshr_b32 s19, s18, 1           ; n2
    s_and_b32 s28, s18, 1            ; hf
    v_and_b32 v{VM}, 15, v1
    v_lshrrev_b32 v{VQ}, 4, v1
    v_lshlrev_b32 v6, 4, v1          ; lane*16
    s_waitcnt lgkmcnt(0)
    """)
    srd(a,20,10,2097152)
    srd(a,24,16,WS_SIZE)
    srd(a,44,8,524288)
    import os
    def b_loads():
        a(f"""
        s_lshl_b32 s29, s28, 5
        s_lshl_b32 s30, s3, 2
        s_add_u32 s29, s29, s30
        s_lshl_b32 s29, s29, 5
        s_add_u32 s29, s29, s19          ; s0
        s_lshl_b32 s29, s29, 10
        s_mul_i32 s30, s3, {4*XR_STRIDE}
        """)
        for e in range(4):
            a(f"s_add_u32 m0, s30, {e*XR_STRIDE}")
            a(f"s_add_u32 s31, s29, {e*32*1024}")
            a(f"buffer_load_dwordx4 v6, s[20:23], s31 offen lds")
        a(f"""
        s_lshl_b32 s32, s18, 3
        s_add_u32 s32, s32, s3           ; idx
        s_lshr_b32 s33, s32, 5
        s_lshl_b32 s33, s33, 6
        s_and_b32 s34, s32, 31
        s_lshl_b32 s34, s34, 14
        s_add_u32 s33, s33, s34
        v_and_b32 v7, 31, v1
        v_lshlrev_b32 v7, 1, v7
        v_lshrrev_b32 v{TMP}, 5, v1
        v_lshl_add_u32 v7, v{TMP}, 12, v7    ; h*4 rows*1024 + n*2
        """)
        for j8 in range(8):
            d=8*(j8>>2)+(j8&3)
            a(f"s_add_u32 s34, s33, {d*1024}")
            dst=(WOL if j8%2==0 else WOH)+j8//2
            a(f"buffer_load_ushort v{dst}, v7, s[44:47], s34 offen")
        a(f"""
        s_and_b32 s35, s18, 7
        s_lshl_b32 s35, s35, 3
        s_add_u32 s35, s35, s3
        s_lshr_b32 s36, s18, 3
        s_and_b32 s37, s36, 3            ; q
        s_lshr_b32 s36, s36, 2           ; tp
        s_lshl_b32 s36, s36, 2
        s_add_u32 s36, s36, s37          ; 4tp+q
        s_lshl_b32 s36, s36, 8           ; *4*64
        s_add_u32 s35, s35, s36          ; g(i=0)
        s_mul_i32 s35, s35, 514
        v_and_b32 v{TMP}, 31, v1
        v_lshlrev_b32 v{TMP}, 4, v{TMP}
        v_add_u32 v{TMP}, s35, v{TMP}
        v_cmp_gt_u32 vcc, 32, v1
        v_mov_b32 v{TMP+2}, s14
        v_mov_b32 v{TMP+3}, s15
        v_mov_b32 v{TMP+4}, s12
        v_mov_b32 v{TMP+5}, s13
        v_cndmask_b32 v{TMP+2}, v{TMP+2}, v{TMP+4}, vcc
        v_cndmask_b32 v{TMP+3}, v{TMP+3}, v{TMP+5}, vcc
        v_add_co_u32 v{TMP+2}, vcc, v{TMP+2}, v{TMP}
        s_mul_i32 s36, s3, {4*XR_STRIDE}
        s_nop 0
        v_addc_co_u32 v{TMP+3}, vcc, 0, v{TMP+3}, vcc
        """)
        for i in range(4):
            a(f"s_add_u32 m0, s36, {B1_WTL+i*XR_STRIDE}")
            a("s_nop 0")
            a(f"global_load_lds_dwordx4 {vr(TMP+2,2)}, off")
            if i<3:
                a(f"v_add_co_u32 v{TMP+2}, vcc, {64*514}, v{TMP+2}")
                a("s_nop 1")
                a(f"v_addc_co_u32 v{TMP+3}, vcc, 0, v{TMP+3}, vcc")
        a(f"""
        s_sub_u32 s35, s18, 32
        s_cmp_lt_u32 s35, 32
        s_cselect_b32 s39, 1, 0
        s_cmp_eq_u32 s3, 7
        s_cselect_b32 s39, s39, 0
        s_cmp_eq_u32 s39, 1
        s_cbranch_scc0 k1_B_noab
        s_lshl_b32 s36, s35, 6
        v_add_u32 v{TMP}, s36, v1        ; g
        v_sub_u32 v{TMP+1}, 2048, v{TMP}
        v_and_b32 v{TMP+1}, 2047, v{TMP+1}   ; -g
        v_mul_u32_u24 v{TMP}, 514, v{TMP}
        v_mul_u32_u24 v{TMP+1}, 514, v{TMP+1}
        """)
        srd(a,48,12,2048*257*2); srd(a,40,14,2048*257*2)
        for k,(arr,val,off) in enumerate([(48,TMP,0),(40,TMP,0),(48,TMP+1,0),(40,TMP+1,0),(48,TMP,512),(40,TMP,512),(48,TMP+1,512),(40,TMP+1,512)]):
            a(f"buffer_load_ushort v{ABL+k}, v{val}, s[{arr}:{arr+3}], 0 offen offset:{off}")
        a.label("k1_B_noab")
    def b_consts():
        a(f"""
        v_cvt_f32_u32 v{VMF}, v{VM}
        v_lshlrev_b32 v{VQF}, 2, v{VQ}
        v_cvt_f32_u32 v{VQF}, v{VQF}
        """)
        gen_consts(a, False, 1.0, R16, TWc, TWs, A32, TMP, VMF, VQF)
    if os.environ.get("K1BORD","1")=="1":
        b_consts(); b_loads()
    else:
        b_loads(); b_consts()
    a(f"""
    s_cmp_lt_u32 s18, 2
    s_cbranch_scc0 k1_B_not64
    s_lshl_b32 s36, s18, 3
    s_add_u32 s36, s36, s3           ; unit
    s_lshr_b32 s37, s36, 2           ; w
    s_and_b32 s38, s36, 3            ; u
    s_lshl_b32 s37, s37, 4
    s_lshl_b32 s38, s38, 4
    v_add_u32 v{TMP}, s37, v{VM}
    v_cvt_f32_u32 v{TMP}, v{TMP}
    v_mul_f32 v{TMP}, {hex(f2u(1/64.))}, v{TMP}
    v_cvt_f32_u32 v{TMP+1}, s38
    v_add_f32 v{TMP+1}, v{TMP+1}, v{VQF}
    v_add_f32 v{TMP+2}, 1.0, v{TMP+1}
    v_add_f32 v{TMP+3}, 2.0, v{TMP+1}
    v_add_f32 v{TMP+4}, 1.0, v{TMP+3}
    """)
    for i in range(4): a(f"v_mul_f32 v{TMP+1+i}, v{TMP+1+i}, v{TMP}")
    for i in range(4):
        a(f"v_cos_f32 v{TMP+5+i}, v{TMP+1+i}")
        a(f"v_sin_f32 v{TMP+9+i}, v{TMP+1+i}")
    a("s_nop 0")
    for i in range(4):
        a(f"v_cvt_pk_bf16_f32 v{TMP+16+i}, v{TMP+5+i}, v{TMP+9+i}")
        a(f"v_cvt_pk_bf16_f32 v{TMP+20+i}, -v{TMP+9+i}, v{TMP+5+i}")
    a(f"""
    s_lshl_b32 s36, s36, 11
    s_add_u32 s36, s36, {OFF_T64}
    buffer_store_dwordx4 {vr(TMP+16,4)}, v6, s[24:27], s36 offen
    buffer_store_dwordx4 {vr(TMP+20,4)}, v6, s[24:27], s36 offen offset:1024
    """)
    a.label("k1_B_not64")
    a(f"""
    s_cmp_eq_u32 s18, 2
    s_cbranch_scc0 k1_B_notw
    s_cmp_lt_u32 s3, 4
    s_cbranch_scc0 k1_B_a32
    s_lshl_b32 s37, s3, 4
    v_add_u32 v{TMP}, s37, v{VM}
    v_cvt_f32_u32 v{TMP}, v{TMP}
    v_mul_f32 v{TMP}, {hex(f2u(1/2048.))}, v{TMP}
    """)
    for t in range(2):
        for i in range(4):
            k=16*t+i
            if k==0: a(f"v_mov_b32 v{TMP+1}, v{VQF}")
            else: a(f"v_add_f32 v{TMP+1+4*t+i}, {hex(f2u(float(k)))}, v{VQF}")
    for e in range(8): a(f"v_mul_f32 v{TMP+1+e}, v{TMP+1+e}, v{TMP}")
    for e in range(8):
        a(f"v_cos_f32 v{TMP+16+e}, v{TMP+1+e}")
        a(f"v_sin_f32 v{TMP+24+e}, v{TMP+1+e}")
    a(f"""
    s_lshl_b32 s36, s3, 12
    s_add_u32 s36, s36, {OFF_TW}
    buffer_store_dwordx4 {vr(TMP+16,4)}, v6, s[24:27], s36 offen
    buffer_store_dwordx4 {vr(TMP+20,4)}, v6, s[24:27], s36 offen offset:1024
    buffer_store_dwordx4 {vr(TMP+24,4)}, v6, s[24:27], s36 offen offset:2048
    buffer_store_dwordx4 {vr(TMP+28,4)}, v6, s[24:27], s36 offen offset:3072
    s_branch k1_B_notw
    """)
    a.label("k1_B_a32")
    a("""
    s_cmp_eq_u32 s3, 4
    s_cbranch_scc0 k1_B_notw
    """)
    for blk in range(8):
        a(f"s_mov_b32 s36, {OFF_A32+blk*1024}")
        a(f"buffer_store_dwordx4 {vr(A32+4*blk,4)}, v6, s[24:27], s36 offen")
    a.label("k1_B_notw")
    a(f"""
    v_bfe_u32 v{TMP}, v1, 2, 2       ; r4
    v_and_b32 v{TMP+1}, 1, v{TMP}
    v_mul_u32_u24 v{TMP+1}, {XR_STRIDE}, v{TMP+1}
    v_lshrrev_b32 v{TMP+2}, 1, v{TMP}
    v_lshl_add_u32 v{TMP+2}, v{VQ}, 2, v{TMP+2}    ; 4q + (r4>>1)
    v_lshl_add_u32 v{TMP+1}, v{TMP+2}, 6, v{TMP+1}
    v_and_b32 v{TMP+2}, 3, v1
    v_lshl_add_u32 v{TMP+1}, v{TMP+2}, 3, v{TMP+1}
    s_mul_i32 s30, s3, {4*XR_STRIDE}
    v_add_u32 v7, s30, v{TMP+1}
    """)
    stamp(a,1)
    a("s_waitcnt vmcnt(0)")
    stamp(a,2)
    for pp in range(2):
        for t in range(2):
            a(f"ds_read_b64_tr_b16 {vr(PIN+8*pp+4*t,2)}, v7 offset:{pp*2*XR_STRIDE+t*32}")
            a(f"ds_read_b64_tr_b16 {vr(PIN+8*pp+4*t+2,2)}, v7 offset:{pp*2*XR_STRIDE+t*32+128}")
    for j in range(4): a(f"v_lshl_or_b32 v{WOL+j}, v{WOH+j}, 16, v{WOL+j}")
    a(f"""
    s_lshl_b32 s32, s32, 10
    s_add_u32 s32, s32, {OFF_WOF}
    buffer_store_dwordx4 {vr(WOL,4)}, v6, s[24:27], s32 offen
    """)
    a(f"""
    s_cmp_eq_u32 s39, 1
    s_cbranch_scc0 k1_B_noab2
    """)
    for k in range(8): a(f"v_lshlrev_b32 v{ABL+k}, 16, v{ABL+k}")
    a(f"""
    v_add_f32 v{TMP}, v{ABL}, v{ABL+2}        ; 2*Wh0.re
    v_sub_f32 v{TMP+1}, v{ABL+1}, v{ABL+3}    ; 2*Wh0.im
    v_add_f32 v{TMP+2}, v{ABL+4}, v{ABL+6}    ; 2*Wh256.re
    v_sub_f32 v{TMP+3}, v{ABL+5}, v{ABL+7}    ; 2*Wh256.im
    v_add_f32 v{TMP+4}, v{TMP}, v{TMP+2}
    v_add_f32 v{TMP+5}, v{TMP+1}, v{TMP+3}
    v_sub_f32 v{TMP+6}, v{TMP}, v{TMP+2}
    v_sub_f32 v{TMP+7}, v{TMP+1}, v{TMP+3}
    v_mul_f32 v{TMP+4}, 0.25, v{TMP+4}
    v_mul_f32 v{TMP+5}, 0.25, v{TMP+5}
    v_mul_f32 v{TMP+6}, 0.25, v{TMP+6}
    v_mul_f32 v{TMP+7}, 0.25, v{TMP+7}
    v_cvt_pk_bf16_f32 v{TMP+4}, v{TMP+4}, v{TMP+5}
    v_cvt_pk_bf16_f32 v{TMP+5}, v{TMP+6}, v{TMP+7}
    s_lshr_b32 s36, s35, 4
    s_lshl_b32 s36, s36, 2
    s_and_b32 s37, s35, 3
    s_add_u32 s36, s36, s37          ; e
    s_and_b32 s38, s36, 1
    s_lshl_b32 s38, s38, 3           ; (e&1)*8
    s_lshr_b32 s36, s36, 1
    s_lshl_b32 s36, s36, 10          ; ep*1024
    s_add_u32 s36, s36, s38
    s_lshr_b32 s37, s35, 2
    s_and_b32 s37, s37, 3
    s_lshl_b32 s37, s37, 8           ; q*16*16
    s_add_u32 s36, s36, s37
    s_add_u32 s36, s36, {OFF_AB}
    v_lshlrev_b32 v{TMP+8}, 12, v{VQ}
    v_lshl_add_u32 v{TMP+8}, v{VM}, 4, v{TMP+8}
    buffer_store_dwordx2 {vr(TMP+4,2)}, v{TMP+8}, s[24:27], s36 offen
    """)
    a.label("k1_B_noab2")
    a("s_waitcnt lgkmcnt(0)")
    for pp in range(2):
        for t in range(2):
            for part in range(2):
                a(f"v_mfma_f32_16x16x32_bf16 {vr(D1+16*pp+8*t+4*part,4)}, {vr(PIN+8*pp+4*t,4)}, {vr(R16+4*part,4)}, 0")
    a("s_nop 4")
    for pp in range(2):
        for t in range(2):
            twiddle(a, D1+16*pp+8*t, D1+16*pp+8*t+4, TWc+4*t, TWs+4*t, PIN+8*pp+4*t, TMP)
    a("s_nop 1")
    for pp in range(2):
        for tp in range(2):
            for part in range(2):
                d=D2+16*pp+8*tp+4*part
                for t in range(2):
                    A=A32+((tp*2+part)*2+t)*4
                    a(f"v_mfma_f32_16x16x32_bf16 {vr(d,4)}, {vr(A,4)}, {vr(PIN+8*pp+4*t,4)}, {'0' if t==0 else vr(d,4)}")
    a(f"""
    v_lshl_add_u32 v{TMP}, v{VQ}, 6, v{VM}         ; m + 64q
    s_mul_i32 s30, s3, {4*XR_STRIDE}
    v_lshl_add_u32 v{TMP+1}, v{TMP}, 3, s30
    v_sub_u32 v{TMP+2}, {256-48}, v{TMP}            ; 256-48-f0
    v_lshl_add_u32 v{TMP+2}, v{TMP+2}, 3, s30
    v_add_u32 v{TMP+3}, 384, v{TMP+2}               ; i=0 address
    v_cmp_eq_u32 vcc, 0, v1
    v_mov_b32 v{TMP+4}, s30
    s_nop 0
    v_cndmask_b32 v{TMP+3}, v{TMP+3}, v{TMP+4}, vcc ; lane0 -> g=0 (Z[256])
    s_nop 1
    """)
    for pp in range(2):
        for i in range(4):
            a(f"ds_write2_b32 v{TMP+1}, v{D2+16*pp+8+i}, v{D2+16*pp+12+i} offset0:{(pp*2048+i*128)//4 if False else i*32} offset1:{i*32+1}" if pp==0 else
              f"ds_write2_b32 v{TMP+5}, v{D2+16*pp+8+i}, v{D2+16*pp+12+i} offset0:{i*32} offset1:{i*32+1}")
        if pp==0: a(f"v_add_u32 v{TMP+5}, 2048, v{TMP+1}")
    a("s_waitcnt lgkmcnt(0)")
    PR=D1
    for pp in range(2):
        a(f"ds_read_b64 {vr(PR+8*pp,2)}, v{TMP+3} offset:{pp*2048}")
        for i in range(1,4):
            a(f"ds_read_b64 {vr(PR+8*pp+2*i,2)}, v{TMP+2} offset:{pp*2048+(3-i)*128}")
    a(f"""
    v_lshrrev_b32 v{TMP+6}, 1, v{VM}               ; (f>>1)&7 = m>>1
    v_xor_b32 v{TMP+6}, s3, v{TMP+6}               ; wave ^ (m>>1)
    v_lshlrev_b32 v{TMP+6}, 4, v{TMP+6}
    v_lshl_add_u32 v{TMP+6}, v{TMP}, 7, v{TMP+6}
    v_add_u32 v{TMP+6}, {B1_MB}, v{TMP+6}
    s_waitcnt lgkmcnt(0)
    """)
    O=TMP+8
    for pp in range(2):
        for i in range(4):
            zr,zi=D2+16*pp+i, D2+16*pp+4+i
            pr,pi=PR+8*pp+2*i, PR+8*pp+2*i+1
            a(f"v_add_f32 v{O}, v{zr}, v{pr}")
            a(f"v_sub_f32 v{O+1}, v{zi}, v{pi}")
            a(f"v_add_f32 v{O+2}, v{zi}, v{pi}")
            a(f"v_sub_f32 v{O+3}, v{pr}, v{zr}")
            if i==0:
                a(f"v_add_f32 v{O+4}, v{zr}, v{zr}")
                a(f"v_add_f32 v{O+5}, v{pr}, v{pr}")
                a(f"v_add_f32 v{O+6}, v{zi}, v{zi}")
                a(f"v_add_f32 v{O+7}, v{pi}, v{pi}")
                for k in range(4): a(f"v_cndmask_b32 v{O+k}, v{O+k}, v{O+4+k}, vcc")
            o2=O+8+2*((pp*4+i)%4)
            a(f"v_cvt_pk_bf16_f32 v{o2}, v{O}, v{O+1}")
            a(f"v_cvt_pk_bf16_f32 v{o2+1}, v{O+2}, v{O+3}")
            a(f"ds_write_b64 v{TMP+6}, {vr(o2,2)} offset:{i*2048+pp*8}")
    a(f"""
    v_bfe_u32 v{TMP}, v1, 2, 2                     ; r4
    v_lshrrev_b32 v{TMP+1}, 1, v{TMP}
    v_mul_u32_u24 v{TMP+1}, {XR_STRIDE}, v{TMP+1}
    v_and_b32 v{TMP+2}, 1, v{TMP}
    v_lshl_add_u32 v{TMP+1}, v{TMP+2}, 9, v{TMP+1}
    v_lshl_add_u32 v{TMP+1}, v{VQ}, 5, v{TMP+1}
    v_and_b32 v{TMP+2}, 3, v1
    v_lshl_add_u32 v{TMP+1}, v{TMP+2}, 3, v{TMP+1} ; + c4*8
    s_mul_i32 s30, s3, {4*XR_STRIDE}
    s_add_u32 s30, s30, {B1_WTL}
    v_add_u32 v{TMP+1}, s30, v{TMP+1}
    """)
    for jj in range(4):
        a(f"ds_read_b64_tr_b16 {vr(D1+4*jj,2)}, v{TMP+1} offset:{jj*128}")
        a(f"ds_read_b64_tr_b16 {vr(D1+4*jj+2,2)}, v{TMP+1} offset:{jj*128+2*XR_STRIDE}")
    a(f"""
    v_and_b32 v{TMP+2}, 7, v1
    v_xor_b32 v{TMP+2}, s3, v{TMP+2}
    v_lshlrev_b32 v{TMP+2}, 4, v{TMP+2}
    v_lshl_add_u32 v{TMP+2}, v1, 7, v{TMP+2}
    v_add_u32 v{TMP+2}, {B1_MBW}, v{TMP+2}
    """)
    for jj in range(4):
        a(f"s_waitcnt lgkmcnt({6-2*jj})")
        a(f"ds_write_b128 v{TMP+2}, {vr(D1+4*jj,4)} offset:{jj*8192}")
    a("""
    s_waitcnt lgkmcnt(0)
    s_barrier
    """)
    a(f"""
    v_lshrrev_b32 v{TMP}, 3, v1
    v_and_b32 v{TMP+1}, 7, v1
    s_lshl_b32 s30, s3, 5
    v_add_u32 v{TMP+2}, s30, v{TMP}                ; f
    v_xor_b32 v{TMP+3}, v{TMP}, v{TMP+1}
    v_lshlrev_b32 v{TMP+3}, 4, v{TMP+3}
    v_lshl_add_u32 v{TMP+3}, v{TMP+2}, 7, v{TMP+3}
    v_add_u32 v{TMP+3}, {B1_MBW}, v{TMP+3}
    v_lshlrev_b32 v{TMP+5}, 13, v{TMP+2}
    v_lshl_add_u32 v{TMP+5}, v{TMP+1}, 4, v{TMP+5} ; f*8192 + c8*16
    s_and_b32 s31, s18, 7
    s_lshr_b32 s32, s31, 1
    s_lshl_b32 s32, s32, 11
    s_and_b32 s31, s31, 1
    s_lshl_b32 s31, s31, 7
    s_add_u32 s32, s32, s31
    s_lshr_b32 s31, s18, 5
    s_lshl_b32 s31, s31, 10
    s_add_u32 s32, s32, s31
    s_lshr_b32 s31, s18, 3
    s_and_b32 s31, s31, 3
    s_lshl_b32 s31, s31, 8
    s_add_u32 s32, s32, s31
    s_add_u32 s32, s32, {OFF_WT}
    """)
    for jj in range(4):
        a(f"ds_read_b128 {vr(D1+4*jj,4)}, v{TMP+3} offset:{jj*1024}")
    for jj in range(4):
        a(f"s_waitcnt lgkmcnt({3-jj})")
        a(f"s_add_u32 s31, s32, {jj*8*8192}")
        a(f"buffer_store_dwordx4 {vr(D1+4*jj,4)}, v{TMP+5}, s[24:27], s31 offen")
    a(f"""
    v_lshrrev_b32 v{TMP}, 3, v1                    ; fl
    v_and_b32 v{TMP+1}, 7, v1                      ; c8
    s_lshl_b32 s30, s3, 5
    v_add_u32 v{TMP+2}, s30, v{TMP}                ; f (jj=0)
    v_lshrrev_b32 v{TMP+3}, 1, v{TMP}
    v_xor_b32 v{TMP+3}, v{TMP+3}, v{TMP+1}
    v_lshlrev_b32 v{TMP+3}, 4, v{TMP+3}
    v_lshl_add_u32 v{TMP+3}, v{TMP+2}, 7, v{TMP+3}
    v_add_u32 v{TMP+3}, {B1_MB}, v{TMP+3}
    v_xor_b32 v{TMP+4}, 64, v{TMP+3}
    v_lshlrev_b32 v{TMP+5}, 13, v{TMP+2}
    v_lshl_add_u32 v{TMP+5}, v{TMP+1}, 4, v{TMP+5} ; f*8192 + c8*16
    s_lshl_b32 s31, s19, 8
    s_lshl_b32 s32, s28, 7
    s_add_u32 s31, s31, s32
    s_add_u32 s31, s31, {OFF_Z}
    """)
    for jj in range(4):
        a(f"ds_read_b128 {vr(D2+4*jj,4)}, v{TMP+3+(jj&1)} offset:{jj*1024}")
    for jj in range(4):
        a(f"s_waitcnt lgkmcnt({3-jj})")
        a(f"s_add_u32 s32, s31, {jj*8*8192}")
        a(f"buffer_store_dwordx4 {vr(D2+4*jj,4)}, v{TMP+5}, s[24:27], s32 offen")
    if asm.STAMP and not asm.F12:
        stamp(a,3); a("s_waitcnt vmcnt(0)"); stamp(a,4); stamp_dump(a,0)
    fin(a)

def build_k1(a=None):
    own = a is None
    if own: a=Asm()
    k1_prologue(a)
    k1_loader(a)
    k1_compute(a)
    k1_B(a)
    a.sc_srd=None
    if own:
        a.label("k1_end")
        a("s_endpgm")
    return a
```

```python
import asm
from asm import *
from layout import *
from k1 import srd, twiddle
import os
VAR=set(os.environ.get("VAR","").split(","))
def opt(name,default):
    for v in VAR:
        if v.startswith(name+"="): return int(v.split("=")[1])
    return default
K2_COL=135168
K2_E=K2_COL+8192
K2_LDS=163840
K2_CNT=163840-64
THRESH2=4096.0/1.03
NB=opt("NB",30)
NA=64-NB
ARRIT=opt("ARRIT",2)
TABIT=opt("TABIT",2)
B2IT=opt("B2IT",4)
PUBIT=opt("PUBIT",6)
XB=opt("XB",12)

VK,VV,VIDX=2,3,4
Q=[8,12]; S=[16,32]; O=[48,64]
F=[(80,84,88),(92,96,100)]
TMP=104
T64,A32,TW,WT,BUF,D1,P=112,144,176,192,200,232,248
X2=200
CI=[112,128]
VM,VQd=108,109
WOR=144

def expo(a,r): a(f"v_exp_f32 v{r}, v{r}")

def unit(a,tp,qt,fb):
    Sc,Sn=S[qt],S[1-qt]
    def pv(Ob,V,B): a(f"v_smfmac_f32_32x32x32_bf16 {vr(Ob,16)}, {vr(V,4)}, {vr(B,8)}, v{VIDX}")
    def qk(Sd,K,qq): a(f"v_mfma_f32_32x32x16_bf16 {vr(Sd,16)}, {vr(K,4)}, {vr(Q[qq],4)}, {vr(CI[qq],16) if fb else '0'}")
    if qt==0:
        Kc,V0c,V1c=F[tp]; Kn,V0n,V1n=F[1-tp]
        expo(a,Sc); expo(a,Sc+1)
        pv(O[1],V1n,Sn+8)
        a(f"ds_read_b128 {vr(Kn,4)}, v{VK} offset:{(tp+1)*KV_TILE}")
        expo(a,Sc+2)
        a(f"ds_read_b128 {vr(V0n,4)}, v{VV} offset:{(tp+1)*KV_TILE+512}")
        expo(a,Sc+3)
        a(f"ds_read_b128 {vr(V1n,4)}, v{VV} offset:{(tp+1)*KV_TILE+784}")
        expo(a,Sc+4); expo(a,Sc+5)
        qk(Sn,Kc,1)
        for i in range(6,12): expo(a,Sc+i)
        pv(O[0],V0c,Sc)
        for i in range(12,16): expo(a,Sc+i)
    else:
        Kc,V0c,V1c=F[tp]; Kn,V0n,V1n=F[1-tp]
        expo(a,Sc); expo(a,Sc+1)
        pv(O[0],V1c,Sn+8)
        for i in range(2,6): expo(a,Sc+i)
        a("s_waitcnt lgkmcnt(0)")
        qk(Sn,Kn,0)
        for i in range(6,12): expo(a,Sc+i)
        pv(O[1],V0c,Sc)
        for i in range(12,16): expo(a,Sc+i)

def bbar(a,tag,cnt=0):
    a(f"""
    v_mov_b32 v111, {K2_CNT+cnt}
    v_mov_b32 v110, 1
    s_waitcnt lgkmcnt(0)
    s_mov_b64 exec, 1
    ds_add_u32 v111, v110
    s_mov_b64 exec, -1
    s_add_u32 s47, s47, 4
    """)
    a.label(f"k2_bbar_{tag}")
    a(f"""
    ds_read_b32 v109, v111
    s_waitcnt lgkmcnt(0)
    v_readfirstlane_b32 s48, v109
    s_nop 0
    s_cmp_lt_u32 s48, s47
    s_cbranch_scc1 k2_bbar_{tag}
    """)

def dma_arrive(a,younger=0):
    a(f"""
    s_waitcnt vmcnt({younger})
    v_mov_b32 v{TMP}, {K2_CNT+4}
    v_mov_b32 v{TMP+1}, 1
    s_mov_b64 exec, 1
    ds_add_u32 v{TMP}, v{TMP+1}
    s_mov_b64 exec, -1
    """)
def dma_wait(a,tag):
    a(f"v_mov_b32 v{TMP}, {K2_CNT+4}")
    a.label(f"k2_dwait_{tag}")
    a(f"""
    ds_read_b32 v{TMP+1}, v{TMP}
    s_waitcnt lgkmcnt(0)
    v_readfirstlane_b32 s48, v{TMP+1}
    s_nop 0
    s_cmp_lt_u32 s48, 8
    s_cbranch_scc1 k2_dwait_{tag}
    """)

def kv_dma(a, ns):
    for n in ns:
        a(f"s_add_u32 m0, s34, {n*1024}")
        a(f"s_add_u32 s36, s35, {n*1024}")
        a(f"buffer_load_dwordx4 v{TMP}, s[20:23], s36 offen lds")

def b2_part1(a):
    a("s_waitcnt vmcnt(0)")
    bbar(a,"col")
    a(f"""
    v_and_b32 v{VM}, 15, v1
    v_lshrrev_b32 v{VQd}, 4, v1
    v_xor_b32 v104, v{VM}, v{VQd}
    v_lshlrev_b32 v104, 4, v104
    v_lshl_add_u32 v104, v{VM}, 8, v104
    v_add_u32 v104, {K2_COL}, v104
    v_xor_b32 v105, 64, v104
    v_xor_b32 v106, 128, v104
    v_xor_b32 v107, 192, v104
    """)
    for u in range(4):
        for t in range(2):
            a(f"ds_read_b128 {vr(BUF+16*t+4*u,4)}, v{104+u} offset:{t*4096}")
    for u in range(4):
        a(f"s_waitcnt lgkmcnt({6-2*u})")
        for t in range(2):
            for part in range(2):
                d=D1+8*t+4*part
                a(f"v_mfma_f32_16x16x32_bf16 {vr(d,4)}, {vr(BUF+16*t+4*u,4)}, {vr(T64+8*u+4*part,4)}, {'0' if u==0 else vr(d,4)}")
    a("""
    s_cmp_eq_u32 s28, 0
    s_cbranch_scc0 k2_p1_noab
    """)
    a(f"v_lshlrev_b32 v110, 4, v1")
    a(f"s_lshl_b32 s36, s3, 12")
    a(f"s_add_u32 s36, s36, {OFF_AB}")
    for ep in range(4):
        a(f"buffer_load_dwordx4 {vr(216+4*ep,4)}, v110, s[20:23], s36 offen offset:{ep*1024}")
    a.label("k2_p1_noab")
    a("s_nop 6")
    for t in range(2):
        twiddle(a, D1+8*t, D1+8*t+4, TW+4*t, TW+8+4*t, P+4*t, 104)
    a("s_nop 1")
    for t in range(2):
        for tp in range(2):
            for part in range(2):
                d=X2+8*tp+4*part
                a(f"v_mfma_f32_16x16x32_bf16 {vr(d,4)}, {vr(A32+((tp*2+part)*2+t)*4,4)}, {vr(P+4*t,4)}, {'0' if t==0 else vr(d,4)}")

def b2_part2(a):
    a("s_waitcnt vmcnt(0)")
    a("""
    s_cmp_eq_u32 s28, 0
    s_cbranch_scc1 k2_p2_special
    """)
    for tp in range(2):
        xr,xi=X2+8*tp,X2+8*tp+4
        wr,wi=D1+8*tp,D1+8*tp+4
        for i in range(4):
            a(f"v_lshlrev_b32 v{wr+i}, 16, v{WT+4*tp+i}")
            a(f"v_and_b32 v{wi+i}, 0xffff0000, v{WT+4*tp+i}")
        for p in (0,2):
            a(f"v_pk_mul_f32 {vr(104+p,2)}, {vr(xr+p,2)}, {vr(wr+p,2)}")
            a(f"v_pk_mul_f32 {vr(108+p,2)}, {vr(xr+p,2)}, {vr(wi+p,2)}")
        for p in (0,2):
            a(f"v_pk_fma_f32 {vr(104+p,2)}, {vr(xi+p,2)}, {vr(wi+p,2)}, {vr(104+p,2)} neg_lo:[1,0,0] neg_hi:[1,0,0]")
            a(f"v_pk_fma_f32 {vr(108+p,2)}, {vr(xi+p,2)}, {vr(wr+p,2)}, {vr(108+p,2)}")
        for i in range(4): a(f"v_cvt_pk_bf16_f32 v{P+4*tp+i}, v{104+i}, -v{108+i}")
    a.label("k2_p2_common")
    a("s_nop 1")
    for tp in range(2):
        for t in range(2):
            for part in range(2):
                d=D1+8*t+4*part
                a(f"v_mfma_f32_16x16x32_bf16 {vr(d,4)}, {vr(A32+((t*2+part)*2+tp)*4,4)}, {vr(P+4*tp,4)}, {'0' if tp==0 else vr(d,4)}")
    t0=X2
    a(f"""
    v_and_b32 v{t0}, 15, v1                 ; m
    v_lshrrev_b32 v{t0+1}, 4, v1            ; q
    v_lshrrev_b32 v{t0+2}, 2, v{t0}         ; m>>2
    s_lshl_b32 s36, s3, 2
    v_add_u32 v{t0+2}, s36, v{t0+2}         ; 4w + (m>>2)
    v_lshlrev_b32 v{t0+3}, 2, v{t0+1}       ; 4q
    v_xor_b32 v{t0+2}, v{t0+2}, v{t0+3}
    v_lshlrev_b32 v{t0+2}, 4, v{t0+2}
    v_lshl_add_u32 v{t0+2}, v{t0+3}, 8, v{t0+2}
    v_and_b32 v{t0+4}, 3, v{t0}
    v_lshl_add_u32 v{t0+2}, v{t0+4}, 2, v{t0+2}
    v_add_u32 v{t0+8}, {K2_E}, v{t0+2}
    v_xor_b32 v{t0+9}, 16, v{t0+8}
    v_xor_b32 v{t0+10}, 32, v{t0+8}
    v_xor_b32 v{t0+11}, 48, v{t0+8}
    """)
    for t in range(2):
        twiddle(a, D1+8*t, D1+8*t+4, TW+4*t, TW+8+4*t, P+4*t, 104)
    for t in range(2):
        for i in range(4):
            a(f"ds_write_b32 v{t0+8+i}, v{P+4*t+i} offset:{t*4096+i*256}")
    bbar(a,"e")
    a(f"""
    v_and_b32 v{VM}, 15, v1
    v_lshrrev_b32 v{VQd}, 4, v1
    v_xor_b32 v104, v{VM}, v{VQd}
    v_lshlrev_b32 v104, 4, v104
    v_lshl_add_u32 v104, v{VM}, 8, v104
    v_add_u32 v104, {K2_E}, v104
    v_xor_b32 v105, 64, v104
    v_xor_b32 v106, 128, v104
    v_xor_b32 v107, 192, v104
    """)
    for u in range(4):
        for t in range(2):
            a(f"ds_read_b128 {vr(BUF+16*t+4*u,4)}, v{104+u} offset:{t*4096}")
    a(f"""
    v_lshlrev_b32 v110, 8, v{VM}
    v_lshl_add_u32 v110, v{VQd}, 4, v110
    s_lshl_b32 s36, s28, 13
    s_lshl_b32 s37, s3, 6
    s_add_u32 s36, s36, s37
    s_add_u32 s36, s36, {OFF_Y}
    """)
    for u in range(4):
        a(f"s_waitcnt lgkmcnt({6-2*u})")
        for t in range(2):
            for part in range(2):
                d=D1+8*t+4*part
                a(f"v_mfma_f32_16x16x32_bf16 {vr(d,4)}, {vr(T64+8*u+4*part,4)}, {vr(BUF+16*t+4*u,4)}, {'0' if u==0 else vr(d,4)}")
    a("s_nop 7")
    for t in range(2):
        for i in range(4): a(f"v_cvt_pk_bf16_f32 v{P+4*t+i}, v{D1+8*t+i}, -v{D1+8*t+4+i}")
        a.sc_srd="s[20:23]"
        a(f"buffer_store_dwordx4 {vr(P+4*t,4)}, v110, s[20:23], s36 offen")
        a.sc_srd=a.p1
        if t==0: a("s_add_u32 s36, s36, 4096")
    a("s_setpc_b64 s[60:61]")
    a.label("k2_p2_special")
    bbar(a,"s0")
    XCH=K2_COL
    a(f"""
    v_and_b32 v104, 15, v1
    v_lshrrev_b32 v105, 4, v1
    s_lshl_b32 s36, s3, 4
    v_add_u32 v104, s36, v104                 ; k1
    v_lshl_add_u32 v104, v105, 8, v104         ; g0 = k1 + 64*4q
    v_lshlrev_b32 v106, 3, v104
    v_add_u32 v106, {XCH}, v106
    """)
    for tp in range(2):
        for i in range(4):
            off=(i*64+tp*1024)*8
            a(f"ds_write_b32 v106, v{X2+8*tp+i} offset:{off}")
            a(f"ds_write_b32 v106, v{X2+8*tp+4+i} offset:{off+4}")
    bbar(a,"s1")
    for tp in range(2):
        for i in range(4):
            e=4*tp+i
            a(f"v_sub_u32 v107, {2048-(i*64+tp*1024)}, v104")
            a(f"v_and_b32 v107, 2047, v107")
            a(f"v_lshlrev_b32 v107, 3, v107")
            a(f"v_add_u32 v107, {XCH}, v107")
            a(f"ds_read_b64 {vr(D1+2*e,2)}, v107")
    bbar(a,"s2")
    for tp in range(2):
        for i in range(4):
            e=4*tp+i
            src=216+2*e
            ab=WT
            a(f"v_lshlrev_b32 v{ab}, 16, v{src}")
            a(f"v_and_b32 v{ab+1}, 0xffff0000, v{src}")
            a(f"v_lshlrev_b32 v{ab+2}, 16, v{src+1}")
            a(f"v_and_b32 v{ab+3}, 0xffff0000, v{src+1}")
            zr,zi=X2+8*tp+i,X2+8*tp+4+i
            pr,pi=D1+2*e,D1+2*e+1
            a(f"v_mul_f32 v104, v{zr}, v{ab}")
            a(f"v_mul_f32 v105, v{zr}, v{ab+1}")
            a(f"v_fma_f32 v104, -v{zi}, v{ab+1}, v104")
            a(f"v_fma_f32 v105, v{zi}, v{ab}, v105")
            a(f"v_fma_f32 v104, v{pr}, v{ab+2}, v104")
            a(f"v_fma_f32 v105, v{pr}, v{ab+3}, v105")
            a(f"v_fma_f32 v104, v{pi}, v{ab+3}, v104")
            a(f"v_fma_f32 v105, -v{pi}, v{ab+2}, v105")
            a(f"v_cvt_pk_bf16_f32 v{P+e}, v104, -v105")
    a("s_branch k2_p2_common")


def rounds():
    nA0=NB*KV_TILE//1024
    st1=[0,nA0,8,nA0+8]
    rest=[]
    n=16
    while n<nA0:
        rest.append(min(n,nA0-8) if n+8>nA0 else n); n+=8
    n=nA0+16
    while n<132:
        rest.append(min(n,124)); n+=8
    lo=[r for r in rest if r<nA0]; hi=[r for r in rest if r>=nA0]
    out=[]
    while lo or hi:
        if lo: out.append(lo.pop(0))
        if hi: out.append(hi.pop(0))
    return st1,out

def attn_loop(a,fb):
    sfx="_fb" if fb else ""
    a.label("k2_loop"+sfx)
    if not fb:
        a("""
        s_cmp_eq_u32 s42, s40
        s_cbranch_scc1 k2_hook
        """)
        a.label("k2_hookret")
    unit(a,0,0,fb); unit(a,0,1,fb); unit(a,1,0,fb); unit(a,1,1,fb)
    a(f"""
    v_add_u32 v{VK}, {2*KV_TILE}, v{VK}
    v_add_u32 v{VV}, {2*KV_TILE}, v{VV}
    s_add_u32 s42, s42, 1
    s_cmp_lt_u32 s42, s43
    s_cbranch_scc1 k2_loop{sfx}
    """)

def pipe_prologue(a,fb):
    K,V0,V1=F[0]
    a(f"""
    ds_read_b128 {vr(K,4)}, v{VK}
    ds_read_b128 {vr(V0,4)}, v{VV} offset:512
    ds_read_b128 {vr(V1,4)}, v{VV} offset:784
    s_waitcnt lgkmcnt(2)
    v_mfma_f32_32x32x16_bf16 {vr(S[0],16)}, {vr(K,4)}, {vr(Q[0],4)}, {vr(CI[0],16) if fb else '0'}
    s_mov_b32 s42, 0
    s_waitcnt lgkmcnt(0)
    s_nop 11
    """)

def poll(a,tag,nloads,addr_regs,srdreg="s[20:23]",soff="0"):
    a(f"s_mov_b32 s49, 0x20000")
    a.label(f"poll_{tag}")
    for k in range(nloads):
        a(f"buffer_load_dword v{addr_regs[k][1]}, v{addr_regs[k][0]}, {srdreg}, {soff} offen")
    a("s_waitcnt vmcnt(0)")
    for k in range(nloads):
        a(f"v_cmp_eq_u32 {'vcc' if k==0 else 's[50:51]'}, s56, v{addr_regs[k][1]}")
        if k>0:
            a("s_nop 1"); a("s_and_b64 vcc, vcc, s[50:51]")
    a(f"""
    s_nop 1
    s_cmp_eq_u64 vcc, -1
    s_cbranch_scc1 poll_{tag}_done
    s_sub_u32 s49, s49, 1
    s_cmp_eq_u32 s49, 0
    s_cbranch_scc1 poll_{tag}_done
    s_sleep 1
    s_branch poll_{tag}
    """)
    a.label(f"poll_{tag}_done")

def get_tag(a,tagname):
    a(f"""
    v_mov_b32 v{TMP}, 0
    s_mov_b32 s49, 0x20000
    """)
    a.label(f"kf_tag_{tagname}")
    a(f"""
    global_load_dword v{TMP+1}, v{TMP}, s[54:55] sc1
    s_waitcnt vmcnt(0)
    v_readfirstlane_b32 s56, v{TMP+1}
    s_sub_u32 s49, s49, 1
    s_cmp_eq_u32 s49, 0
    s_cbranch_scc1 kf_tag_{tagname}_done
    s_cmp_eq_u32 s56, 0
    s_cbranch_scc0 kf_tag_{tagname}_done
    s_sleep 1
    s_branch kf_tag_{tagname}
    """)
    a.label(f"kf_tag_{tagname}_done")

def flag_store(a, soff_expr_reg, vtmp):
    a(f"""
    v_mov_b32 v{vtmp}, 0
    v_mov_b32 v{vtmp+1}, s56
    s_mov_b64 exec, 1
    buffer_store_dword v{vtmp+1}, v{vtmp}, s[20:23], s{soff_expr_reg} offen
    s_mov_b64 exec, -1
    """)

def build_k2(a=None):
    own = a is None
    if own: a=Asm()
    P1="s[20:23]" if asm.F12 else None
    a.sc_srd=P1
    st1,rest=rounds()
    R=len(rest)
    if not asm.F12:
        a(f"""
        s_cmp_ge_u32 s2, 256
        s_cbranch_scc1 k2_end
        s_load_dwordx2 s[16:17], s[0:1], 64      ; ws
        {"s_load_dwordx4 s[52:55], s[0:1], 48      ; out, debug" if asm.F23 else ""}
        v_and_b32 v1, 63, v0
        v_lshrrev_b32 v{TMP}, 6, v0
        s_nop 0
        v_readfirstlane_b32 s3, v{TMP}
        """)
        if asm.F23:
            a("""
            s_or_b32 s57, s2, s3
            s_cmp_eq_u32 s57, 0
            s_cbranch_scc0 kf_nononce
            s_memrealtime s[56:57]
            s_waitcnt lgkmcnt(0)
            s_or_b32 s56, s56, 1
            v_mov_b32 v2, 0
            v_mov_b32 v3, s56
            s_mov_b64 exec, 1
            global_store_dword v2, v3, s[54:55] sc1
            s_mov_b64 exec, -1
            """)
            a.label("kf_nononce")
    stamp(a,0)
    a(f"""
    s_and_b32 s18, s2, 7
    s_lshr_b32 s19, s2, 3
    s_lshl_b32 s29, s18, 2
    s_and_b32 s30, s19, 3
    s_add_u32 s29, s29, s30                  ; hd
    s_lshr_b32 s30, s19, 2                   ; qb
    s_lshl_b32 s28, s18, 5
    s_add_u32 s28, s28, s19                  ; f
    v_lshlrev_b32 v{TMP}, 4, v1              ; lane*16
    s_and_b32 s33, s3, 3                     ; qg
    s_lshl_b32 s31, s30, 3
    s_lshl_b32 s33, s33, 1
    s_add_u32 s31, s31, s33
    s_waitcnt lgkmcnt(0)
    """)
    srd(a,20,16,WS_SIZE)
    if asm.F12:
        a(f"""
        s_cmp_eq_u32 s3, 0
        s_cbranch_scc0 k2_nopoll
        s_lshr_b32 s32, s29, 3                   ; hd>>3
        v_and_b32 v{TMP+1}, 15, v1
        v_lshrrev_b32 v{TMP+2}, 4, v1            ; group 0:K 1:V 2,3:Q
        v_and_b32 v{TMP+3}, 1, v1
        s_lshl_b32 s33, s30, 1
        v_add_u32 v{TMP+3}, s33, v{TMP+3}
        v_cmp_gt_u32 vcc, 2, v{TMP+2}
        v_mov_b32 v{TMP+4}, 4
        v_mov_b32 v{TMP+5}, 8
        v_cndmask_b32 v{TMP+1}, v{TMP+3}, v{TMP+1}, vcc   ; rb
        v_cmp_eq_u32 vcc, 0, v{TMP+2}
        v_mov_b32 v{TMP+6}, 0
        s_nop 0
        v_cndmask_b32 v{TMP+6}, v{TMP+6}, v{TMP+4}, vcc
        v_cmp_eq_u32 vcc, 1, v{TMP+2}
        s_nop 1
        v_cndmask_b32 v{TMP+6}, v{TMP+6}, v{TMP+5}, vcc   ; type*4
        v_add_u32 v{TMP+6}, s32, v{TMP+6}        ; cb
        v_lshl_add_u32 v{TMP+1}, v{TMP+6}, 4, v{TMP+1}
        v_lshlrev_b32 v{TMP+1}, 2, v{TMP+1}
        v_add_u32 v{TMP+1}, {OFF_F1Q}, v{TMP+1}
        v_lshlrev_b32 v{TMP+2}, 2, v1
        v_add_u32 v{TMP+2}, {OFF_F1B}, v{TMP+2}
        """)
        poll(a,"p1",2,[(TMP+1,TMP+3),(TMP+2,TMP+4)])
        a.label("k2_nopoll")
        a("s_barrier")
        stamp(a,9)
    a(f"""
    s_lshl_b32 s32, s29, 16
    s_lshl_b32 s33, s31, 10
    s_add_u32 s32, s32, s33
    s_add_u32 s32, s32, {OFF_Q}
    buffer_load_dwordx4 {vr(Q[0],4)}, v{TMP}, s[20:23], s32 offen
    buffer_load_dwordx4 {vr(Q[1],4)}, v{TMP}, s[20:23], s32 offen offset:1024
    v_lshlrev_b32 v{TMP+1}, 2, v1
    s_lshl_b32 s32, s29, 8
    s_add_u32 s32, s32, {OFF_KN}
    buffer_load_dword v{TMP+2}, v{TMP+1}, s[20:23], s32 offen
    s_lshl_b32 s34, s3, 10                   ; wave*1024
    s_mul_i32 s35, s29, {KV_HEAD}
    s_add_u32 s35, s35, s34
    s_add_u32 s35, s35, {OFF_KV}
    """)
    kv_dma(a,st1)
    a("s_waitcnt vmcnt(4)")
    a.label("k2_loaded")
    for qq in range(2):
        acc=TMP+5+qq
        for k in range(4):
            a(f"v_lshlrev_b32 v{TMP+3}, 16, v{Q[qq]+k}")
            a(f"v_and_b32 v{TMP+4}, 0xffff0000, v{Q[qq]+k}")
            a(f"v_mul_f32 v{acc}, v{TMP+3}, v{TMP+3}" if k==0 else f"v_fmac_f32 v{acc}, v{TMP+3}, v{TMP+3}")
            a(f"v_fmac_f32 v{acc}, v{TMP+4}, v{TMP+4}")
    a(f"""
    s_nop 1
    v_permlane32_swap_b32 v{TMP+5}, v{TMP+6}
    s_nop 1
    v_add_f32 v{TMP+5}, v{TMP+5}, v{TMP+6}
    """)
    for sh in ("row_shr:1","row_shr:2","row_shr:4","row_shr:8"):
        a("s_nop 0")
        a(f"v_max_f32_dpp v{TMP+2}, v{TMP+2}, v{TMP+2} {sh} row_mask:0xf bank_mask:0xf bound_ctrl:0")
        a(f"v_max_f32_dpp v{TMP+5}, v{TMP+5}, v{TMP+5} {sh} row_mask:0xf bank_mask:0xf bound_ctrl:0")
    for sh in ("row_bcast:15 row_mask:0xa","row_bcast:31 row_mask:0xc"):
        a("s_nop 0")
        a(f"v_max_f32_dpp v{TMP+2}, v{TMP+2}, v{TMP+2} {sh} bank_mask:0xf")
        a(f"v_max_f32_dpp v{TMP+5}, v{TMP+5}, v{TMP+5} {sh} bank_mask:0xf")
    a(f"""
    s_nop 0
    v_mul_f32 v{TMP+2}, v{TMP+2}, v{TMP+5}
    s_nop 0
    v_readlane_b32 s38, v{TMP+2}, 63
    v_and_b32 v{TMP+3}, 31, v1
    v_lshrrev_b32 v{TMP+4}, 5, v1
    v_mul_u32_u24 v{TMP+4}, 1056, v{TMP+4}
    v_lshl_add_u32 v{VK}, v{TMP+3}, 4, v{TMP+4}
    s_cmp_lt_u32 s3, 4
    s_cselect_b32 s36, 0, {NB*KV_TILE}
    s_cselect_b32 s43, {NB//2}, {NA//2}       ; iterations
    s_cselect_b32 s40, {min(TABIT,ARRIT)}, {ARRIT}
    v_add_u32 v{VK}, s36, v{VK}
    v_cmp_gt_u32 vcc, 17, v{TMP+3}
    v_mov_b32 v{TMP+4}, 0x40000
    v_mov_b32 v{VIDX}, 0xdddd
    v_cndmask_b32 v{VV}, v{TMP+4}, v{VK}, vcc
    """)
    for qq in range(2):
        for i in range(16): a(f"v_mov_b32 v{O[qq]+i}, 0")
    for i in range(8): a(f"v_mov_b32 v{S[1]+8+i}, 0")
    for i in range(4): a(f"v_mov_b32 v{F[1][2]+i}, 0")
    if "nohook" in VAR:
        a("s_waitcnt vmcnt(0)"); a("s_mov_b32 s40, 99")
    a(f"""
    v_mov_b32 v{TMP+3}, {K2_CNT}
    v_mov_b32 v{TMP+4}, 0
    v_mov_b32 v{TMP+5}, 0
    v_mov_b32 v{TMP+6}, 0
    v_mov_b32 v{TMP+7}, 0
    s_mov_b32 s47, 0
    s_cmp_eq_u32 s3, 0
    s_cbranch_scc0 k2_noinit
    ds_write_b128 v{TMP+3}, {vr(TMP+4,4)}
    s_waitcnt lgkmcnt(0)
    """)
    a.label("k2_noinit")
    a("s_waitcnt vmcnt(0)")
    stamp(a,1)
    a("s_barrier")
    a(f"v_lshlrev_b32 v{TMP}, 4, v1")
    kv_dma(a,rest)
    a("""
    s_cmp_lt_u32 s3, 4
    s_cbranch_scc1 k2_prioB
    s_setprio 1
    s_branch k2_priodone
    """)
    a.label("k2_prioB")
    a("s_setprio 2" if "noprio" not in VAR else "s_setprio 0")
    a.label("k2_priodone")
    if "soloA" in VAR:
        a("s_cmp_lt_u32 s3, 4"); a("s_cbranch_scc1 k2_end")
    stamp(a,2)
    a(f"""
    s_cmp_le_u32 s38, {hex(f2u(THRESH2))}
    s_cbranch_scc0 k2_fallback
    """)
    pipe_prologue(a,False)
    attn_loop(a,False)
    a.label("k2_tail")
    stamp(a,6)
    a(f"""
    s_nop 1
    v_smfmac_f32_32x32x32_bf16 {vr(O[1],16)}, {vr(F[1][2],4)}, {vr(S[1]+8,8)}, v{VIDX}
    s_setprio 0
    s_mul_i32 s36, s3, 2304
    s_add_u32 s37, s36, {K2_E+8192-3*2304}
    s_add_u32 s36, s36, {K2_COL}
    s_cmp_lt_u32 s3, 3
    s_cselect_b32 s36, s36, s37
    s_xor_b32 s44, s3, 4
    s_mul_i32 s45, s44, 2304
    s_add_u32 s46, s45, {K2_E+8192-3*2304}
    s_add_u32 s45, s45, {K2_COL}
    s_cmp_lt_u32 s44, 3
    s_cselect_b32 s45, s45, s46
    v_lshlrev_b32 v{TMP}, 4, v1
    v_lshlrev_b32 v{TMP+1}, 2, v1
    v_add_u32 v{TMP+2}, s36, v{TMP}
    v_add_u32 v{TMP+3}, s36, v{TMP+1}
    v_add_u32 v{TMP+4}, s45, v{TMP}
    v_add_u32 v{TMP+5}, s45, v{TMP+1}
    s_cmp_lt_u32 s3, 4
    s_cbranch_scc1 k2_tailB
    """)
    a(f"""
    s_nop 9
    ds_write_b128 v{TMP+2}, {vr(O[0],4)}
    ds_write_b128 v{TMP+2}, {vr(O[0]+4,4)} offset:1024
    ds_write_b32 v{TMP+3}, v{O[0]+8} offset:2048
    s_nop 7
    """)
    for i in range(9): a(f"v_mov_b32 v{O[0]+i}, v{O[1]+i}")
    a("""
    s_add_u32 s31, s31, 1
    s_branch k2_tail2
    """)
    a.label("k2_tailB")
    a(f"""
    s_nop 15
    s_nop 3
    ds_write_b128 v{TMP+2}, {vr(O[1],4)}
    ds_write_b128 v{TMP+2}, {vr(O[1]+4,4)} offset:1024
    ds_write_b32 v{TMP+3}, v{O[1]+8} offset:2048
    """)
    a.label("k2_tail2")
    a(f"""
    s_waitcnt lgkmcnt(0)
    {"" if "soloA" in VAR else "s_barrier"}
    ds_read_b128 {vr(S[0],4)}, v{TMP+4}
    ds_read_b128 {vr(S[0]+4,4)}, v{TMP+4} offset:1024
    ds_read_b32 v{S[0]+8}, v{TMP+5} offset:2048
    s_lshl_b32 s36, s31, 5
    s_add_u32 s36, s36, s29
    s_lshl_b32 s36, s36, 10
    s_add_u32 s36, s36, {OFF_O}
    s_waitcnt lgkmcnt(0)
    """)
    for i in range(9): a(f"v_add_f32 v{O[0]+i}, v{O[0]+i}, v{S[0]+i}")
    a(f"""
    v_mov_b32 v{TMP+1}, v{O[0]+8}
    v_mov_b32 v{TMP+2}, v{O[0]+8}
    s_nop 1
    v_permlane32_swap_b32 v{TMP+1}, v{TMP+2}
    s_nop 1
    v_rcp_f32 v{TMP+1}, v{TMP+1}
    s_nop 0
    """)
    for i in range(8): a(f"v_mul_f32 v{O[0]+i}, v{O[0]+i}, v{TMP+1}")
    for i in range(4): a(f"v_cvt_pk_bf16_f32 v{TMP+4+i}, v{O[0]+2*i}, v{O[0]+2*i+1}")
    a.sc_srd="s[20:23]"
    a(f"buffer_store_dwordx4 {vr(TMP+4,4)}, v{TMP}, s[20:23], s36 offen")
    if asm.F23:
        a("""
        s_waitcnt vmcnt(0)
        s_barrier
        """)
        stamp(a,8)
        a(f"""
        s_cmp_eq_u32 s3, 0
        s_cbranch_scc0 ph3_start
        s_lshl_b32 s36, s30, 5
        s_add_u32 s36, s36, s29
        s_lshl_b32 s36, s36, 2
        s_add_u32 s36, s36, {OFF_F2}
        """)
        flag_store(a,36,TMP)
        a("s_branch ph3_start")
    else:
        if asm.STAMP:
            a("s_waitcnt vmcnt(0)"); stamp(a,8); stamp_dump(a,1)
        a("s_endpgm")
    def act_tab(): a("s_call_b64 s[60:61], k2_tab")
    def act_arriveB():
        dma_arrive(a, 24 if TABIT<ARRIT or (TABIT==ARRIT) else 0)
    def act_b2():
        stamp(a,3); a("s_call_b64 s[60:61], k2_b2"); stamp(a,4)
    def act_pub(): a("s_call_b64 s[60:61], k2_pub")
    def act_prio0(): a("s_setprio 0")
    hooksB=[(TABIT,act_tab),(ARRIT,act_arriveB),(3,lambda: dma_wait(a,"hb")),(B2IT,act_b2)]
    if asm.F23: hooksB.append((PUBIT,act_pub))
    hooksB.append((XB,act_prio0))
    hooksA=[(ARRIT,lambda: dma_arrive(a)),(3,lambda: dma_wait(a,"ha"))]
    def emit(role,hooks):
        its=sorted(set(h[0] for h in hooks))
        for n,it in enumerate(its):
            nxt=its[n+1] if n+1<len(its) else 99
            a(f"s_cmp_eq_u32 s40, {it}")
            a(f"s_cbranch_scc0 k2_hk{role}_{n+1}")
            for (i2,f) in hooks:
                if i2==it: f()
            a(f"s_mov_b32 s40, {nxt}")
            a("s_branch k2_hookret")
            a.label(f"k2_hk{role}_{n+1}")
        a("s_branch k2_hookret")
        return its[0]
    a.label("k2_hook")
    a("""
    s_cmp_lt_u32 s3, 4
    s_cbranch_scc0 k2_hookA
    """)
    emit("B",hooksB)
    a.label("k2_hookA")
    emit("A",hooksA)
    a.label("k2_fallback")
    a("""
    s_cmp_lt_u32 s3, 4
    s_cbranch_scc0 k2_fbA
    """)
    dma_arrive(a)
    dma_wait(a,"fbb")
    a("""
    s_call_b64 s[60:61], k2_tab
    s_call_b64 s[60:61], k2_b2
    """)
    if asm.F23: a("s_call_b64 s[60:61], k2_pub")
    a("""
    s_branch k2_fb_pre
    """)
    a.label("k2_fbA")
    dma_arrive(a)
    dma_wait(a,"fb")
    a.label("k2_fb_pre")
    a(f"""
    v_mov_b32 v{TMP+1}, 0xff800000
    v_mov_b32 v{TMP+2}, 0xff800000
    v_and_b32 v{TMP+3}, 31, v1
    v_lshrrev_b32 v{TMP+4}, 5, v1
    v_mul_u32_u24 v{TMP+4}, 1056, v{TMP+4}
    v_lshl_add_u32 v{TMP+3}, v{TMP+3}, 4, v{TMP+4}
    s_mov_b32 s42, 64
    """)
    a.label("k2_fb_max")
    a(f"""
    ds_read_b128 {vr(F[0][0],4)}, v{TMP+3}
    v_add_u32 v{TMP+3}, {KV_TILE}, v{TMP+3}
    s_waitcnt lgkmcnt(0)
    v_mfma_f32_32x32x16_bf16 {vr(S[0],16)}, {vr(F[0][0],4)}, {vr(Q[0],4)}, 0
    v_mfma_f32_32x32x16_bf16 {vr(CI[0],16)}, {vr(F[0][0],4)}, {vr(Q[1],4)}, 0
    s_nop 15
    """)
    for i in range(0,16,2): a(f"v_max3_f32 v{TMP+1}, v{S[0]+i}, v{S[0]+i+1}, v{TMP+1}")
    for i in range(0,16,2): a(f"v_max3_f32 v{TMP+2}, v{CI[0]+i}, v{CI[0]+i+1}, v{TMP+2}")
    a(f"""
    s_sub_u32 s42, s42, 1
    s_cmp_lg_u32 s42, 0
    s_cbranch_scc1 k2_fb_max
    v_mov_b32 v{TMP+3}, v{TMP+1}
    v_mov_b32 v{TMP+4}, v{TMP+2}
    s_nop 1
    v_permlane32_swap_b32 v{TMP+1}, v{TMP+3}
    v_permlane32_swap_b32 v{TMP+2}, v{TMP+4}
    s_nop 1
    v_max_f32 v{TMP+1}, v{TMP+1}, v{TMP+3}
    v_max_f32 v{TMP+2}, v{TMP+2}, v{TMP+4}
    """)
    for qq in range(2):
        for i in range(16): a(f"v_sub_f32 v{CI[qq]+i}, 0, v{TMP+1+qq}")
    a("s_nop 1")
    pipe_prologue(a,True)
    attn_loop(a,True)
    a("s_branch k2_tail")
    a.label("k2_tab")
    a.sc_srd=P1
    a(f"""
    v_lshlrev_b32 v{TMP}, 4, v1
    v_lshrrev_b32 v{TMP+3}, 4, v1
    s_lshl_b32 s32, s3, 3
    v_add_u32 v{TMP+4}, s32, v{TMP+3}        ; n2 (e=0)
    v_and_b32 v{TMP+5}, 15, v{TMP+4}
    v_and_b32 v{TMP+6}, 15, v1
    v_xor_b32 v{TMP+5}, v{TMP+5}, v{TMP+6}
    v_lshlrev_b32 v{TMP+5}, 4, v{TMP+5}
    v_lshl_add_u32 v{TMP+5}, v{TMP+4}, 8, v{TMP+5}
    v_xor_b32 v{TMP+6}, 64, v{TMP+5}
    v_add_u32 v{TMP+6}, 1024, v{TMP+6}
    s_lshl_b32 s32, s28, 13
    s_add_u32 s32, s32, {OFF_Z}
    s_lshl_b32 s33, s3, 11
    s_add_u32 m0, s33, {K2_COL}
    s_nop 0
    buffer_load_dwordx4 v{TMP+5}, s[20:23], s32 offen lds
    s_add_u32 m0, s33, {K2_COL+1024}
    s_nop 0
    buffer_load_dwordx4 v{TMP+6}, s[20:23], s32 offen lds
    """)
    a(f"s_lshl_b32 s36, s3, 13")
    a(f"s_add_u32 s36, s36, {OFF_T64}")
    for k in range(8):
        a(f"buffer_load_dwordx4 {vr(T64+4*k,4)}, v{TMP}, s[20:23], s36 offen offset:{(k%4)*1024}")
        if k==3: a("s_add_u32 s36, s36, 4096")
    a(f"s_lshl_b32 s36, s3, 12")
    a(f"s_add_u32 s36, s36, {OFF_TW}")
    for k in range(4):
        a(f"buffer_load_dwordx4 {vr(TW+4*k,4)}, v{TMP}, s[20:23], s36 offen offset:{k*1024}")
    a(f"s_mov_b32 s36, {OFF_A32}")
    for k in range(8):
        a(f"buffer_load_dwordx4 {vr(A32+4*k,4)}, v{TMP}, s[20:23], s36 offen offset:{(k%4)*1024}")
        if k==3: a("s_add_u32 s36, s36, 4096")
    a(f"""
    s_lshl_b32 s36, s28, 13
    s_lshl_b32 s37, s3, 11
    s_add_u32 s36, s36, s37
    s_add_u32 s36, s36, {OFF_WT}
    buffer_load_dwordx4 {vr(WT,4)}, v{TMP}, s[20:23], s36 offen
    buffer_load_dwordx4 {vr(WT+4,4)}, v{TMP}, s[20:23], s36 offen offset:1024
    s_setpc_b64 s[60:61]
    """)
    a.label("k2_b2")
    a.sc_srd=P1
    a.p1=P1
    b2_part1(a)
    b2_part2(a)
    if asm.F23:
        a.label("k2_pub")
        if not asm.F12: get_tag(a,"b")
        a.sc_srd="s[20:23]"
        a("s_waitcnt vmcnt(0)")
        bbar(a,"pub")
        a(f"""
        s_cmp_eq_u32 s3, 0
        s_cbranch_scc0 k2_pub1
        s_lshl_b32 s36, s28, 2
        s_add_u32 s36, s36, {OFF_F2B}
        """)
        flag_store(a,36,TMP)
        a.label("k2_pub1")
        a.sc_srd=P1
        a(f"""
        s_lshr_b32 s36, s19, 2                   ; ct
        s_lshl_b32 s36, s36, 16
        s_lshl_b32 s37, s3, 13
        s_add_u32 s36, s36, s37
        s_add_u32 s36, s36, {OFF_WOF}
        v_lshlrev_b32 v{TMP}, 4, v1
        """)
        for hh in range(8):
            a(f"s_add_u32 s37, s36, {hh*1024}")
            a(f"buffer_load_dwordx4 {vr(WOR+8*hh,4)}, v{TMP}, s[20:23], s37 offen")
            a(f"s_add_u32 s37, s37, 32768")
            a(f"buffer_load_dwordx4 {vr(WOR+8*hh+4,4)}, v{TMP}, s[20:23], s37 offen")
        a("s_setpc_b64 s[60:61]")
    a.sc_srd=None
    if own:
        a.label("k2_end")
        a("s_endpgm")
    return a
```

```python
import struct
def f2u(x): return struct.unpack("<I",struct.pack("<f",x))[0]
FUSED=False
F12=False
F23=False
class Asm:
    def __init__(self):
        self.lines=[]
        self.sc_srd=None
    def __call__(self, s):
        for l in s.strip("\n").split("\n"):
            l=l.strip()
            if not l: continue
            if (FUSED or getattr(self,'force_sc',False)) and self.sc_srd and l.startswith("buffer_") and self.sc_srd in l:
                code,_,cm=l.partition(";")
                code=code.rstrip()
                sfx=getattr(self,'sc_sfx'," sc1")
                if code.endswith(" lds"): code=code[:-4]+sfx+" lds"
                else: code+=sfx
                l=code
            self.lines.append("    "+l)
    def label(self,name): self.lines.append(name+":")
    def comment(self,s): self.lines.append("    ; "+s)
    def raw(self,s): self.lines.append(s)
    def text(self): return "\n".join(self.lines)+"\n"
def vr(b,n=1): return f"v{b}" if n==1 else f"v[{b}:{b+n-1}]"
def sr(b,n=1): return f"s{b}" if n==1 else f"s[{b}:{b+n-1}]"

STAMP=False
OFF_DBG=0x0F00000
SMAP=None
def stamp(a,k,real=False):
    if not STAMP: return
    if SMAP is not None:
        if k not in SMAP: return
        k=SMAP[k]
    a(f"s_waitcnt lgkmcnt(0)")
    if STAMP==3:
        if k>=8: k=7
        a(f"s_memrealtime s[{70+2*k}:{71+2*k}]")
        a(f"s_memtime s[{86+2*k}:{87+2*k}]")
    else:
        a(f"{'s_memtime' if STAMP==2 else 's_memrealtime'} s[{70+2*k}:{71+2*k}]")
    a(f"s_waitcnt lgkmcnt(0)")
_dumpn=[0]
def stamp_dump(a,kid,wsreg=16):
    if not STAMP: return
    if STAMP==4:
        _dumpn[0]+=1; n=_dumpn[0]
        a("s_mov_b64 exec, -1")
        a("s_or_b32 s68, s2, s3")
        a("s_cmp_eq_u32 s68, 0")
        a(f"s_cbranch_scc0 dbgdump_skip{n}")
        a("v_mov_b32 v200, 0")
        for k in range(1,14):
            a(f"s_sub_u32 s68, s{70+2*k}, s70")
            a(f"v_mov_b32 v201, s68")
            a(f"global_store_dword v200, v201, s[54:55] offset:{4*k}")
            a("s_nop 1")
        a("s_waitcnt vmcnt(0)")
        a.label(f"dbgdump_skip{n}")
        return
    a("s_mov_b64 exec, -1")
    a("s_lshl_b32 s68, s2, 3")
    a("s_add_u32 s68, s68, s3")
    a("s_lshl_b32 s68, s68, 7")
    a(f"s_add_u32 s68, s68, {OFF_DBG+kid*0x40000}")
    a(f"s_add_u32 s64, s{wsreg}, s68")
    a(f"s_addc_u32 s65, s{wsreg+1}, 0")
    a("v_mov_b32 v200, 0")
    for k in range(32):
        a(f"v_mov_b32 v201, s{70+k}")
        a(f"global_store_dword v200, v201, s[64:65] offset:{4*k}")
        a("s_nop 1")
    a("s_waitcnt vmcnt(0)")

_pf=[0]
def code_prefetch(a, target, end, nblk, voff, vdst, back=False):
    _pf[0]+=1; n=_pf[0]
    a("s_getpc_b64 s[62:63]")
    a.label(f"pf_here{n}")
    if not back:
        a(f"s_add_u32 s62, s62, {target}-pf_here{n}")
        a("s_addc_u32 s63, s63, 0")
    else:
        a(f"s_sub_u32 s62, s62, pf_here{n}-{target}")
        a("s_subb_u32 s63, s63, 0")
    a(f"v_lshlrev_b32 v{voff}, 7, v1")
    a(f"s_mov_b32 s64, {end}-{target}")
    for k in range(nblk):
        a(f"v_cmp_gt_u32 vcc, s64, v{voff}")
        a("s_and_saveexec_b64 s[66:67], vcc")
        a(f"s_cbranch_execz pf_skip{n}_{k}")
        a(f"global_load_dword v{vdst}, v{voff}, s[62:63]")
        a.label(f"pf_skip{n}_{k}")
        a("s_mov_b64 exec, s[66:67]")
        if k+1<nblk: a(f"v_add_u32 v{voff}, 8192, v{voff}")
```

```python
import asm
from asm import *
from layout import *

K1_LDS = 133120

def srd(a, d, base, size):
    a(f"s_mov_b32 s{d}, s{base}")
    a(f"s_and_b32 s{d+1}, s{base+1}, 0xffff")
    a(f"s_mov_b32 s{d+2}, {size}")
    a(f"s_mov_b32 s{d+3}, 0x20000")

def fin(a, restore_exec=False):
    if asm.F12:
        if restore_exec: a("s_mov_b64 exec, -1")
        a("s_waitcnt vmcnt(0)")
        a("s_branch ph1_end")
    else: a("s_endpgm")

def k1_prologue(a):
    a("""
    s_cmp_ge_u32 s2, 256
    s_cbranch_scc1 k1_end
    s_load_dwordx4 s[4:7], s[0:1], 0
    s_load_dwordx2 s[8:9], s[0:1], 16
    s_load_dwordx2 s[10:11], s[0:1], 24
    s_load_dwordx4 s[12:15], s[0:1], 32
    s_load_dwordx2 s[16:17], s[0:1], 64
    """)
    if asm.F12:
        a("""
        s_load_dwordx4 s[52:55], s[0:1], 48
        """)
    a("""
    v_and_b32 v1, 63, v0
    v_lshrrev_b32 v2, 6, v0
    s_nop 0
    v_readfirstlane_b32 s3, v2
    """)
    if asm.F12:
        a("""
        s_or_b32 s57, s2, s3
        s_cmp_eq_u32 s57, 0
        s_cbranch_scc0 kf_nononce
        s_memrealtime s[56:57]
        s_waitcnt lgkmcnt(0)
        s_or_b32 s56, s56, 1
        v_mov_b32 v2, 0
        v_mov_b32 v3, s56
        s_mov_b64 exec, 1
        global_store_dword v2, v3, s[54:55] sc1
        s_mov_b64 exec, -1
        """)
        a.label("kf_nononce")
    stamp(a,0)
    a("""
    s_cmp_ge_u32 s2, 192
    s_cbranch_scc1 k1_B
    s_and_b32 s18, s2, 7
    s_lshr_b32 s19, s2, 3
    s_and_b32 s28, s18, 3
    s_lshl_b32 s28, s28, 2
    s_and_b32 s29, s19, 3
    s_add_u32 s28, s28, s29          ; s28 = rb
    s_lshr_b32 s29, s18, 2
    s_mul_i32 s29, s29, 6
    s_lshr_b32 s30, s19, 2
    s_add_u32 s29, s29, s30          ; s29 = cb
    s_cmp_ge_u32 s3, 4
    s_cbranch_scc0 k1_compute
    """)

def k1_loader(a):
    a.comment("---- loader waves 4..7 ----")
    a("""
    s_sub_u32 s30, s3, 4             ; lw
    v_lshrrev_b32 v2, 3, v1          ; l>>3
    v_lshrrev_b32 v3, 4, v1          ; l>>4
    v_and_b32 v4, 7, v1
    v_xor_b32 v4, v4, v3
    v_lshlrev_b32 v4, 4, v4
    v_lshl_add_u32 v4, v2, 10, v4    ; voffX0
    v_xor_b32 v5, 64, v4             ; voffX1
    v_and_b32 v6, 15, v1
    v_lshlrev_b32 v7, 2, v3
    v_xor_b32 v6, v6, v7
    v_lshlrev_b32 v6, 4, v6
    v_mul_u32_u24 v7, 3072, v3
    v_add_u32 v6, v6, v7             ; voffW
    s_lshl_b32 s31, s28, 17          ; rb*128*1024
    s_lshl_b32 s32, s30, 15          ; lw*32*1024
    s_add_u32 s31, s31, s32          ; sX0
    s_mul_i32 s32, s30, 16*3072
    s_lshl_b32 s33, s29, 8
    s_add_u32 s32, s32, s33          ; sW0
    s_lshl_b32 s33, s30, 12
    s_waitcnt lgkmcnt(0)
    """)
    stamp(a,4)
    srd(a,20,4,2097152); srd(a,24,6,1572864)
    import os
    ROT=int(os.environ.get("K1ROT","1"))
    if ROT:
        a("""
        s_lshr_b32 s35, s19, 2
        s_and_b32 s36, s19, 3
        s_lshl_b32 s36, s36, 1
        s_add_u32 s35, s35, s36
        """)
    else: a("s_mov_b32 s35, 0")
    def issue(c):
        slot=c&3
        a(f"s_add_u32 s36, s35, {c}")
        a("s_and_b32 s36, s36, 7")
        a("s_lshl_b32 s37, s36, 7")
        a("s_add_u32 s37, s37, s31")
        a(f"s_mul_i32 s38, s36, {64*3072}")
        a("s_add_u32 s38, s38, s32")
        for e in range(4):
            a(f"s_add_u32 m0, s33, {slot*32768+e*1024}")
            a(f"s_add_u32 s34, s37, {e*8192}")
            a(f"buffer_load_dwordx4 v{4+(e&1)}, s[20:23], s34 offen lds")
        for e in range(4):
            a(f"s_add_u32 m0, s33, {slot*32768+16384+e*1024}")
            a(f"s_add_u32 s34, s38, {4*e*3072}")
            a(f"buffer_load_dwordx4 v6, s[24:27], s34 offen lds")
    import os
    LA=int(os.environ.get("K1LA","2"))
    issued=-1
    for c in range(min(LA,4)):
        issue(c); issued=c
        if c==0: stamp(a,5)
    stamp(a,6)
    for c in range(8):
        n=8*(issued-c)
        a(f"s_waitcnt vmcnt({n})")
        a("s_barrier")
        if c in (0,3,7): stamp(a,{0:1,3:2,7:3}[c])
        while issued<min(7,c+LA,c+3):
            issued+=1; issue(issued)
    if not asm.F12: stamp_dump(a,0)
    fin(a)

def k1_compute(a):
    import os
    a.label("k1_compute")
    import os
    qsc=os.environ.get("K1QSC","sc1")
    a.sc_srd="s[20:23]" if (asm.F12 or qsc!="none") else None
    if qsc!="none" and not asm.F12:
        a.force_sc=True; a.sc_sfx=" "+qsc.replace("_"," ")
    XA,XB,WA,WB=2,6,10,12
    a("""
    s_lshr_b32 s30, s3, 1            ; wm
    s_and_b32 s31, s3, 1             ; wn
    v_and_b32 v14, 31, v1            ; r
    v_lshrrev_b32 v15, 5, v1         ; h
    v_lshrrev_b32 v16, 1, v14
    v_and_b32 v16, 7, v16            ; (r>>1)&7
    v_xor_b32 v16, v16, v15          ; h ^ c
    v_lshlrev_b32 v16, 4, v16
    v_lshl_add_u32 v16, v14, 7, v16  ; r*128 + slot*16
    s_lshl_b32 s32, s30, 13          ; wm*64*128
    v_add_u32 v2, s32, v16
    v_xor_b32 v3, 32, v2
    v_xor_b32 v4, 64, v2
    v_xor_b32 v5, 96, v2
    v_add_u32 v6, 0x10000, v2
    v_add_u32 v7, 0x10000, v3
    v_add_u32 v8, 0x10000, v4
    v_add_u32 v9, 0x10000, v5
    v_and_b32 v16, 15, v1
    v_lshrrev_b32 v16, 2, v16        ; r4
    v_lshl_add_u32 v17, v15, 3, v16  ; 8h + r4
    v_lshlrev_b32 v17, 8, v17        ; *256
    s_lshl_b32 s32, s31, 1
    v_xor_b32 v18, s32, v16          ; nt0 ^ r4
    v_lshl_add_u32 v17, v18, 6, v17
    v_lshrrev_b32 v18, 4, v1
    v_and_b32 v18, 1, v18
    v_lshl_add_u32 v17, v18, 5, v17  ; + cg*32
    v_and_b32 v18, 3, v1
    v_lshl_add_u32 v17, v18, 3, v17  ; + c4*8
    v_add_u32 v10, 16384, v17
    v_xor_b32 v11, 64, v10
    v_add_u32 v12, 0x10000, v10
    v_add_u32 v13, 0x10000, v11
    """)
    if os.environ.get("K1PF","0")=="1":
        a("s_cmp_eq_u32 s3, 0")
        a("s_cbranch_scc0 k1_nopf")
        code_prefetch(a,"k1_compute","k1_B",2,250,252,back=True)
        a.label("k1_nopf")
    for i in range(64): a(f"v_mov_b32 v{64+i}, 0")
    a("s_waitcnt lgkmcnt(0)")
    srd(a,20,16,WS_SIZE)
    a("""
    s_cmp_ge_u32 s29, 8
    s_cbranch_scc1 k1_vloop
    """)
    bufs=[(16,20,24,28),(32,36,40,44)]
    def reads(c,ks,buf):
        slot=c&3
        xa=(XA if slot<2 else XB)+ks; wa=(WA if slot<2 else WB)
        so=(slot&1)*32768
        X0,X1,W0,W1=buf
        a(f"ds_read_b128 {vr(X0,4)}, v{xa} offset:{so}")
        a(f"ds_read_b64_tr_b16 {vr(W0,2)}, v{wa} offset:{so+ks*4096}")
        a(f"ds_read_b64_tr_b16 {vr(W0+2,2)}, v{wa} offset:{so+ks*4096+1024}")
        a(f"ds_read_b128 {vr(X1,4)}, v{xa} offset:{so+4096}")
        a(f"ds_read_b64_tr_b16 {vr(W1,2)}, v{wa+1} offset:{so+ks*4096}")
        a(f"ds_read_b64_tr_b16 {vr(W1+2,2)}, v{wa+1} offset:{so+ks*4096+1024}")
    def loop(vtype):
        a("s_barrier")
        stamp(a,1)
        reads(0,0,bufs[0])
        for c in range(8):
            for ks in range(4):
                j=4*c+ks
                cur=bufs[j&1]; nxt=bufs[(j+1)&1]
                if ks<3:
                    reads(c,ks+1,nxt)
                    a("s_waitcnt lgkmcnt(6)")
                else:
                    a("s_waitcnt lgkmcnt(0)")
                    if c<7:
                        a("s_barrier")
                        reads(c+1,0,nxt)
                X0,X1,W0,W1=cur
                for ntl in range(2):
                    for rt in range(2):
                        acc=64+(ntl*2+rt)*16
                        W=(W0,W1)[ntl]; X=(X0,X1)[rt]
                        if not vtype: a(f"v_mfma_f32_32x32x16_bf16 {vr(acc,16)}, {vr(W,4)}, {vr(X,4)}, {vr(acc,16)}")
                        else:         a(f"v_mfma_f32_32x32x16_bf16 {vr(acc,16)}, {vr(X,4)}, {vr(W,4)}, {vr(acc,16)}")
            if c==3: stamp(a,2)
        stamp(a,3)
    loop(False)
    a("""
    s_and_b32 s33, s29, 3
    s_lshl_b32 s33, s33, 3
    s_lshl_b32 s34, s31, 2
    s_add_u32 s33, s33, s34          ; head0
    s_lshl_b32 s34, s28, 2
    s_lshl_b32 s35, s30, 1
    s_add_u32 s34, s34, s35          ; tile0
    s_cmp_ge_u32 s29, 4
    s_cbranch_scc1 k1_kepi
    """)
    a(f"""
    v_lshlrev_b32 v2, 9, v15
    v_lshl_add_u32 v2, v14, 4, v2    ; h*512 + r*16
    s_lshl_b32 s35, s33, 16
    s_lshl_b32 s36, s34, 10
    s_add_u32 s35, s35, s36
    s_add_u32 s35, s35, {OFF_Q}
    s_mov_b32 s37, {hex(f2u(QSCALE))}
    s_nop 7
    """)
    for ntl in range(2):
        for rt in range(2):
            acc=64+(ntl*2+rt)*16
            for i in range(16): a(f"v_mul_f32 v{acc+i}, s37, v{acc+i}")
            t=16+(ntl*2+rt)*8
            for i in range(8): a(f"v_cvt_pk_bf16_f32 v{t+i}, v{acc+2*i}, v{acc+2*i+1}")
            for hh in range(2):
                a(f"s_add_u32 s36, s35, {(2*ntl+hh)*65536+rt*1024}")
                a(f"buffer_store_dwordx4 {vr(t+4*hh,4)}, v2, s[20:23], s36 offen")
    if asm.STAMP and not asm.F12:
        a("s_waitcnt vmcnt(0)"); stamp(a,4); stamp_dump(a,0)
    fin(a)
    a.label("k1_kepi")
    a(f"""
    v_and_b32 v2, 0x13, v14
    v_and_b32 v3, 4, v14
    v_lshl_or_b32 v2, v3, 1, v2
    v_and_b32 v3, 8, v14
    v_lshrrev_b32 v3, 1, v3
    v_or_b32 v2, v2, v3              ; pi(r)
    v_lshlrev_b32 v2, 4, v2
    v_mul_u32_u24 v3, 1056, v15
    v_add_u32 v2, v2, v3             ; h*1056 + pi(r)*16
    s_mul_i32 s35, s33, {KV_HEAD}
    s_mul_i32 s36, s34, {KV_TILE}
    s_add_u32 s35, s35, s36
    s_add_u32 s35, s35, {OFF_KV}
    s_nop 5
    """)
    for ntl in range(2):
        for rt in range(2):
            acc=64+(ntl*2+rt)*16
            t=16+(ntl*2+rt)*8
            for i in range(8): a(f"v_cvt_pk_bf16_f32 v{t+i}, v{acc+2*i}, v{acc+2*i+1}")
            for hh in range(2):
                a(f"s_add_u32 s36, s35, {(2*ntl+hh)*KV_HEAD+rt*KV_TILE}")
                a(f"buffer_store_dwordx4 {vr(t+4*hh,4)}, v2, s[20:23], s36 offen")
    for q in range(4):
        acc=64+q*16
        for hh in range(2):
            a(f"v_mul_f32 v{48+2*q+hh}, v{acc+8*hh}, v{acc+8*hh}")
        for i in range(1,8):
            for hh in range(2):
                a(f"v_fmac_f32 v{48+2*q+hh}, v{acc+8*hh+i}, v{acc+8*hh+i}")
    a("s_nop 1")
    for q in range(4): a(f"v_permlane32_swap_b32 v{48+2*q}, v{49+2*q}")
    a("s_nop 1")
    for q in range(4): a(f"v_add_f32 v{48+2*q}, v{48+2*q}, v{49+2*q}")
    for sh in ("row_shr:1","row_shr:2","row_shr:4","row_shr:8"):
        for q in range(4): a(f"v_max_f32_dpp v{48+2*q}, v{48+2*q}, v{48+2*q} {sh} row_mask:0xf bank_mask:0xf bound_ctrl:0")
    for q in range(4): a(f"v_max_f32_dpp v{48+2*q}, v{48+2*q}, v{48+2*q} row_bcast:15 row_mask:0xa bank_mask:0xf")
    a(f"""
    v_lshlrev_b32 v3, 8, v15
    s_lshl_b32 s35, s33, 8
    s_lshl_b32 s36, s34, 2
    s_add_u32 s35, s35, s36
    s_add_u32 s35, s35, {OFF_KN}
    s_mov_b32 exec_lo, 0x80000000
    s_mov_b32 exec_hi, 0x80000000
    """)
    for ntl in range(2):
        for rt in range(2):
            q=ntl*2+rt
            a(f"s_add_u32 s36, s35, {2*ntl*256+rt*4}")
            a(f"buffer_store_dword v{48+2*q}, v3, s[20:23], s36 offen")
    if asm.STAMP and not asm.F12:
        a("s_waitcnt vmcnt(0)"); stamp(a,4); stamp_dump(a,0)
    fin(a,True)
    a.label("k1_vloop")
    loop(True)
    a(f"""
    s_and_b32 s33, s29, 3
    s_lshl_b32 s33, s33, 3
    s_lshl_b32 s34, s31, 2
    s_add_u32 s33, s33, s34          ; head0
    s_lshl_b32 s34, s28, 2
    s_lshl_b32 s35, s30, 1
    s_add_u32 s34, s34, s35          ; tile0
    v_lshrrev_b32 v2, 4, v14         ; n>>4
    s_mov_b32 s36, {KV_HEAD}
    v_mul_lo_u32 v2, v2, s36
    v_mul_u32_u24 v3, 1056, v15
    v_add_u32 v2, v2, v3
    v_and_b32 v3, 15, v14
    v_lshl_add_u32 v2, v3, 4, v2
    s_mul_i32 s35, s33, {KV_HEAD}
    s_mul_i32 s36, s34, {KV_TILE}
    s_add_u32 s35, s35, s36
    s_add_u32 s35, s35, {OFF_KV+512}
    """)
    for ntl in range(2):
        for rt in range(2):
            acc=64+(ntl*2+rt)*16
            t=16+(ntl*2+rt)*8
            for i in range(8): a(f"v_cvt_pk_bf16_f32 v{t+i}, v{acc+2*i}, v{acc+2*i+1}")
            for u in range(2):
                a(f"s_add_u32 s36, s35, {2*ntl*KV_HEAD+rt*KV_TILE+u*272}")
                a(f"buffer_store_dwordx4 {vr(t+4*u,4)}, v2, s[20:23], s36 offen")
    a(f"""
    v_and_b32 v3, 1, v1
    v_mul_u32_u24 v3, 1056, v3
    v_bfe_u32 v4, v1, 1, 1
    v_mul_u32_u24 v4, 272, v4
    v_add_u32 v3, v3, v4
    v_bfe_u32 v4, v1, 2, 1
    v_mul_u32_u24 v4, {KV_TILE}, v4
    v_add_u32 v3, v3, v4
    v_bfe_u32 v4, v1, 3, 2
    s_mov_b32 s36, {KV_HEAD}
    v_mul_lo_u32 v4, v4, s36
    v_add_u32 v3, v3, v4
    v_mov_b32 v4, 0x3f803f80
    v_mov_b32 v5, 0x3f803f80
    v_mov_b32 v6, 0x3f803f80
    v_mov_b32 v7, 0x3f803f80
    s_add_u32 s36, s35, 256
    s_mov_b32 exec_hi, 0
    buffer_store_dwordx4 v[4:7], v3, s[20:23], s36 offen
    """)
    if asm.STAMP and not asm.F12:
        a("s_waitcnt vmcnt(0)"); stamp(a,4); stamp_dump(a,0)
    fin(a,True)

def gen_consts(a, inv, scale, R16, TWc, TWs, A32, tmp, vm, vq):
    T=tmp
    a(f"v_mul_f32 v{T}, {hex(f2u(1/16.))}, v{vm}")
    for i in range(4):
        a(f"v_add_f32 v{T+1+i}, {float(i)}, v{vq}" if i else f"v_mov_b32 v{T+1}, v{vq}")
    for i in range(4): a(f"v_mul_f32 v{T+1+i}, v{T+1+i}, v{T}")
    for i in range(4):
        a(f"v_cos_f32 v{T+5+i}, v{T+1+i}")
        a(f"v_sin_f32 v{T+9+i}, v{T+1+i}")
    if scale!=1.0:
        a(f"s_mov_b32 s40, {hex(f2u(scale))}")
        for i in range(8): a(f"v_mul_f32 v{T+5+i}, s40, v{T+5+i}")
    else: a("s_nop 0")
    for i in range(4):
        c,s=T+5+i,T+9+i
        if not inv:
            a(f"v_cvt_pk_bf16_f32 v{R16+i}, v{c}, v{s}")
            a(f"v_cvt_pk_bf16_f32 v{R16+4+i}, -v{s}, v{c}")
        else:
            a(f"v_cvt_pk_bf16_f32 v{R16+i}, v{c}, -v{s}")
            a(f"v_cvt_pk_bf16_f32 v{R16+4+i}, v{s}, v{c}")
    a(f"v_mul_f32 v{T}, {hex(f2u(1/512.))}, v{vm}")
    for t in range(2):
        for i in range(4):
            k=16*t+i
            if k==0: a(f"v_mov_b32 v{T+1}, v{vq}")
            else:
                a(f"v_add_f32 v{T+1+4*t+i}, {hex(f2u(float(k)))}, v{vq}")
    for e in range(8): a(f"v_mul_f32 v{T+1+e}, v{T+1+e}, v{T}")
    for e in range(8):
        a(f"v_cos_f32 v{TWc+e}, v{T+1+e}")
        a(f"v_sin_f32 v{TWs+e}, {'-' if inv else ''}v{T+1+e}")
    gen_a32(a, inv, A32, tmp, vm, vq)

def gen_a32(a, inv, A32, tmp, vm, vq):
    T=tmp
    for t in range(2):
        for i in range(4):
            k=16*t+i
            if k==0: a(f"v_mov_b32 v{T+1}, v{vq}")
            else: a(f"v_add_f32 v{T+1+4*t+i}, {hex(f2u(float(k)))}, v{vq}")
    a(f"v_mul_f32 v{T+9}, {hex(f2u(1/32.))}, v{vm}")
    a(f"v_add_f32 v{T+10}, 0.5, v{T+9}")
    for tp in range(2):
        for e in range(8): a(f"v_mul_f32 v{T+11+e}, v{T+1+e}, v{T+9+tp}")
        for e in range(8):
            a(f"v_cos_f32 v{T+19+e}, v{T+11+e}")
            a(f"v_sin_f32 v{T+11+e}, v{T+11+e}")
        a("s_nop 0")
        for t in range(2):
            for i in range(4):
                e=4*t+i; c,s=T+19+e,T+11+e
                re=A32+((tp*2+0)*2+t)*4+i; im=A32+((tp*2+1)*2+t)*4+i
                if not inv:
                    a(f"v_cvt_pk_bf16_f32 v{re}, v{c}, v{s}")
                    a(f"v_cvt_pk_bf16_f32 v{im}, -v{s}, v{c}")
                else:
                    a(f"v_cvt_pk_bf16_f32 v{re}, v{c}, -v{s}")
                    a(f"v_cvt_pk_bf16_f32 v{im}, v{s}, v{c}")

def twiddle(a, re, im, c, s, out, tmp):
    T,U=tmp,tmp+4
    for p in (0,2):
        a(f"v_pk_mul_f32 {vr(T+p,2)}, {vr(re+p,2)}, {vr(c+p,2)}")
        a(f"v_pk_mul_f32 {vr(U+p,2)}, {vr(im+p,2)}, {vr(c+p,2)}")
    for p in (0,2):
        a(f"v_pk_fma_f32 {vr(T+p,2)}, {vr(im+p,2)}, {vr(s+p,2)}, {vr(T+p,2)}")
        a(f"v_pk_fma_f32 {vr(U+p,2)}, {vr(re+p,2)}, {vr(s+p,2)}, {vr(U+p,2)} neg_lo:[1,0,0] neg_hi:[1,0,0]")
    for i in range(4): a(f"v_cvt_pk_bf16_f32 v{out+i}, v{T+i}, v{U+i}")

XR_STRIDE=1056
B1_MB=33792
B1_WTL=66560
B1_MBW=100352

def k1_B(a):
    a.label("k1_B")
    import os
    a.sc_srd="s[24:27]" if (asm.F12 or os.environ.get("K1BSC","1")=="1") else None
    a.force_sc=True; a.sc_sfx=" sc1"
    VM,VQ,VMF,VQF=2,3,4,5
    R16,TWc,TWs,A32=8,16,24,32
    PIN=64
    D1=80
    D2=112
    TMP=144
    WOL,WOH=192,196
    ABL=200
    a(f"""
    s_sub_u32 s18, s2, 192           ; b
    s_lshr_b32 s19, s18, 1           ; n2
    s_and_b32 s28, s18, 1            ; hf
    v_and_b32 v{VM}, 15, v1
    v_lshrrev_b32 v{VQ}, 4, v1
    v_lshlrev_b32 v6, 4, v1          ; lane*16
    s_waitcnt lgkmcnt(0)
    """)
    srd(a,20,10,2097152)
    srd(a,24,16,WS_SIZE)
    srd(a,44,8,524288)
    import os
    def b_loads():
        a(f"""
        s_lshl_b32 s29, s28, 5
        s_lshl_b32 s30, s3, 2
        s_add_u32 s29, s29, s30
        s_lshl_b32 s29, s29, 5
        s_add_u32 s29, s29, s19          ; s0
        s_lshl_b32 s29, s29, 10
        s_mul_i32 s30, s3, {4*XR_STRIDE}
        """)
        for e in range(4):
            a(f"s_add_u32 m0, s30, {e*XR_STRIDE}")
            a(f"s_add_u32 s31, s29, {e*32*1024}")
            a(f"buffer_load_dwordx4 v6, s[20:23], s31 offen lds")
        a(f"""
        s_lshl_b32 s32, s18, 3
        s_add_u32 s32, s32, s3           ; idx
        s_lshr_b32 s33, s32, 5
        s_lshl_b32 s33, s33, 6
        s_and_b32 s34, s32, 31
        s_lshl_b32 s34, s34, 14
        s_add_u32 s33, s33, s34
        v_and_b32 v7, 31, v1
        v_lshlrev_b32 v7, 1, v7
        v_lshrrev_b32 v{TMP}, 5, v1
        v_lshl_add_u32 v7, v{TMP}, 12, v7    ; h*4 rows*1024 + n*2
        """)
        for j8 in range(8):
            d=8*(j8>>2)+(j8&3)
            a(f"s_add_u32 s34, s33, {d*1024}")
            dst=(WOL if j8%2==0 else WOH)+j8//2
            a(f"buffer_load_ushort v{dst}, v7, s[44:47], s34 offen")
        a(f"""
        s_and_b32 s35, s18, 7
        s_lshl_b32 s35, s35, 3
        s_add_u32 s35, s35, s3
        s_lshr_b32 s36, s18, 3
        s_and_b32 s37, s36, 3            ; q
        s_lshr_b32 s36, s36, 2           ; tp
        s_lshl_b32 s36, s36, 2
        s_add_u32 s36, s36, s37          ; 4tp+q
        s_lshl_b32 s36, s36, 8           ; *4*64
        s_add_u32 s35, s35, s36          ; g(i=0)
        s_mul_i32 s35, s35, 514
        v_and_b32 v{TMP}, 31, v1
        v_lshlrev_b32 v{TMP}, 4, v{TMP}
        v_add_u32 v{TMP}, s35, v{TMP}
        v_cmp_gt_u32 vcc, 32, v1
        v_mov_b32 v{TMP+2}, s14
        v_mov_b32 v{TMP+3}, s15
        v_mov_b32 v{TMP+4}, s12
        v_mov_b32 v{TMP+5}, s13
        v_cndmask_b32 v{TMP+2}, v{TMP+2}, v{TMP+4}, vcc
        v_cndmask_b32 v{TMP+3}, v{TMP+3}, v{TMP+5}, vcc
        v_add_co_u32 v{TMP+2}, vcc, v{TMP+2}, v{TMP}
        s_mul_i32 s36, s3, {4*XR_STRIDE}
        s_nop 0
        v_addc_co_u32 v{TMP+3}, vcc, 0, v{TMP+3}, vcc
        """)
        for i in range(4):
            a(f"s_add_u32 m0, s36, {B1_WTL+i*XR_STRIDE}")
            a("s_nop 0")
            a(f"global_load_lds_dwordx4 {vr(TMP+2,2)}, off")
            if i<3:
                a(f"v_add_co_u32 v{TMP+2}, vcc, {64*514}, v{TMP+2}")
                a("s_nop 1")
                a(f"v_addc_co_u32 v{TMP+3}, vcc, 0, v{TMP+3}, vcc")
        a(f"""
        s_sub_u32 s35, s18, 32
        s_cmp_lt_u32 s35, 32
        s_cselect_b32 s39, 1, 0
        s_cmp_eq_u32 s3, 7
        s_cselect_b32 s39, s39, 0
        s_cmp_eq_u32 s39, 1
        s_cbranch_scc0 k1_B_noab
        s_lshl_b32 s36, s35, 6
        v_add_u32 v{TMP}, s36, v1        ; g
        v_sub_u32 v{TMP+1}, 2048, v{TMP}
        v_and_b32 v{TMP+1}, 2047, v{TMP+1}   ; -g
        v_mul_u32_u24 v{TMP}, 514, v{TMP}
        v_mul_u32_u24 v{TMP+1}, 514, v{TMP+1}
        """)
        srd(a,48,12,2048*257*2); srd(a,40,14,2048*257*2)
        for k,(arr,val,off) in enumerate([(48,TMP,0),(40,TMP,0),(48,TMP+1,0),(40,TMP+1,0),(48,TMP,512),(40,TMP,512),(48,TMP+1,512),(40,TMP+1,512)]):
            a(f"buffer_load_ushort v{ABL+k}, v{val}, s[{arr}:{arr+3}], 0 offen offset:{off}")
        a.label("k1_B_noab")
    def b_consts():
        a(f"""
        v_cvt_f32_u32 v{VMF}, v{VM}
        v_lshlrev_b32 v{VQF}, 2, v{VQ}
        v_cvt_f32_u32 v{VQF}, v{VQF}
        """)
        gen_consts(a, False, 1.0, R16, TWc, TWs, A32, TMP, VMF, VQF)
    if os.environ.get("K1BORD","1")=="1":
        b_consts(); b_loads()
    else:
        b_loads(); b_consts()
    if os.environ.get("K1PF","0")=="1" and getattr(asm,"NEXT_KERNEL",None):
        a("s_cmp_eq_u32 s3, 6")
        a("s_cbranch_scc0 k1_nopf2")
        code_prefetch(a,asm.NEXT_KERNEL,"k2_end",2,250,252)
        a.label("k1_nopf2")
    a(f"""
    s_cmp_lt_u32 s18, 2
    s_cbranch_scc0 k1_B_not64
    s_lshl_b32 s36, s18, 3
    s_add_u32 s36, s36, s3           ; unit
    s_lshr_b32 s37, s36, 2           ; w
    s_and_b32 s38, s36, 3            ; u
    s_lshl_b32 s37, s37, 4
    s_lshl_b32 s38, s38, 4
    v_add_u32 v{TMP}, s37, v{VM}
    v_cvt_f32_u32 v{TMP}, v{TMP}
    v_mul_f32 v{TMP}, {hex(f2u(1/64.))}, v{TMP}
    v_cvt_f32_u32 v{TMP+1}, s38
    v_add_f32 v{TMP+1}, v{TMP+1}, v{VQF}
    v_add_f32 v{TMP+2}, 1.0, v{TMP+1}
    v_add_f32 v{TMP+3}, 2.0, v{TMP+1}
    v_add_f32 v{TMP+4}, 1.0, v{TMP+3}
    """)
    for i in range(4): a(f"v_mul_f32 v{TMP+1+i}, v{TMP+1+i}, v{TMP}")
    for i in range(4):
        a(f"v_cos_f32 v{TMP+5+i}, v{TMP+1+i}")
        a(f"v_sin_f32 v{TMP+9+i}, v{TMP+1+i}")
    a("s_nop 0")
    for i in range(4):
        a(f"v_cvt_pk_bf16_f32 v{TMP+16+i}, v{TMP+5+i}, v{TMP+9+i}")
        a(f"v_cvt_pk_bf16_f32 v{TMP+20+i}, -v{TMP+9+i}, v{TMP+5+i}")
    a(f"""
    s_lshl_b32 s36, s36, 11
    s_add_u32 s36, s36, {OFF_T64}
    buffer_store_dwordx4 {vr(TMP+16,4)}, v6, s[24:27], s36 offen
    buffer_store_dwordx4 {vr(TMP+20,4)}, v6, s[24:27], s36 offen offset:1024
    """)
    a.label("k1_B_not64")
    a(f"""
    s_cmp_eq_u32 s18, 2
    s_cbranch_scc0 k1_B_notw
    s_cmp_lt_u32 s3, 4
    s_cbranch_scc0 k1_B_a32
    s_lshl_b32 s37, s3, 4
    v_add_u32 v{TMP}, s37, v{VM}
    v_cvt_f32_u32 v{TMP}, v{TMP}
    v_mul_f32 v{TMP}, {hex(f2u(1/2048.))}, v{TMP}
    """)
    for t in range(2):
        for i in range(4):
            k=16*t+i
            if k==0: a(f"v_mov_b32 v{TMP+1}, v{VQF}")
            else: a(f"v_add_f32 v{TMP+1+4*t+i}, {hex(f2u(float(k)))}, v{VQF}")
    for e in range(8): a(f"v_mul_f32 v{TMP+1+e}, v{TMP+1+e}, v{TMP}")
    for e in range(8):
        a(f"v_cos_f32 v{TMP+16+e}, v{TMP+1+e}")
        a(f"v_sin_f32 v{TMP+24+e}, v{TMP+1+e}")
    a(f"""
    s_lshl_b32 s36, s3, 12
    s_add_u32 s36, s36, {OFF_TW}
    buffer_store_dwordx4 {vr(TMP+16,4)}, v6, s[24:27], s36 offen
    buffer_store_dwordx4 {vr(TMP+20,4)}, v6, s[24:27], s36 offen offset:1024
    buffer_store_dwordx4 {vr(TMP+24,4)}, v6, s[24:27], s36 offen offset:2048
    buffer_store_dwordx4 {vr(TMP+28,4)}, v6, s[24:27], s36 offen offset:3072
    s_branch k1_B_notw
    """)
    a.label("k1_B_a32")
    a("""
    s_cmp_eq_u32 s3, 4
    s_cbranch_scc0 k1_B_notw
    """)
    for blk in range(8):
        a(f"s_mov_b32 s36, {OFF_A32+blk*1024}")
        a(f"buffer_store_dwordx4 {vr(A32+4*blk,4)}, v6, s[24:27], s36 offen")
    a.label("k1_B_notw")
    a(f"""
    v_bfe_u32 v{TMP}, v1, 2, 2       ; r4
    v_and_b32 v{TMP+1}, 1, v{TMP}
    v_mul_u32_u24 v{TMP+1}, {XR_STRIDE}, v{TMP+1}
    v_lshrrev_b32 v{TMP+2}, 1, v{TMP}
    v_lshl_add_u32 v{TMP+2}, v{VQ}, 2, v{TMP+2}    ; 4q + (r4>>1)
    v_lshl_add_u32 v{TMP+1}, v{TMP+2}, 6, v{TMP+1}
    v_and_b32 v{TMP+2}, 3, v1
    v_lshl_add_u32 v{TMP+1}, v{TMP+2}, 3, v{TMP+1}
    s_mul_i32 s30, s3, {4*XR_STRIDE}
    v_add_u32 v7, s30, v{TMP+1}
    """)
    stamp(a,1)
    a("s_waitcnt vmcnt(0)")
    stamp(a,2)
    for pp in range(2):
        for t in range(2):
            a(f"ds_read_b64_tr_b16 {vr(PIN+8*pp+4*t,2)}, v7 offset:{pp*2*XR_STRIDE+t*32}")
            a(f"ds_read_b64_tr_b16 {vr(PIN+8*pp+4*t+2,2)}, v7 offset:{pp*2*XR_STRIDE+t*32+128}")
    for j in range(4): a(f"v_lshl_or_b32 v{WOL+j}, v{WOH+j}, 16, v{WOL+j}")
    a(f"""
    s_lshl_b32 s32, s32, 10
    s_add_u32 s32, s32, {OFF_WOF}
    buffer_store_dwordx4 {vr(WOL,4)}, v6, s[24:27], s32 offen
    """)
    a(f"""
    s_cmp_eq_u32 s39, 1
    s_cbranch_scc0 k1_B_noab2
    """)
    for k in range(8): a(f"v_lshlrev_b32 v{ABL+k}, 16, v{ABL+k}")
    a(f"""
    v_add_f32 v{TMP}, v{ABL}, v{ABL+2}        ; 2*Wh0.re
    v_sub_f32 v{TMP+1}, v{ABL+1}, v{ABL+3}    ; 2*Wh0.im
    v_add_f32 v{TMP+2}, v{ABL+4}, v{ABL+6}    ; 2*Wh256.re
    v_sub_f32 v{TMP+3}, v{ABL+5}, v{ABL+7}    ; 2*Wh256.im
    v_add_f32 v{TMP+4}, v{TMP}, v{TMP+2}
    v_add_f32 v{TMP+5}, v{TMP+1}, v{TMP+3}
    v_sub_f32 v{TMP+6}, v{TMP}, v{TMP+2}
    v_sub_f32 v{TMP+7}, v{TMP+1}, v{TMP+3}
    v_mul_f32 v{TMP+4}, 0.25, v{TMP+4}
    v_mul_f32 v{TMP+5}, 0.25, v{TMP+5}
    v_mul_f32 v{TMP+6}, 0.25, v{TMP+6}
    v_mul_f32 v{TMP+7}, 0.25, v{TMP+7}
    v_cvt_pk_bf16_f32 v{TMP+4}, v{TMP+4}, v{TMP+5}
    v_cvt_pk_bf16_f32 v{TMP+5}, v{TMP+6}, v{TMP+7}
    s_lshr_b32 s36, s35, 4
    s_lshl_b32 s36, s36, 2
    s_and_b32 s37, s35, 3
    s_add_u32 s36, s36, s37          ; e
    s_and_b32 s38, s36, 1
    s_lshl_b32 s38, s38, 3           ; (e&1)*8
    s_lshr_b32 s36, s36, 1
    s_lshl_b32 s36, s36, 10          ; ep*1024
    s_add_u32 s36, s36, s38
    s_lshr_b32 s37, s35, 2
    s_and_b32 s37, s37, 3
    s_lshl_b32 s37, s37, 8           ; q*16*16
    s_add_u32 s36, s36, s37
    s_add_u32 s36, s36, {OFF_AB}
    v_lshlrev_b32 v{TMP+8}, 12, v{VQ}
    v_lshl_add_u32 v{TMP+8}, v{VM}, 4, v{TMP+8}
    buffer_store_dwordx2 {vr(TMP+4,2)}, v{TMP+8}, s[24:27], s36 offen
    """)
    a.label("k1_B_noab2")
    a("s_waitcnt lgkmcnt(0)")
    for pp in range(2):
        for t in range(2):
            for part in range(2):
                a(f"v_mfma_f32_16x16x32_bf16 {vr(D1+16*pp+8*t+4*part,4)}, {vr(PIN+8*pp+4*t,4)}, {vr(R16+4*part,4)}, 0")
    a("s_nop 4")
    for pp in range(2):
        for t in range(2):
            twiddle(a, D1+16*pp+8*t, D1+16*pp+8*t+4, TWc+4*t, TWs+4*t, PIN+8*pp+4*t, TMP)
    a("s_nop 1")
    for pp in range(2):
        for tp in range(2):
            for part in range(2):
                d=D2+16*pp+8*tp+4*part
                for t in range(2):
                    A=A32+((tp*2+part)*2+t)*4
                    a(f"v_mfma_f32_16x16x32_bf16 {vr(d,4)}, {vr(A,4)}, {vr(PIN+8*pp+4*t,4)}, {'0' if t==0 else vr(d,4)}")
    a(f"""
    v_lshl_add_u32 v{TMP}, v{VQ}, 6, v{VM}         ; m + 64q
    s_mul_i32 s30, s3, {4*XR_STRIDE}
    v_lshl_add_u32 v{TMP+1}, v{TMP}, 3, s30
    v_sub_u32 v{TMP+2}, {256-48}, v{TMP}            ; 256-48-f0
    v_lshl_add_u32 v{TMP+2}, v{TMP+2}, 3, s30
    v_add_u32 v{TMP+3}, 384, v{TMP+2}               ; i=0 address
    v_cmp_eq_u32 vcc, 0, v1
    v_mov_b32 v{TMP+4}, s30
    s_nop 0
    v_cndmask_b32 v{TMP+3}, v{TMP+3}, v{TMP+4}, vcc ; lane0 -> g=0 (Z[256])
    s_nop 1
    """)
    for pp in range(2):
        for i in range(4):
            a(f"ds_write2_b32 v{TMP+1}, v{D2+16*pp+8+i}, v{D2+16*pp+12+i} offset0:{(pp*2048+i*128)//4 if False else i*32} offset1:{i*32+1}" if pp==0 else
              f"ds_write2_b32 v{TMP+5}, v{D2+16*pp+8+i}, v{D2+16*pp+12+i} offset0:{i*32} offset1:{i*32+1}")
        if pp==0: a(f"v_add_u32 v{TMP+5}, 2048, v{TMP+1}")
    a("s_waitcnt lgkmcnt(0)")
    PR=D1
    for pp in range(2):
        a(f"ds_read_b64 {vr(PR+8*pp,2)}, v{TMP+3} offset:{pp*2048}")
        for i in range(1,4):
            a(f"ds_read_b64 {vr(PR+8*pp+2*i,2)}, v{TMP+2} offset:{pp*2048+(3-i)*128}")
    a(f"""
    v_lshrrev_b32 v{TMP+6}, 1, v{VM}               ; (f>>1)&7 = m>>1
    v_xor_b32 v{TMP+6}, s3, v{TMP+6}               ; wave ^ (m>>1)
    v_lshlrev_b32 v{TMP+6}, 4, v{TMP+6}
    v_lshl_add_u32 v{TMP+6}, v{TMP}, 7, v{TMP+6}
    v_add_u32 v{TMP+6}, {B1_MB}, v{TMP+6}
    s_waitcnt lgkmcnt(0)
    """)
    O=TMP+8
    for pp in range(2):
        for i in range(4):
            zr,zi=D2+16*pp+i, D2+16*pp+4+i
            pr,pi=PR+8*pp+2*i, PR+8*pp+2*i+1
            a(f"v_add_f32 v{O}, v{zr}, v{pr}")
            a(f"v_sub_f32 v{O+1}, v{zi}, v{pi}")
            a(f"v_add_f32 v{O+2}, v{zi}, v{pi}")
            a(f"v_sub_f32 v{O+3}, v{pr}, v{zr}")
            if i==0:
                a(f"v_add_f32 v{O+4}, v{zr}, v{zr}")
                a(f"v_add_f32 v{O+5}, v{pr}, v{pr}")
                a(f"v_add_f32 v{O+6}, v{zi}, v{zi}")
                a(f"v_add_f32 v{O+7}, v{pi}, v{pi}")
                for k in range(4): a(f"v_cndmask_b32 v{O+k}, v{O+k}, v{O+4+k}, vcc")
            o2=O+8+2*((pp*4+i)%4)
            a(f"v_cvt_pk_bf16_f32 v{o2}, v{O}, v{O+1}")
            a(f"v_cvt_pk_bf16_f32 v{o2+1}, v{O+2}, v{O+3}")
            a(f"ds_write_b64 v{TMP+6}, {vr(o2,2)} offset:{i*2048+pp*8}")
    a(f"""
    v_bfe_u32 v{TMP}, v1, 2, 2                     ; r4
    v_lshrrev_b32 v{TMP+1}, 1, v{TMP}
    v_mul_u32_u24 v{TMP+1}, {XR_STRIDE}, v{TMP+1}
    v_and_b32 v{TMP+2}, 1, v{TMP}
    v_lshl_add_u32 v{TMP+1}, v{TMP+2}, 9, v{TMP+1}
    v_lshl_add_u32 v{TMP+1}, v{VQ}, 5, v{TMP+1}
    v_and_b32 v{TMP+2}, 3, v1
    v_lshl_add_u32 v{TMP+1}, v{TMP+2}, 3, v{TMP+1} ; + c4*8
    s_mul_i32 s30, s3, {4*XR_STRIDE}
    s_add_u32 s30, s30, {B1_WTL}
    v_add_u32 v{TMP+1}, s30, v{TMP+1}
    """)
    for jj in range(4):
        a(f"ds_read_b64_tr_b16 {vr(D1+4*jj,2)}, v{TMP+1} offset:{jj*128}")
        a(f"ds_read_b64_tr_b16 {vr(D1+4*jj+2,2)}, v{TMP+1} offset:{jj*128+2*XR_STRIDE}")
    a(f"""
    v_and_b32 v{TMP+2}, 7, v1
    v_xor_b32 v{TMP+2}, s3, v{TMP+2}
    v_lshlrev_b32 v{TMP+2}, 4, v{TMP+2}
    v_lshl_add_u32 v{TMP+2}, v1, 7, v{TMP+2}
    v_add_u32 v{TMP+2}, {B1_MBW}, v{TMP+2}
    """)
    for jj in range(4):
        a(f"s_waitcnt lgkmcnt({6-2*jj})")
        a(f"ds_write_b128 v{TMP+2}, {vr(D1+4*jj,4)} offset:{jj*8192}")
    a("""
    s_waitcnt lgkmcnt(0)
    s_barrier
    """)
    a(f"""
    v_lshrrev_b32 v{TMP}, 3, v1
    v_and_b32 v{TMP+1}, 7, v1
    s_lshl_b32 s30, s3, 5
    v_add_u32 v{TMP+2}, s30, v{TMP}                ; f
    v_xor_b32 v{TMP+3}, v{TMP}, v{TMP+1}
    v_lshlrev_b32 v{TMP+3}, 4, v{TMP+3}
    v_lshl_add_u32 v{TMP+3}, v{TMP+2}, 7, v{TMP+3}
    v_add_u32 v{TMP+3}, {B1_MBW}, v{TMP+3}
    v_lshlrev_b32 v{TMP+5}, 13, v{TMP+2}
    v_lshl_add_u32 v{TMP+5}, v{TMP+1}, 4, v{TMP+5} ; f*8192 + c8*16
    s_and_b32 s31, s18, 7
    s_lshr_b32 s32, s31, 1
    s_lshl_b32 s32, s32, 11
    s_and_b32 s31, s31, 1
    s_lshl_b32 s31, s31, 7
    s_add_u32 s32, s32, s31
    s_lshr_b32 s31, s18, 5
    s_lshl_b32 s31, s31, 10
    s_add_u32 s32, s32, s31
    s_lshr_b32 s31, s18, 3
    s_and_b32 s31, s31, 3
    s_lshl_b32 s31, s31, 8
    s_add_u32 s32, s32, s31
    s_add_u32 s32, s32, {OFF_WT}
    """)
    for jj in range(4):
        a(f"ds_read_b128 {vr(D1+4*jj,4)}, v{TMP+3} offset:{jj*1024}")
    for jj in range(4):
        a(f"s_waitcnt lgkmcnt({3-jj})")
        a(f"s_add_u32 s31, s32, {jj*8*8192}")
        a(f"buffer_store_dwordx4 {vr(D1+4*jj,4)}, v{TMP+5}, s[24:27], s31 offen")
    a(f"""
    v_lshrrev_b32 v{TMP}, 3, v1                    ; fl
    v_and_b32 v{TMP+1}, 7, v1                      ; c8
    s_lshl_b32 s30, s3, 5
    v_add_u32 v{TMP+2}, s30, v{TMP}                ; f (jj=0)
    v_lshrrev_b32 v{TMP+3}, 1, v{TMP}
    v_xor_b32 v{TMP+3}, v{TMP+3}, v{TMP+1}
    v_lshlrev_b32 v{TMP+3}, 4, v{TMP+3}
    v_lshl_add_u32 v{TMP+3}, v{TMP+2}, 7, v{TMP+3}
    v_add_u32 v{TMP+3}, {B1_MB}, v{TMP+3}
    v_xor_b32 v{TMP+4}, 64, v{TMP+3}
    v_lshlrev_b32 v{TMP+5}, 13, v{TMP+2}
    v_lshl_add_u32 v{TMP+5}, v{TMP+1}, 4, v{TMP+5} ; f*8192 + c8*16
    s_lshl_b32 s31, s19, 8
    s_lshl_b32 s32, s28, 7
    s_add_u32 s31, s31, s32
    s_add_u32 s31, s31, {OFF_Z}
    """)
    for jj in range(4):
        a(f"ds_read_b128 {vr(D2+4*jj,4)}, v{TMP+3+(jj&1)} offset:{jj*1024}")
    for jj in range(4):
        a(f"s_waitcnt lgkmcnt({3-jj})")
        a(f"s_add_u32 s32, s31, {jj*8*8192}")
        a(f"buffer_store_dwordx4 {vr(D2+4*jj,4)}, v{TMP+5}, s[24:27], s32 offen")
    if asm.STAMP and not asm.F12:
        stamp(a,3); a("s_waitcnt vmcnt(0)"); stamp(a,4); stamp_dump(a,0)
    fin(a)

def build_k1(a=None):
    own = a is None
    if own: a=Asm()
    k1_prologue(a)
    k1_loader(a)
    k1_compute(a)
    k1_B(a)
    a.sc_srd=None
    if own:
        a.label("k1_end")
        a("s_endpgm")
    return a
```

```python
import asm
from asm import *
from layout import *
from k1 import srd, twiddle
import os
VAR=set(os.environ.get("VAR","").split(","))
def opt(name,default):
    for v in VAR:
        if v.startswith(name+"="): return int(v.split("=")[1])
    return default
K2_COL=135168
K2_E=K2_COL+8192
K2_LDS=163840
K2_CNT=163840-64
THRESH2=4096.0/1.03
NB=opt("NB",30)
NA=64-NB
ARRIT=opt("ARRIT",2)
TABIT=opt("TABIT",2)
B2IT=opt("B2IT",4)
PUBIT=opt("PUBIT",6)
XB=opt("XB",12)

VK,VV,VIDX=2,3,4
Q=[8,12]; S=[16,32]; O=[48,64]
F=[(80,84,88),(92,96,100)]
TMP=104
T64,A32,TW,WT,BUF,D1,P=112,144,176,192,200,232,248
X2=200
CI=[112,128]
VM,VQd=108,109
WOR=144

def expo(a,r): a(f"v_exp_f32 v{r}, v{r}")

def unit(a,tp,qt,fb):
    Sc,Sn=S[qt],S[1-qt]
    def pv(Ob,V,B): a(f"v_smfmac_f32_32x32x32_bf16 {vr(Ob,16)}, {vr(V,4)}, {vr(B,8)}, v{VIDX}")
    def qk(Sd,K,qq): a(f"v_mfma_f32_32x32x16_bf16 {vr(Sd,16)}, {vr(K,4)}, {vr(Q[qq],4)}, {vr(CI[qq],16) if fb else '0'}")
    if qt==0:
        Kc,V0c,V1c=F[tp]; Kn,V0n,V1n=F[1-tp]
        expo(a,Sc); expo(a,Sc+1)
        pv(O[1],V1n,Sn+8)
        a(f"ds_read_b128 {vr(Kn,4)}, v{VK} offset:{(tp+1)*KV_TILE}")
        expo(a,Sc+2)
        a(f"ds_read_b128 {vr(V0n,4)}, v{VV} offset:{(tp+1)*KV_TILE+512}")
        expo(a,Sc+3)
        a(f"ds_read_b128 {vr(V1n,4)}, v{VV} offset:{(tp+1)*KV_TILE+784}")
        expo(a,Sc+4); expo(a,Sc+5)
        qk(Sn,Kc,1)
        for i in range(6,12): expo(a,Sc+i)
        pv(O[0],V0c,Sc)
        for i in range(12,16): expo(a,Sc+i)
    else:
        Kc,V0c,V1c=F[tp]; Kn,V0n,V1n=F[1-tp]
        expo(a,Sc); expo(a,Sc+1)
        pv(O[0],V1c,Sn+8)
        for i in range(2,6): expo(a,Sc+i)
        a("s_waitcnt lgkmcnt(0)")
        qk(Sn,Kn,0)
        for i in range(6,12): expo(a,Sc+i)
        pv(O[1],V0c,Sc)
        for i in range(12,16): expo(a,Sc+i)

def bbar(a,tag,cnt=0):
    a(f"""
    v_mov_b32 v111, {K2_CNT+cnt}
    v_mov_b32 v110, 1
    s_waitcnt lgkmcnt(0)
    s_mov_b64 exec, 1
    ds_add_u32 v111, v110
    s_mov_b64 exec, -1
    s_add_u32 s47, s47, 4
    """)
    a.label(f"k2_bbar_{tag}")
    a(f"""
    ds_read_b32 v109, v111
    s_waitcnt lgkmcnt(0)
    v_readfirstlane_b32 s48, v109
    s_nop 0
    s_cmp_lt_u32 s48, s47
    s_cbranch_scc1 k2_bbar_{tag}
    """)

def dma_arrive(a,younger=0):
    a(f"""
    s_waitcnt vmcnt({younger})
    v_mov_b32 v{TMP}, {K2_CNT+4}
    v_mov_b32 v{TMP+1}, 1
    s_mov_b64 exec, 1
    ds_add_u32 v{TMP}, v{TMP+1}
    s_mov_b64 exec, -1
    """)
def dma_wait(a,tag):
    a(f"v_mov_b32 v{TMP}, {K2_CNT+4}")
    a.label(f"k2_dwait_{tag}")
    a(f"""
    ds_read_b32 v{TMP+1}, v{TMP}
    s_waitcnt lgkmcnt(0)
    v_readfirstlane_b32 s48, v{TMP+1}
    s_nop 0
    s_cmp_lt_u32 s48, 8
    s_cbranch_scc1 k2_dwait_{tag}
    """)

def kv_dma(a, ns):
    for n in ns:
        a(f"s_add_u32 m0, s34, {n*1024}")
        a(f"s_add_u32 s36, s35, {n*1024}")
        a(f"buffer_load_dwordx4 v{TMP}, s[20:23], s36 offen lds")

def b2_part1(a):
    a("s_waitcnt vmcnt(0)")
    bbar(a,"col")
    a(f"""
    v_and_b32 v{VM}, 15, v1
    v_lshrrev_b32 v{VQd}, 4, v1
    v_xor_b32 v104, v{VM}, v{VQd}
    v_lshlrev_b32 v104, 4, v104
    v_lshl_add_u32 v104, v{VM}, 8, v104
    v_add_u32 v104, {K2_COL}, v104
    v_xor_b32 v105, 64, v104
    v_xor_b32 v106, 128, v104
    v_xor_b32 v107, 192, v104
    """)
    for u in range(4):
        for t in range(2):
            a(f"ds_read_b128 {vr(BUF+16*t+4*u,4)}, v{104+u} offset:{t*4096}")
    for u in range(4):
        a(f"s_waitcnt lgkmcnt({6-2*u})")
        for t in range(2):
            for part in range(2):
                d=D1+8*t+4*part
                a(f"v_mfma_f32_16x16x32_bf16 {vr(d,4)}, {vr(BUF+16*t+4*u,4)}, {vr(T64+8*u+4*part,4)}, {'0' if u==0 else vr(d,4)}")
    a("""
    s_cmp_eq_u32 s28, 0
    s_cbranch_scc0 k2_p1_noab
    """)
    a(f"v_lshlrev_b32 v110, 4, v1")
    a(f"s_lshl_b32 s36, s3, 12")
    a(f"s_add_u32 s36, s36, {OFF_AB}")
    for ep in range(4):
        a(f"buffer_load_dwordx4 {vr(216+4*ep,4)}, v110, s[20:23], s36 offen offset:{ep*1024}")
    a.label("k2_p1_noab")
    a("s_nop 6")
    for t in range(2):
        twiddle(a, D1+8*t, D1+8*t+4, TW+4*t, TW+8+4*t, P+4*t, 104)
    a("s_nop 1")
    for t in range(2):
        for tp in range(2):
            for part in range(2):
                d=X2+8*tp+4*part
                a(f"v_mfma_f32_16x16x32_bf16 {vr(d,4)}, {vr(A32+((tp*2+part)*2+t)*4,4)}, {vr(P+4*t,4)}, {'0' if t==0 else vr(d,4)}")

def b2_part2(a):
    a("s_waitcnt vmcnt(0)")
    a("""
    s_cmp_eq_u32 s28, 0
    s_cbranch_scc1 k2_p2_special
    """)
    for tp in range(2):
        xr,xi=X2+8*tp,X2+8*tp+4
        wr,wi=D1+8*tp,D1+8*tp+4
        for i in range(4):
            a(f"v_lshlrev_b32 v{wr+i}, 16, v{WT+4*tp+i}")
            a(f"v_and_b32 v{wi+i}, 0xffff0000, v{WT+4*tp+i}")
        for p in (0,2):
            a(f"v_pk_mul_f32 {vr(104+p,2)}, {vr(xr+p,2)}, {vr(wr+p,2)}")
            a(f"v_pk_mul_f32 {vr(108+p,2)}, {vr(xr+p,2)}, {vr(wi+p,2)}")
        for p in (0,2):
            a(f"v_pk_fma_f32 {vr(104+p,2)}, {vr(xi+p,2)}, {vr(wi+p,2)}, {vr(104+p,2)} neg_lo:[1,0,0] neg_hi:[1,0,0]")
            a(f"v_pk_fma_f32 {vr(108+p,2)}, {vr(xi+p,2)}, {vr(wr+p,2)}, {vr(108+p,2)}")
        for i in range(4): a(f"v_cvt_pk_bf16_f32 v{P+4*tp+i}, v{104+i}, -v{108+i}")
    a.label("k2_p2_common")
    a("s_nop 1")
    for tp in range(2):
        for t in range(2):
            for part in range(2):
                d=D1+8*t+4*part
                a(f"v_mfma_f32_16x16x32_bf16 {vr(d,4)}, {vr(A32+((t*2+part)*2+tp)*4,4)}, {vr(P+4*tp,4)}, {'0' if tp==0 else vr(d,4)}")
    t0=X2
    a(f"""
    v_and_b32 v{t0}, 15, v1                 ; m
    v_lshrrev_b32 v{t0+1}, 4, v1            ; q
    v_lshrrev_b32 v{t0+2}, 2, v{t0}         ; m>>2
    s_lshl_b32 s36, s3, 2
    v_add_u32 v{t0+2}, s36, v{t0+2}         ; 4w + (m>>2)
    v_lshlrev_b32 v{t0+3}, 2, v{t0+1}       ; 4q
    v_xor_b32 v{t0+2}, v{t0+2}, v{t0+3}
    v_lshlrev_b32 v{t0+2}, 4, v{t0+2}
    v_lshl_add_u32 v{t0+2}, v{t0+3}, 8, v{t0+2}
    v_and_b32 v{t0+4}, 3, v{t0}
    v_lshl_add_u32 v{t0+2}, v{t0+4}, 2, v{t0+2}
    v_add_u32 v{t0+8}, {K2_E}, v{t0+2}
    v_xor_b32 v{t0+9}, 16, v{t0+8}
    v_xor_b32 v{t0+10}, 32, v{t0+8}
    v_xor_b32 v{t0+11}, 48, v{t0+8}
    """)
    for t in range(2):
        twiddle(a, D1+8*t, D1+8*t+4, TW+4*t, TW+8+4*t, P+4*t, 104)
    for t in range(2):
        for i in range(4):
            a(f"ds_write_b32 v{t0+8+i}, v{P+4*t+i} offset:{t*4096+i*256}")
    bbar(a,"e")
    a(f"""
    v_and_b32 v{VM}, 15, v1
    v_lshrrev_b32 v{VQd}, 4, v1
    v_xor_b32 v104, v{VM}, v{VQd}
    v_lshlrev_b32 v104, 4, v104
    v_lshl_add_u32 v104, v{VM}, 8, v104
    v_add_u32 v104, {K2_E}, v104
    v_xor_b32 v105, 64, v104
    v_xor_b32 v106, 128, v104
    v_xor_b32 v107, 192, v104
    """)
    for u in range(4):
        for t in range(2):
            a(f"ds_read_b128 {vr(BUF+16*t+4*u,4)}, v{104+u} offset:{t*4096}")
    a(f"""
    v_lshlrev_b32 v110, 8, v{VM}
    v_lshl_add_u32 v110, v{VQd}, 4, v110
    s_lshl_b32 s36, s28, 13
    s_lshl_b32 s37, s3, 6
    s_add_u32 s36, s36, s37
    s_add_u32 s36, s36, {OFF_Y}
    """)
    for u in range(4):
        a(f"s_waitcnt lgkmcnt({6-2*u})")
        for t in range(2):
            for part in range(2):
                d=D1+8*t+4*part
                a(f"v_mfma_f32_16x16x32_bf16 {vr(d,4)}, {vr(T64+8*u+4*part,4)}, {vr(BUF+16*t+4*u,4)}, {'0' if u==0 else vr(d,4)}")
    a("s_nop 7")
    for t in range(2):
        for i in range(4): a(f"v_cvt_pk_bf16_f32 v{P+4*t+i}, v{D1+8*t+i}, -v{D1+8*t+4+i}")
        a.sc_srd="s[20:23]"
        a(f"buffer_store_dwordx4 {vr(P+4*t,4)}, v110, s[20:23], s36 offen")
        a.sc_srd=a.p1
        if t==0: a("s_add_u32 s36, s36, 4096")
    a("s_setpc_b64 s[60:61]")
    a.label("k2_p2_special")
    bbar(a,"s0")
    XCH=K2_COL
    a(f"""
    v_and_b32 v104, 15, v1
    v_lshrrev_b32 v105, 4, v1
    s_lshl_b32 s36, s3, 4
    v_add_u32 v104, s36, v104                 ; k1
    v_lshl_add_u32 v104, v105, 8, v104         ; g0 = k1 + 64*4q
    v_lshlrev_b32 v106, 3, v104
    v_add_u32 v106, {XCH}, v106
    """)
    for tp in range(2):
        for i in range(4):
            off=(i*64+tp*1024)*8
            a(f"ds_write_b32 v106, v{X2+8*tp+i} offset:{off}")
            a(f"ds_write_b32 v106, v{X2+8*tp+4+i} offset:{off+4}")
    bbar(a,"s1")
    for tp in range(2):
        for i in range(4):
            e=4*tp+i
            a(f"v_sub_u32 v107, {2048-(i*64+tp*1024)}, v104")
            a(f"v_and_b32 v107, 2047, v107")
            a(f"v_lshlrev_b32 v107, 3, v107")
            a(f"v_add_u32 v107, {XCH}, v107")
            a(f"ds_read_b64 {vr(D1+2*e,2)}, v107")
    bbar(a,"s2")
    for tp in range(2):
        for i in range(4):
            e=4*tp+i
            src=216+2*e
            ab=WT
            a(f"v_lshlrev_b32 v{ab}, 16, v{src}")
            a(f"v_and_b32 v{ab+1}, 0xffff0000, v{src}")
            a(f"v_lshlrev_b32 v{ab+2}, 16, v{src+1}")
            a(f"v_and_b32 v{ab+3}, 0xffff0000, v{src+1}")
            zr,zi=X2+8*tp+i,X2+8*tp+4+i
            pr,pi=D1+2*e,D1+2*e+1
            a(f"v_mul_f32 v104, v{zr}, v{ab}")
            a(f"v_mul_f32 v105, v{zr}, v{ab+1}")
            a(f"v_fma_f32 v104, -v{zi}, v{ab+1}, v104")
            a(f"v_fma_f32 v105, v{zi}, v{ab}, v105")
            a(f"v_fma_f32 v104, v{pr}, v{ab+2}, v104")
            a(f"v_fma_f32 v105, v{pr}, v{ab+3}, v105")
            a(f"v_fma_f32 v104, v{pi}, v{ab+3}, v104")
            a(f"v_fma_f32 v105, -v{pi}, v{ab+2}, v105")
            a(f"v_cvt_pk_bf16_f32 v{P+e}, v104, -v105")
    a("s_branch k2_p2_common")


def rounds():
    nA0=NB*KV_TILE//1024
    st1=[0,nA0,8,nA0+8]
    rest=[]
    n=16
    while n<nA0:
        rest.append(min(n,nA0-8) if n+8>nA0 else n); n+=8
    n=nA0+16
    while n<132:
        rest.append(min(n,124)); n+=8
    lo=[r for r in rest if r<nA0]; hi=[r for r in rest if r>=nA0]
    out=[]
    while lo or hi:
        if lo: out.append(lo.pop(0))
        if hi: out.append(hi.pop(0))
    return st1,out

def attn_loop(a,fb):
    sfx="_fb" if fb else ""
    a.label("k2_loop"+sfx)
    if not fb:
        a("""
        s_cmp_eq_u32 s42, s40
        s_cbranch_scc1 k2_hook
        """)
        a.label("k2_hookret")
    unit(a,0,0,fb); unit(a,0,1,fb); unit(a,1,0,fb); unit(a,1,1,fb)
    a(f"""
    v_add_u32 v{VK}, {2*KV_TILE}, v{VK}
    v_add_u32 v{VV}, {2*KV_TILE}, v{VV}
    s_add_u32 s42, s42, 1
    s_cmp_lt_u32 s42, s43
    s_cbranch_scc1 k2_loop{sfx}
    """)

def pipe_prologue(a,fb):
    K,V0,V1=F[0]
    a(f"""
    ds_read_b128 {vr(K,4)}, v{VK}
    ds_read_b128 {vr(V0,4)}, v{VV} offset:512
    ds_read_b128 {vr(V1,4)}, v{VV} offset:784
    s_waitcnt lgkmcnt(2)
    v_mfma_f32_32x32x16_bf16 {vr(S[0],16)}, {vr(K,4)}, {vr(Q[0],4)}, {vr(CI[0],16) if fb else '0'}
    s_mov_b32 s42, 0
    s_waitcnt lgkmcnt(0)
    s_nop 11
    """)

def poll(a,tag,nloads,addr_regs,srdreg="s[20:23]",soff="0"):
    a(f"s_mov_b32 s49, 0x20000")
    a.label(f"poll_{tag}")
    for k in range(nloads):
        a(f"buffer_load_dword v{addr_regs[k][1]}, v{addr_regs[k][0]}, {srdreg}, {soff} offen")
    a("s_waitcnt vmcnt(0)")
    for k in range(nloads):
        a(f"v_cmp_eq_u32 {'vcc' if k==0 else 's[50:51]'}, s56, v{addr_regs[k][1]}")
        if k>0:
            a("s_nop 1"); a("s_and_b64 vcc, vcc, s[50:51]")
    a(f"""
    s_nop 1
    s_cmp_eq_u64 vcc, -1
    s_cbranch_scc1 poll_{tag}_done
    s_sub_u32 s49, s49, 1
    s_cmp_eq_u32 s49, 0
    s_cbranch_scc1 poll_{tag}_done
    s_sleep 1
    s_branch poll_{tag}
    """)
    a.label(f"poll_{tag}_done")

def get_tag(a,tagname):
    a(f"""
    v_mov_b32 v{TMP}, 0
    s_mov_b32 s49, 0x20000
    """)
    a.label(f"kf_tag_{tagname}")
    a(f"""
    global_load_dword v{TMP+1}, v{TMP}, s[54:55] sc1
    s_waitcnt vmcnt(0)
    v_readfirstlane_b32 s56, v{TMP+1}
    s_sub_u32 s49, s49, 1
    s_cmp_eq_u32 s49, 0
    s_cbranch_scc1 kf_tag_{tagname}_done
    s_cmp_eq_u32 s56, 0
    s_cbranch_scc0 kf_tag_{tagname}_done
    s_sleep 1
    s_branch kf_tag_{tagname}
    """)
    a.label(f"kf_tag_{tagname}_done")

def flag_store(a, soff_expr_reg, vtmp):
    a(f"""
    v_mov_b32 v{vtmp}, 0
    v_mov_b32 v{vtmp+1}, s56
    s_mov_b64 exec, 1
    buffer_store_dword v{vtmp+1}, v{vtmp}, s[20:23], s{soff_expr_reg} offen
    s_mov_b64 exec, -1
    """)

def build_k2(a=None):
    own = a is None
    if own: a=Asm()
    P1="s[20:23]" if asm.F12 else None
    a.sc_srd=P1
    st1,rest=rounds()
    R=len(rest)
    if not asm.F12:
        a(f"""
        s_cmp_ge_u32 s2, 256
        s_cbranch_scc1 k2_end
        s_load_dwordx2 s[16:17], s[0:1], 64      ; ws
        {"s_load_dwordx4 s[52:55], s[0:1], 48      ; out, debug" if asm.F23 else ""}
        v_and_b32 v1, 63, v0
        v_lshrrev_b32 v{TMP}, 6, v0
        s_nop 0
        v_readfirstlane_b32 s3, v{TMP}
        """)
        if asm.F23:
            a("""
            s_or_b32 s57, s2, s3
            s_cmp_eq_u32 s57, 0
            s_cbranch_scc0 kf_nononce
            s_memrealtime s[56:57]
            s_waitcnt lgkmcnt(0)
            s_or_b32 s56, s56, 1
            v_mov_b32 v2, 0
            v_mov_b32 v3, s56
            s_mov_b64 exec, 1
            global_store_dword v2, v3, s[54:55] sc1
            s_mov_b64 exec, -1
            """)
            a.label("kf_nononce")
    stamp(a,0)
    a(f"""
    s_and_b32 s18, s2, 7
    s_lshr_b32 s19, s2, 3
    s_lshl_b32 s29, s18, 2
    s_and_b32 s30, s19, 3
    s_add_u32 s29, s29, s30                  ; hd
    s_lshr_b32 s30, s19, 2                   ; qb
    s_lshl_b32 s28, s18, 5
    s_add_u32 s28, s28, s19                  ; f
    v_lshlrev_b32 v{TMP}, 4, v1              ; lane*16
    s_and_b32 s33, s3, 3                     ; qg
    s_lshl_b32 s31, s30, 3
    s_lshl_b32 s33, s33, 1
    s_add_u32 s31, s31, s33
    s_waitcnt lgkmcnt(0)
    """)
    srd(a,20,16,WS_SIZE)
    if asm.F12:
        a(f"""
        s_cmp_eq_u32 s3, 0
        s_cbranch_scc0 k2_nopoll
        s_lshr_b32 s32, s29, 3                   ; hd>>3
        v_and_b32 v{TMP+1}, 15, v1
        v_lshrrev_b32 v{TMP+2}, 4, v1            ; group 0:K 1:V 2,3:Q
        v_and_b32 v{TMP+3}, 1, v1
        s_lshl_b32 s33, s30, 1
        v_add_u32 v{TMP+3}, s33, v{TMP+3}
        v_cmp_gt_u32 vcc, 2, v{TMP+2}
        v_mov_b32 v{TMP+4}, 4
        v_mov_b32 v{TMP+5}, 8
        v_cndmask_b32 v{TMP+1}, v{TMP+3}, v{TMP+1}, vcc   ; rb
        v_cmp_eq_u32 vcc, 0, v{TMP+2}
        v_mov_b32 v{TMP+6}, 0
        s_nop 0
        v_cndmask_b32 v{TMP+6}, v{TMP+6}, v{TMP+4}, vcc
        v_cmp_eq_u32 vcc, 1, v{TMP+2}
        s_nop 1
        v_cndmask_b32 v{TMP+6}, v{TMP+6}, v{TMP+5}, vcc   ; type*4
        v_add_u32 v{TMP+6}, s32, v{TMP+6}        ; cb
        v_lshl_add_u32 v{TMP+1}, v{TMP+6}, 4, v{TMP+1}
        v_lshlrev_b32 v{TMP+1}, 2, v{TMP+1}
        v_add_u32 v{TMP+1}, {OFF_F1Q}, v{TMP+1}
        v_lshlrev_b32 v{TMP+2}, 2, v1
        v_add_u32 v{TMP+2}, {OFF_F1B}, v{TMP+2}
        """)
        poll(a,"p1",2,[(TMP+1,TMP+3),(TMP+2,TMP+4)])
        a.label("k2_nopoll")
        a("s_barrier")
        stamp(a,9)
    a(f"""
    s_lshl_b32 s32, s29, 16
    s_lshl_b32 s33, s31, 10
    s_add_u32 s32, s32, s33
    s_add_u32 s32, s32, {OFF_Q}
    buffer_load_dwordx4 {vr(Q[0],4)}, v{TMP}, s[20:23], s32 offen
    buffer_load_dwordx4 {vr(Q[1],4)}, v{TMP}, s[20:23], s32 offen offset:1024
    v_lshlrev_b32 v{TMP+1}, 2, v1
    s_lshl_b32 s32, s29, 8
    s_add_u32 s32, s32, {OFF_KN}
    buffer_load_dword v{TMP+2}, v{TMP+1}, s[20:23], s32 offen
    s_lshl_b32 s34, s3, 10                   ; wave*1024
    s_mul_i32 s35, s29, {KV_HEAD}
    s_add_u32 s35, s35, s34
    s_add_u32 s35, s35, {OFF_KV}
    """)
    kv_dma(a,st1)
    a("s_waitcnt vmcnt(4)")
    a.label("k2_loaded")
    for qq in range(2):
        acc=TMP+5+qq
        for k in range(4):
            a(f"v_lshlrev_b32 v{TMP+3}, 16, v{Q[qq]+k}")
            a(f"v_and_b32 v{TMP+4}, 0xffff0000, v{Q[qq]+k}")
            a(f"v_mul_f32 v{acc}, v{TMP+3}, v{TMP+3}" if k==0 else f"v_fmac_f32 v{acc}, v{TMP+3}, v{TMP+3}")
            a(f"v_fmac_f32 v{acc}, v{TMP+4}, v{TMP+4}")
    a(f"""
    s_nop 1
    v_permlane32_swap_b32 v{TMP+5}, v{TMP+6}
    s_nop 1
    v_add_f32 v{TMP+5}, v{TMP+5}, v{TMP+6}
    """)
    for sh in ("row_shr:1","row_shr:2","row_shr:4","row_shr:8"):
        a("s_nop 0")
        a(f"v_max_f32_dpp v{TMP+2}, v{TMP+2}, v{TMP+2} {sh} row_mask:0xf bank_mask:0xf bound_ctrl:0")
        a(f"v_max_f32_dpp v{TMP+5}, v{TMP+5}, v{TMP+5} {sh} row_mask:0xf bank_mask:0xf bound_ctrl:0")
    for sh in ("row_bcast:15 row_mask:0xa","row_bcast:31 row_mask:0xc"):
        a("s_nop 0")
        a(f"v_max_f32_dpp v{TMP+2}, v{TMP+2}, v{TMP+2} {sh} bank_mask:0xf")
        a(f"v_max_f32_dpp v{TMP+5}, v{TMP+5}, v{TMP+5} {sh} bank_mask:0xf")
    a(f"""
    s_nop 0
    v_mul_f32 v{TMP+2}, v{TMP+2}, v{TMP+5}
    s_nop 0
    v_readlane_b32 s38, v{TMP+2}, 63
    v_and_b32 v{TMP+3}, 31, v1
    v_lshrrev_b32 v{TMP+4}, 5, v1
    v_mul_u32_u24 v{TMP+4}, 1056, v{TMP+4}
    v_lshl_add_u32 v{VK}, v{TMP+3}, 4, v{TMP+4}
    s_cmp_lt_u32 s3, 4
    s_cselect_b32 s36, 0, {NB*KV_TILE}
    s_cselect_b32 s43, {NB//2}, {NA//2}       ; iterations
    s_cselect_b32 s40, {min(TABIT,ARRIT)}, {ARRIT}
    v_add_u32 v{VK}, s36, v{VK}
    v_cmp_gt_u32 vcc, 17, v{TMP+3}
    v_mov_b32 v{TMP+4}, 0x40000
    v_mov_b32 v{VIDX}, 0xdddd
    v_cndmask_b32 v{VV}, v{TMP+4}, v{VK}, vcc
    """)
    for qq in range(2):
        for i in range(16): a(f"v_mov_b32 v{O[qq]+i}, 0")
    for i in range(8): a(f"v_mov_b32 v{S[1]+8+i}, 0")
    for i in range(4): a(f"v_mov_b32 v{F[1][2]+i}, 0")
    if "nohook" in VAR:
        a("s_waitcnt vmcnt(0)"); a("s_mov_b32 s40, 99")
    a(f"""
    v_mov_b32 v{TMP+3}, {K2_CNT}
    v_mov_b32 v{TMP+4}, 0
    v_mov_b32 v{TMP+5}, 0
    v_mov_b32 v{TMP+6}, 0
    v_mov_b32 v{TMP+7}, 0
    s_mov_b32 s47, 0
    s_cmp_eq_u32 s3, 0
    s_cbranch_scc0 k2_noinit
    ds_write_b128 v{TMP+3}, {vr(TMP+4,4)}
    s_waitcnt lgkmcnt(0)
    """)
    a.label("k2_noinit")
    a("s_waitcnt vmcnt(0)")
    stamp(a,1)
    a("s_barrier")
    if "nopf" not in VAR and asm.F23:
        a("s_cmp_eq_u32 s3, 7")
        a("s_cbranch_scc0 k2_nopf")
        code_prefetch(a,"k2_tail","k2_end",2,TMP+1,TMP+2)
        a.label("k2_nopf")
    a(f"v_lshlrev_b32 v{TMP}, 4, v1")
    kv_dma(a,rest)
    a("""
    s_cmp_lt_u32 s3, 4
    s_cbranch_scc1 k2_prioB
    s_setprio 1
    s_branch k2_priodone
    """)
    a.label("k2_prioB")
    a("s_setprio 2" if "noprio" not in VAR else "s_setprio 0")
    a.label("k2_priodone")
    if "soloA" in VAR:
        a("s_cmp_lt_u32 s3, 4"); a("s_cbranch_scc1 k2_end")
    stamp(a,2)
    a(f"""
    s_cmp_le_u32 s38, {hex(f2u(THRESH2))}
    s_cbranch_scc0 k2_fallback
    """)
    pipe_prologue(a,False)
    attn_loop(a,False)
    a.label("k2_tail")
    stamp(a,6)
    a(f"""
    s_nop 1
    v_smfmac_f32_32x32x32_bf16 {vr(O[1],16)}, {vr(F[1][2],4)}, {vr(S[1]+8,8)}, v{VIDX}
    s_setprio 0
    s_mul_i32 s36, s3, 2304
    s_add_u32 s37, s36, {K2_E+8192-3*2304}
    s_add_u32 s36, s36, {K2_COL}
    s_cmp_lt_u32 s3, 3
    s_cselect_b32 s36, s36, s37
    s_xor_b32 s44, s3, 4
    s_mul_i32 s45, s44, 2304
    s_add_u32 s46, s45, {K2_E+8192-3*2304}
    s_add_u32 s45, s45, {K2_COL}
    s_cmp_lt_u32 s44, 3
    s_cselect_b32 s45, s45, s46
    v_lshlrev_b32 v{TMP}, 4, v1
    v_lshlrev_b32 v{TMP+1}, 2, v1
    v_add_u32 v{TMP+2}, s36, v{TMP}
    v_add_u32 v{TMP+3}, s36, v{TMP+1}
    v_add_u32 v{TMP+4}, s45, v{TMP}
    v_add_u32 v{TMP+5}, s45, v{TMP+1}
    s_cmp_lt_u32 s3, 4
    s_cbranch_scc1 k2_tailB
    """)
    a(f"""
    s_nop 9
    ds_write_b128 v{TMP+2}, {vr(O[0],4)}
    ds_write_b128 v{TMP+2}, {vr(O[0]+4,4)} offset:1024
    ds_write_b32 v{TMP+3}, v{O[0]+8} offset:2048
    s_nop 7
    """)
    for i in range(9): a(f"v_mov_b32 v{O[0]+i}, v{O[1]+i}")
    a("""
    s_add_u32 s31, s31, 1
    s_branch k2_tail2
    """)
    a.label("k2_tailB")
    a(f"""
    s_nop 15
    s_nop 3
    ds_write_b128 v{TMP+2}, {vr(O[1],4)}
    ds_write_b128 v{TMP+2}, {vr(O[1]+4,4)} offset:1024
    ds_write_b32 v{TMP+3}, v{O[1]+8} offset:2048
    """)
    a.label("k2_tail2")
    a(f"""
    s_waitcnt lgkmcnt(0)
    {"" if "soloA" in VAR else "s_barrier"}
    ds_read_b128 {vr(S[0],4)}, v{TMP+4}
    ds_read_b128 {vr(S[0]+4,4)}, v{TMP+4} offset:1024
    ds_read_b32 v{S[0]+8}, v{TMP+5} offset:2048
    s_lshl_b32 s36, s31, 5
    s_add_u32 s36, s36, s29
    s_lshl_b32 s36, s36, 10
    s_add_u32 s36, s36, {OFF_O}
    s_waitcnt lgkmcnt(0)
    """)
    for i in range(9): a(f"v_add_f32 v{O[0]+i}, v{O[0]+i}, v{S[0]+i}")
    a(f"""
    v_mov_b32 v{TMP+1}, v{O[0]+8}
    v_mov_b32 v{TMP+2}, v{O[0]+8}
    s_nop 1
    v_permlane32_swap_b32 v{TMP+1}, v{TMP+2}
    s_nop 1
    v_rcp_f32 v{TMP+1}, v{TMP+1}
    s_nop 0
    """)
    for i in range(8): a(f"v_mul_f32 v{O[0]+i}, v{O[0]+i}, v{TMP+1}")
    for i in range(4): a(f"v_cvt_pk_bf16_f32 v{TMP+4+i}, v{O[0]+2*i}, v{O[0]+2*i+1}")
    a.sc_srd="s[20:23]"
    a(f"buffer_store_dwordx4 {vr(TMP+4,4)}, v{TMP}, s[20:23], s36 offen")
    if asm.F23:
        a("""
        s_waitcnt vmcnt(0)
        s_barrier
        """)
        stamp(a,8)
        a(f"""
        s_cmp_eq_u32 s3, 0
        s_cbranch_scc0 ph3_start
        s_lshl_b32 s36, s30, 5
        s_add_u32 s36, s36, s29
        s_lshl_b32 s36, s36, 2
        s_add_u32 s36, s36, {OFF_F2}
        """)
        flag_store(a,36,TMP)
        a("s_branch ph3_start")
    else:
        if asm.STAMP:
            a("s_waitcnt vmcnt(0)"); stamp(a,8); stamp_dump(a,1)
        a("s_endpgm")
    def act_tab(): a("s_call_b64 s[60:61], k2_tab")
    def act_arriveB():
        dma_arrive(a, 24 if TABIT<ARRIT or (TABIT==ARRIT) else 0)
    def act_b2():
        stamp(a,3); a("s_call_b64 s[60:61], k2_b2"); stamp(a,4)
    def act_pub(): a("s_call_b64 s[60:61], k2_pub")
    def act_prio0(): a("s_setprio 0")
    hooksB=[(TABIT,act_tab),(ARRIT,act_arriveB),(3,lambda: dma_wait(a,"hb")),(B2IT,act_b2)]
    if asm.F23: hooksB.append((PUBIT,act_pub))
    hooksB.append((XB,act_prio0))
    hooksA=[(ARRIT,lambda: dma_arrive(a)),(3,lambda: dma_wait(a,"ha"))]
    def emit(role,hooks):
        its=sorted(set(h[0] for h in hooks))
        for n,it in enumerate(its):
            nxt=its[n+1] if n+1<len(its) else 99
            a(f"s_cmp_eq_u32 s40, {it}")
            a(f"s_cbranch_scc0 k2_hk{role}_{n+1}")
            for (i2,f) in hooks:
                if i2==it: f()
            a(f"s_mov_b32 s40, {nxt}")
            a("s_branch k2_hookret")
            a.label(f"k2_hk{role}_{n+1}")
        a("s_branch k2_hookret")
        return its[0]
    a.label("k2_hook")
    a("""
    s_cmp_lt_u32 s3, 4
    s_cbranch_scc0 k2_hookA
    """)
    emit("B",hooksB)
    a.label("k2_hookA")
    emit("A",hooksA)
    a.label("k2_fallback")
    a("""
    s_cmp_lt_u32 s3, 4
    s_cbranch_scc0 k2_fbA
    """)
    dma_arrive(a)
    dma_wait(a,"fbb")
    a("""
    s_call_b64 s[60:61], k2_tab
    s_call_b64 s[60:61], k2_b2
    """)
    if asm.F23: a("s_call_b64 s[60:61], k2_pub")
    a("""
    s_branch k2_fb_pre
    """)
    a.label("k2_fbA")
    dma_arrive(a)
    dma_wait(a,"fb")
    a.label("k2_fb_pre")
    a(f"""
    v_mov_b32 v{TMP+1}, 0xff800000
    v_mov_b32 v{TMP+2}, 0xff800000
    v_and_b32 v{TMP+3}, 31, v1
    v_lshrrev_b32 v{TMP+4}, 5, v1
    v_mul_u32_u24 v{TMP+4}, 1056, v{TMP+4}
    v_lshl_add_u32 v{TMP+3}, v{TMP+3}, 4, v{TMP+4}
    s_mov_b32 s42, 64
    """)
    a.label("k2_fb_max")
    a(f"""
    ds_read_b128 {vr(F[0][0],4)}, v{TMP+3}
    v_add_u32 v{TMP+3}, {KV_TILE}, v{TMP+3}
    s_waitcnt lgkmcnt(0)
    v_mfma_f32_32x32x16_bf16 {vr(S[0],16)}, {vr(F[0][0],4)}, {vr(Q[0],4)}, 0
    v_mfma_f32_32x32x16_bf16 {vr(CI[0],16)}, {vr(F[0][0],4)}, {vr(Q[1],4)}, 0
    s_nop 15
    """)
    for i in range(0,16,2): a(f"v_max3_f32 v{TMP+1}, v{S[0]+i}, v{S[0]+i+1}, v{TMP+1}")
    for i in range(0,16,2): a(f"v_max3_f32 v{TMP+2}, v{CI[0]+i}, v{CI[0]+i+1}, v{TMP+2}")
    a(f"""
    s_sub_u32 s42, s42, 1
    s_cmp_lg_u32 s42, 0
    s_cbranch_scc1 k2_fb_max
    v_mov_b32 v{TMP+3}, v{TMP+1}
    v_mov_b32 v{TMP+4}, v{TMP+2}
    s_nop 1
    v_permlane32_swap_b32 v{TMP+1}, v{TMP+3}
    v_permlane32_swap_b32 v{TMP+2}, v{TMP+4}
    s_nop 1
    v_max_f32 v{TMP+1}, v{TMP+1}, v{TMP+3}
    v_max_f32 v{TMP+2}, v{TMP+2}, v{TMP+4}
    """)
    for qq in range(2):
        for i in range(16): a(f"v_sub_f32 v{CI[qq]+i}, 0, v{TMP+1+qq}")
    a("s_nop 1")
    pipe_prologue(a,True)
    attn_loop(a,True)
    a("s_branch k2_tail")
    a.label("k2_tab")
    a.sc_srd=P1
    a(f"""
    v_lshlrev_b32 v{TMP}, 4, v1
    v_lshrrev_b32 v{TMP+3}, 4, v1
    s_lshl_b32 s32, s3, 3
    v_add_u32 v{TMP+4}, s32, v{TMP+3}        ; n2 (e=0)
    v_and_b32 v{TMP+5}, 15, v{TMP+4}
    v_and_b32 v{TMP+6}, 15, v1
    v_xor_b32 v{TMP+5}, v{TMP+5}, v{TMP+6}
    v_lshlrev_b32 v{TMP+5}, 4, v{TMP+5}
    v_lshl_add_u32 v{TMP+5}, v{TMP+4}, 8, v{TMP+5}
    v_xor_b32 v{TMP+6}, 64, v{TMP+5}
    v_add_u32 v{TMP+6}, 1024, v{TMP+6}
    s_lshl_b32 s32, s28, 13
    s_add_u32 s32, s32, {OFF_Z}
    s_lshl_b32 s33, s3, 11
    s_add_u32 m0, s33, {K2_COL}
    s_nop 0
    buffer_load_dwordx4 v{TMP+5}, s[20:23], s32 offen lds
    s_add_u32 m0, s33, {K2_COL+1024}
    s_nop 0
    buffer_load_dwordx4 v{TMP+6}, s[20:23], s32 offen lds
    """)
    a(f"s_lshl_b32 s36, s3, 13")
    a(f"s_add_u32 s36, s36, {OFF_T64}")
    for k in range(8):
        a(f"buffer_load_dwordx4 {vr(T64+4*k,4)}, v{TMP}, s[20:23], s36 offen offset:{(k%4)*1024}")
        if k==3: a("s_add_u32 s36, s36, 4096")
    a(f"s_lshl_b32 s36, s3, 12")
    a(f"s_add_u32 s36, s36, {OFF_TW}")
    for k in range(4):
        a(f"buffer_load_dwordx4 {vr(TW+4*k,4)}, v{TMP}, s[20:23], s36 offen offset:{k*1024}")
    a(f"s_mov_b32 s36, {OFF_A32}")
    for k in range(8):
        a(f"buffer_load_dwordx4 {vr(A32+4*k,4)}, v{TMP}, s[20:23], s36 offen offset:{(k%4)*1024}")
        if k==3: a("s_add_u32 s36, s36, 4096")
    a(f"""
    s_lshl_b32 s36, s28, 13
    s_lshl_b32 s37, s3, 11
    s_add_u32 s36, s36, s37
    s_add_u32 s36, s36, {OFF_WT}
    buffer_load_dwordx4 {vr(WT,4)}, v{TMP}, s[20:23], s36 offen
    buffer_load_dwordx4 {vr(WT+4,4)}, v{TMP}, s[20:23], s36 offen offset:1024
    s_setpc_b64 s[60:61]
    """)
    a.label("k2_b2")
    a.sc_srd=P1
    a.p1=P1
    b2_part1(a)
    b2_part2(a)
    if asm.F23:
        a.label("k2_pub")
        if not asm.F12: get_tag(a,"b")
        a.sc_srd="s[20:23]"
        a("s_waitcnt vmcnt(0)")
        bbar(a,"pub")
        a(f"""
        s_cmp_eq_u32 s3, 0
        s_cbranch_scc0 k2_pub1
        s_lshl_b32 s36, s28, 2
        s_add_u32 s36, s36, {OFF_F2B}
        """)
        flag_store(a,36,TMP)
        a.label("k2_pub1")
        a.sc_srd=P1
        a(f"""
        s_lshr_b32 s36, s19, 2                   ; ct
        s_lshl_b32 s36, s36, 16
        s_lshl_b32 s37, s3, 13
        s_add_u32 s36, s36, s37
        s_add_u32 s36, s36, {OFF_WOF}
        v_lshlrev_b32 v{TMP}, 4, v1
        """)
        for hh in range(8):
            a(f"s_add_u32 s37, s36, {hh*1024}")
            a(f"buffer_load_dwordx4 {vr(WOR+8*hh,4)}, v{TMP}, s[20:23], s37 offen")
            a(f"s_add_u32 s37, s37, 32768")
            a(f"buffer_load_dwordx4 {vr(WOR+8*hh+4,4)}, v{TMP}, s[20:23], s37 offen")
        a("s_setpc_b64 s[60:61]")
    a.sc_srd=None
    if own:
        a.label("k2_end")
        a("s_endpgm")
    return a
```

```python
import struct
def f2u(x): return struct.unpack("<I",struct.pack("<f",x))[0]
FUSED=False
F12=False
F23=False
class Asm:
    def __init__(self):
        self.lines=[]
        self.sc_srd=None
    def __call__(self, s):
        for l in s.strip("\n").split("\n"):
            l=l.strip()
            if not l: continue
            if (FUSED or getattr(self,'force_sc',False)) and self.sc_srd and l.startswith("buffer_") and self.sc_srd in l:
                code,_,cm=l.partition(";")
                code=code.rstrip()
                sfx=getattr(self,'sc_sfx'," sc1")
                if code.endswith(" lds"): code=code[:-4]+sfx+" lds"
                else: code+=sfx
                l=code
            self.lines.append("    "+l)
    def label(self,name): self.lines.append(name+":")
    def comment(self,s): self.lines.append("    ; "+s)
    def raw(self,s): self.lines.append(s)
    def text(self): return "\n".join(self.lines)+"\n"
def vr(b,n=1): return f"v{b}" if n==1 else f"v[{b}:{b+n-1}]"
def sr(b,n=1): return f"s{b}" if n==1 else f"s[{b}:{b+n-1}]"

STAMP=False
OFF_DBG=0x0F00000
SMAP=None
def stamp(a,k,real=False):
    if not STAMP: return
    if SMAP is not None:
        if k not in SMAP: return
        k=SMAP[k]
    a(f"s_waitcnt lgkmcnt(0)")
    if STAMP==3:
        if k>=8: k=7
        a(f"s_memrealtime s[{70+2*k}:{71+2*k}]")
        a(f"s_memtime s[{86+2*k}:{87+2*k}]")
    else:
        a(f"{'s_memtime' if STAMP==2 else 's_memrealtime'} s[{70+2*k}:{71+2*k}]")
    a(f"s_waitcnt lgkmcnt(0)")
_dumpn=[0]
def stamp_dump(a,kid,wsreg=16):
    if not STAMP: return
    if STAMP==4:
        _dumpn[0]+=1; n=_dumpn[0]
        a("s_mov_b64 exec, -1")
        a("s_or_b32 s68, s2, s3")
        a("s_cmp_eq_u32 s68, 0")
        a(f"s_cbranch_scc0 dbgdump_skip{n}")
        a("v_mov_b32 v200, 0")
        for k in range(1,14):
            a(f"s_sub_u32 s68, s{70+2*k}, s70")
            a(f"v_mov_b32 v201, s68")
            a(f"global_store_dword v200, v201, s[54:55] offset:{4*k}")
            a("s_nop 1")
        a("s_waitcnt vmcnt(0)")
        a.label(f"dbgdump_skip{n}")
        return
    a("s_mov_b64 exec, -1")
    a("s_lshl_b32 s68, s2, 3")
    a("s_add_u32 s68, s68, s3")
    a("s_lshl_b32 s68, s68, 7")
    a(f"s_add_u32 s68, s68, {OFF_DBG+kid*0x40000}")
    a(f"s_add_u32 s64, s{wsreg}, s68")
    a(f"s_addc_u32 s65, s{wsreg+1}, 0")
    a("v_mov_b32 v200, 0")
    for k in range(32):
        a(f"v_mov_b32 v201, s{70+k}")
        a(f"global_store_dword v200, v201, s[64:65] offset:{4*k}")
        a("s_nop 1")
    a("s_waitcnt vmcnt(0)")

_pf=[0]
def code_prefetch(a, target, end, nblk, voff, vdst, back=False):
    _pf[0]+=1; n=_pf[0]
    a("s_getpc_b64 s[62:63]")
    a.label(f"pf_here{n}")
    if not back:
        a(f"s_add_u32 s62, s62, {target}-pf_here{n}")
        a("s_addc_u32 s63, s63, 0")
    else:
        a(f"s_sub_u32 s62, s62, pf_here{n}-{target}")
        a("s_subb_u32 s63, s63, 0")
    a(f"v_lshlrev_b32 v{voff}, 7, v1")
    a(f"s_mov_b32 s64, {end}-{target}-4")
    for k in range(nblk):
        a(f"v_min_u32 v{voff+1}, s64, v{voff}")
        a(f"global_load_dword v{vdst}, v{voff+1}, s[62:63]")
        if k+1<nblk: a(f"v_add_u32 v{voff}, 8192, v{voff}")
```

```python
import asm
from asm import *
from layout import *
from k1 import srd, twiddle
import os
VAR=set(os.environ.get("VAR","").split(","))
def opt(name,default):
    for v in VAR:
        if v.startswith(name+"="): return int(v.split("=")[1])
    return default
K2_COL=135168
K2_E=K2_COL+8192
K2_LDS=163840
K2_CNT=163840-64
THRESH2=4096.0/1.03
NB=opt("NB",30)
NA=64-NB
ARRIT=opt("ARRIT",2)
TABIT=opt("TABIT",2)
B2IT=opt("B2IT",4)
PUBIT=opt("PUBIT",6)
XB=opt("XB",12)

VK,VV,VIDX=2,3,4
Q=[8,12]; S=[16,32]; O=[48,64]
F=[(80,84,88),(92,96,100)]
TMP=104
T64,A32,TW,WT,BUF,D1,P=112,144,176,192,200,232,248
X2=200
CI=[112,128]
VM,VQd=108,109
WOR=144

def expo(a,r): a(f"v_exp_f32 v{r}, v{r}")

def unit(a,tp,qt,fb):
    Sc,Sn=S[qt],S[1-qt]
    def pv(Ob,V,B): a(f"v_smfmac_f32_32x32x32_bf16 {vr(Ob,16)}, {vr(V,4)}, {vr(B,8)}, v{VIDX}")
    def qk(Sd,K,qq): a(f"v_mfma_f32_32x32x16_bf16 {vr(Sd,16)}, {vr(K,4)}, {vr(Q[qq],4)}, {vr(CI[qq],16) if fb else '0'}")
    if qt==0:
        Kc,V0c,V1c=F[tp]; Kn,V0n,V1n=F[1-tp]
        expo(a,Sc); expo(a,Sc+1)
        pv(O[1],V1n,Sn+8)
        a(f"ds_read_b128 {vr(Kn,4)}, v{VK} offset:{(tp+1)*KV_TILE}")
        expo(a,Sc+2)
        a(f"ds_read_b128 {vr(V0n,4)}, v{VV} offset:{(tp+1)*KV_TILE+512}")
        expo(a,Sc+3)
        a(f"ds_read_b128 {vr(V1n,4)}, v{VV} offset:{(tp+1)*KV_TILE+784}")
        expo(a,Sc+4); expo(a,Sc+5)
        qk(Sn,Kc,1)
        for i in range(6,12): expo(a,Sc+i)
        pv(O[0],V0c,Sc)
        for i in range(12,16): expo(a,Sc+i)
    else:
        Kc,V0c,V1c=F[tp]; Kn,V0n,V1n=F[1-tp]
        expo(a,Sc); expo(a,Sc+1)
        pv(O[0],V1c,Sn+8)
        for i in range(2,6): expo(a,Sc+i)
        a("s_waitcnt lgkmcnt(0)")
        qk(Sn,Kn,0)
        for i in range(6,12): expo(a,Sc+i)
        pv(O[1],V0c,Sc)
        for i in range(12,16): expo(a,Sc+i)

def bbar(a,tag,cnt=0):
    a(f"""
    v_mov_b32 v111, {K2_CNT+cnt}
    v_mov_b32 v110, 1
    s_waitcnt lgkmcnt(0)
    s_mov_b64 exec, 1
    ds_add_u32 v111, v110
    s_mov_b64 exec, -1
    s_add_u32 s47, s47, 4
    """)
    a.label(f"k2_bbar_{tag}")
    a(f"""
    ds_read_b32 v109, v111
    s_waitcnt lgkmcnt(0)
    v_readfirstlane_b32 s48, v109
    s_nop 0
    s_cmp_lt_u32 s48, s47
    s_cbranch_scc1 k2_bbar_{tag}
    """)

def dma_arrive(a,younger=0):
    a(f"""
    s_waitcnt vmcnt({younger})
    v_mov_b32 v{TMP}, {K2_CNT+4}
    v_mov_b32 v{TMP+1}, 1
    s_mov_b64 exec, 1
    ds_add_u32 v{TMP}, v{TMP+1}
    s_mov_b64 exec, -1
    """)
def dma_wait(a,tag):
    a(f"v_mov_b32 v{TMP}, {K2_CNT+4}")
    a.label(f"k2_dwait_{tag}")
    a(f"""
    ds_read_b32 v{TMP+1}, v{TMP}
    s_waitcnt lgkmcnt(0)
    v_readfirstlane_b32 s48, v{TMP+1}
    s_nop 0
    s_cmp_lt_u32 s48, 8
    s_cbranch_scc1 k2_dwait_{tag}
    """)

def kv_dma(a, ns):
    for n in ns:
        a(f"s_add_u32 m0, s34, {n*1024}")
        a(f"s_add_u32 s36, s35, {n*1024}")
        a(f"buffer_load_dwordx4 v{TMP}, s[20:23], s36 offen lds")

def b2_part1(a):
    a("s_waitcnt vmcnt(0)")
    bbar(a,"col")
    a(f"""
    v_and_b32 v{VM}, 15, v1
    v_lshrrev_b32 v{VQd}, 4, v1
    v_xor_b32 v104, v{VM}, v{VQd}
    v_lshlrev_b32 v104, 4, v104
    v_lshl_add_u32 v104, v{VM}, 8, v104
    v_add_u32 v104, {K2_COL}, v104
    v_xor_b32 v105, 64, v104
    v_xor_b32 v106, 128, v104
    v_xor_b32 v107, 192, v104
    """)
    for u in range(4):
        for t in range(2):
            a(f"ds_read_b128 {vr(BUF+16*t+4*u,4)}, v{104+u} offset:{t*4096}")
    for u in range(4):
        a(f"s_waitcnt lgkmcnt({6-2*u})")
        for t in range(2):
            for part in range(2):
                d=D1+8*t+4*part
                a(f"v_mfma_f32_16x16x32_bf16 {vr(d,4)}, {vr(BUF+16*t+4*u,4)}, {vr(T64+8*u+4*part,4)}, {'0' if u==0 else vr(d,4)}")
    a("""
    s_cmp_eq_u32 s28, 0
    s_cbranch_scc0 k2_p1_noab
    """)
    a(f"v_lshlrev_b32 v110, 4, v1")
    a(f"s_lshl_b32 s36, s3, 12")
    a(f"s_add_u32 s36, s36, {OFF_AB}")
    for ep in range(4):
        a(f"buffer_load_dwordx4 {vr(216+4*ep,4)}, v110, s[20:23], s36 offen offset:{ep*1024}")
    a.label("k2_p1_noab")
    a("s_nop 6")
    for t in range(2):
        twiddle(a, D1+8*t, D1+8*t+4, TW+4*t, TW+8+4*t, P+4*t, 104)
    a("s_nop 1")
    for t in range(2):
        for tp in range(2):
            for part in range(2):
                d=X2+8*tp+4*part
                a(f"v_mfma_f32_16x16x32_bf16 {vr(d,4)}, {vr(A32+((tp*2+part)*2+t)*4,4)}, {vr(P+4*t,4)}, {'0' if t==0 else vr(d,4)}")

def b2_part2(a):
    a("s_waitcnt vmcnt(0)")
    a("""
    s_cmp_eq_u32 s28, 0
    s_cbranch_scc1 k2_p2_special
    """)
    for tp in range(2):
        xr,xi=X2+8*tp,X2+8*tp+4
        wr,wi=D1+8*tp,D1+8*tp+4
        for i in range(4):
            a(f"v_lshlrev_b32 v{wr+i}, 16, v{WT+4*tp+i}")
            a(f"v_and_b32 v{wi+i}, 0xffff0000, v{WT+4*tp+i}")
        for p in (0,2):
            a(f"v_pk_mul_f32 {vr(104+p,2)}, {vr(xr+p,2)}, {vr(wr+p,2)}")
            a(f"v_pk_mul_f32 {vr(108+p,2)}, {vr(xr+p,2)}, {vr(wi+p,2)}")
        for p in (0,2):
            a(f"v_pk_fma_f32 {vr(104+p,2)}, {vr(xi+p,2)}, {vr(wi+p,2)}, {vr(104+p,2)} neg_lo:[1,0,0] neg_hi:[1,0,0]")
            a(f"v_pk_fma_f32 {vr(108+p,2)}, {vr(xi+p,2)}, {vr(wr+p,2)}, {vr(108+p,2)}")
        for i in range(4): a(f"v_cvt_pk_bf16_f32 v{P+4*tp+i}, v{104+i}, -v{108+i}")
    a.label("k2_p2_common")
    a("s_nop 1")
    for tp in range(2):
        for t in range(2):
            for part in range(2):
                d=D1+8*t+4*part
                a(f"v_mfma_f32_16x16x32_bf16 {vr(d,4)}, {vr(A32+((t*2+part)*2+tp)*4,4)}, {vr(P+4*tp,4)}, {'0' if tp==0 else vr(d,4)}")
    t0=X2
    a(f"""
    v_and_b32 v{t0}, 15, v1                 ; m
    v_lshrrev_b32 v{t0+1}, 4, v1            ; q
    v_lshrrev_b32 v{t0+2}, 2, v{t0}         ; m>>2
    s_lshl_b32 s36, s3, 2
    v_add_u32 v{t0+2}, s36, v{t0+2}         ; 4w + (m>>2)
    v_lshlrev_b32 v{t0+3}, 2, v{t0+1}       ; 4q
    v_xor_b32 v{t0+2}, v{t0+2}, v{t0+3}
    v_lshlrev_b32 v{t0+2}, 4, v{t0+2}
    v_lshl_add_u32 v{t0+2}, v{t0+3}, 8, v{t0+2}
    v_and_b32 v{t0+4}, 3, v{t0}
    v_lshl_add_u32 v{t0+2}, v{t0+4}, 2, v{t0+2}
    v_add_u32 v{t0+8}, {K2_E}, v{t0+2}
    v_xor_b32 v{t0+9}, 16, v{t0+8}
    v_xor_b32 v{t0+10}, 32, v{t0+8}
    v_xor_b32 v{t0+11}, 48, v{t0+8}
    """)
    for t in range(2):
        twiddle(a, D1+8*t, D1+8*t+4, TW+4*t, TW+8+4*t, P+4*t, 104)
    for t in range(2):
        for i in range(4):
            a(f"ds_write_b32 v{t0+8+i}, v{P+4*t+i} offset:{t*4096+i*256}")
    bbar(a,"e")
    a(f"""
    v_and_b32 v{VM}, 15, v1
    v_lshrrev_b32 v{VQd}, 4, v1
    v_xor_b32 v104, v{VM}, v{VQd}
    v_lshlrev_b32 v104, 4, v104
    v_lshl_add_u32 v104, v{VM}, 8, v104
    v_add_u32 v104, {K2_E}, v104
    v_xor_b32 v105, 64, v104
    v_xor_b32 v106, 128, v104
    v_xor_b32 v107, 192, v104
    """)
    for u in range(4):
        for t in range(2):
            a(f"ds_read_b128 {vr(BUF+16*t+4*u,4)}, v{104+u} offset:{t*4096}")
    a(f"""
    v_lshlrev_b32 v110, 8, v{VM}
    v_lshl_add_u32 v110, v{VQd}, 4, v110
    s_lshl_b32 s36, s28, 13
    s_lshl_b32 s37, s3, 6
    s_add_u32 s36, s36, s37
    s_add_u32 s36, s36, {OFF_Y}
    """)
    for u in range(4):
        a(f"s_waitcnt lgkmcnt({6-2*u})")
        for t in range(2):
            for part in range(2):
                d=D1+8*t+4*part
                a(f"v_mfma_f32_16x16x32_bf16 {vr(d,4)}, {vr(T64+8*u+4*part,4)}, {vr(BUF+16*t+4*u,4)}, {'0' if u==0 else vr(d,4)}")
    a("s_nop 7")
    for t in range(2):
        for i in range(4): a(f"v_cvt_pk_bf16_f32 v{P+4*t+i}, v{D1+8*t+i}, -v{D1+8*t+4+i}")
        a.sc_srd="s[20:23]"
        a(f"buffer_store_dwordx4 {vr(P+4*t,4)}, v110, s[20:23], s36 offen")
        a.sc_srd=a.p1
        if t==0: a("s_add_u32 s36, s36, 4096")
    a("s_setpc_b64 s[60:61]")
    a.label("k2_p2_special")
    bbar(a,"s0")
    XCH=K2_COL
    a(f"""
    v_and_b32 v104, 15, v1
    v_lshrrev_b32 v105, 4, v1
    s_lshl_b32 s36, s3, 4
    v_add_u32 v104, s36, v104                 ; k1
    v_lshl_add_u32 v104, v105, 8, v104         ; g0 = k1 + 64*4q
    v_lshlrev_b32 v106, 3, v104
    v_add_u32 v106, {XCH}, v106
    """)
    for tp in range(2):
        for i in range(4):
            off=(i*64+tp*1024)*8
            a(f"ds_write_b32 v106, v{X2+8*tp+i} offset:{off}")
            a(f"ds_write_b32 v106, v{X2+8*tp+4+i} offset:{off+4}")
    bbar(a,"s1")
    for tp in range(2):
        for i in range(4):
            e=4*tp+i
            a(f"v_sub_u32 v107, {2048-(i*64+tp*1024)}, v104")
            a(f"v_and_b32 v107, 2047, v107")
            a(f"v_lshlrev_b32 v107, 3, v107")
            a(f"v_add_u32 v107, {XCH}, v107")
            a(f"ds_read_b64 {vr(D1+2*e,2)}, v107")
    bbar(a,"s2")
    for tp in range(2):
        for i in range(4):
            e=4*tp+i
            src=216+2*e
            ab=WT
            a(f"v_lshlrev_b32 v{ab}, 16, v{src}")
            a(f"v_and_b32 v{ab+1}, 0xffff0000, v{src}")
            a(f"v_lshlrev_b32 v{ab+2}, 16, v{src+1}")
            a(f"v_and_b32 v{ab+3}, 0xffff0000, v{src+1}")
            zr,zi=X2+8*tp+i,X2+8*tp+4+i
            pr,pi=D1+2*e,D1+2*e+1
            a(f"v_mul_f32 v104, v{zr}, v{ab}")
            a(f"v_mul_f32 v105, v{zr}, v{ab+1}")
            a(f"v_fma_f32 v104, -v{zi}, v{ab+1}, v104")
            a(f"v_fma_f32 v105, v{zi}, v{ab}, v105")
            a(f"v_fma_f32 v104, v{pr}, v{ab+2}, v104")
            a(f"v_fma_f32 v105, v{pr}, v{ab+3}, v105")
            a(f"v_fma_f32 v104, v{pi}, v{ab+3}, v104")
            a(f"v_fma_f32 v105, -v{pi}, v{ab+2}, v105")
            a(f"v_cvt_pk_bf16_f32 v{P+e}, v104, -v105")
    a("s_branch k2_p2_common")


def rounds():
    nA0=NB*KV_TILE//1024
    st1=[0,nA0,8,nA0+8]
    rest=[]
    n=16
    while n<nA0:
        rest.append(min(n,nA0-8) if n+8>nA0 else n); n+=8
    n=nA0+16
    while n<132:
        rest.append(min(n,124)); n+=8
    lo=[r for r in rest if r<nA0]; hi=[r for r in rest if r>=nA0]
    out=[]
    while lo or hi:
        if lo: out.append(lo.pop(0))
        if hi: out.append(hi.pop(0))
    return st1,out

def attn_loop(a,fb):
    sfx="_fb" if fb else ""
    a.label("k2_loop"+sfx)
    if not fb:
        a("""
        s_cmp_eq_u32 s42, s40
        s_cbranch_scc1 k2_hook
        """)
        a.label("k2_hookret")
    unit(a,0,0,fb); unit(a,0,1,fb); unit(a,1,0,fb); unit(a,1,1,fb)
    a(f"""
    v_add_u32 v{VK}, {2*KV_TILE}, v{VK}
    v_add_u32 v{VV}, {2*KV_TILE}, v{VV}
    s_add_u32 s42, s42, 1
    s_cmp_lt_u32 s42, s43
    s_cbranch_scc1 k2_loop{sfx}
    """)

def pipe_prologue(a,fb):
    K,V0,V1=F[0]
    a(f"""
    ds_read_b128 {vr(K,4)}, v{VK}
    ds_read_b128 {vr(V0,4)}, v{VV} offset:512
    ds_read_b128 {vr(V1,4)}, v{VV} offset:784
    s_waitcnt lgkmcnt(2)
    v_mfma_f32_32x32x16_bf16 {vr(S[0],16)}, {vr(K,4)}, {vr(Q[0],4)}, {vr(CI[0],16) if fb else '0'}
    s_mov_b32 s42, 0
    s_waitcnt lgkmcnt(0)
    s_nop 11
    """)

def poll(a,tag,nloads,addr_regs,srdreg="s[20:23]",soff="0"):
    a(f"s_mov_b32 s49, 0x20000")
    a.label(f"poll_{tag}")
    for k in range(nloads):
        a(f"buffer_load_dword v{addr_regs[k][1]}, v{addr_regs[k][0]}, {srdreg}, {soff} offen")
    a("s_waitcnt vmcnt(0)")
    for k in range(nloads):
        a(f"v_cmp_eq_u32 {'vcc' if k==0 else 's[50:51]'}, s56, v{addr_regs[k][1]}")
        if k>0:
            a("s_nop 1"); a("s_and_b64 vcc, vcc, s[50:51]")
    a(f"""
    s_nop 1
    s_cmp_eq_u64 vcc, -1
    s_cbranch_scc1 poll_{tag}_done
    s_sub_u32 s49, s49, 1
    s_cmp_eq_u32 s49, 0
    s_cbranch_scc1 poll_{tag}_done
    s_sleep 1
    s_branch poll_{tag}
    """)
    a.label(f"poll_{tag}_done")

def get_tag(a,tagname):
    a(f"""
    v_mov_b32 v{TMP}, 0
    s_mov_b32 s49, 0x20000
    """)
    a.label(f"kf_tag_{tagname}")
    a(f"""
    global_load_dword v{TMP+1}, v{TMP}, s[54:55] sc1
    s_waitcnt vmcnt(0)
    v_readfirstlane_b32 s56, v{TMP+1}
    s_sub_u32 s49, s49, 1
    s_cmp_eq_u32 s49, 0
    s_cbranch_scc1 kf_tag_{tagname}_done
    s_cmp_eq_u32 s56, 0
    s_cbranch_scc0 kf_tag_{tagname}_done
    s_sleep 1
    s_branch kf_tag_{tagname}
    """)
    a.label(f"kf_tag_{tagname}_done")

def flag_store(a, soff_expr_reg, vtmp):
    a(f"""
    v_mov_b32 v{vtmp}, 0
    v_mov_b32 v{vtmp+1}, s56
    s_mov_b64 exec, 1
    buffer_store_dword v{vtmp+1}, v{vtmp}, s[20:23], s{soff_expr_reg} offen
    s_mov_b64 exec, -1
    """)

def build_k2(a=None):
    own = a is None
    if own: a=Asm()
    P1="s[20:23]" if asm.F12 else None
    a.sc_srd=P1
    st1,rest=rounds()
    R=len(rest)
    if not asm.F12:
        a(f"""
        s_cmp_ge_u32 s2, 256
        s_cbranch_scc1 k2_end
        s_load_dwordx2 s[16:17], s[0:1], 64      ; ws
        {"s_load_dwordx4 s[52:55], s[0:1], 48      ; out, debug" if asm.F23 else ""}
        v_and_b32 v1, 63, v0
        v_lshrrev_b32 v{TMP}, 6, v0
        s_nop 0
        v_readfirstlane_b32 s3, v{TMP}
        """)
        if asm.F23:
            a("""
            s_or_b32 s57, s2, s3
            s_cmp_eq_u32 s57, 0
            s_cbranch_scc0 kf_nononce
            s_memrealtime s[56:57]
            s_waitcnt lgkmcnt(0)
            s_or_b32 s56, s56, 1
            v_mov_b32 v2, 0
            v_mov_b32 v3, s56
            s_mov_b64 exec, 1
            global_store_dword v2, v3, s[54:55] sc1
            s_mov_b64 exec, -1
            """)
            a.label("kf_nononce")
    stamp(a,0)
    a(f"""
    s_and_b32 s18, s2, 7
    s_lshr_b32 s19, s2, 3
    s_lshl_b32 s29, s18, 2
    s_and_b32 s30, s19, 3
    s_add_u32 s29, s29, s30                  ; hd
    s_lshr_b32 s30, s19, 2                   ; qb
    s_lshl_b32 s28, s18, 5
    s_add_u32 s28, s28, s19                  ; f
    v_lshlrev_b32 v{TMP}, 4, v1              ; lane*16
    s_and_b32 s33, s3, 3                     ; qg
    s_lshl_b32 s31, s30, 3
    s_lshl_b32 s33, s33, 1
    s_add_u32 s31, s31, s33
    s_waitcnt lgkmcnt(0)
    """)
    srd(a,20,16,WS_SIZE)
    if asm.F12:
        a(f"""
        s_cmp_eq_u32 s3, 0
        s_cbranch_scc0 k2_nopoll
        s_lshr_b32 s32, s29, 3                   ; hd>>3
        v_and_b32 v{TMP+1}, 15, v1
        v_lshrrev_b32 v{TMP+2}, 4, v1            ; group 0:K 1:V 2,3:Q
        v_and_b32 v{TMP+3}, 1, v1
        s_lshl_b32 s33, s30, 1
        v_add_u32 v{TMP+3}, s33, v{TMP+3}
        v_cmp_gt_u32 vcc, 2, v{TMP+2}
        v_mov_b32 v{TMP+4}, 4
        v_mov_b32 v{TMP+5}, 8
        v_cndmask_b32 v{TMP+1}, v{TMP+3}, v{TMP+1}, vcc   ; rb
        v_cmp_eq_u32 vcc, 0, v{TMP+2}
        v_mov_b32 v{TMP+6}, 0
        s_nop 0
        v_cndmask_b32 v{TMP+6}, v{TMP+6}, v{TMP+4}, vcc
        v_cmp_eq_u32 vcc, 1, v{TMP+2}
        s_nop 1
        v_cndmask_b32 v{TMP+6}, v{TMP+6}, v{TMP+5}, vcc   ; type*4
        v_add_u32 v{TMP+6}, s32, v{TMP+6}        ; cb
        v_lshl_add_u32 v{TMP+1}, v{TMP+6}, 4, v{TMP+1}
        v_lshlrev_b32 v{TMP+1}, 2, v{TMP+1}
        v_add_u32 v{TMP+1}, {OFF_F1Q}, v{TMP+1}
        v_lshlrev_b32 v{TMP+2}, 2, v1
        v_add_u32 v{TMP+2}, {OFF_F1B}, v{TMP+2}
        """)
        poll(a,"p1",2,[(TMP+1,TMP+3),(TMP+2,TMP+4)])
        a.label("k2_nopoll")
        a("s_barrier")
        stamp(a,9)
    a(f"""
    s_lshl_b32 s32, s29, 16
    s_lshl_b32 s33, s31, 10
    s_add_u32 s32, s32, s33
    s_add_u32 s32, s32, {OFF_Q}
    buffer_load_dwordx4 {vr(Q[0],4)}, v{TMP}, s[20:23], s32 offen
    buffer_load_dwordx4 {vr(Q[1],4)}, v{TMP}, s[20:23], s32 offen offset:1024
    v_lshlrev_b32 v{TMP+1}, 2, v1
    s_lshl_b32 s32, s29, 8
    s_add_u32 s32, s32, {OFF_KN}
    buffer_load_dword v{TMP+2}, v{TMP+1}, s[20:23], s32 offen
    s_lshl_b32 s34, s3, 10                   ; wave*1024
    s_mul_i32 s35, s29, {KV_HEAD}
    s_add_u32 s35, s35, s34
    s_add_u32 s35, s35, {OFF_KV}
    """)
    kv_dma(a,st1)
    a("s_waitcnt vmcnt(4)")
    a.label("k2_loaded")
    for qq in range(2):
        acc=TMP+5+qq
        for k in range(4):
            a(f"v_lshlrev_b32 v{TMP+3}, 16, v{Q[qq]+k}")
            a(f"v_and_b32 v{TMP+4}, 0xffff0000, v{Q[qq]+k}")
            a(f"v_mul_f32 v{acc}, v{TMP+3}, v{TMP+3}" if k==0 else f"v_fmac_f32 v{acc}, v{TMP+3}, v{TMP+3}")
            a(f"v_fmac_f32 v{acc}, v{TMP+4}, v{TMP+4}")
    a(f"""
    s_nop 1
    v_permlane32_swap_b32 v{TMP+5}, v{TMP+6}
    s_nop 1
    v_add_f32 v{TMP+5}, v{TMP+5}, v{TMP+6}
    """)
    for sh in ("row_shr:1","row_shr:2","row_shr:4","row_shr:8"):
        a("s_nop 0")
        a(f"v_max_f32_dpp v{TMP+2}, v{TMP+2}, v{TMP+2} {sh} row_mask:0xf bank_mask:0xf bound_ctrl:0")
        a(f"v_max_f32_dpp v{TMP+5}, v{TMP+5}, v{TMP+5} {sh} row_mask:0xf bank_mask:0xf bound_ctrl:0")
    for sh in ("row_bcast:15 row_mask:0xa","row_bcast:31 row_mask:0xc"):
        a("s_nop 0")
        a(f"v_max_f32_dpp v{TMP+2}, v{TMP+2}, v{TMP+2} {sh} bank_mask:0xf")
        a(f"v_max_f32_dpp v{TMP+5}, v{TMP+5}, v{TMP+5} {sh} bank_mask:0xf")
    a(f"""
    s_nop 0
    v_mul_f32 v{TMP+2}, v{TMP+2}, v{TMP+5}
    s_nop 0
    v_readlane_b32 s38, v{TMP+2}, 63
    v_and_b32 v{TMP+3}, 31, v1
    v_lshrrev_b32 v{TMP+4}, 5, v1
    v_mul_u32_u24 v{TMP+4}, 1056, v{TMP+4}
    v_lshl_add_u32 v{VK}, v{TMP+3}, 4, v{TMP+4}
    s_cmp_lt_u32 s3, 4
    s_cselect_b32 s36, 0, {NB*KV_TILE}
    s_cselect_b32 s43, {NB//2}, {NA//2}       ; iterations
    s_cselect_b32 s40, {min(TABIT,ARRIT)}, {ARRIT}
    v_add_u32 v{VK}, s36, v{VK}
    v_cmp_gt_u32 vcc, 17, v{TMP+3}
    v_mov_b32 v{TMP+4}, 0x40000
    v_mov_b32 v{VIDX}, 0xdddd
    v_cndmask_b32 v{VV}, v{TMP+4}, v{VK}, vcc
    """)
    for qq in range(2):
        for i in range(16): a(f"v_mov_b32 v{O[qq]+i}, 0")
    for i in range(8): a(f"v_mov_b32 v{S[1]+8+i}, 0")
    for i in range(4): a(f"v_mov_b32 v{F[1][2]+i}, 0")
    if "nohook" in VAR:
        a("s_waitcnt vmcnt(0)"); a("s_mov_b32 s40, 99")
    a(f"""
    v_mov_b32 v{TMP+3}, {K2_CNT}
    v_mov_b32 v{TMP+4}, 0
    v_mov_b32 v{TMP+5}, 0
    v_mov_b32 v{TMP+6}, 0
    v_mov_b32 v{TMP+7}, 0
    s_mov_b32 s47, 0
    s_cmp_eq_u32 s3, 0
    s_cbranch_scc0 k2_noinit
    ds_write_b128 v{TMP+3}, {vr(TMP+4,4)}
    s_waitcnt lgkmcnt(0)
    """)
    a.label("k2_noinit")
    a("s_waitcnt vmcnt(0)")
    stamp(a,1)
    a("s_barrier")
    a(f"v_lshlrev_b32 v{TMP}, 4, v1")
    kv_dma(a,rest)
    PF = "nopf" not in VAR and asm.F23
    if PF:
        a("s_cmp_eq_u32 s3, 7")
        a("s_cbranch_scc0 k2_nopf")
        code_prefetch(a,"k2_tail","k2_end",2,TMP+1,5)
        a.label("k2_nopf")
    a("""
    s_cmp_lt_u32 s3, 4
    s_cbranch_scc1 k2_prioB
    s_setprio 1
    s_branch k2_priodone
    """)
    a.label("k2_prioB")
    a("s_setprio 2" if "noprio" not in VAR else "s_setprio 0")
    a.label("k2_priodone")
    if "soloA" in VAR:
        a("s_cmp_lt_u32 s3, 4"); a("s_cbranch_scc1 k2_end")
    stamp(a,2)
    a(f"""
    s_cmp_le_u32 s38, {hex(f2u(THRESH2))}
    s_cbranch_scc0 k2_fallback
    """)
    pipe_prologue(a,False)
    attn_loop(a,False)
    a.label("k2_tail")
    stamp(a,6)
    a(f"""
    s_nop 1
    v_smfmac_f32_32x32x32_bf16 {vr(O[1],16)}, {vr(F[1][2],4)}, {vr(S[1]+8,8)}, v{VIDX}
    s_setprio 0
    s_mul_i32 s36, s3, 2304
    s_add_u32 s37, s36, {K2_E+8192-3*2304}
    s_add_u32 s36, s36, {K2_COL}
    s_cmp_lt_u32 s3, 3
    s_cselect_b32 s36, s36, s37
    s_xor_b32 s44, s3, 4
    s_mul_i32 s45, s44, 2304
    s_add_u32 s46, s45, {K2_E+8192-3*2304}
    s_add_u32 s45, s45, {K2_COL}
    s_cmp_lt_u32 s44, 3
    s_cselect_b32 s45, s45, s46
    v_lshlrev_b32 v{TMP}, 4, v1
    v_lshlrev_b32 v{TMP+1}, 2, v1
    v_add_u32 v{TMP+2}, s36, v{TMP}
    v_add_u32 v{TMP+3}, s36, v{TMP+1}
    v_add_u32 v{TMP+4}, s45, v{TMP}
    v_add_u32 v{TMP+5}, s45, v{TMP+1}
    s_cmp_lt_u32 s3, 4
    s_cbranch_scc1 k2_tailB
    """)
    a(f"""
    s_nop 9
    ds_write_b128 v{TMP+2}, {vr(O[0],4)}
    ds_write_b128 v{TMP+2}, {vr(O[0]+4,4)} offset:1024
    ds_write_b32 v{TMP+3}, v{O[0]+8} offset:2048
    s_nop 7
    """)
    for i in range(9): a(f"v_mov_b32 v{O[0]+i}, v{O[1]+i}")
    a("""
    s_add_u32 s31, s31, 1
    s_branch k2_tail2
    """)
    a.label("k2_tailB")
    a(f"""
    s_nop 15
    s_nop 3
    ds_write_b128 v{TMP+2}, {vr(O[1],4)}
    ds_write_b128 v{TMP+2}, {vr(O[1]+4,4)} offset:1024
    ds_write_b32 v{TMP+3}, v{O[1]+8} offset:2048
    """)
    a.label("k2_tail2")
    a(f"""
    s_waitcnt lgkmcnt(0)
    {"" if "soloA" in VAR else "s_barrier"}
    ds_read_b128 {vr(S[0],4)}, v{TMP+4}
    ds_read_b128 {vr(S[0]+4,4)}, v{TMP+4} offset:1024
    ds_read_b32 v{S[0]+8}, v{TMP+5} offset:2048
    s_lshl_b32 s36, s31, 5
    s_add_u32 s36, s36, s29
    s_lshl_b32 s36, s36, 10
    s_add_u32 s36, s36, {OFF_O}
    s_waitcnt lgkmcnt(0)
    """)
    for i in range(9): a(f"v_add_f32 v{O[0]+i}, v{O[0]+i}, v{S[0]+i}")
    a(f"""
    v_mov_b32 v{TMP+1}, v{O[0]+8}
    v_mov_b32 v{TMP+2}, v{O[0]+8}
    s_nop 1
    v_permlane32_swap_b32 v{TMP+1}, v{TMP+2}
    s_nop 1
    v_rcp_f32 v{TMP+1}, v{TMP+1}
    s_nop 0
    """)
    for i in range(8): a(f"v_mul_f32 v{O[0]+i}, v{O[0]+i}, v{TMP+1}")
    for i in range(4): a(f"v_cvt_pk_bf16_f32 v{TMP+4+i}, v{O[0]+2*i}, v{O[0]+2*i+1}")
    a.sc_srd="s[20:23]"
    a(f"buffer_store_dwordx4 {vr(TMP+4,4)}, v{TMP}, s[20:23], s36 offen")
    if asm.F23:
        a("""
        s_waitcnt vmcnt(0)
        s_barrier
        """)
        stamp(a,8)
        a(f"""
        s_cmp_eq_u32 s3, 0
        s_cbranch_scc0 ph3_start
        s_lshl_b32 s36, s30, 5
        s_add_u32 s36, s36, s29
        s_lshl_b32 s36, s36, 2
        s_add_u32 s36, s36, {OFF_F2}
        """)
        flag_store(a,36,TMP)
        a("s_branch ph3_start")
    else:
        if asm.STAMP:
            a("s_waitcnt vmcnt(0)"); stamp(a,8); stamp_dump(a,1)
        a("s_endpgm")
    def act_tab(): a("s_call_b64 s[60:61], k2_tab")
    def act_arriveB():
        dma_arrive(a, 24 if TABIT<ARRIT or (TABIT==ARRIT) else 0)
    def act_b2():
        stamp(a,3); a("s_call_b64 s[60:61], k2_b2"); stamp(a,4)
    def act_pub(): a("s_call_b64 s[60:61], k2_pub")
    def act_prio0(): a("s_setprio 0")
    hooksB=[(TABIT,act_tab),(ARRIT,act_arriveB),(3,lambda: dma_wait(a,"hb")),(B2IT,act_b2)]
    if asm.F23: hooksB.append((PUBIT,act_pub))
    hooksB.append((XB,act_prio0))
    def arriveA():
        if PF:
            a("s_cmp_eq_u32 s3, 7")
            a("s_cbranch_scc0 k2_arr_n")
            dma_arrive(a,2)
            a("s_branch k2_arr_d")
            a.label("k2_arr_n")
            dma_arrive(a)
            a.label("k2_arr_d")
        else: dma_arrive(a)
    hooksA=[(ARRIT,arriveA),(3,lambda: dma_wait(a,"ha"))]
    def emit(role,hooks):
        its=sorted(set(h[0] for h in hooks))
        for n,it in enumerate(its):
            nxt=its[n+1] if n+1<len(its) else 99
            a(f"s_cmp_eq_u32 s40, {it}")
            a(f"s_cbranch_scc0 k2_hk{role}_{n+1}")
            for (i2,f) in hooks:
                if i2==it: f()
            a(f"s_mov_b32 s40, {nxt}")
            a("s_branch k2_hookret")
            a.label(f"k2_hk{role}_{n+1}")
        a("s_branch k2_hookret")
        return its[0]
    a.label("k2_hook")
    a("""
    s_cmp_lt_u32 s3, 4
    s_cbranch_scc0 k2_hookA
    """)
    emit("B",hooksB)
    a.label("k2_hookA")
    emit("A",hooksA)
    a.label("k2_fallback")
    a("""
    s_cmp_lt_u32 s3, 4
    s_cbranch_scc0 k2_fbA
    """)
    dma_arrive(a)
    dma_wait(a,"fbb")
    a("""
    s_call_b64 s[60:61], k2_tab
    s_call_b64 s[60:61], k2_b2
    """)
    if asm.F23: a("s_call_b64 s[60:61], k2_pub")
    a("""
    s_branch k2_fb_pre
    """)
    a.label("k2_fbA")
    dma_arrive(a)
    dma_wait(a,"fb")
    a.label("k2_fb_pre")
    a(f"""
    v_mov_b32 v{TMP+1}, 0xff800000
    v_mov_b32 v{TMP+2}, 0xff800000
    v_and_b32 v{TMP+3}, 31, v1
    v_lshrrev_b32 v{TMP+4}, 5, v1
    v_mul_u32_u24 v{TMP+4}, 1056, v{TMP+4}
    v_lshl_add_u32 v{TMP+3}, v{TMP+3}, 4, v{TMP+4}
    s_mov_b32 s42, 64
    """)
    a.label("k2_fb_max")
    a(f"""
    ds_read_b128 {vr(F[0][0],4)}, v{TMP+3}
    v_add_u32 v{TMP+3}, {KV_TILE}, v{TMP+3}
    s_waitcnt lgkmcnt(0)
    v_mfma_f32_32x32x16_bf16 {vr(S[0],16)}, {vr(F[0][0],4)}, {vr(Q[0],4)}, 0
    v_mfma_f32_32x32x16_bf16 {vr(CI[0],16)}, {vr(F[0][0],4)}, {vr(Q[1],4)}, 0
    s_nop 15
    """)
    for i in range(0,16,2): a(f"v_max3_f32 v{TMP+1}, v{S[0]+i}, v{S[0]+i+1}, v{TMP+1}")
    for i in range(0,16,2): a(f"v_max3_f32 v{TMP+2}, v{CI[0]+i}, v{CI[0]+i+1}, v{TMP+2}")
    a(f"""
    s_sub_u32 s42, s42, 1
    s_cmp_lg_u32 s42, 0
    s_cbranch_scc1 k2_fb_max
    v_mov_b32 v{TMP+3}, v{TMP+1}
    v_mov_b32 v{TMP+4}, v{TMP+2}
    s_nop 1
    v_permlane32_swap_b32 v{TMP+1}, v{TMP+3}
    v_permlane32_swap_b32 v{TMP+2}, v{TMP+4}
    s_nop 1
    v_max_f32 v{TMP+1}, v{TMP+1}, v{TMP+3}
    v_max_f32 v{TMP+2}, v{TMP+2}, v{TMP+4}
    """)
    for qq in range(2):
        for i in range(16): a(f"v_sub_f32 v{CI[qq]+i}, 0, v{TMP+1+qq}")
    a("s_nop 1")
    pipe_prologue(a,True)
    attn_loop(a,True)
    a("s_branch k2_tail")
    a.label("k2_tab")
    a.sc_srd=P1
    a(f"""
    v_lshlrev_b32 v{TMP}, 4, v1
    v_lshrrev_b32 v{TMP+3}, 4, v1
    s_lshl_b32 s32, s3, 3
    v_add_u32 v{TMP+4}, s32, v{TMP+3}        ; n2 (e=0)
    v_and_b32 v{TMP+5}, 15, v{TMP+4}
    v_and_b32 v{TMP+6}, 15, v1
    v_xor_b32 v{TMP+5}, v{TMP+5}, v{TMP+6}
    v_lshlrev_b32 v{TMP+5}, 4, v{TMP+5}
    v_lshl_add_u32 v{TMP+5}, v{TMP+4}, 8, v{TMP+5}
    v_xor_b32 v{TMP+6}, 64, v{TMP+5}
    v_add_u32 v{TMP+6}, 1024, v{TMP+6}
    s_lshl_b32 s32, s28, 13
    s_add_u32 s32, s32, {OFF_Z}
    s_lshl_b32 s33, s3, 11
    s_add_u32 m0, s33, {K2_COL}
    s_nop 0
    buffer_load_dwordx4 v{TMP+5}, s[20:23], s32 offen lds
    s_add_u32 m0, s33, {K2_COL+1024}
    s_nop 0
    buffer_load_dwordx4 v{TMP+6}, s[20:23], s32 offen lds
    """)
    a(f"s_lshl_b32 s36, s3, 13")
    a(f"s_add_u32 s36, s36, {OFF_T64}")
    for k in range(8):
        a(f"buffer_load_dwordx4 {vr(T64+4*k,4)}, v{TMP}, s[20:23], s36 offen offset:{(k%4)*1024}")
        if k==3: a("s_add_u32 s36, s36, 4096")
    a(f"s_lshl_b32 s36, s3, 12")
    a(f"s_add_u32 s36, s36, {OFF_TW}")
    for k in range(4):
        a(f"buffer_load_dwordx4 {vr(TW+4*k,4)}, v{TMP}, s[20:23], s36 offen offset:{k*1024}")
    a(f"s_mov_b32 s36, {OFF_A32}")
    for k in range(8):
        a(f"buffer_load_dwordx4 {vr(A32+4*k,4)}, v{TMP}, s[20:23], s36 offen offset:{(k%4)*1024}")
        if k==3: a("s_add_u32 s36, s36, 4096")
    a(f"""
    s_lshl_b32 s36, s28, 13
    s_lshl_b32 s37, s3, 11
    s_add_u32 s36, s36, s37
    s_add_u32 s36, s36, {OFF_WT}
    buffer_load_dwordx4 {vr(WT,4)}, v{TMP}, s[20:23], s36 offen
    buffer_load_dwordx4 {vr(WT+4,4)}, v{TMP}, s[20:23], s36 offen offset:1024
    s_setpc_b64 s[60:61]
    """)
    a.label("k2_b2")
    a.sc_srd=P1
    a.p1=P1
    b2_part1(a)
    b2_part2(a)
    if asm.F23:
        a.label("k2_pub")
        if not asm.F12: get_tag(a,"b")
        a.sc_srd="s[20:23]"
        a("s_waitcnt vmcnt(0)")
        bbar(a,"pub")
        a(f"""
        s_cmp_eq_u32 s3, 0
        s_cbranch_scc0 k2_pub1
        s_lshl_b32 s36, s28, 2
        s_add_u32 s36, s36, {OFF_F2B}
        """)
        flag_store(a,36,TMP)
        a.label("k2_pub1")
        a.sc_srd=P1
        a(f"""
        s_lshr_b32 s36, s19, 2                   ; ct
        s_lshl_b32 s36, s36, 16
        s_lshl_b32 s37, s3, 13
        s_add_u32 s36, s36, s37
        s_add_u32 s36, s36, {OFF_WOF}
        v_lshlrev_b32 v{TMP}, 4, v1
        """)
        for hh in range(8):
            a(f"s_add_u32 s37, s36, {hh*1024}")
            a(f"buffer_load_dwordx4 {vr(WOR+8*hh,4)}, v{TMP}, s[20:23], s37 offen")
            a(f"s_add_u32 s37, s37, 32768")
            a(f"buffer_load_dwordx4 {vr(WOR+8*hh+4,4)}, v{TMP}, s[20:23], s37 offen")
        a("s_setpc_b64 s[60:61]")
    a.sc_srd=None
    if own:
        a.label("k2_end")
        a("s_endpgm")
    return a
```

```python
import asm
from asm import *
from layout import *
from k1 import srd, twiddle
import os
VAR=set(os.environ.get("VAR","").split(","))
def opt(name,default):
    for v in VAR:
        if v.startswith(name+"="): return int(v.split("=")[1])
    return default
K2_COL=135168
K2_E=K2_COL+8192
K2_LDS=163840
K2_CNT=163840-64
THRESH2=4096.0/1.03
NB=opt("NB",30)
NA=64-NB
ARRIT=opt("ARRIT",2)
TABIT=opt("TABIT",2)
B2IT=opt("B2IT",4)
PUBIT=opt("PUBIT",6)
XB=opt("XB",11)

HB=opt("HB",PUBIT+1); HA=opt("HA",5)
assert (XB-HB)%2==0 and XB>HB and (NB//2-XB)%2==0 and NB//2>XB and (NA//2-HA)%2==0, (HB,XB,NB,HA)
VK,VV,VIDX=2,3,4
Q=[8,12]; S=[16,32]; O=[48,64]
F=[(80,84,88),(92,96,100)]
TMP=104
T64,A32,TW,WT,BUF,D1,P=112,144,176,192,200,232,248
X2=200
CI=[112,128]
VM,VQd=108,109
WOR=144

def expo(a,r): a(f"v_exp_f32 v{r}, v{r}")

def unit(a,tau,qt,fb):
    tp=tau&1
    Sc,Sn=S[qt],S[1-qt]
    def pv(Ob,V,B): a(f"v_smfmac_f32_32x32x32_bf16 {vr(Ob,16)}, {vr(V,4)}, {vr(B,8)}, v{VIDX}")
    def qk(Sd,K,qq): a(f"v_mfma_f32_32x32x16_bf16 {vr(Sd,16)}, {vr(K,4)}, {vr(Q[qq],4)}, {vr(CI[qq],16) if fb else '0'}")
    if qt==0:
        Kc,V0c,V1c=F[tp]; Kn,V0n,V1n=F[1-tp]
        expo(a,Sc); expo(a,Sc+1)
        pv(O[1],V1n,Sn+8)
        a(f"ds_read_b128 {vr(Kn,4)}, v{VK} offset:{(tau+1)*KV_TILE}")
        expo(a,Sc+2)
        a(f"ds_read_b128 {vr(V0n,4)}, v{VV} offset:{(tau+1)*KV_TILE+512}")
        expo(a,Sc+3)
        a(f"ds_read_b128 {vr(V1n,4)}, v{VV} offset:{(tau+1)*KV_TILE+784}")
        expo(a,Sc+4); expo(a,Sc+5)
        qk(Sn,Kc,1)
        for i in range(6,12): expo(a,Sc+i)
        pv(O[0],V0c,Sc)
        for i in range(12,16): expo(a,Sc+i)
    else:
        Kc,V0c,V1c=F[tp]; Kn,V0n,V1n=F[1-tp]
        expo(a,Sc); expo(a,Sc+1)
        pv(O[0],V1c,Sn+8)
        for i in range(2,6): expo(a,Sc+i)
        a("s_waitcnt lgkmcnt(0)")
        qk(Sn,Kn,0)
        for i in range(6,12): expo(a,Sc+i)
        pv(O[1],V0c,Sc)
        for i in range(12,16): expo(a,Sc+i)

def bbar(a,tag,cnt=0):
    a(f"""
    v_mov_b32 v111, {K2_CNT+cnt}
    v_mov_b32 v110, 1
    s_waitcnt lgkmcnt(0)
    s_mov_b64 exec, 1
    ds_add_u32 v111, v110
    s_mov_b64 exec, -1
    s_add_u32 s47, s47, 4
    """)
    a.label(f"k2_bbar_{tag}")
    a(f"""
    ds_read_b32 v109, v111
    s_waitcnt lgkmcnt(0)
    v_readfirstlane_b32 s48, v109
    s_nop 0
    s_cmp_lt_u32 s48, s47
    s_cbranch_scc1 k2_bbar_{tag}
    """)

def dma_arrive(a,younger=0):
    a(f"""
    s_waitcnt vmcnt({younger})
    v_mov_b32 v{TMP}, {K2_CNT+4}
    v_mov_b32 v{TMP+1}, 1
    s_mov_b64 exec, 1
    ds_add_u32 v{TMP}, v{TMP+1}
    s_mov_b64 exec, -1
    """)
def dma_wait(a,tag):
    a(f"v_mov_b32 v{TMP}, {K2_CNT+4}")
    a.label(f"k2_dwait_{tag}")
    a(f"""
    ds_read_b32 v{TMP+1}, v{TMP}
    s_waitcnt lgkmcnt(0)
    v_readfirstlane_b32 s48, v{TMP+1}
    s_nop 0
    s_cmp_lt_u32 s48, 8
    s_cbranch_scc1 k2_dwait_{tag}
    """)

def kv_dma(a, ns):
    for n in ns:
        a(f"s_add_u32 m0, s34, {n*1024}")
        a(f"s_add_u32 s36, s35, {n*1024}")
        a(f"buffer_load_dwordx4 v{TMP}, s[20:23], s36 offen lds")

def b2_part1(a):
    a("s_waitcnt vmcnt(0)")
    bbar(a,"col")
    a(f"""
    v_and_b32 v{VM}, 15, v1
    v_lshrrev_b32 v{VQd}, 4, v1
    v_xor_b32 v104, v{VM}, v{VQd}
    v_lshlrev_b32 v104, 4, v104
    v_lshl_add_u32 v104, v{VM}, 8, v104
    v_add_u32 v104, {K2_COL}, v104
    v_xor_b32 v105, 64, v104
    v_xor_b32 v106, 128, v104
    v_xor_b32 v107, 192, v104
    """)
    for u in range(4):
        for t in range(2):
            a(f"ds_read_b128 {vr(BUF+16*t+4*u,4)}, v{104+u} offset:{t*4096}")
    for u in range(4):
        a(f"s_waitcnt lgkmcnt({6-2*u})")
        for t in range(2):
            for part in range(2):
                d=D1+8*t+4*part
                a(f"v_mfma_f32_16x16x32_bf16 {vr(d,4)}, {vr(BUF+16*t+4*u,4)}, {vr(T64+8*u+4*part,4)}, {'0' if u==0 else vr(d,4)}")
    a("""
    s_cmp_eq_u32 s28, 0
    s_cbranch_scc0 k2_p1_noab
    """)
    a(f"v_lshlrev_b32 v110, 4, v1")
    a(f"s_lshl_b32 s36, s3, 12")
    a(f"s_add_u32 s36, s36, {OFF_AB}")
    for ep in range(4):
        a(f"buffer_load_dwordx4 {vr(216+4*ep,4)}, v110, s[20:23], s36 offen offset:{ep*1024}")
    a.label("k2_p1_noab")
    a("s_nop 6")
    for t in range(2):
        twiddle(a, D1+8*t, D1+8*t+4, TW+4*t, TW+8+4*t, P+4*t, 104)
    a("s_nop 1")
    for t in range(2):
        for tp in range(2):
            for part in range(2):
                d=X2+8*tp+4*part
                a(f"v_mfma_f32_16x16x32_bf16 {vr(d,4)}, {vr(A32+((tp*2+part)*2+t)*4,4)}, {vr(P+4*t,4)}, {'0' if t==0 else vr(d,4)}")

def b2_part2(a):
    a("s_waitcnt vmcnt(0)")
    a("""
    s_cmp_eq_u32 s28, 0
    s_cbranch_scc1 k2_p2_special
    """)
    for tp in range(2):
        xr,xi=X2+8*tp,X2+8*tp+4
        wr,wi=D1+8*tp,D1+8*tp+4
        for i in range(4):
            a(f"v_lshlrev_b32 v{wr+i}, 16, v{WT+4*tp+i}")
            a(f"v_and_b32 v{wi+i}, 0xffff0000, v{WT+4*tp+i}")
        for p in (0,2):
            a(f"v_pk_mul_f32 {vr(104+p,2)}, {vr(xr+p,2)}, {vr(wr+p,2)}")
            a(f"v_pk_mul_f32 {vr(108+p,2)}, {vr(xr+p,2)}, {vr(wi+p,2)}")
        for p in (0,2):
            a(f"v_pk_fma_f32 {vr(104+p,2)}, {vr(xi+p,2)}, {vr(wi+p,2)}, {vr(104+p,2)} neg_lo:[1,0,0] neg_hi:[1,0,0]")
            a(f"v_pk_fma_f32 {vr(108+p,2)}, {vr(xi+p,2)}, {vr(wr+p,2)}, {vr(108+p,2)}")
        for i in range(4): a(f"v_cvt_pk_bf16_f32 v{P+4*tp+i}, v{104+i}, -v{108+i}")
    a.label("k2_p2_common")
    a("s_nop 1")
    for tp in range(2):
        for t in range(2):
            for part in range(2):
                d=D1+8*t+4*part
                a(f"v_mfma_f32_16x16x32_bf16 {vr(d,4)}, {vr(A32+((t*2+part)*2+tp)*4,4)}, {vr(P+4*tp,4)}, {'0' if tp==0 else vr(d,4)}")
    t0=X2
    a(f"""
    v_and_b32 v{t0}, 15, v1                 ; m
    v_lshrrev_b32 v{t0+1}, 4, v1            ; q
    v_lshrrev_b32 v{t0+2}, 2, v{t0}         ; m>>2
    s_lshl_b32 s36, s3, 2
    v_add_u32 v{t0+2}, s36, v{t0+2}         ; 4w + (m>>2)
    v_lshlrev_b32 v{t0+3}, 2, v{t0+1}       ; 4q
    v_xor_b32 v{t0+2}, v{t0+2}, v{t0+3}
    v_lshlrev_b32 v{t0+2}, 4, v{t0+2}
    v_lshl_add_u32 v{t0+2}, v{t0+3}, 8, v{t0+2}
    v_and_b32 v{t0+4}, 3, v{t0}
    v_lshl_add_u32 v{t0+2}, v{t0+4}, 2, v{t0+2}
    v_add_u32 v{t0+8}, {K2_E}, v{t0+2}
    v_xor_b32 v{t0+9}, 16, v{t0+8}
    v_xor_b32 v{t0+10}, 32, v{t0+8}
    v_xor_b32 v{t0+11}, 48, v{t0+8}
    """)
    for t in range(2):
        twiddle(a, D1+8*t, D1+8*t+4, TW+4*t, TW+8+4*t, P+4*t, 104)
    for t in range(2):
        for i in range(4):
            a(f"ds_write_b32 v{t0+8+i}, v{P+4*t+i} offset:{t*4096+i*256}")
    bbar(a,"e")
    a(f"""
    v_and_b32 v{VM}, 15, v1
    v_lshrrev_b32 v{VQd}, 4, v1
    v_xor_b32 v104, v{VM}, v{VQd}
    v_lshlrev_b32 v104, 4, v104
    v_lshl_add_u32 v104, v{VM}, 8, v104
    v_add_u32 v104, {K2_E}, v104
    v_xor_b32 v105, 64, v104
    v_xor_b32 v106, 128, v104
    v_xor_b32 v107, 192, v104
    """)
    for u in range(4):
        for t in range(2):
            a(f"ds_read_b128 {vr(BUF+16*t+4*u,4)}, v{104+u} offset:{t*4096}")
    a(f"""
    v_lshlrev_b32 v110, 8, v{VM}
    v_lshl_add_u32 v110, v{VQd}, 4, v110
    s_lshl_b32 s36, s28, 13
    s_lshl_b32 s37, s3, 6
    s_add_u32 s36, s36, s37
    s_add_u32 s36, s36, {OFF_Y}
    """)
    for u in range(4):
        a(f"s_waitcnt lgkmcnt({6-2*u})")
        for t in range(2):
            for part in range(2):
                d=D1+8*t+4*part
                a(f"v_mfma_f32_16x16x32_bf16 {vr(d,4)}, {vr(T64+8*u+4*part,4)}, {vr(BUF+16*t+4*u,4)}, {'0' if u==0 else vr(d,4)}")
    a("s_nop 7")
    for t in range(2):
        for i in range(4): a(f"v_cvt_pk_bf16_f32 v{P+4*t+i}, v{D1+8*t+i}, -v{D1+8*t+4+i}")
        a.sc_srd="s[20:23]"
        a(f"buffer_store_dwordx4 {vr(P+4*t,4)}, v110, s[20:23], s36 offen")
        a.sc_srd=a.p1
        if t==0: a("s_add_u32 s36, s36, 4096")
    a("s_setpc_b64 s[60:61]")
    a.label("k2_p2_special")
    bbar(a,"s0")
    XCH=K2_COL
    a(f"""
    v_and_b32 v104, 15, v1
    v_lshrrev_b32 v105, 4, v1
    s_lshl_b32 s36, s3, 4
    v_add_u32 v104, s36, v104                 ; k1
    v_lshl_add_u32 v104, v105, 8, v104         ; g0 = k1 + 64*4q
    v_lshlrev_b32 v106, 3, v104
    v_add_u32 v106, {XCH}, v106
    """)
    for tp in range(2):
        for i in range(4):
            off=(i*64+tp*1024)*8
            a(f"ds_write_b32 v106, v{X2+8*tp+i} offset:{off}")
            a(f"ds_write_b32 v106, v{X2+8*tp+4+i} offset:{off+4}")
    bbar(a,"s1")
    for tp in range(2):
        for i in range(4):
            e=4*tp+i
            a(f"v_sub_u32 v107, {2048-(i*64+tp*1024)}, v104")
            a(f"v_and_b32 v107, 2047, v107")
            a(f"v_lshlrev_b32 v107, 3, v107")
            a(f"v_add_u32 v107, {XCH}, v107")
            a(f"ds_read_b64 {vr(D1+2*e,2)}, v107")
    bbar(a,"s2")
    for tp in range(2):
        for i in range(4):
            e=4*tp+i
            src=216+2*e
            ab=WT
            a(f"v_lshlrev_b32 v{ab}, 16, v{src}")
            a(f"v_and_b32 v{ab+1}, 0xffff0000, v{src}")
            a(f"v_lshlrev_b32 v{ab+2}, 16, v{src+1}")
            a(f"v_and_b32 v{ab+3}, 0xffff0000, v{src+1}")
            zr,zi=X2+8*tp+i,X2+8*tp+4+i
            pr,pi=D1+2*e,D1+2*e+1
            a(f"v_mul_f32 v104, v{zr}, v{ab}")
            a(f"v_mul_f32 v105, v{zr}, v{ab+1}")
            a(f"v_fma_f32 v104, -v{zi}, v{ab+1}, v104")
            a(f"v_fma_f32 v105, v{zi}, v{ab}, v105")
            a(f"v_fma_f32 v104, v{pr}, v{ab+2}, v104")
            a(f"v_fma_f32 v105, v{pr}, v{ab+3}, v105")
            a(f"v_fma_f32 v104, v{pi}, v{ab+3}, v104")
            a(f"v_fma_f32 v105, -v{pi}, v{ab+2}, v105")
            a(f"v_cvt_pk_bf16_f32 v{P+e}, v104, -v105")
    a("s_branch k2_p2_common")


def rounds():
    nA0=NB*KV_TILE//1024
    st1=[0,nA0,8,nA0+8]
    rest=[]
    n=16
    while n<nA0:
        rest.append(min(n,nA0-8) if n+8>nA0 else n); n+=8
    n=nA0+16
    while n<132:
        rest.append(min(n,124)); n+=8
    lo=[r for r in rest if r<nA0]; hi=[r for r in rest if r>=nA0]
    out=[]
    while lo or hi:
        if lo: out.append(lo.pop(0))
        if hi: out.append(hi.pop(0))
    return st1,out

def attn_loop(a,fb):
    if fb:
        a.label("k2_loop_fb")
        unit(a,0,0,fb); unit(a,0,1,fb); unit(a,1,0,fb); unit(a,1,1,fb)
        a(f"""
        v_add_u32 v{VK}, {2*KV_TILE}, v{VK}
        v_add_u32 v{VV}, {2*KV_TILE}, v{VV}
        s_add_u32 s42, s42, 1
        s_cmp_lt_u32 s42, s43
        s_cbranch_scc1 k2_loop_fb
        """)
        return
    a.label("k2_loop")
    a("""
    s_cmp_eq_u32 s42, s40
    s_cbranch_scc1 k2_hook
    """)
    a.label("k2_hookret")
    unit(a,0,0,fb); unit(a,0,1,fb); unit(a,1,0,fb); unit(a,1,1,fb)
    a(f"""
    v_add_u32 v{VK}, {2*KV_TILE}, v{VK}
    v_add_u32 v{VV}, {2*KV_TILE}, v{VV}
    s_add_u32 s42, s42, 1
    s_cmp_lt_u32 s42, s44
    s_cbranch_scc1 k2_loop
    """)
    a(".p2align 3, 0xbf800000" if False else "s_nop 0") if False else None
    a.label("k2_lean")
    for tau in range(4):
        unit(a,tau,0,fb); unit(a,tau,1,fb)
    a(f"""
    v_add_u32 v{VK}, {4*KV_TILE}, v{VK}
    v_add_u32 v{VV}, {4*KV_TILE}, v{VV}
    s_sub_u32 s43, s43, 1
    s_cmp_lg_u32 s43, 0
    s_cbranch_scc1 k2_lean
    s_cmp_eq_u32 s41, 0
    s_cbranch_scc1 k2_lean_done
    s_setprio 0
    s_mov_b32 s43, s41
    s_mov_b32 s41, 0
    s_branch k2_lean
    """)
    a.label("k2_lean_done")

def pipe_prologue(a,fb):
    K,V0,V1=F[0]
    a(f"""
    ds_read_b128 {vr(K,4)}, v{VK}
    ds_read_b128 {vr(V0,4)}, v{VV} offset:512
    ds_read_b128 {vr(V1,4)}, v{VV} offset:784
    s_waitcnt lgkmcnt(2)
    v_mfma_f32_32x32x16_bf16 {vr(S[0],16)}, {vr(K,4)}, {vr(Q[0],4)}, {vr(CI[0],16) if fb else '0'}
    s_mov_b32 s42, 0
    s_waitcnt lgkmcnt(0)
    s_nop 11
    """)

def poll(a,tag,nloads,addr_regs,srdreg="s[20:23]",soff="0"):
    a(f"s_mov_b32 s49, 0x20000")
    a.label(f"poll_{tag}")
    for k in range(nloads):
        a(f"buffer_load_dword v{addr_regs[k][1]}, v{addr_regs[k][0]}, {srdreg}, {soff} offen")
    a("s_waitcnt vmcnt(0)")
    for k in range(nloads):
        a(f"v_cmp_eq_u32 {'vcc' if k==0 else 's[50:51]'}, s56, v{addr_regs[k][1]}")
        if k>0:
            a("s_nop 1"); a("s_and_b64 vcc, vcc, s[50:51]")
    a(f"""
    s_nop 1
    s_cmp_eq_u64 vcc, -1
    s_cbranch_scc1 poll_{tag}_done
    s_sub_u32 s49, s49, 1
    s_cmp_eq_u32 s49, 0
    s_cbranch_scc1 poll_{tag}_done
    s_sleep 1
    s_branch poll_{tag}
    """)
    a.label(f"poll_{tag}_done")

def get_tag(a,tagname):
    a(f"""
    v_mov_b32 v{TMP}, 0
    s_mov_b32 s49, 0x20000
    """)
    a.label(f"kf_tag_{tagname}")
    a(f"""
    global_load_dword v{TMP+1}, v{TMP}, s[54:55] sc1
    s_waitcnt vmcnt(0)
    v_readfirstlane_b32 s56, v{TMP+1}
    s_sub_u32 s49, s49, 1
    s_cmp_eq_u32 s49, 0
    s_cbranch_scc1 kf_tag_{tagname}_done
    s_cmp_eq_u32 s56, 0
    s_cbranch_scc0 kf_tag_{tagname}_done
    s_sleep 1
    s_branch kf_tag_{tagname}
    """)
    a.label(f"kf_tag_{tagname}_done")

def flag_store(a, soff_expr_reg, vtmp):
    a(f"""
    v_mov_b32 v{vtmp}, 0
    v_mov_b32 v{vtmp+1}, s56
    s_mov_b64 exec, 1
    buffer_store_dword v{vtmp+1}, v{vtmp}, s[20:23], s{soff_expr_reg} offen
    s_mov_b64 exec, -1
    """)

def build_k2(a=None):
    own = a is None
    if own: a=Asm()
    P1="s[20:23]" if asm.F12 else None
    a.sc_srd=P1
    st1,rest=rounds()
    R=len(rest)
    if not asm.F12:
        a(f"""
        s_cmp_ge_u32 s2, 256
        s_cbranch_scc1 k2_end
        s_load_dwordx2 s[16:17], s[0:1], 64      ; ws
        {"s_load_dwordx4 s[52:55], s[0:1], 48      ; out, debug" if asm.F23 else ""}
        v_and_b32 v1, 63, v0
        v_lshrrev_b32 v{TMP}, 6, v0
        s_nop 0
        v_readfirstlane_b32 s3, v{TMP}
        """)
        if asm.F23:
            a("""
            s_or_b32 s57, s2, s3
            s_cmp_eq_u32 s57, 0
            s_cbranch_scc0 kf_nononce
            s_memrealtime s[56:57]
            s_waitcnt lgkmcnt(0)
            s_or_b32 s56, s56, 1
            v_mov_b32 v2, 0
            v_mov_b32 v3, s56
            s_mov_b64 exec, 1
            global_store_dword v2, v3, s[54:55] sc1
            s_mov_b64 exec, -1
            """)
            a.label("kf_nononce")
    stamp(a,0)
    a(f"""
    s_and_b32 s18, s2, 7
    s_lshr_b32 s19, s2, 3
    s_lshl_b32 s29, s18, 2
    s_and_b32 s30, s19, 3
    s_add_u32 s29, s29, s30                  ; hd
    s_lshr_b32 s30, s19, 2                   ; qb
    s_lshl_b32 s28, s18, 5
    s_add_u32 s28, s28, s19                  ; f
    v_lshlrev_b32 v{TMP}, 4, v1              ; lane*16
    s_and_b32 s33, s3, 3                     ; qg
    s_lshl_b32 s31, s30, 3
    s_lshl_b32 s33, s33, 1
    s_add_u32 s31, s31, s33
    s_waitcnt lgkmcnt(0)
    """)
    srd(a,20,16,WS_SIZE)
    if asm.F12:
        a(f"""
        s_cmp_eq_u32 s3, 0
        s_cbranch_scc0 k2_nopoll
        s_lshr_b32 s32, s29, 3                   ; hd>>3
        v_and_b32 v{TMP+1}, 15, v1
        v_lshrrev_b32 v{TMP+2}, 4, v1            ; group 0:K 1:V 2,3:Q
        v_and_b32 v{TMP+3}, 1, v1
        s_lshl_b32 s33, s30, 1
        v_add_u32 v{TMP+3}, s33, v{TMP+3}
        v_cmp_gt_u32 vcc, 2, v{TMP+2}
        v_mov_b32 v{TMP+4}, 4
        v_mov_b32 v{TMP+5}, 8
        v_cndmask_b32 v{TMP+1}, v{TMP+3}, v{TMP+1}, vcc   ; rb
        v_cmp_eq_u32 vcc, 0, v{TMP+2}
        v_mov_b32 v{TMP+6}, 0
        s_nop 0
        v_cndmask_b32 v{TMP+6}, v{TMP+6}, v{TMP+4}, vcc
        v_cmp_eq_u32 vcc, 1, v{TMP+2}
        s_nop 1
        v_cndmask_b32 v{TMP+6}, v{TMP+6}, v{TMP+5}, vcc   ; type*4
        v_add_u32 v{TMP+6}, s32, v{TMP+6}        ; cb
        v_lshl_add_u32 v{TMP+1}, v{TMP+6}, 4, v{TMP+1}
        v_lshlrev_b32 v{TMP+1}, 2, v{TMP+1}
        v_add_u32 v{TMP+1}, {OFF_F1Q}, v{TMP+1}
        v_lshlrev_b32 v{TMP+2}, 2, v1
        v_add_u32 v{TMP+2}, {OFF_F1B}, v{TMP+2}
        """)
        poll(a,"p1",2,[(TMP+1,TMP+3),(TMP+2,TMP+4)])
        a.label("k2_nopoll")
        a("s_barrier")
        stamp(a,9)
    a(f"""
    s_lshl_b32 s32, s29, 16
    s_lshl_b32 s33, s31, 10
    s_add_u32 s32, s32, s33
    s_add_u32 s32, s32, {OFF_Q}
    buffer_load_dwordx4 {vr(Q[0],4)}, v{TMP}, s[20:23], s32 offen
    buffer_load_dwordx4 {vr(Q[1],4)}, v{TMP}, s[20:23], s32 offen offset:1024
    v_lshlrev_b32 v{TMP+1}, 2, v1
    s_lshl_b32 s32, s29, 8
    s_add_u32 s32, s32, {OFF_KN}
    buffer_load_dword v{TMP+2}, v{TMP+1}, s[20:23], s32 offen
    s_lshl_b32 s34, s3, 10                   ; wave*1024
    s_mul_i32 s35, s29, {KV_HEAD}
    s_add_u32 s35, s35, s34
    s_add_u32 s35, s35, {OFF_KV}
    """)
    kv_dma(a,st1)
    a("s_waitcnt vmcnt(4)")
    a.label("k2_loaded")
    for qq in range(2):
        acc=TMP+5+qq
        for k in range(4):
            a(f"v_lshlrev_b32 v{TMP+3}, 16, v{Q[qq]+k}")
            a(f"v_and_b32 v{TMP+4}, 0xffff0000, v{Q[qq]+k}")
            a(f"v_mul_f32 v{acc}, v{TMP+3}, v{TMP+3}" if k==0 else f"v_fmac_f32 v{acc}, v{TMP+3}, v{TMP+3}")
            a(f"v_fmac_f32 v{acc}, v{TMP+4}, v{TMP+4}")
    a(f"""
    s_nop 1
    v_permlane32_swap_b32 v{TMP+5}, v{TMP+6}
    s_nop 1
    v_add_f32 v{TMP+5}, v{TMP+5}, v{TMP+6}
    """)
    for sh in ("row_shr:1","row_shr:2","row_shr:4","row_shr:8"):
        a("s_nop 0")
        a(f"v_max_f32_dpp v{TMP+2}, v{TMP+2}, v{TMP+2} {sh} row_mask:0xf bank_mask:0xf bound_ctrl:0")
        a(f"v_max_f32_dpp v{TMP+5}, v{TMP+5}, v{TMP+5} {sh} row_mask:0xf bank_mask:0xf bound_ctrl:0")
    for sh in ("row_bcast:15 row_mask:0xa","row_bcast:31 row_mask:0xc"):
        a("s_nop 0")
        a(f"v_max_f32_dpp v{TMP+2}, v{TMP+2}, v{TMP+2} {sh} bank_mask:0xf")
        a(f"v_max_f32_dpp v{TMP+5}, v{TMP+5}, v{TMP+5} {sh} bank_mask:0xf")
    a(f"""
    s_nop 0
    v_mul_f32 v{TMP+2}, v{TMP+2}, v{TMP+5}
    s_nop 0
    v_readlane_b32 s38, v{TMP+2}, 63
    v_and_b32 v{TMP+3}, 31, v1
    v_lshrrev_b32 v{TMP+4}, 5, v1
    v_mul_u32_u24 v{TMP+4}, 1056, v{TMP+4}
    v_lshl_add_u32 v{VK}, v{TMP+3}, 4, v{TMP+4}
    s_cmp_lt_u32 s3, 4
    s_cselect_b32 s36, 0, {NB*KV_TILE}
    s_cselect_b32 s45, {NB//2}, {NA//2}
    s_cselect_b32 s44, {HB}, {HA}
    s_cselect_b32 s43, {(XB-HB)//2}, {(NA//2-HA)//2}
    s_cselect_b32 s41, {(NB//2-XB)//2}, 0
    s_cselect_b32 s40, {min(TABIT,ARRIT)}, {ARRIT}
    v_add_u32 v{VK}, s36, v{VK}
    v_cmp_gt_u32 vcc, 17, v{TMP+3}
    v_mov_b32 v{TMP+4}, 0x40000
    v_mov_b32 v{VIDX}, 0xdddd
    v_cndmask_b32 v{VV}, v{TMP+4}, v{VK}, vcc
    """)
    for qq in range(2):
        for i in range(16): a(f"v_mov_b32 v{O[qq]+i}, 0")
    for i in range(8): a(f"v_mov_b32 v{S[1]+8+i}, 0")
    for i in range(4): a(f"v_mov_b32 v{F[1][2]+i}, 0")
    if "nohook" in VAR:
        a("s_waitcnt vmcnt(0)"); a("s_mov_b32 s40, 99")
    a(f"""
    v_mov_b32 v{TMP+3}, {K2_CNT}
    v_mov_b32 v{TMP+4}, 0
    v_mov_b32 v{TMP+5}, 0
    v_mov_b32 v{TMP+6}, 0
    v_mov_b32 v{TMP+7}, 0
    s_mov_b32 s47, 0
    s_cmp_eq_u32 s3, 0
    s_cbranch_scc0 k2_noinit
    ds_write_b128 v{TMP+3}, {vr(TMP+4,4)}
    s_waitcnt lgkmcnt(0)
    """)
    a.label("k2_noinit")
    a("s_waitcnt vmcnt(0)")
    stamp(a,1)
    a("s_barrier")
    a(f"v_lshlrev_b32 v{TMP}, 4, v1")
    kv_dma(a,rest)
    PF = "pf" in VAR and asm.F23
    if PF:
        a("s_cmp_eq_u32 s3, 7")
        a("s_cbranch_scc0 k2_nopf")
        code_prefetch(a,"k2_tail","k2_end",2,TMP+1,5)
        a.label("k2_nopf")
    a("""
    s_cmp_lt_u32 s3, 4
    s_cbranch_scc1 k2_prioB
    s_setprio 1
    s_branch k2_priodone
    """)
    a.label("k2_prioB")
    a("s_setprio 2" if "noprio" not in VAR else "s_setprio 0")
    a.label("k2_priodone")
    if "soloA" in VAR:
        a("s_cmp_lt_u32 s3, 4"); a("s_cbranch_scc1 k2_end")
    stamp(a,2)
    a(f"""
    s_cmp_le_u32 s38, {hex(f2u(THRESH2))}
    s_cbranch_scc0 k2_fallback
    """)
    pipe_prologue(a,False)
    attn_loop(a,False)
    a.label("k2_tail")
    stamp(a,6)
    a(f"""
    s_nop 1
    v_smfmac_f32_32x32x32_bf16 {vr(O[1],16)}, {vr(F[1][2],4)}, {vr(S[1]+8,8)}, v{VIDX}
    s_setprio 0
    s_mul_i32 s36, s3, 2304
    s_add_u32 s37, s36, {K2_E+8192-3*2304}
    s_add_u32 s36, s36, {K2_COL}
    s_cmp_lt_u32 s3, 3
    s_cselect_b32 s36, s36, s37
    s_xor_b32 s44, s3, 4
    s_mul_i32 s45, s44, 2304
    s_add_u32 s46, s45, {K2_E+8192-3*2304}
    s_add_u32 s45, s45, {K2_COL}
    s_cmp_lt_u32 s44, 3
    s_cselect_b32 s45, s45, s46
    v_lshlrev_b32 v{TMP}, 4, v1
    v_lshlrev_b32 v{TMP+1}, 2, v1
    v_add_u32 v{TMP+2}, s36, v{TMP}
    v_add_u32 v{TMP+3}, s36, v{TMP+1}
    v_add_u32 v{TMP+4}, s45, v{TMP}
    v_add_u32 v{TMP+5}, s45, v{TMP+1}
    s_cmp_lt_u32 s3, 4
    s_cbranch_scc1 k2_tailB
    """)
    a(f"""
    s_nop 9
    ds_write_b128 v{TMP+2}, {vr(O[0],4)}
    ds_write_b128 v{TMP+2}, {vr(O[0]+4,4)} offset:1024
    ds_write_b32 v{TMP+3}, v{O[0]+8} offset:2048
    s_nop 7
    """)
    for i in range(9): a(f"v_mov_b32 v{O[0]+i}, v{O[1]+i}")
    a("""
    s_add_u32 s31, s31, 1
    s_branch k2_tail2
    """)
    a.label("k2_tailB")
    a(f"""
    s_nop 15
    s_nop 3
    ds_write_b128 v{TMP+2}, {vr(O[1],4)}
    ds_write_b128 v{TMP+2}, {vr(O[1]+4,4)} offset:1024
    ds_write_b32 v{TMP+3}, v{O[1]+8} offset:2048
    """)
    a.label("k2_tail2")
    a(f"""
    s_waitcnt lgkmcnt(0)
    {"" if "soloA" in VAR else "s_barrier"}
    ds_read_b128 {vr(S[0],4)}, v{TMP+4}
    ds_read_b128 {vr(S[0]+4,4)}, v{TMP+4} offset:1024
    ds_read_b32 v{S[0]+8}, v{TMP+5} offset:2048
    s_lshl_b32 s36, s31, 5
    s_add_u32 s36, s36, s29
    s_lshl_b32 s36, s36, 10
    s_add_u32 s36, s36, {OFF_O}
    s_waitcnt lgkmcnt(0)
    """)
    for i in range(9): a(f"v_add_f32 v{O[0]+i}, v{O[0]+i}, v{S[0]+i}")
    a(f"""
    v_mov_b32 v{TMP+1}, v{O[0]+8}
    v_mov_b32 v{TMP+2}, v{O[0]+8}
    s_nop 1
    v_permlane32_swap_b32 v{TMP+1}, v{TMP+2}
    s_nop 1
    v_rcp_f32 v{TMP+1}, v{TMP+1}
    s_nop 0
    """)
    for i in range(8): a(f"v_mul_f32 v{O[0]+i}, v{O[0]+i}, v{TMP+1}")
    for i in range(4): a(f"v_cvt_pk_bf16_f32 v{TMP+4+i}, v{O[0]+2*i}, v{O[0]+2*i+1}")
    a.sc_srd="s[20:23]"
    a(f"buffer_store_dwordx4 {vr(TMP+4,4)}, v{TMP}, s[20:23], s36 offen")
    if asm.F23:
        a("""
        s_waitcnt vmcnt(0)
        s_barrier
        """)
        stamp(a,8)
        a(f"""
        s_cmp_eq_u32 s3, 0
        s_cbranch_scc0 ph3_start
        s_lshl_b32 s36, s30, 5
        s_add_u32 s36, s36, s29
        s_lshl_b32 s36, s36, 2
        s_add_u32 s36, s36, {OFF_F2}
        """)
        flag_store(a,36,TMP)
        a("s_branch ph3_start")
    else:
        if asm.STAMP:
            a("s_waitcnt vmcnt(0)"); stamp(a,8); stamp_dump(a,1)
        a("s_endpgm")
    def act_tab(): a("s_call_b64 s[60:61], k2_tab")
    def act_arriveB():
        dma_arrive(a, 24 if TABIT<ARRIT or (TABIT==ARRIT) else 0)
    def act_b2():
        stamp(a,3); a("s_call_b64 s[60:61], k2_b2"); stamp(a,4)
    def act_pub(): a("s_call_b64 s[60:61], k2_pub")
    def act_prio0(): a("s_setprio 0")
    hooksB=[(TABIT,act_tab),(ARRIT,act_arriveB),(3,lambda: dma_wait(a,"hb")),(B2IT,act_b2)]
    if asm.F23: hooksB.append((PUBIT,act_pub))
    def arriveA():
        if PF:
            a("s_cmp_eq_u32 s3, 7")
            a("s_cbranch_scc0 k2_arr_n")
            dma_arrive(a,2)
            a("s_branch k2_arr_d")
            a.label("k2_arr_n")
            dma_arrive(a)
            a.label("k2_arr_d")
        else: dma_arrive(a)
    hooksA=[(ARRIT,arriveA),(3,lambda: dma_wait(a,"ha"))]
    def emit(role,hooks):
        its=sorted(set(h[0] for h in hooks))
        for n,it in enumerate(its):
            nxt=its[n+1] if n+1<len(its) else 99
            a(f"s_cmp_eq_u32 s40, {it}")
            a(f"s_cbranch_scc0 k2_hk{role}_{n+1}")
            for (i2,f) in hooks:
                if i2==it: f()
            a(f"s_mov_b32 s40, {nxt}")
            a("s_branch k2_hookret")
            a.label(f"k2_hk{role}_{n+1}")
        a("s_branch k2_hookret")
        return its[0]
    a.label("k2_hook")
    a("""
    s_cmp_lt_u32 s3, 4
    s_cbranch_scc0 k2_hookA
    """)
    emit("B",hooksB)
    a.label("k2_hookA")
    emit("A",hooksA)
    a.label("k2_fallback")
    a("""
    s_cmp_lt_u32 s3, 4
    s_cbranch_scc0 k2_fbA
    """)
    dma_arrive(a)
    dma_wait(a,"fbb")
    a("""
    s_call_b64 s[60:61], k2_tab
    s_call_b64 s[60:61], k2_b2
    """)
    if asm.F23: a("s_call_b64 s[60:61], k2_pub")
    a("""
    s_branch k2_fb_pre
    """)
    a.label("k2_fbA")
    dma_arrive(a)
    dma_wait(a,"fb")
    a.label("k2_fb_pre")
    a(f"""
    v_mov_b32 v{TMP+1}, 0xff800000
    v_mov_b32 v{TMP+2}, 0xff800000
    v_and_b32 v{TMP+3}, 31, v1
    v_lshrrev_b32 v{TMP+4}, 5, v1
    v_mul_u32_u24 v{TMP+4}, 1056, v{TMP+4}
    v_lshl_add_u32 v{TMP+3}, v{TMP+3}, 4, v{TMP+4}
    s_mov_b32 s42, 64
    """)
    a.label("k2_fb_max")
    a(f"""
    ds_read_b128 {vr(F[0][0],4)}, v{TMP+3}
    v_add_u32 v{TMP+3}, {KV_TILE}, v{TMP+3}
    s_waitcnt lgkmcnt(0)
    v_mfma_f32_32x32x16_bf16 {vr(S[0],16)}, {vr(F[0][0],4)}, {vr(Q[0],4)}, 0
    v_mfma_f32_32x32x16_bf16 {vr(CI[0],16)}, {vr(F[0][0],4)}, {vr(Q[1],4)}, 0
    s_nop 15
    """)
    for i in range(0,16,2): a(f"v_max3_f32 v{TMP+1}, v{S[0]+i}, v{S[0]+i+1}, v{TMP+1}")
    for i in range(0,16,2): a(f"v_max3_f32 v{TMP+2}, v{CI[0]+i}, v{CI[0]+i+1}, v{TMP+2}")
    a(f"""
    s_sub_u32 s42, s42, 1
    s_cmp_lg_u32 s42, 0
    s_cbranch_scc1 k2_fb_max
    v_mov_b32 v{TMP+3}, v{TMP+1}
    v_mov_b32 v{TMP+4}, v{TMP+2}
    s_nop 1
    v_permlane32_swap_b32 v{TMP+1}, v{TMP+3}
    v_permlane32_swap_b32 v{TMP+2}, v{TMP+4}
    s_nop 1
    v_max_f32 v{TMP+1}, v{TMP+1}, v{TMP+3}
    v_max_f32 v{TMP+2}, v{TMP+2}, v{TMP+4}
    """)
    for qq in range(2):
        for i in range(16): a(f"v_sub_f32 v{CI[qq]+i}, 0, v{TMP+1+qq}")
    a("s_nop 1")
    a("s_mov_b32 s43, s45")
    pipe_prologue(a,True)
    attn_loop(a,True)
    a("s_branch k2_tail")
    a.label("k2_tab")
    a.sc_srd=P1
    a(f"""
    v_lshlrev_b32 v{TMP}, 4, v1
    v_lshrrev_b32 v{TMP+3}, 4, v1
    s_lshl_b32 s32, s3, 3
    v_add_u32 v{TMP+4}, s32, v{TMP+3}        ; n2 (e=0)
    v_and_b32 v{TMP+5}, 15, v{TMP+4}
    v_and_b32 v{TMP+6}, 15, v1
    v_xor_b32 v{TMP+5}, v{TMP+5}, v{TMP+6}
    v_lshlrev_b32 v{TMP+5}, 4, v{TMP+5}
    v_lshl_add_u32 v{TMP+5}, v{TMP+4}, 8, v{TMP+5}
    v_xor_b32 v{TMP+6}, 64, v{TMP+5}
    v_add_u32 v{TMP+6}, 1024, v{TMP+6}
    s_lshl_b32 s32, s28, 13
    s_add_u32 s32, s32, {OFF_Z}
    s_lshl_b32 s33, s3, 11
    s_add_u32 m0, s33, {K2_COL}
    s_nop 0
    buffer_load_dwordx4 v{TMP+5}, s[20:23], s32 offen lds
    s_add_u32 m0, s33, {K2_COL+1024}
    s_nop 0
    buffer_load_dwordx4 v{TMP+6}, s[20:23], s32 offen lds
    """)
    a(f"s_lshl_b32 s36, s3, 13")
    a(f"s_add_u32 s36, s36, {OFF_T64}")
    for k in range(8):
        a(f"buffer_load_dwordx4 {vr(T64+4*k,4)}, v{TMP}, s[20:23], s36 offen offset:{(k%4)*1024}")
        if k==3: a("s_add_u32 s36, s36, 4096")
    a(f"s_lshl_b32 s36, s3, 12")
    a(f"s_add_u32 s36, s36, {OFF_TW}")
    for k in range(4):
        a(f"buffer_load_dwordx4 {vr(TW+4*k,4)}, v{TMP}, s[20:23], s36 offen offset:{k*1024}")
    a(f"s_mov_b32 s36, {OFF_A32}")
    for k in range(8):
        a(f"buffer_load_dwordx4 {vr(A32+4*k,4)}, v{TMP}, s[20:23], s36 offen offset:{(k%4)*1024}")
        if k==3: a("s_add_u32 s36, s36, 4096")
    a(f"""
    s_lshl_b32 s36, s28, 13
    s_lshl_b32 s37, s3, 11
    s_add_u32 s36, s36, s37
    s_add_u32 s36, s36, {OFF_WT}
    buffer_load_dwordx4 {vr(WT,4)}, v{TMP}, s[20:23], s36 offen
    buffer_load_dwordx4 {vr(WT+4,4)}, v{TMP}, s[20:23], s36 offen offset:1024
    s_setpc_b64 s[60:61]
    """)
    a.label("k2_b2")
    a.sc_srd=P1
    a.p1=P1
    b2_part1(a)
    b2_part2(a)
    if asm.F23:
        a.label("k2_pub")
        if not asm.F12: get_tag(a,"b")
        a.sc_srd="s[20:23]"
        a("s_waitcnt vmcnt(0)")
        bbar(a,"pub")
        a(f"""
        s_cmp_eq_u32 s3, 0
        s_cbranch_scc0 k2_pub1
        s_lshl_b32 s36, s28, 2
        s_add_u32 s36, s36, {OFF_F2B}
        """)
        flag_store(a,36,TMP)
        a.label("k2_pub1")
        a.sc_srd=P1
        a(f"""
        s_lshr_b32 s36, s19, 2                   ; ct
        s_lshl_b32 s36, s36, 16
        s_lshl_b32 s37, s3, 13
        s_add_u32 s36, s36, s37
        s_add_u32 s36, s36, {OFF_WOF}
        v_lshlrev_b32 v{TMP}, 4, v1
        """)
        for hh in range(8):
            a(f"s_add_u32 s37, s36, {hh*1024}")
            a(f"buffer_load_dwordx4 {vr(WOR+8*hh,4)}, v{TMP}, s[20:23], s37 offen")
            a(f"s_add_u32 s37, s37, 32768")
            a(f"buffer_load_dwordx4 {vr(WOR+8*hh+4,4)}, v{TMP}, s[20:23], s37 offen")
        a("s_setpc_b64 s[60:61]")
    a.sc_srd=None
    if own:
        a.label("k2_end")
        a("s_endpgm")
    return a
```

```python
import asm
from asm import *
from layout import *
import k1, k2
from k1 import srd, twiddle, gen_consts
from k2 import bbar, poll, flag_store, get_tag, WOR, TMP as T2
import os
OUTSC={'':'','sc1':' sc1','nt':' nt','none':''}[os.environ.get('OUTSC','sc1')]
KF_LDS=163840
PSTR=17408
S3=4*PSTR

def ph1_end(a):
    a.label("ph1_end")
    a("s_barrier")
    stamp(a,20)
    a("""
    v_mov_b32 v2, 0
    s_mov_b32 s49, 0x20000
    """)
    a.label("kf_tag")
    a("""
    global_load_dword v3, v2, s[54:55] sc1
    s_waitcnt vmcnt(0)
    v_readfirstlane_b32 s56, v3
    s_sub_u32 s49, s49, 1
    s_cmp_eq_u32 s49, 0
    s_cbranch_scc1 kf_tag_done
    s_cmp_eq_u32 s56, 0
    s_cbranch_scc0 kf_tag_done
    s_sleep 1
    s_branch kf_tag
    """)
    a.label("kf_tag_done")
    srd(a,20,16,WS_SIZE)
    a(f"""
    s_cmp_eq_u32 s3, 0
    s_cbranch_scc0 kf_noflag1
    s_cmp_ge_u32 s2, 192
    s_cbranch_scc1 kf_flagB
    s_lshl_b32 s36, s29, 4
    s_add_u32 s36, s36, s28
    s_lshl_b32 s36, s36, 2
    s_add_u32 s36, s36, {OFF_F1Q}
    s_branch kf_flag1
    """)
    a.label("kf_flagB")
    a(f"""
    s_sub_u32 s36, s2, 192
    s_lshl_b32 s36, s36, 2
    s_add_u32 s36, s36, {OFF_F1B}
    """)
    a.label("kf_flag1")
    a.sc_srd="s[20:23]"
    flag_store(a,36,4)
    a.sc_srd=None
    a.label("kf_noflag1")

def phase3(a):
    a.label("ph3_start")
    a.sc_srd="s[20:23]"
    a(f"""
    v_lshlrev_b32 v2, 4, v1                  ; lane*16
    s_cmp_ge_u32 s3, 4
    s_cbranch_scc1 ph3_B
    s_lshl_b32 s28, s18, 2
    s_and_b32 s29, s19, 3
    s_add_u32 s28, s28, s29                  ; rt
    s_lshr_b32 s29, s19, 2                   ; ct
    s_lshl_b32 s30, s28, 16
    s_lshl_b32 s31, s3, 13
    s_add_u32 s30, s30, s31
    s_add_u32 s30, s30, {OFF_O}
    s_cmp_eq_u32 s3, 0
    s_cbranch_scc0 ph3_nopoll
    s_lshr_b32 s32, s28, 2
    s_lshl_b32 s32, s32, 7
    s_add_u32 s32, s32, {OFF_F2}
    v_and_b32 v3, 31, v1
    v_lshlrev_b32 v3, 2, v3
    v_add_u32 v3, s32, v3
    """)
    poll(a,"p2",1,[(3,4)])
    a.label("ph3_nopoll")
    bbar(a,"p3a")
    stamp(a,21)
    OL=8; ACCS=[72,88,112,128]
    for hh in range(8):
        a(f"s_add_u32 s34, s30, {hh*1024}")
        a(f"buffer_load_dwordx4 {vr(OL+8*hh,4)}, v2, s[20:23], s34 offen")
        a(f"s_add_u32 s34, s34, 32768")
        a(f"buffer_load_dwordx4 {vr(OL+8*hh+4,4)}, v2, s[20:23], s34 offen")
    a(f"""
    v_and_b32 v3, 31, v1
    v_lshrrev_b32 v4, 5, v1
    v_mul_u32_u24 v3, 272, v3
    v_lshl_add_u32 v3, v4, 4, v3
    s_mul_i32 s33, s3, {PSTR}
    v_add_u32 v3, s33, v3
    v_lshrrev_b32 v4, 3, v1                  ; rl
    v_and_b32 v5, 7, v1                      ; c
    s_lshl_b32 s33, s3, 4
    v_add_u32 v6, s33, v4
    v_mul_u32_u24 v7, 272, v6
    v_lshl_add_u32 v7, v5, 5, v7
    s_lshl_b32 s33, s28, 6
    v_add_u32 v6, s33, v6
    v_lshlrev_b32 v6, 11, v6
    v_lshl_add_u32 v6, v5, 4, v6
    s_lshl_b32 s35, s29, 7
    """)
    srd(a,24,52,2048*1024*2)
    for hh in range(8):
        a(f"s_waitcnt vmcnt({2*(7-hh)})")
        for nl in range(2):
            for st in range(2):
                acc=ACCS[nl*2+st]
                a(f"v_mfma_f32_32x32x16_bf16 {vr(acc,16)}, {vr(WOR+8*hh+4*nl,4)}, {vr(OL+8*hh+4*st,4)}, {'0' if hh==0 else vr(acc,16)}")
    a("s_nop 7")
    for q in range(4):
        nl,st=q>>1,q&1
        if q==2: a("s_nop 3")
        for jj in range(4):
            a(f"ds_write_b128 v3, {vr(ACCS[q]+4*jj,4)} offset:{st*32*272+(32*nl+8*jj)*4}")
    bbar(a,"p3b")
    stamp(a,22)
    R=8
    for e in range(2):
        for w in range(4):
            for hf in range(2):
                a(f"ds_read_b128 {vr(R+32*e+8*w+4*hf,4)}, v7 offset:{w*PSTR+e*8*272+hf*16}")
    for e in range(2):
        a(f"s_waitcnt lgkmcnt({8*(1-e)})")
        b=R+32*e
        for k in range(8):
            a(f"v_add_f32 v{b+k}, v{b+k}, v{b+8+k}")
            a(f"v_add_f32 v{b+16+k}, v{b+16+k}, v{b+24+k}")
        for k in range(8): a(f"v_add_f32 v{b+k}, v{b+k}, v{b+16+k}")
        for k in range(4): a(f"v_cvt_pk_bf16_f32 v{80+4*e+k}, v{b+2*k}, v{b+2*k+1}")
        a(f"s_add_u32 s36, s35, {e*8*2048}")
        a(f"buffer_store_dwordx4 {vr(80+4*e,4)}, v6, s[24:27], s36 offen{OUTSC}")
    if asm.STAMP:
        a("s_waitcnt vmcnt(0)"); stamp(a,23); stamp_dump(a,0 if asm.F12 else 1)
    a("s_endpgm")
    a.label("ph3_B")
    VM,VQ,VMF,VQF=3,4,5,6
    R16,TWc,TWs,A32=8,16,24,32
    AB=64; P=80; D1=88; D2=112; TMP=128
    a(f"""
    s_sub_u32 s28, s3, 4                     ; jv
    s_lshr_b32 s29, s19, 3
    s_lshl_b32 s29, s29, 3
    s_add_u32 s29, s29, s18                  ; n2
    s_and_b32 s30, s19, 7                    ; a
    """)
    if not asm.F12: get_tag(a,"a")
    a(f"""
    s_cmp_eq_u32 s3, 4
    s_cbranch_scc0 ph3_nopollB
    v_lshlrev_b32 v{TMP}, 2, v1
    v_add_u32 v{TMP}, {OFF_F2B}, v{TMP}
    v_add_u32 v{TMP+1}, 256, v{TMP}
    v_add_u32 v{TMP+2}, 512, v{TMP}
    v_add_u32 v{TMP+3}, 768, v{TMP}
    """)
    poll(a,"p2b",4,[(TMP+k,TMP+4+k) for k in range(4)])
    a.label("ph3_nopollB")
    bbar(a,"p3c",8)
    a(f"""
    v_lshrrev_b32 v{TMP}, 1, v1
    v_lshlrev_b32 v{TMP}, 13, v{TMP}         ; (l>>1)*8192
    v_and_b32 v{TMP+1}, 1, v1
    v_lshl_add_u32 v{TMP}, v{TMP+1}, 4, v{TMP}
    s_lshl_b32 s31, s29, 8
    s_lshl_b32 s32, s30, 5
    s_add_u32 s31, s31, s32
    s_lshl_b32 s32, s28, 19                  ; jv*2*32*8192
    s_add_u32 s31, s31, s32
    s_add_u32 s31, s31, {OFF_Y}
    s_lshl_b32 s33, s28, 11
    s_add_u32 m0, s33, {S3}
    s_nop 0
    buffer_load_dwordx4 v{TMP}, s[20:23], s31 offen lds
    s_add_u32 m0, s33, {S3+1024}
    s_add_u32 s31, s31, {32*8192}
    buffer_load_dwordx4 v{TMP}, s[20:23], s31 offen lds
    v_and_b32 v{VM}, 15, v1
    v_lshrrev_b32 v{VQ}, 4, v1
    v_cvt_f32_u32 v{VMF}, v{VM}
    v_lshlrev_b32 v{VQF}, 2, v{VQ}
    v_cvt_f32_u32 v{VQF}, v{VQF}
    """)
    srd(a,24,52,2048*1024*2)
    gen_consts(a, True, 2.0**-21, R16, TWc, TWs, A32, TMP, VMF, VQF)
    a(f"""
    v_lshl_add_u32 v{TMP}, v{VQ}, 7, v{VM}           ; 128q + m
    v_sub_u32 v{TMP+1}, 512, v{TMP}
    v_cmp_gt_u32 vcc, 32, v1                         ; q<2 <=> lane<32
    v_mov_b32 v{TMP+2}, -1.0
    v_mov_b32 v{TMP+3}, -512
    v_cndmask_b32 v{TMP}, v{TMP+1}, v{TMP}, vcc
    v_cndmask_b32 v7, v{TMP+2}, 1.0, vcc             ; sigma
    v_mov_b32 v{TMP+4}, 512
    v_cndmask_b32 v{TMP+3}, v{TMP+3}, v{TMP+4}, vcc  ; step
    s_lshl_b32 s33, s28, 3
    s_add_u32 s33, s33, {S3}
    v_lshl_add_u32 v{TMP}, v{TMP}, 5, s33            ; base
    v_mov_b32 v{TMP+5}, s33
    v_cmp_eq_u32 vcc, 32, v1
    v_add_u32 v{TMP+7}, v{TMP}, v{TMP+3}             ; addr e=1
    s_nop 0
    v_cndmask_b32 v{TMP+6}, v{TMP}, v{TMP+5}, vcc
    s_mov_b64 s[36:37], vcc
    s_waitcnt vmcnt(0)
    """)
    bbar(a,"p3d",8)
    stamp(a,21)
    a(f"ds_read_b64 {vr(AB,2)}, v{TMP+6}")
    for e in range(1,8):
        i,t=e>>1,e&1
        a(f"ds_read_b64 {vr(AB+2*(4*t+i),2)}, v{TMP+7}")
        if e<7: a(f"v_add_u32 v{TMP+7}, v{TMP+7}, v{TMP+3}")
    a(f"""
    v_cmp_eq_u32 vcc, 0, v1
    s_nop 1
    s_or_b64 s[38:39], vcc, s[36:37]
    v_cndmask_b32 v{TMP+8}, v7, 0, s[38:39]          ; sigma0
    s_waitcnt lgkmcnt(0)
    """)
    for t in range(2):
        for i in range(4):
            A,B=AB+2*(4*t+i),AB+2*(4*t+i)+1
            ar,ai,br,bi=TMP+10,TMP+11,TMP+12,TMP+13
            a(f"v_lshlrev_b32 v{ar}, 16, v{A}")
            a(f"v_and_b32 v{ai}, 0xffff0000, v{A}")
            a(f"v_lshlrev_b32 v{br}, 16, v{B}")
            a(f"v_and_b32 v{bi}, 0xffff0000, v{B}")
            sg=7
            if t==0 and i==0:
                a(f"v_cndmask_b32 v{ar}, v{ar}, v{ai}, s[36:37]")
                a(f"v_cndmask_b32 v{br}, v{br}, v{bi}, s[36:37]")
                sg=TMP+8
            a(f"v_fma_f32 v{TMP+14}, -v{sg}, v{bi}, v{ar}")
            a(f"v_fma_f32 v{TMP+15}, v{sg}, v{ai}, v{br}")
            a(f"v_cvt_pk_bf16_f32 v{P+4*t+i}, v{TMP+14}, v{TMP+15}")
    a("s_nop 1")
    for t in range(2):
        for part in range(2):
            a(f"v_mfma_f32_16x16x32_bf16 {vr(D1+8*t+4*part,4)}, {vr(P+4*t,4)}, {vr(R16+4*part,4)}, 0")
    a("s_nop 7")
    for t in range(2):
        twiddle(a, D1+8*t, D1+8*t+4, TWc+4*t, TWs+4*t, P+4*t, TMP)
    a("s_nop 1")
    for t in range(2):
        for tp in range(2):
            for part in range(2):
                d=D2+8*tp+4*part
                a(f"v_mfma_f32_16x16x32_bf16 {vr(d,4)}, {vr(P+4*t,4)}, {vr(A32+((tp*2+part)*2+t)*4,4)}, {'0' if t==0 else vr(d,4)}")
    a(f"""
    v_lshlrev_b32 v{TMP}, 5, v{VM}
    v_lshl_add_u32 v{TMP}, v{VQ}, 3, v{TMP}
    s_lshl_b32 s33, s30, 3
    s_lshl_b32 s34, s28, 1
    s_add_u32 s33, s33, s34
    s_lshl_b32 s33, s33, 5
    s_add_u32 s33, s33, s29
    s_lshl_b32 s33, s33, 11
    s_add_u32 s33, s33, 1024
    s_nop 3
    """)
    for part in range(2):
        for tp in range(2):
            d=D2+8*tp+4*part
            o=TMP+2+2*(part*2+tp)
            a(f"v_cvt_pk_bf16_f32 v{o}, v{d}, v{d+1}")
            a(f"v_cvt_pk_bf16_f32 v{o+1}, v{d+2}, v{d+3}")
            a(f"s_add_u32 s34, s33, {part*32*2048+tp*512}")
            a(f"buffer_store_dwordx2 {vr(o,2)}, v{TMP}, s[24:27], s34 offen{OUTSC}")
    if asm.STAMP:
        a("s_waitcnt vmcnt(0)"); stamp(a,23); stamp_dump(a,0 if asm.F12 else 1)
    a.sc_srd=None

def build_k23():
    asm.FUSED=True; asm.F12=False; asm.F23=True
    a=Asm()
    asm.SMAP={0:0,1:4,2:5,3:6,4:7,6:8,8:9,21:10,22:11,23:12}
    if asm.STAMP==3: asm.SMAP={0:0,2:1,3:2,4:3,6:4,8:5,21:6,23:7}
    k2.build_k2(a)
    phase3(a)
    a.label("k2_end")
    a("s_endpgm")
    asm.FUSED=False; asm.F23=False; asm.SMAP=None
    return a

def build_fused():
    asm.FUSED=True; asm.F12=True; asm.F23=True
    a=Asm()
    asm.SMAP={0:0,1:1,3:2,20:3}
    k1.build_k1(a)
    ph1_end(a)
    asm.SMAP={9:4,2:5,3:6,4:7,6:8,8:9,21:10,22:11,23:12}
    k2.build_k2(a)
    phase3(a)
    a.label("k1_end")
    a.label("k2_end")
    a("s_endpgm")
    return a
```

```python
import asm
from asm import *
from layout import *
from k1 import srd, twiddle
import os
VAR=set(os.environ.get("VAR","").split(","))
def opt(name,default):
    for v in VAR:
        if v.startswith(name+"="): return int(v.split("=")[1])
    return default
K2_COL=135168
K2_E=K2_COL+8192
K2_LDS=163840
K2_CNT=163840-64
THRESH2=4096.0/1.03
NB=opt("NB",30)
NA=64-NB
ST1R=opt("ST1R",6)
DRIP=opt("DRIP",1)
DWAIT=opt("DWAIT",5 if ST1R==6 else 3)
ARRIT=opt("ARRIT",3)
TABIT=opt("TABIT",2)
B2IT=opt("B2IT",4)
PUBIT=opt("PUBIT",6)
XB=opt("XB",11)

HB=opt("HB",PUBIT+1); HA=opt("HA",7)
assert (XB-HB)%2==0 and XB>HB and (NB//2-XB)%2==0 and NB//2>XB and (NA//2-HA)%2==0, (HB,XB,NB,HA)
VK,VV,VIDX=2,3,4
Q=[8,12]; S=[16,32]; O=[48,64]
F=[(80,84,88),(92,96,100)]
TMP=104
T64,A32,TW,WT,BUF,D1,P=112,144,176,192,200,232,248
X2=200
CI=[112,128]
VM,VQd=108,109
WOR=144

def expo(a,r): a(f"v_exp_f32 v{r}, v{r}")

def unit(a,tau,qt,fb,extra=()):
    extra=list(extra)
    def ex():
        if extra: extra.pop(0)()
    tp=tau&1
    Sc,Sn=S[qt],S[1-qt]
    def pv(Ob,V,B): a(f"v_smfmac_f32_32x32x32_bf16 {vr(Ob,16)}, {vr(V,4)}, {vr(B,8)}, v{VIDX}")
    def qk(Sd,K,qq): a(f"v_mfma_f32_32x32x16_bf16 {vr(Sd,16)}, {vr(K,4)}, {vr(Q[qq],4)}, {vr(CI[qq],16) if fb else '0'}")
    if qt==0:
        Kc,V0c,V1c=F[tp]; Kn,V0n,V1n=F[1-tp]
        expo(a,Sc); expo(a,Sc+1)
        pv(O[1],V1n,Sn+8)
        a(f"ds_read_b128 {vr(Kn,4)}, v{VK} offset:{(tau+1)*KV_TILE}")
        expo(a,Sc+2)
        a(f"ds_read_b128 {vr(V0n,4)}, v{VV} offset:{(tau+1)*KV_TILE+512}")
        expo(a,Sc+3)
        a(f"ds_read_b128 {vr(V1n,4)}, v{VV} offset:{(tau+1)*KV_TILE+784}")
        expo(a,Sc+4); expo(a,Sc+5)
        qk(Sn,Kc,1)
        for i in range(6,12):
            expo(a,Sc+i)
            if i==7: ex()
        pv(O[0],V0c,Sc)
        for i in range(12,16):
            expo(a,Sc+i)
            if i==13: ex()
    else:
        Kc,V0c,V1c=F[tp]; Kn,V0n,V1n=F[1-tp]
        expo(a,Sc); expo(a,Sc+1)
        pv(O[0],V1c,Sn+8)
        for i in range(2,6): expo(a,Sc+i)
        a("s_waitcnt lgkmcnt(0)")
        qk(Sn,Kn,0)
        for i in range(6,12):
            expo(a,Sc+i)
            if i==7: ex()
        pv(O[1],V0c,Sc)
        for i in range(12,16):
            expo(a,Sc+i)
            if i==13: ex()

def bbar(a,tag,cnt=0):
    a(f"""
    v_mov_b32 v111, {K2_CNT+cnt}
    v_mov_b32 v110, 1
    s_waitcnt lgkmcnt(0)
    s_mov_b64 exec, 1
    ds_add_u32 v111, v110
    s_mov_b64 exec, -1
    s_add_u32 s47, s47, 4
    """)
    a.label(f"k2_bbar_{tag}")
    a(f"""
    ds_read_b32 v109, v111
    s_waitcnt lgkmcnt(0)
    v_readfirstlane_b32 s48, v109
    s_nop 0
    s_cmp_lt_u32 s48, s47
    s_cbranch_scc1 k2_bbar_{tag}
    """)

def dma_arrive(a,younger=0):
    a(f"""
    s_waitcnt vmcnt({younger})
    v_mov_b32 v{TMP}, {K2_CNT+4}
    v_mov_b32 v{TMP+1}, 1
    s_mov_b64 exec, 1
    ds_add_u32 v{TMP}, v{TMP+1}
    s_mov_b64 exec, -1
    """)
def dma_wait(a,tag):
    a(f"v_mov_b32 v{TMP}, {K2_CNT+4}")
    a.label(f"k2_dwait_{tag}")
    a(f"""
    ds_read_b32 v{TMP+1}, v{TMP}
    s_waitcnt lgkmcnt(0)
    v_readfirstlane_b32 s48, v{TMP+1}
    s_nop 0
    s_cmp_lt_u32 s48, 8
    s_cbranch_scc1 k2_dwait_{tag}
    """)

def kv_dma(a, ns):
    for n in ns:
        a(f"s_add_u32 m0, s34, {n*1024}")
        a(f"s_add_u32 s36, s35, {n*1024}")
        a(f"buffer_load_dwordx4 v{TMP}, s[20:23], s36 offen lds")

def b2_part1(a):
    a("s_waitcnt vmcnt(0)")
    bbar(a,"col")
    a(f"""
    v_and_b32 v{VM}, 15, v1
    v_lshrrev_b32 v{VQd}, 4, v1
    v_xor_b32 v104, v{VM}, v{VQd}
    v_lshlrev_b32 v104, 4, v104
    v_lshl_add_u32 v104, v{VM}, 8, v104
    v_add_u32 v104, {K2_COL}, v104
    v_xor_b32 v105, 64, v104
    v_xor_b32 v106, 128, v104
    v_xor_b32 v107, 192, v104
    """)
    for u in range(4):
        for t in range(2):
            a(f"ds_read_b128 {vr(BUF+16*t+4*u,4)}, v{104+u} offset:{t*4096}")
    for u in range(4):
        a(f"s_waitcnt lgkmcnt({6-2*u})")
        for t in range(2):
            for part in range(2):
                d=D1+8*t+4*part
                a(f"v_mfma_f32_16x16x32_bf16 {vr(d,4)}, {vr(BUF+16*t+4*u,4)}, {vr(T64+8*u+4*part,4)}, {'0' if u==0 else vr(d,4)}")
    a("""
    s_cmp_eq_u32 s28, 0
    s_cbranch_scc0 k2_p1_noab
    """)
    a(f"v_lshlrev_b32 v110, 4, v1")
    a(f"s_lshl_b32 s36, s3, 12")
    a(f"s_add_u32 s36, s36, {OFF_AB}")
    for ep in range(4):
        a(f"buffer_load_dwordx4 {vr(216+4*ep,4)}, v110, s[20:23], s36 offen offset:{ep*1024}")
    a.label("k2_p1_noab")
    a("s_nop 6")
    for t in range(2):
        twiddle(a, D1+8*t, D1+8*t+4, TW+4*t, TW+8+4*t, P+4*t, 104)
    a("s_nop 1")
    for t in range(2):
        for tp in range(2):
            for part in range(2):
                d=X2+8*tp+4*part
                a(f"v_mfma_f32_16x16x32_bf16 {vr(d,4)}, {vr(A32+((tp*2+part)*2+t)*4,4)}, {vr(P+4*t,4)}, {'0' if t==0 else vr(d,4)}")

def b2_part2(a):
    a("s_waitcnt vmcnt(0)")
    a("""
    s_cmp_eq_u32 s28, 0
    s_cbranch_scc1 k2_p2_special
    """)
    for tp in range(2):
        xr,xi=X2+8*tp,X2+8*tp+4
        wr,wi=D1+8*tp,D1+8*tp+4
        for i in range(4):
            a(f"v_lshlrev_b32 v{wr+i}, 16, v{WT+4*tp+i}")
            a(f"v_and_b32 v{wi+i}, 0xffff0000, v{WT+4*tp+i}")
        for p in (0,2):
            a(f"v_pk_mul_f32 {vr(104+p,2)}, {vr(xr+p,2)}, {vr(wr+p,2)}")
            a(f"v_pk_mul_f32 {vr(108+p,2)}, {vr(xr+p,2)}, {vr(wi+p,2)}")
        for p in (0,2):
            a(f"v_pk_fma_f32 {vr(104+p,2)}, {vr(xi+p,2)}, {vr(wi+p,2)}, {vr(104+p,2)} neg_lo:[1,0,0] neg_hi:[1,0,0]")
            a(f"v_pk_fma_f32 {vr(108+p,2)}, {vr(xi+p,2)}, {vr(wr+p,2)}, {vr(108+p,2)}")
        for i in range(4): a(f"v_cvt_pk_bf16_f32 v{P+4*tp+i}, v{104+i}, -v{108+i}")
    a.label("k2_p2_common")
    a("s_nop 1")
    for tp in range(2):
        for t in range(2):
            for part in range(2):
                d=D1+8*t+4*part
                a(f"v_mfma_f32_16x16x32_bf16 {vr(d,4)}, {vr(A32+((t*2+part)*2+tp)*4,4)}, {vr(P+4*tp,4)}, {'0' if tp==0 else vr(d,4)}")
    t0=X2
    a(f"""
    v_and_b32 v{t0}, 15, v1                 ; m
    v_lshrrev_b32 v{t0+1}, 4, v1            ; q
    v_lshrrev_b32 v{t0+2}, 2, v{t0}         ; m>>2
    s_lshl_b32 s36, s3, 2
    v_add_u32 v{t0+2}, s36, v{t0+2}         ; 4w + (m>>2)
    v_lshlrev_b32 v{t0+3}, 2, v{t0+1}       ; 4q
    v_xor_b32 v{t0+2}, v{t0+2}, v{t0+3}
    v_lshlrev_b32 v{t0+2}, 4, v{t0+2}
    v_lshl_add_u32 v{t0+2}, v{t0+3}, 8, v{t0+2}
    v_and_b32 v{t0+4}, 3, v{t0}
    v_lshl_add_u32 v{t0+2}, v{t0+4}, 2, v{t0+2}
    v_add_u32 v{t0+8}, {K2_E}, v{t0+2}
    v_xor_b32 v{t0+9}, 16, v{t0+8}
    v_xor_b32 v{t0+10}, 32, v{t0+8}
    v_xor_b32 v{t0+11}, 48, v{t0+8}
    """)
    for t in range(2):
        twiddle(a, D1+8*t, D1+8*t+4, TW+4*t, TW+8+4*t, P+4*t, 104)
    for t in range(2):
        for i in range(4):
            a(f"ds_write_b32 v{t0+8+i}, v{P+4*t+i} offset:{t*4096+i*256}")
    bbar(a,"e")
    a(f"""
    v_and_b32 v{VM}, 15, v1
    v_lshrrev_b32 v{VQd}, 4, v1
    v_xor_b32 v104, v{VM}, v{VQd}
    v_lshlrev_b32 v104, 4, v104
    v_lshl_add_u32 v104, v{VM}, 8, v104
    v_add_u32 v104, {K2_E}, v104
    v_xor_b32 v105, 64, v104
    v_xor_b32 v106, 128, v104
    v_xor_b32 v107, 192, v104
    """)
    for u in range(4):
        for t in range(2):
            a(f"ds_read_b128 {vr(BUF+16*t+4*u,4)}, v{104+u} offset:{t*4096}")
    a(f"""
    v_lshlrev_b32 v110, 8, v{VM}
    v_lshl_add_u32 v110, v{VQd}, 4, v110
    s_lshl_b32 s36, s28, 13
    s_lshl_b32 s37, s3, 6
    s_add_u32 s36, s36, s37
    s_add_u32 s36, s36, {OFF_Y}
    """)
    for u in range(4):
        a(f"s_waitcnt lgkmcnt({6-2*u})")
        for t in range(2):
            for part in range(2):
                d=D1+8*t+4*part
                a(f"v_mfma_f32_16x16x32_bf16 {vr(d,4)}, {vr(T64+8*u+4*part,4)}, {vr(BUF+16*t+4*u,4)}, {'0' if u==0 else vr(d,4)}")
    a("s_nop 7")
    for t in range(2):
        for i in range(4): a(f"v_cvt_pk_bf16_f32 v{P+4*t+i}, v{D1+8*t+i}, -v{D1+8*t+4+i}")
        a.sc_srd="s[20:23]"
        a(f"buffer_store_dwordx4 {vr(P+4*t,4)}, v110, s[20:23], s36 offen")
        a.sc_srd=a.p1
        if t==0: a("s_add_u32 s36, s36, 4096")
    a("s_setpc_b64 s[60:61]")
    a.label("k2_p2_special")
    bbar(a,"s0")
    XCH=K2_COL
    a(f"""
    v_and_b32 v104, 15, v1
    v_lshrrev_b32 v105, 4, v1
    s_lshl_b32 s36, s3, 4
    v_add_u32 v104, s36, v104                 ; k1
    v_lshl_add_u32 v104, v105, 8, v104         ; g0 = k1 + 64*4q
    v_lshlrev_b32 v106, 3, v104
    v_add_u32 v106, {XCH}, v106
    """)
    for tp in range(2):
        for i in range(4):
            off=(i*64+tp*1024)*8
            a(f"ds_write_b32 v106, v{X2+8*tp+i} offset:{off}")
            a(f"ds_write_b32 v106, v{X2+8*tp+4+i} offset:{off+4}")
    bbar(a,"s1")
    for tp in range(2):
        for i in range(4):
            e=4*tp+i
            a(f"v_sub_u32 v107, {2048-(i*64+tp*1024)}, v104")
            a(f"v_and_b32 v107, 2047, v107")
            a(f"v_lshlrev_b32 v107, 3, v107")
            a(f"v_add_u32 v107, {XCH}, v107")
            a(f"ds_read_b64 {vr(D1+2*e,2)}, v107")
    bbar(a,"s2")
    for tp in range(2):
        for i in range(4):
            e=4*tp+i
            src=216+2*e
            ab=WT
            a(f"v_lshlrev_b32 v{ab}, 16, v{src}")
            a(f"v_and_b32 v{ab+1}, 0xffff0000, v{src}")
            a(f"v_lshlrev_b32 v{ab+2}, 16, v{src+1}")
            a(f"v_and_b32 v{ab+3}, 0xffff0000, v{src+1}")
            zr,zi=X2+8*tp+i,X2+8*tp+4+i
            pr,pi=D1+2*e,D1+2*e+1
            a(f"v_mul_f32 v104, v{zr}, v{ab}")
            a(f"v_mul_f32 v105, v{zr}, v{ab+1}")
            a(f"v_fma_f32 v104, -v{zi}, v{ab+1}, v104")
            a(f"v_fma_f32 v105, v{zi}, v{ab}, v105")
            a(f"v_fma_f32 v104, v{pr}, v{ab+2}, v104")
            a(f"v_fma_f32 v105, v{pr}, v{ab+3}, v105")
            a(f"v_fma_f32 v104, v{pi}, v{ab+3}, v104")
            a(f"v_fma_f32 v105, -v{pi}, v{ab+2}, v105")
            a(f"v_cvt_pk_bf16_f32 v{P+e}, v104, -v105")
    a("s_branch k2_p2_common")


def rounds():
    nA0=NB*KV_TILE//1024
    st1=[x for k in range(ST1R//2) for x in (8*k,nA0+8*k)]
    rest=[]
    n=8*(ST1R//2)
    while n<nA0:
        rest.append(min(n,nA0-8) if n+8>nA0 else n); n+=8
    n=nA0+8*(ST1R//2)
    while n<132:
        rest.append(min(n,124)); n+=8
    lo=[r for r in rest if r<nA0]; hi=[r for r in rest if r>=nA0]
    out=[]
    while lo or hi:
        if lo: out.append(lo.pop(0))
        if hi: out.append(hi.pop(0))
    return st1,out

def attn_loop(a,fb):
    if fb:
        a.label("k2_loop_fb")
        unit(a,0,0,fb); unit(a,0,1,fb); unit(a,1,0,fb); unit(a,1,1,fb)
        a(f"""
        v_add_u32 v{VK}, {2*KV_TILE}, v{VK}
        v_add_u32 v{VV}, {2*KV_TILE}, v{VV}
        s_add_u32 s42, s42, 1
        s_cmp_lt_u32 s42, s43
        s_cbranch_scc1 k2_loop_fb
        """)
        return
    a.label("k2_loop")
    a("""
    s_cmp_eq_u32 s42, s40
    s_cbranch_scc1 k2_hook
    """)
    a.label("k2_hookret")
    unit(a,0,0,fb); unit(a,0,1,fb); unit(a,1,0,fb); unit(a,1,1,fb)
    a(f"""
    v_add_u32 v{VK}, {2*KV_TILE}, v{VK}
    v_add_u32 v{VV}, {2*KV_TILE}, v{VV}
    s_add_u32 s42, s42, 1
    s_cmp_lt_u32 s42, s44
    s_cbranch_scc1 k2_loop
    """)
    a(".p2align 3, 0xbf800000" if False else "s_nop 0") if False else None
    a.label("k2_lean")
    for tau in range(4):
        unit(a,tau,0,fb); unit(a,tau,1,fb)
    a(f"""
    v_add_u32 v{VK}, {4*KV_TILE}, v{VK}
    v_add_u32 v{VV}, {4*KV_TILE}, v{VV}
    s_sub_u32 s43, s43, 1
    s_cmp_lg_u32 s43, 0
    s_cbranch_scc1 k2_lean
    s_cmp_eq_u32 s41, 0
    s_cbranch_scc1 k2_lean_done
    s_setprio 0
    s_mov_b32 s43, s41
    s_mov_b32 s41, 0
    s_branch k2_lean
    """)
    a.label("k2_lean_done")

def pipe_prologue(a,fb):
    K,V0,V1=F[0]
    a(f"""
    ds_read_b128 {vr(K,4)}, v{VK}
    ds_read_b128 {vr(V0,4)}, v{VV} offset:512
    ds_read_b128 {vr(V1,4)}, v{VV} offset:784
    s_waitcnt lgkmcnt(2)
    v_mfma_f32_32x32x16_bf16 {vr(S[0],16)}, {vr(K,4)}, {vr(Q[0],4)}, {vr(CI[0],16) if fb else '0'}
    s_mov_b32 s42, 0
    s_waitcnt lgkmcnt(0)
    s_nop 11
    """)

def poll(a,tag,nloads,addr_regs,srdreg="s[20:23]",soff="0"):
    a(f"s_mov_b32 s49, 0x20000")
    a.label(f"poll_{tag}")
    for k in range(nloads):
        a(f"buffer_load_dword v{addr_regs[k][1]}, v{addr_regs[k][0]}, {srdreg}, {soff} offen")
    a("s_waitcnt vmcnt(0)")
    for k in range(nloads):
        a(f"v_cmp_eq_u32 {'vcc' if k==0 else 's[50:51]'}, s56, v{addr_regs[k][1]}")
        if k>0:
            a("s_nop 1"); a("s_and_b64 vcc, vcc, s[50:51]")
    a(f"""
    s_nop 1
    s_cmp_eq_u64 vcc, -1
    s_cbranch_scc1 poll_{tag}_done
    s_sub_u32 s49, s49, 1
    s_cmp_eq_u32 s49, 0
    s_cbranch_scc1 poll_{tag}_done
    s_sleep 1
    s_branch poll_{tag}
    """)
    a.label(f"poll_{tag}_done")

def get_tag(a,tagname):
    a(f"""
    v_mov_b32 v{TMP}, 0
    s_mov_b32 s49, 0x20000
    """)
    a.label(f"kf_tag_{tagname}")
    a(f"""
    global_load_dword v{TMP+1}, v{TMP}, s[54:55] sc1
    s_waitcnt vmcnt(0)
    v_readfirstlane_b32 s56, v{TMP+1}
    s_sub_u32 s49, s49, 1
    s_cmp_eq_u32 s49, 0
    s_cbranch_scc1 kf_tag_{tagname}_done
    s_cmp_eq_u32 s56, 0
    s_cbranch_scc0 kf_tag_{tagname}_done
    s_sleep 1
    s_branch kf_tag_{tagname}
    """)
    a.label(f"kf_tag_{tagname}_done")

def flag_store(a, soff_expr_reg, vtmp):
    a(f"""
    v_mov_b32 v{vtmp}, 0
    v_mov_b32 v{vtmp+1}, s56
    s_mov_b64 exec, 1
    buffer_store_dword v{vtmp+1}, v{vtmp}, s[20:23], s{soff_expr_reg} offen
    s_mov_b64 exec, -1
    """)

def build_k2(a=None):
    own = a is None
    if own: a=Asm()
    P1="s[20:23]" if asm.F12 else None
    a.sc_srd=P1
    st1,rest=rounds()
    R=len(rest)
    if not asm.F12:
        a(f"""
        s_cmp_ge_u32 s2, 256
        s_cbranch_scc1 k2_end
        s_load_dwordx2 s[16:17], s[0:1], 64      ; ws
        {"s_load_dwordx4 s[52:55], s[0:1], 48      ; out, debug" if asm.F23 else ""}
        v_and_b32 v1, 63, v0
        v_lshrrev_b32 v{TMP}, 6, v0
        s_nop 0
        v_readfirstlane_b32 s3, v{TMP}
        """)
        if asm.F23:
            a("""
            s_or_b32 s57, s2, s3
            s_cmp_eq_u32 s57, 0
            s_cbranch_scc0 kf_nononce
            s_memrealtime s[56:57]
            s_waitcnt lgkmcnt(0)
            s_or_b32 s56, s56, 1
            v_mov_b32 v2, 0
            v_mov_b32 v3, s56
            s_mov_b64 exec, 1
            global_store_dword v2, v3, s[54:55] sc1
            s_mov_b64 exec, -1
            """)
            a.label("kf_nononce")
    stamp(a,0)
    a(f"""
    s_and_b32 s18, s2, 7
    s_lshr_b32 s19, s2, 3
    s_lshl_b32 s29, s18, 2
    s_and_b32 s30, s19, 3
    s_add_u32 s29, s29, s30                  ; hd
    s_lshr_b32 s30, s19, 2                   ; qb
    s_lshl_b32 s28, s18, 5
    s_add_u32 s28, s28, s19                  ; f
    v_lshlrev_b32 v{TMP}, 4, v1              ; lane*16
    s_and_b32 s33, s3, 3                     ; qg
    s_lshl_b32 s31, s30, 3
    s_lshl_b32 s33, s33, 1
    s_add_u32 s31, s31, s33
    s_waitcnt lgkmcnt(0)
    """)
    srd(a,20,16,WS_SIZE)
    if asm.F12:
        a(f"""
        s_cmp_eq_u32 s3, 0
        s_cbranch_scc0 k2_nopoll
        s_lshr_b32 s32, s29, 3                   ; hd>>3
        v_and_b32 v{TMP+1}, 15, v1
        v_lshrrev_b32 v{TMP+2}, 4, v1            ; group 0:K 1:V 2,3:Q
        v_and_b32 v{TMP+3}, 1, v1
        s_lshl_b32 s33, s30, 1
        v_add_u32 v{TMP+3}, s33, v{TMP+3}
        v_cmp_gt_u32 vcc, 2, v{TMP+2}
        v_mov_b32 v{TMP+4}, 4
        v_mov_b32 v{TMP+5}, 8
        v_cndmask_b32 v{TMP+1}, v{TMP+3}, v{TMP+1}, vcc   ; rb
        v_cmp_eq_u32 vcc, 0, v{TMP+2}
        v_mov_b32 v{TMP+6}, 0
        s_nop 0
        v_cndmask_b32 v{TMP+6}, v{TMP+6}, v{TMP+4}, vcc
        v_cmp_eq_u32 vcc, 1, v{TMP+2}
        s_nop 1
        v_cndmask_b32 v{TMP+6}, v{TMP+6}, v{TMP+5}, vcc   ; type*4
        v_add_u32 v{TMP+6}, s32, v{TMP+6}        ; cb
        v_lshl_add_u32 v{TMP+1}, v{TMP+6}, 4, v{TMP+1}
        v_lshlrev_b32 v{TMP+1}, 2, v{TMP+1}
        v_add_u32 v{TMP+1}, {OFF_F1Q}, v{TMP+1}
        v_lshlrev_b32 v{TMP+2}, 2, v1
        v_add_u32 v{TMP+2}, {OFF_F1B}, v{TMP+2}
        """)
        poll(a,"p1",2,[(TMP+1,TMP+3),(TMP+2,TMP+4)])
        a.label("k2_nopoll")
        a("s_barrier")
        stamp(a,9)
    a(f"""
    s_lshl_b32 s32, s29, 16
    s_lshl_b32 s33, s31, 10
    s_add_u32 s32, s32, s33
    s_add_u32 s32, s32, {OFF_Q}
    buffer_load_dwordx4 {vr(Q[0],4)}, v{TMP}, s[20:23], s32 offen
    buffer_load_dwordx4 {vr(Q[1],4)}, v{TMP}, s[20:23], s32 offen offset:1024
    v_lshlrev_b32 v{TMP+1}, 2, v1
    s_lshl_b32 s32, s29, 8
    s_add_u32 s32, s32, {OFF_KN}
    buffer_load_dword v{TMP+2}, v{TMP+1}, s[20:23], s32 offen
    s_lshl_b32 s34, s3, 10                   ; wave*1024
    s_mul_i32 s35, s29, {KV_HEAD}
    s_add_u32 s35, s35, s34
    s_add_u32 s35, s35, {OFF_KV}
    """)
    kv_dma(a,st1)
    a("s_waitcnt vmcnt(4)")
    a.label("k2_loaded")
    for qq in range(2):
        acc=TMP+5+qq
        for k in range(4):
            a(f"v_lshlrev_b32 v{TMP+3}, 16, v{Q[qq]+k}")
            a(f"v_and_b32 v{TMP+4}, 0xffff0000, v{Q[qq]+k}")
            a(f"v_mul_f32 v{acc}, v{TMP+3}, v{TMP+3}" if k==0 else f"v_fmac_f32 v{acc}, v{TMP+3}, v{TMP+3}")
            a(f"v_fmac_f32 v{acc}, v{TMP+4}, v{TMP+4}")
    a(f"""
    s_nop 1
    v_permlane32_swap_b32 v{TMP+5}, v{TMP+6}
    s_nop 1
    v_add_f32 v{TMP+5}, v{TMP+5}, v{TMP+6}
    """)
    for sh in ("row_shr:1","row_shr:2","row_shr:4","row_shr:8"):
        a("s_nop 0")
        a(f"v_max_f32_dpp v{TMP+2}, v{TMP+2}, v{TMP+2} {sh} row_mask:0xf bank_mask:0xf bound_ctrl:0")
        a(f"v_max_f32_dpp v{TMP+5}, v{TMP+5}, v{TMP+5} {sh} row_mask:0xf bank_mask:0xf bound_ctrl:0")
    for sh in ("row_bcast:15 row_mask:0xa","row_bcast:31 row_mask:0xc"):
        a("s_nop 0")
        a(f"v_max_f32_dpp v{TMP+2}, v{TMP+2}, v{TMP+2} {sh} bank_mask:0xf")
        a(f"v_max_f32_dpp v{TMP+5}, v{TMP+5}, v{TMP+5} {sh} bank_mask:0xf")
    a(f"""
    s_nop 0
    v_mul_f32 v{TMP+2}, v{TMP+2}, v{TMP+5}
    s_nop 0
    v_readlane_b32 s38, v{TMP+2}, 63
    v_and_b32 v{TMP+3}, 31, v1
    v_lshrrev_b32 v{TMP+4}, 5, v1
    v_mul_u32_u24 v{TMP+4}, 1056, v{TMP+4}
    v_lshl_add_u32 v{VK}, v{TMP+3}, 4, v{TMP+4}
    s_cmp_lt_u32 s3, 4
    s_cselect_b32 s36, 0, {NB*KV_TILE}
    s_cselect_b32 s45, {NB//2}, {NA//2}
    s_cselect_b32 s44, {HB}, {HA}
    s_cselect_b32 s43, {(XB-HB)//2}, {(NA//2-HA)//2}
    s_cselect_b32 s41, {(NB//2-XB)//2}, 0
    s_cselect_b32 s40, {min(TABIT,ARRIT)}, {ARRIT}
    v_add_u32 v{VK}, s36, v{VK}
    v_cmp_gt_u32 vcc, 17, v{TMP+3}
    v_mov_b32 v{TMP+4}, 0x40000
    v_mov_b32 v{VIDX}, 0xdddd
    v_cndmask_b32 v{VV}, v{TMP+4}, v{VK}, vcc
    """)
    for qq in range(2):
        for i in range(16): a(f"v_mov_b32 v{O[qq]+i}, 0")
    for i in range(8): a(f"v_mov_b32 v{S[1]+8+i}, 0")
    for i in range(4): a(f"v_mov_b32 v{F[1][2]+i}, 0")
    if "nohook" in VAR:
        a("s_waitcnt vmcnt(0)"); a("s_mov_b32 s40, 99")
    a(f"""
    v_mov_b32 v{TMP+3}, {K2_CNT}
    v_mov_b32 v{TMP+4}, 0
    v_mov_b32 v{TMP+5}, 0
    v_mov_b32 v{TMP+6}, 0
    v_mov_b32 v{TMP+7}, 0
    s_mov_b32 s47, 0
    s_cmp_eq_u32 s3, 0
    s_cbranch_scc0 k2_noinit
    ds_write_b128 v{TMP+3}, {vr(TMP+4,4)}
    s_waitcnt lgkmcnt(0)
    """)
    a.label("k2_noinit")
    a("s_waitcnt vmcnt(0)")
    stamp(a,1)
    a("s_barrier")
    a(f"v_lshlrev_b32 v{TMP}, 4, v1")
    if not DRIP: kv_dma(a,rest)
    PF = "pf" in VAR and asm.F23
    if PF:
        a("s_cmp_eq_u32 s3, 7")
        a("s_cbranch_scc0 k2_nopf")
        code_prefetch(a,"k2_tail","k2_end",2,TMP+1,5)
        a.label("k2_nopf")
    a("""
    s_cmp_lt_u32 s3, 4
    s_cbranch_scc1 k2_prioB
    s_setprio 1
    s_branch k2_priodone
    """)
    a.label("k2_prioB")
    a("s_setprio 2" if "noprio" not in VAR else "s_setprio 0")
    a.label("k2_priodone")
    if "soloA" in VAR:
        a("s_cmp_lt_u32 s3, 4"); a("s_cbranch_scc1 k2_end")
    stamp(a,2)
    a(f"""
    s_cmp_le_u32 s38, {hex(f2u(THRESH2))}
    s_cbranch_scc0 k2_fallback
    """)
    pipe_prologue(a,False)
    if DRIP:
        todo=[(lambda n=n: kv_dma(a,[n])) for n in rest]
        per=-(-len(todo)//8)
        for trip in range(2):
            for tau in range(2):
                for qt in range(2):
                    take=todo[:per]; todo=todo[per:]
                    unit(a,tau,qt,False,take)
            a(f"v_add_u32 v{VK}, {2*KV_TILE}, v{VK}")
            a(f"v_add_u32 v{VV}, {2*KV_TILE}, v{VV}")
        assert not todo
        a("s_mov_b32 s42, 2")
    attn_loop(a,False)
    a.label("k2_tail")
    stamp(a,6)
    a(f"""
    s_nop 1
    v_smfmac_f32_32x32x32_bf16 {vr(O[1],16)}, {vr(F[1][2],4)}, {vr(S[1]+8,8)}, v{VIDX}
    s_setprio 0
    s_mul_i32 s36, s3, 2304
    s_add_u32 s37, s36, {K2_E+8192-3*2304}
    s_add_u32 s36, s36, {K2_COL}
    s_cmp_lt_u32 s3, 3
    s_cselect_b32 s36, s36, s37
    s_xor_b32 s44, s3, 4
    s_mul_i32 s45, s44, 2304
    s_add_u32 s46, s45, {K2_E+8192-3*2304}
    s_add_u32 s45, s45, {K2_COL}
    s_cmp_lt_u32 s44, 3
    s_cselect_b32 s45, s45, s46
    v_lshlrev_b32 v{TMP}, 4, v1
    v_lshlrev_b32 v{TMP+1}, 2, v1
    v_add_u32 v{TMP+2}, s36, v{TMP}
    v_add_u32 v{TMP+3}, s36, v{TMP+1}
    v_add_u32 v{TMP+4}, s45, v{TMP}
    v_add_u32 v{TMP+5}, s45, v{TMP+1}
    s_cmp_lt_u32 s3, 4
    s_cbranch_scc1 k2_tailB
    """)
    a(f"""
    s_nop 9
    ds_write_b128 v{TMP+2}, {vr(O[0],4)}
    ds_write_b128 v{TMP+2}, {vr(O[0]+4,4)} offset:1024
    ds_write_b32 v{TMP+3}, v{O[0]+8} offset:2048
    s_nop 7
    """)
    for i in range(9): a(f"v_mov_b32 v{O[0]+i}, v{O[1]+i}")
    a("""
    s_add_u32 s31, s31, 1
    s_branch k2_tail2
    """)
    a.label("k2_tailB")
    a(f"""
    s_nop 15
    s_nop 3
    ds_write_b128 v{TMP+2}, {vr(O[1],4)}
    ds_write_b128 v{TMP+2}, {vr(O[1]+4,4)} offset:1024
    ds_write_b32 v{TMP+3}, v{O[1]+8} offset:2048
    """)
    a.label("k2_tail2")
    a(f"""
    s_waitcnt lgkmcnt(0)
    {"" if "soloA" in VAR else "s_barrier"}
    ds_read_b128 {vr(S[0],4)}, v{TMP+4}
    ds_read_b128 {vr(S[0]+4,4)}, v{TMP+4} offset:1024
    ds_read_b32 v{S[0]+8}, v{TMP+5} offset:2048
    s_lshl_b32 s36, s31, 5
    s_add_u32 s36, s36, s29
    s_lshl_b32 s36, s36, 10
    s_add_u32 s36, s36, {OFF_O}
    s_waitcnt lgkmcnt(0)
    """)
    for i in range(9): a(f"v_add_f32 v{O[0]+i}, v{O[0]+i}, v{S[0]+i}")
    a(f"""
    v_mov_b32 v{TMP+1}, v{O[0]+8}
    v_mov_b32 v{TMP+2}, v{O[0]+8}
    s_nop 1
    v_permlane32_swap_b32 v{TMP+1}, v{TMP+2}
    s_nop 1
    v_rcp_f32 v{TMP+1}, v{TMP+1}
    s_nop 0
    """)
    for i in range(8): a(f"v_mul_f32 v{O[0]+i}, v{O[0]+i}, v{TMP+1}")
    for i in range(4): a(f"v_cvt_pk_bf16_f32 v{TMP+4+i}, v{O[0]+2*i}, v{O[0]+2*i+1}")
    a.sc_srd="s[20:23]"
    a(f"buffer_store_dwordx4 {vr(TMP+4,4)}, v{TMP}, s[20:23], s36 offen")
    if asm.F23:
        a("""
        s_waitcnt vmcnt(0)
        s_barrier
        """)
        stamp(a,8)
        a(f"""
        s_cmp_eq_u32 s3, 0
        s_cbranch_scc0 ph3_start
        s_lshl_b32 s36, s30, 5
        s_add_u32 s36, s36, s29
        s_lshl_b32 s36, s36, 2
        s_add_u32 s36, s36, {OFF_F2}
        """)
        flag_store(a,36,TMP)
        a("s_branch ph3_start")
    else:
        if asm.STAMP:
            a("s_waitcnt vmcnt(0)"); stamp(a,8); stamp_dump(a,1)
        a("s_endpgm")
    def act_tab(): a("s_call_b64 s[60:61], k2_tab")
    def act_arriveB():
        dma_arrive(a, 24 if TABIT<ARRIT or (TABIT==ARRIT) else 0)
    def act_b2():
        stamp(a,3); a("s_call_b64 s[60:61], k2_b2"); stamp(a,4)
    def act_pub(): a("s_call_b64 s[60:61], k2_pub")
    def act_prio0(): a("s_setprio 0")
    hooksB=[(TABIT,act_tab),(ARRIT,act_arriveB),(DWAIT,lambda: dma_wait(a,"hb")),(B2IT,act_b2)]
    hooksB.sort(key=lambda h:h[0])
    if asm.F23: hooksB.append((PUBIT,act_pub))
    def arriveA():
        if PF:
            a("s_cmp_eq_u32 s3, 7")
            a("s_cbranch_scc0 k2_arr_n")
            dma_arrive(a,2)
            a("s_branch k2_arr_d")
            a.label("k2_arr_n")
            dma_arrive(a)
            a.label("k2_arr_d")
        else: dma_arrive(a)
    hooksA=[(ARRIT,arriveA),(DWAIT,lambda: dma_wait(a,"ha"))]
    def emit(role,hooks):
        its=sorted(set(h[0] for h in hooks))
        for n,it in enumerate(its):
            nxt=its[n+1] if n+1<len(its) else 99
            a(f"s_cmp_eq_u32 s40, {it}")
            a(f"s_cbranch_scc0 k2_hk{role}_{n+1}")
            for (i2,f) in hooks:
                if i2==it: f()
            a(f"s_mov_b32 s40, {nxt}")
            a("s_branch k2_hookret")
            a.label(f"k2_hk{role}_{n+1}")
        a("s_branch k2_hookret")
        return its[0]
    a.label("k2_hook")
    a("""
    s_cmp_lt_u32 s3, 4
    s_cbranch_scc0 k2_hookA
    """)
    emit("B",hooksB)
    a.label("k2_hookA")
    emit("A",hooksA)
    a.label("k2_fallback")
    if DRIP: kv_dma(a,rest)
    a("""
    s_cmp_lt_u32 s3, 4
    s_cbranch_scc0 k2_fbA
    """)
    dma_arrive(a)
    dma_wait(a,"fbb")
    a("""
    s_call_b64 s[60:61], k2_tab
    s_call_b64 s[60:61], k2_b2
    """)
    if asm.F23: a("s_call_b64 s[60:61], k2_pub")
    a("""
    s_branch k2_fb_pre
    """)
    a.label("k2_fbA")
    dma_arrive(a)
    dma_wait(a,"fb")
    a.label("k2_fb_pre")
    a(f"""
    v_mov_b32 v{TMP+1}, 0xff800000
    v_mov_b32 v{TMP+2}, 0xff800000
    v_and_b32 v{TMP+3}, 31, v1
    v_lshrrev_b32 v{TMP+4}, 5, v1
    v_mul_u32_u24 v{TMP+4}, 1056, v{TMP+4}
    v_lshl_add_u32 v{TMP+3}, v{TMP+3}, 4, v{TMP+4}
    s_mov_b32 s42, 64
    """)
    a.label("k2_fb_max")
    a(f"""
    ds_read_b128 {vr(F[0][0],4)}, v{TMP+3}
    v_add_u32 v{TMP+3}, {KV_TILE}, v{TMP+3}
    s_waitcnt lgkmcnt(0)
    v_mfma_f32_32x32x16_bf16 {vr(S[0],16)}, {vr(F[0][0],4)}, {vr(Q[0],4)}, 0
    v_mfma_f32_32x32x16_bf16 {vr(CI[0],16)}, {vr(F[0][0],4)}, {vr(Q[1],4)}, 0
    s_nop 15
    """)
    for i in range(0,16,2): a(f"v_max3_f32 v{TMP+1}, v{S[0]+i}, v{S[0]+i+1}, v{TMP+1}")
    for i in range(0,16,2): a(f"v_max3_f32 v{TMP+2}, v{CI[0]+i}, v{CI[0]+i+1}, v{TMP+2}")
    a(f"""
    s_sub_u32 s42, s42, 1
    s_cmp_lg_u32 s42, 0
    s_cbranch_scc1 k2_fb_max
    v_mov_b32 v{TMP+3}, v{TMP+1}
    v_mov_b32 v{TMP+4}, v{TMP+2}
    s_nop 1
    v_permlane32_swap_b32 v{TMP+1}, v{TMP+3}
    v_permlane32_swap_b32 v{TMP+2}, v{TMP+4}
    s_nop 1
    v_max_f32 v{TMP+1}, v{TMP+1}, v{TMP+3}
    v_max_f32 v{TMP+2}, v{TMP+2}, v{TMP+4}
    """)
    for qq in range(2):
        for i in range(16): a(f"v_sub_f32 v{CI[qq]+i}, 0, v{TMP+1+qq}")
    a("s_nop 1")
    a("s_mov_b32 s43, s45")
    pipe_prologue(a,True)
    attn_loop(a,True)
    a("s_branch k2_tail")
    a.label("k2_tab")
    a.sc_srd=P1
    a(f"""
    v_lshlrev_b32 v{TMP}, 4, v1
    v_lshrrev_b32 v{TMP+3}, 4, v1
    s_lshl_b32 s32, s3, 3
    v_add_u32 v{TMP+4}, s32, v{TMP+3}        ; n2 (e=0)
    v_and_b32 v{TMP+5}, 15, v{TMP+4}
    v_and_b32 v{TMP+6}, 15, v1
    v_xor_b32 v{TMP+5}, v{TMP+5}, v{TMP+6}
    v_lshlrev_b32 v{TMP+5}, 4, v{TMP+5}
    v_lshl_add_u32 v{TMP+5}, v{TMP+4}, 8, v{TMP+5}
    v_xor_b32 v{TMP+6}, 64, v{TMP+5}
    v_add_u32 v{TMP+6}, 1024, v{TMP+6}
    s_lshl_b32 s32, s28, 13
    s_add_u32 s32, s32, {OFF_Z}
    s_lshl_b32 s33, s3, 11
    s_add_u32 m0, s33, {K2_COL}
    s_nop 0
    buffer_load_dwordx4 v{TMP+5}, s[20:23], s32 offen lds
    s_add_u32 m0, s33, {K2_COL+1024}
    s_nop 0
    buffer_load_dwordx4 v{TMP+6}, s[20:23], s32 offen lds
    """)
    a(f"s_lshl_b32 s36, s3, 13")
    a(f"s_add_u32 s36, s36, {OFF_T64}")
    for k in range(8):
        a(f"buffer_load_dwordx4 {vr(T64+4*k,4)}, v{TMP}, s[20:23], s36 offen offset:{(k%4)*1024}")
        if k==3: a("s_add_u32 s36, s36, 4096")
    a(f"s_lshl_b32 s36, s3, 12")
    a(f"s_add_u32 s36, s36, {OFF_TW}")
    for k in range(4):
        a(f"buffer_load_dwordx4 {vr(TW+4*k,4)}, v{TMP}, s[20:23], s36 offen offset:{k*1024}")
    a(f"s_mov_b32 s36, {OFF_A32}")
    for k in range(8):
        a(f"buffer_load_dwordx4 {vr(A32+4*k,4)}, v{TMP}, s[20:23], s36 offen offset:{(k%4)*1024}")
        if k==3: a("s_add_u32 s36, s36, 4096")
    a(f"""
    s_lshl_b32 s36, s28, 13
    s_lshl_b32 s37, s3, 11
    s_add_u32 s36, s36, s37
    s_add_u32 s36, s36, {OFF_WT}
    buffer_load_dwordx4 {vr(WT,4)}, v{TMP}, s[20:23], s36 offen
    buffer_load_dwordx4 {vr(WT+4,4)}, v{TMP}, s[20:23], s36 offen offset:1024
    s_setpc_b64 s[60:61]
    """)
    a.label("k2_b2")
    a.sc_srd=P1
    a.p1=P1
    b2_part1(a)
    b2_part2(a)
    if asm.F23:
        a.label("k2_pub")
        if not asm.F12: get_tag(a,"b")
        a.sc_srd="s[20:23]"
        a("s_waitcnt vmcnt(0)")
        bbar(a,"pub")
        a(f"""
        s_cmp_eq_u32 s3, 0
        s_cbranch_scc0 k2_pub1
        s_lshl_b32 s36, s28, 2
        s_add_u32 s36, s36, {OFF_F2B}
        """)
        flag_store(a,36,TMP)
        a.label("k2_pub1")
        a.sc_srd=P1
        a(f"""
        s_lshr_b32 s36, s19, 2                   ; ct
        s_lshl_b32 s36, s36, 16
        s_lshl_b32 s37, s3, 13
        s_add_u32 s36, s36, s37
        s_add_u32 s36, s36, {OFF_WOF}
        v_lshlrev_b32 v{TMP}, 4, v1
        """)
        for hh in range(8):
            a(f"s_add_u32 s37, s36, {hh*1024}")
            a(f"buffer_load_dwordx4 {vr(WOR+8*hh,4)}, v{TMP}, s[20:23], s37 offen")
            a(f"s_add_u32 s37, s37, 32768")
            a(f"buffer_load_dwordx4 {vr(WOR+8*hh+4,4)}, v{TMP}, s[20:23], s37 offen")
        a("s_setpc_b64 s[60:61]")
    a.sc_srd=None
    if own:
        a.label("k2_end")
        a("s_endpgm")
    return a
```

```python
import asm
from asm import *
from layout import *
from k1 import srd, twiddle
import os
VAR=set(os.environ.get("VAR","").split(","))
def opt(name,default):
    for v in VAR:
        if v.startswith(name+"="): return int(v.split("=")[1])
    return default
K2_COL=135168
K2_E=K2_COL+8192
K2_LDS=163840
K2_CNT=163840-64
THRESH2=4096.0/1.03
NB=opt("NB",30)
NA=64-NB
ST1R=opt("ST1R",4)
DRIP=opt("DRIP",1)
DWAIT=opt("DWAIT",5 if ST1R==6 else 3)
ARRIT=opt("ARRIT",2)
TABIT=opt("TABIT",2)
B2IT=opt("B2IT",4)
PUBIT=opt("PUBIT",6)
XB=opt("XB",11)

HB=opt("HB",PUBIT+1); HA=opt("HA",5)
assert (XB-HB)%2==0 and XB>HB and (NB//2-XB)%2==0 and NB//2>XB and (NA//2-HA)%2==0, (HB,XB,NB,HA)
VK,VV,VIDX=2,3,4
Q=[8,12]; S=[16,32]; O=[48,64]
F=[(80,84,88),(92,96,100)]
TMP=104
T64,A32,TW,WT,BUF,D1,P=112,144,176,192,200,232,248
X2=200
CI=[112,128]
VM,VQd=108,109
WOR=144

def expo(a,r): a(f"v_exp_f32 v{r}, v{r}")

def unit(a,tau,qt,fb,extra=()):
    extra=list(extra)
    def ex():
        if extra: extra.pop(0)()
    tp=tau&1
    Sc,Sn=S[qt],S[1-qt]
    def pv(Ob,V,B): a(f"v_smfmac_f32_32x32x32_bf16 {vr(Ob,16)}, {vr(V,4)}, {vr(B,8)}, v{VIDX}")
    def qk(Sd,K,qq): a(f"v_mfma_f32_32x32x16_bf16 {vr(Sd,16)}, {vr(K,4)}, {vr(Q[qq],4)}, {vr(CI[qq],16) if fb else '0'}")
    if qt==0:
        Kc,V0c,V1c=F[tp]; Kn,V0n,V1n=F[1-tp]
        expo(a,Sc); expo(a,Sc+1)
        pv(O[1],V1n,Sn+8)
        a(f"ds_read_b128 {vr(Kn,4)}, v{VK} offset:{(tau+1)*KV_TILE}")
        expo(a,Sc+2)
        a(f"ds_read_b128 {vr(V0n,4)}, v{VV} offset:{(tau+1)*KV_TILE+512}")
        expo(a,Sc+3)
        a(f"ds_read_b128 {vr(V1n,4)}, v{VV} offset:{(tau+1)*KV_TILE+784}")
        expo(a,Sc+4); expo(a,Sc+5)
        qk(Sn,Kc,1)
        for i in range(6,12):
            expo(a,Sc+i)
            if i==7: ex()
        pv(O[0],V0c,Sc)
        for i in range(12,16):
            expo(a,Sc+i)
            if i==13: ex()
    else:
        Kc,V0c,V1c=F[tp]; Kn,V0n,V1n=F[1-tp]
        expo(a,Sc); expo(a,Sc+1)
        pv(O[0],V1c,Sn+8)
        for i in range(2,6): expo(a,Sc+i)
        a("s_waitcnt lgkmcnt(0)")
        qk(Sn,Kn,0)
        for i in range(6,12):
            expo(a,Sc+i)
            if i==7: ex()
        pv(O[1],V0c,Sc)
        for i in range(12,16):
            expo(a,Sc+i)
            if i==13: ex()

def bbar(a,tag,cnt=0):
    a(f"""
    v_mov_b32 v111, {K2_CNT+cnt}
    v_mov_b32 v110, 1
    s_waitcnt lgkmcnt(0)
    s_mov_b64 exec, 1
    ds_add_u32 v111, v110
    s_mov_b64 exec, -1
    s_add_u32 s47, s47, 4
    """)
    a.label(f"k2_bbar_{tag}")
    a(f"""
    ds_read_b32 v109, v111
    s_waitcnt lgkmcnt(0)
    v_readfirstlane_b32 s48, v109
    s_nop 0
    s_cmp_lt_u32 s48, s47
    s_cbranch_scc1 k2_bbar_{tag}
    """)

def dma_arrive(a,younger=0):
    a(f"""
    s_waitcnt vmcnt({younger})
    v_mov_b32 v{TMP}, {K2_CNT+4}
    v_mov_b32 v{TMP+1}, 1
    s_mov_b64 exec, 1
    ds_add_u32 v{TMP}, v{TMP+1}
    s_mov_b64 exec, -1
    """)
def dma_wait(a,tag):
    a(f"v_mov_b32 v{TMP}, {K2_CNT+4}")
    a.label(f"k2_dwait_{tag}")
    a(f"""
    ds_read_b32 v{TMP+1}, v{TMP}
    s_waitcnt lgkmcnt(0)
    v_readfirstlane_b32 s48, v{TMP+1}
    s_nop 0
    s_cmp_lt_u32 s48, 8
    s_cbranch_scc1 k2_dwait_{tag}
    """)

def kv_dma(a, ns):
    for n in ns:
        a(f"s_add_u32 m0, s34, {n*1024}")
        a(f"s_add_u32 s36, s35, {n*1024}")
        a(f"buffer_load_dwordx4 v{TMP}, s[20:23], s36 offen lds")

def b2_part1(a):
    a("s_waitcnt vmcnt(0)")
    bbar(a,"col")
    a(f"""
    v_and_b32 v{VM}, 15, v1
    v_lshrrev_b32 v{VQd}, 4, v1
    v_xor_b32 v104, v{VM}, v{VQd}
    v_lshlrev_b32 v104, 4, v104
    v_lshl_add_u32 v104, v{VM}, 8, v104
    v_add_u32 v104, {K2_COL}, v104
    v_xor_b32 v105, 64, v104
    v_xor_b32 v106, 128, v104
    v_xor_b32 v107, 192, v104
    """)
    for u in range(4):
        for t in range(2):
            a(f"ds_read_b128 {vr(BUF+16*t+4*u,4)}, v{104+u} offset:{t*4096}")
    for u in range(4):
        a(f"s_waitcnt lgkmcnt({6-2*u})")
        for t in range(2):
            for part in range(2):
                d=D1+8*t+4*part
                a(f"v_mfma_f32_16x16x32_bf16 {vr(d,4)}, {vr(BUF+16*t+4*u,4)}, {vr(T64+8*u+4*part,4)}, {'0' if u==0 else vr(d,4)}")
    a("""
    s_cmp_eq_u32 s28, 0
    s_cbranch_scc0 k2_p1_noab
    """)
    a(f"v_lshlrev_b32 v110, 4, v1")
    a(f"s_lshl_b32 s36, s3, 12")
    a(f"s_add_u32 s36, s36, {OFF_AB}")
    for ep in range(4):
        a(f"buffer_load_dwordx4 {vr(216+4*ep,4)}, v110, s[20:23], s36 offen offset:{ep*1024}")
    a.label("k2_p1_noab")
    a("s_nop 6")
    for t in range(2):
        twiddle(a, D1+8*t, D1+8*t+4, TW+4*t, TW+8+4*t, P+4*t, 104)
    a("s_nop 1")
    for t in range(2):
        for tp in range(2):
            for part in range(2):
                d=X2+8*tp+4*part
                a(f"v_mfma_f32_16x16x32_bf16 {vr(d,4)}, {vr(A32+((tp*2+part)*2+t)*4,4)}, {vr(P+4*t,4)}, {'0' if t==0 else vr(d,4)}")

def b2_part2(a):
    a("s_waitcnt vmcnt(0)")
    a("""
    s_cmp_eq_u32 s28, 0
    s_cbranch_scc1 k2_p2_special
    """)
    for tp in range(2):
        xr,xi=X2+8*tp,X2+8*tp+4
        wr,wi=D1+8*tp,D1+8*tp+4
        for i in range(4):
            a(f"v_lshlrev_b32 v{wr+i}, 16, v{WT+4*tp+i}")
            a(f"v_and_b32 v{wi+i}, 0xffff0000, v{WT+4*tp+i}")
        for p in (0,2):
            a(f"v_pk_mul_f32 {vr(104+p,2)}, {vr(xr+p,2)}, {vr(wr+p,2)}")
            a(f"v_pk_mul_f32 {vr(108+p,2)}, {vr(xr+p,2)}, {vr(wi+p,2)}")
        for p in (0,2):
            a(f"v_pk_fma_f32 {vr(104+p,2)}, {vr(xi+p,2)}, {vr(wi+p,2)}, {vr(104+p,2)} neg_lo:[1,0,0] neg_hi:[1,0,0]")
            a(f"v_pk_fma_f32 {vr(108+p,2)}, {vr(xi+p,2)}, {vr(wr+p,2)}, {vr(108+p,2)}")
        for i in range(4): a(f"v_cvt_pk_bf16_f32 v{P+4*tp+i}, v{104+i}, -v{108+i}")
    a.label("k2_p2_common")
    a("s_nop 1")
    for tp in range(2):
        for t in range(2):
            for part in range(2):
                d=D1+8*t+4*part
                a(f"v_mfma_f32_16x16x32_bf16 {vr(d,4)}, {vr(A32+((t*2+part)*2+tp)*4,4)}, {vr(P+4*tp,4)}, {'0' if tp==0 else vr(d,4)}")
    t0=X2
    a(f"""
    v_and_b32 v{t0}, 15, v1                 ; m
    v_lshrrev_b32 v{t0+1}, 4, v1            ; q
    v_lshrrev_b32 v{t0+2}, 2, v{t0}         ; m>>2
    s_lshl_b32 s36, s3, 2
    v_add_u32 v{t0+2}, s36, v{t0+2}         ; 4w + (m>>2)
    v_lshlrev_b32 v{t0+3}, 2, v{t0+1}       ; 4q
    v_xor_b32 v{t0+2}, v{t0+2}, v{t0+3}
    v_lshlrev_b32 v{t0+2}, 4, v{t0+2}
    v_lshl_add_u32 v{t0+2}, v{t0+3}, 8, v{t0+2}
    v_and_b32 v{t0+4}, 3, v{t0}
    v_lshl_add_u32 v{t0+2}, v{t0+4}, 2, v{t0+2}
    v_add_u32 v{t0+8}, {K2_E}, v{t0+2}
    v_xor_b32 v{t0+9}, 16, v{t0+8}
    v_xor_b32 v{t0+10}, 32, v{t0+8}
    v_xor_b32 v{t0+11}, 48, v{t0+8}
    """)
    for t in range(2):
        twiddle(a, D1+8*t, D1+8*t+4, TW+4*t, TW+8+4*t, P+4*t, 104)
    for t in range(2):
        for i in range(4):
            a(f"ds_write_b32 v{t0+8+i}, v{P+4*t+i} offset:{t*4096+i*256}")
    bbar(a,"e")
    a(f"""
    v_and_b32 v{VM}, 15, v1
    v_lshrrev_b32 v{VQd}, 4, v1
    v_xor_b32 v104, v{VM}, v{VQd}
    v_lshlrev_b32 v104, 4, v104
    v_lshl_add_u32 v104, v{VM}, 8, v104
    v_add_u32 v104, {K2_E}, v104
    v_xor_b32 v105, 64, v104
    v_xor_b32 v106, 128, v104
    v_xor_b32 v107, 192, v104
    """)
    for u in range(4):
        for t in range(2):
            a(f"ds_read_b128 {vr(BUF+16*t+4*u,4)}, v{104+u} offset:{t*4096}")
    a(f"""
    v_lshlrev_b32 v110, 8, v{VM}
    v_lshl_add_u32 v110, v{VQd}, 4, v110
    s_lshl_b32 s36, s28, 13
    s_lshl_b32 s37, s3, 6
    s_add_u32 s36, s36, s37
    s_add_u32 s36, s36, {OFF_Y}
    """)
    for u in range(4):
        a(f"s_waitcnt lgkmcnt({6-2*u})")
        for t in range(2):
            for part in range(2):
                d=D1+8*t+4*part
                a(f"v_mfma_f32_16x16x32_bf16 {vr(d,4)}, {vr(T64+8*u+4*part,4)}, {vr(BUF+16*t+4*u,4)}, {'0' if u==0 else vr(d,4)}")
    a("s_nop 7")
    for t in range(2):
        for i in range(4): a(f"v_cvt_pk_bf16_f32 v{P+4*t+i}, v{D1+8*t+i}, -v{D1+8*t+4+i}")
        a.sc_srd="s[20:23]"
        a(f"buffer_store_dwordx4 {vr(P+4*t,4)}, v110, s[20:23], s36 offen")
        a.sc_srd=a.p1
        if t==0: a("s_add_u32 s36, s36, 4096")
    a("s_setpc_b64 s[60:61]")
    a.label("k2_p2_special")
    bbar(a,"s0")
    XCH=K2_COL
    a(f"""
    v_and_b32 v104, 15, v1
    v_lshrrev_b32 v105, 4, v1
    s_lshl_b32 s36, s3, 4
    v_add_u32 v104, s36, v104                 ; k1
    v_lshl_add_u32 v104, v105, 8, v104         ; g0 = k1 + 64*4q
    v_lshlrev_b32 v106, 3, v104
    v_add_u32 v106, {XCH}, v106
    """)
    for tp in range(2):
        for i in range(4):
            off=(i*64+tp*1024)*8
            a(f"ds_write_b32 v106, v{X2+8*tp+i} offset:{off}")
            a(f"ds_write_b32 v106, v{X2+8*tp+4+i} offset:{off+4}")
    bbar(a,"s1")
    for tp in range(2):
        for i in range(4):
            e=4*tp+i
            a(f"v_sub_u32 v107, {2048-(i*64+tp*1024)}, v104")
            a(f"v_and_b32 v107, 2047, v107")
            a(f"v_lshlrev_b32 v107, 3, v107")
            a(f"v_add_u32 v107, {XCH}, v107")
            a(f"ds_read_b64 {vr(D1+2*e,2)}, v107")
    bbar(a,"s2")
    for tp in range(2):
        for i in range(4):
            e=4*tp+i
            src=216+2*e
            ab=WT
            a(f"v_lshlrev_b32 v{ab}, 16, v{src}")
            a(f"v_and_b32 v{ab+1}, 0xffff0000, v{src}")
            a(f"v_lshlrev_b32 v{ab+2}, 16, v{src+1}")
            a(f"v_and_b32 v{ab+3}, 0xffff0000, v{src+1}")
            zr,zi=X2+8*tp+i,X2+8*tp+4+i
            pr,pi=D1+2*e,D1+2*e+1
            a(f"v_mul_f32 v104, v{zr}, v{ab}")
            a(f"v_mul_f32 v105, v{zr}, v{ab+1}")
            a(f"v_fma_f32 v104, -v{zi}, v{ab+1}, v104")
            a(f"v_fma_f32 v105, v{zi}, v{ab}, v105")
            a(f"v_fma_f32 v104, v{pr}, v{ab+2}, v104")
            a(f"v_fma_f32 v105, v{pr}, v{ab+3}, v105")
            a(f"v_fma_f32 v104, v{pi}, v{ab+3}, v104")
            a(f"v_fma_f32 v105, -v{pi}, v{ab+2}, v105")
            a(f"v_cvt_pk_bf16_f32 v{P+e}, v104, -v105")
    a("s_branch k2_p2_common")


def rounds():
    nA0=NB*KV_TILE//1024
    st1=[x for k in range(ST1R//2) for x in (8*k,nA0+8*k)]
    rest=[]
    n=8*(ST1R//2)
    while n<nA0:
        rest.append(min(n,nA0-8) if n+8>nA0 else n); n+=8
    n=nA0+8*(ST1R//2)
    while n<132:
        rest.append(min(n,124)); n+=8
    lo=[r for r in rest if r<nA0]; hi=[r for r in rest if r>=nA0]
    out=[]
    while lo or hi:
        if lo: out.append(lo.pop(0))
        if hi: out.append(hi.pop(0))
    return st1,out

def attn_loop(a,fb):
    if fb:
        a.label("k2_loop_fb")
        unit(a,0,0,fb); unit(a,0,1,fb); unit(a,1,0,fb); unit(a,1,1,fb)
        a(f"""
        v_add_u32 v{VK}, {2*KV_TILE}, v{VK}
        v_add_u32 v{VV}, {2*KV_TILE}, v{VV}
        s_add_u32 s42, s42, 1
        s_cmp_lt_u32 s42, s43
        s_cbranch_scc1 k2_loop_fb
        """)
        return
    a.label("k2_loop")
    a("""
    s_cmp_eq_u32 s42, s40
    s_cbranch_scc1 k2_hook
    """)
    a.label("k2_hookret")
    unit(a,0,0,fb); unit(a,0,1,fb); unit(a,1,0,fb); unit(a,1,1,fb)
    a(f"""
    v_add_u32 v{VK}, {2*KV_TILE}, v{VK}
    v_add_u32 v{VV}, {2*KV_TILE}, v{VV}
    s_add_u32 s42, s42, 1
    s_cmp_lt_u32 s42, s44
    s_cbranch_scc1 k2_loop
    """)
    a(".p2align 3, 0xbf800000" if False else "s_nop 0") if False else None
    a.label("k2_lean")
    for tau in range(4):
        unit(a,tau,0,fb); unit(a,tau,1,fb)
    a(f"""
    v_add_u32 v{VK}, {4*KV_TILE}, v{VK}
    v_add_u32 v{VV}, {4*KV_TILE}, v{VV}
    s_sub_u32 s43, s43, 1
    s_cmp_lg_u32 s43, 0
    s_cbranch_scc1 k2_lean
    s_cmp_eq_u32 s41, 0
    s_cbranch_scc1 k2_lean_done
    s_setprio 0
    s_mov_b32 s43, s41
    s_mov_b32 s41, 0
    s_branch k2_lean
    """)
    a.label("k2_lean_done")

def pipe_prologue(a,fb):
    K,V0,V1=F[0]
    a(f"""
    ds_read_b128 {vr(K,4)}, v{VK}
    ds_read_b128 {vr(V0,4)}, v{VV} offset:512
    ds_read_b128 {vr(V1,4)}, v{VV} offset:784
    s_waitcnt lgkmcnt(2)
    v_mfma_f32_32x32x16_bf16 {vr(S[0],16)}, {vr(K,4)}, {vr(Q[0],4)}, {vr(CI[0],16) if fb else '0'}
    s_mov_b32 s42, 0
    s_waitcnt lgkmcnt(0)
    s_nop 11
    """)

def poll(a,tag,nloads,addr_regs,srdreg="s[20:23]",soff="0"):
    a(f"s_mov_b32 s49, 0x20000")
    a.label(f"poll_{tag}")
    for k in range(nloads):
        a(f"buffer_load_dword v{addr_regs[k][1]}, v{addr_regs[k][0]}, {srdreg}, {soff} offen")
    a("s_waitcnt vmcnt(0)")
    for k in range(nloads):
        a(f"v_cmp_eq_u32 {'vcc' if k==0 else 's[50:51]'}, s56, v{addr_regs[k][1]}")
        if k>0:
            a("s_nop 1"); a("s_and_b64 vcc, vcc, s[50:51]")
    a(f"""
    s_nop 1
    s_cmp_eq_u64 vcc, -1
    s_cbranch_scc1 poll_{tag}_done
    s_sub_u32 s49, s49, 1
    s_cmp_eq_u32 s49, 0
    s_cbranch_scc1 poll_{tag}_done
    s_sleep 1
    s_branch poll_{tag}
    """)
    a.label(f"poll_{tag}_done")

def get_tag(a,tagname):
    a(f"""
    v_mov_b32 v{TMP}, 0
    s_mov_b32 s49, 0x20000
    """)
    a.label(f"kf_tag_{tagname}")
    a(f"""
    global_load_dword v{TMP+1}, v{TMP}, s[54:55] sc1
    s_waitcnt vmcnt(0)
    v_readfirstlane_b32 s56, v{TMP+1}
    s_sub_u32 s49, s49, 1
    s_cmp_eq_u32 s49, 0
    s_cbranch_scc1 kf_tag_{tagname}_done
    s_cmp_eq_u32 s56, 0
    s_cbranch_scc0 kf_tag_{tagname}_done
    s_sleep 1
    s_branch kf_tag_{tagname}
    """)
    a.label(f"kf_tag_{tagname}_done")

def flag_store(a, soff_expr_reg, vtmp):
    a(f"""
    v_mov_b32 v{vtmp}, 0
    v_mov_b32 v{vtmp+1}, s56
    s_mov_b64 exec, 1
    buffer_store_dword v{vtmp+1}, v{vtmp}, s[20:23], s{soff_expr_reg} offen
    s_mov_b64 exec, -1
    """)

def build_k2(a=None):
    own = a is None
    if own: a=Asm()
    P1="s[20:23]" if asm.F12 else None
    a.sc_srd=P1
    st1,rest=rounds()
    R=len(rest)
    if not asm.F12:
        a(f"""
        s_cmp_ge_u32 s2, 256
        s_cbranch_scc1 k2_end
        s_load_dwordx2 s[16:17], s[0:1], 64      ; ws
        {"s_load_dwordx4 s[52:55], s[0:1], 48      ; out, debug" if asm.F23 else ""}
        v_and_b32 v1, 63, v0
        v_lshrrev_b32 v{TMP}, 6, v0
        s_nop 0
        v_readfirstlane_b32 s3, v{TMP}
        """)
        if asm.F23:
            a("""
            s_or_b32 s57, s2, s3
            s_cmp_eq_u32 s57, 0
            s_cbranch_scc0 kf_nononce
            s_memrealtime s[56:57]
            s_waitcnt lgkmcnt(0)
            s_or_b32 s56, s56, 1
            v_mov_b32 v2, 0
            v_mov_b32 v3, s56
            s_mov_b64 exec, 1
            global_store_dword v2, v3, s[54:55] sc1
            s_mov_b64 exec, -1
            """)
            a.label("kf_nononce")
    stamp(a,0)
    a(f"""
    s_and_b32 s18, s2, 7
    s_lshr_b32 s19, s2, 3
    s_lshl_b32 s29, s18, 2
    s_and_b32 s30, s19, 3
    s_add_u32 s29, s29, s30                  ; hd
    s_lshr_b32 s30, s19, 2                   ; qb
    s_lshl_b32 s28, s18, 5
    s_add_u32 s28, s28, s19                  ; f
    v_lshlrev_b32 v{TMP}, 4, v1              ; lane*16
    s_and_b32 s33, s3, 3                     ; qg
    s_lshl_b32 s31, s30, 3
    s_lshl_b32 s33, s33, 1
    s_add_u32 s31, s31, s33
    s_waitcnt lgkmcnt(0)
    """)
    srd(a,20,16,WS_SIZE)
    if asm.F12:
        a(f"""
        s_cmp_eq_u32 s3, 0
        s_cbranch_scc0 k2_nopoll
        s_lshr_b32 s32, s29, 3                   ; hd>>3
        v_and_b32 v{TMP+1}, 15, v1
        v_lshrrev_b32 v{TMP+2}, 4, v1            ; group 0:K 1:V 2,3:Q
        v_and_b32 v{TMP+3}, 1, v1
        s_lshl_b32 s33, s30, 1
        v_add_u32 v{TMP+3}, s33, v{TMP+3}
        v_cmp_gt_u32 vcc, 2, v{TMP+2}
        v_mov_b32 v{TMP+4}, 4
        v_mov_b32 v{TMP+5}, 8
        v_cndmask_b32 v{TMP+1}, v{TMP+3}, v{TMP+1}, vcc   ; rb
        v_cmp_eq_u32 vcc, 0, v{TMP+2}
        v_mov_b32 v{TMP+6}, 0
        s_nop 0
        v_cndmask_b32 v{TMP+6}, v{TMP+6}, v{TMP+4}, vcc
        v_cmp_eq_u32 vcc, 1, v{TMP+2}
        s_nop 1
        v_cndmask_b32 v{TMP+6}, v{TMP+6}, v{TMP+5}, vcc   ; type*4
        v_add_u32 v{TMP+6}, s32, v{TMP+6}        ; cb
        v_lshl_add_u32 v{TMP+1}, v{TMP+6}, 4, v{TMP+1}
        v_lshlrev_b32 v{TMP+1}, 2, v{TMP+1}
        v_add_u32 v{TMP+1}, {OFF_F1Q}, v{TMP+1}
        v_lshlrev_b32 v{TMP+2}, 2, v1
        v_add_u32 v{TMP+2}, {OFF_F1B}, v{TMP+2}
        """)
        poll(a,"p1",2,[(TMP+1,TMP+3),(TMP+2,TMP+4)])
        a.label("k2_nopoll")
        a("s_barrier")
        stamp(a,9)
    a(f"""
    s_lshl_b32 s32, s29, 16
    s_lshl_b32 s33, s31, 10
    s_add_u32 s32, s32, s33
    s_add_u32 s32, s32, {OFF_Q}
    buffer_load_dwordx4 {vr(Q[0],4)}, v{TMP}, s[20:23], s32 offen
    buffer_load_dwordx4 {vr(Q[1],4)}, v{TMP}, s[20:23], s32 offen offset:1024
    v_lshlrev_b32 v{TMP+1}, 2, v1
    s_lshl_b32 s32, s29, 8
    s_add_u32 s32, s32, {OFF_KN}
    buffer_load_dword v{TMP+2}, v{TMP+1}, s[20:23], s32 offen
    s_lshl_b32 s34, s3, 10                   ; wave*1024
    s_mul_i32 s35, s29, {KV_HEAD}
    s_add_u32 s35, s35, s34
    s_add_u32 s35, s35, {OFF_KV}
    """)
    kv_dma(a,st1)
    a("s_waitcnt vmcnt(4)")
    a.label("k2_loaded")
    for qq in range(2):
        acc=TMP+5+qq
        for k in range(4):
            a(f"v_lshlrev_b32 v{TMP+3}, 16, v{Q[qq]+k}")
            a(f"v_and_b32 v{TMP+4}, 0xffff0000, v{Q[qq]+k}")
            a(f"v_mul_f32 v{acc}, v{TMP+3}, v{TMP+3}" if k==0 else f"v_fmac_f32 v{acc}, v{TMP+3}, v{TMP+3}")
            a(f"v_fmac_f32 v{acc}, v{TMP+4}, v{TMP+4}")
    a(f"""
    s_nop 1
    v_permlane32_swap_b32 v{TMP+5}, v{TMP+6}
    s_nop 1
    v_add_f32 v{TMP+5}, v{TMP+5}, v{TMP+6}
    """)
    for sh in ("row_shr:1","row_shr:2","row_shr:4","row_shr:8"):
        a("s_nop 0")
        a(f"v_max_f32_dpp v{TMP+2}, v{TMP+2}, v{TMP+2} {sh} row_mask:0xf bank_mask:0xf bound_ctrl:0")
        a(f"v_max_f32_dpp v{TMP+5}, v{TMP+5}, v{TMP+5} {sh} row_mask:0xf bank_mask:0xf bound_ctrl:0")
    for sh in ("row_bcast:15 row_mask:0xa","row_bcast:31 row_mask:0xc"):
        a("s_nop 0")
        a(f"v_max_f32_dpp v{TMP+2}, v{TMP+2}, v{TMP+2} {sh} bank_mask:0xf")
        a(f"v_max_f32_dpp v{TMP+5}, v{TMP+5}, v{TMP+5} {sh} bank_mask:0xf")
    a(f"""
    s_nop 0
    v_mul_f32 v{TMP+2}, v{TMP+2}, v{TMP+5}
    s_nop 0
    v_readlane_b32 s38, v{TMP+2}, 63
    v_and_b32 v{TMP+3}, 31, v1
    v_lshrrev_b32 v{TMP+4}, 5, v1
    v_mul_u32_u24 v{TMP+4}, 1056, v{TMP+4}
    v_lshl_add_u32 v{VK}, v{TMP+3}, 4, v{TMP+4}
    s_cmp_lt_u32 s3, 4
    s_cselect_b32 s36, 0, {NB*KV_TILE}
    s_cselect_b32 s45, {NB//2}, {NA//2}
    s_cselect_b32 s44, {HB}, {HA}
    s_cselect_b32 s43, {(XB-HB)//2}, {(NA//2-HA)//2}
    s_cselect_b32 s41, {(NB//2-XB)//2}, 0
    s_cselect_b32 s40, {min(TABIT,ARRIT)}, {ARRIT}
    v_add_u32 v{VK}, s36, v{VK}
    v_cmp_gt_u32 vcc, 17, v{TMP+3}
    v_mov_b32 v{TMP+4}, 0x40000
    v_mov_b32 v{VIDX}, 0xdddd
    v_cndmask_b32 v{VV}, v{TMP+4}, v{VK}, vcc
    """)
    for qq in range(2):
        for i in range(16): a(f"v_mov_b32 v{O[qq]+i}, 0")
    for i in range(8): a(f"v_mov_b32 v{S[1]+8+i}, 0")
    for i in range(4): a(f"v_mov_b32 v{F[1][2]+i}, 0")
    if "nohook" in VAR:
        a("s_waitcnt vmcnt(0)"); a("s_mov_b32 s40, 99")
    a(f"""
    v_mov_b32 v{TMP+3}, {K2_CNT}
    v_mov_b32 v{TMP+4}, 0
    v_mov_b32 v{TMP+5}, 0
    v_mov_b32 v{TMP+6}, 0
    v_mov_b32 v{TMP+7}, 0
    s_mov_b32 s47, 0
    s_cmp_eq_u32 s3, 0
    s_cbranch_scc0 k2_noinit
    ds_write_b128 v{TMP+3}, {vr(TMP+4,4)}
    s_waitcnt lgkmcnt(0)
    """)
    a.label("k2_noinit")
    a("s_waitcnt vmcnt(0)")
    stamp(a,1)
    a("s_barrier")
    a(f"v_lshlrev_b32 v{TMP}, 4, v1")
    if not DRIP: kv_dma(a,rest)
    PF = "pf" in VAR and asm.F23
    if PF:
        a("s_cmp_eq_u32 s3, 7")
        a("s_cbranch_scc0 k2_nopf")
        code_prefetch(a,"k2_tail","k2_end",2,TMP+1,5)
        a.label("k2_nopf")
    a("""
    s_cmp_lt_u32 s3, 4
    s_cbranch_scc1 k2_prioB
    s_setprio 1
    s_branch k2_priodone
    """)
    a.label("k2_prioB")
    a("s_setprio 2" if "noprio" not in VAR else "s_setprio 0")
    a.label("k2_priodone")
    if "soloA" in VAR:
        a("s_cmp_lt_u32 s3, 4"); a("s_cbranch_scc1 k2_end")
    stamp(a,2)
    a(f"""
    s_cmp_le_u32 s38, {hex(f2u(THRESH2))}
    s_cbranch_scc0 k2_fallback
    """)
    pipe_prologue(a,False)
    if DRIP:
        todo=[(lambda n=n: kv_dma(a,[n])) for n in rest]
        per=-(-len(todo)//8)
        for trip in range(2):
            for tau in range(2):
                for qt in range(2):
                    take=todo[:per]; todo=todo[per:]
                    unit(a,tau,qt,False,take)
            a(f"v_add_u32 v{VK}, {2*KV_TILE}, v{VK}")
            a(f"v_add_u32 v{VV}, {2*KV_TILE}, v{VV}")
        assert not todo
        a("s_mov_b32 s42, 2")
    attn_loop(a,False)
    a.label("k2_tail")
    stamp(a,6)
    a(f"""
    s_nop 1
    v_smfmac_f32_32x32x32_bf16 {vr(O[1],16)}, {vr(F[1][2],4)}, {vr(S[1]+8,8)}, v{VIDX}
    s_setprio 0
    s_mul_i32 s36, s3, 2304
    s_add_u32 s37, s36, {K2_E+8192-3*2304}
    s_add_u32 s36, s36, {K2_COL}
    s_cmp_lt_u32 s3, 3
    s_cselect_b32 s36, s36, s37
    s_xor_b32 s44, s3, 4
    s_mul_i32 s45, s44, 2304
    s_add_u32 s46, s45, {K2_E+8192-3*2304}
    s_add_u32 s45, s45, {K2_COL}
    s_cmp_lt_u32 s44, 3
    s_cselect_b32 s45, s45, s46
    v_lshlrev_b32 v{TMP}, 4, v1
    v_lshlrev_b32 v{TMP+1}, 2, v1
    v_add_u32 v{TMP+2}, s36, v{TMP}
    v_add_u32 v{TMP+3}, s36, v{TMP+1}
    v_add_u32 v{TMP+4}, s45, v{TMP}
    v_add_u32 v{TMP+5}, s45, v{TMP+1}
    s_cmp_lt_u32 s3, 4
    s_cbranch_scc1 k2_tailB
    """)
    a(f"""
    s_nop 9
    ds_write_b128 v{TMP+2}, {vr(O[0],4)}
    ds_write_b128 v{TMP+2}, {vr(O[0]+4,4)} offset:1024
    ds_write_b32 v{TMP+3}, v{O[0]+8} offset:2048
    s_nop 7
    """)
    for i in range(9): a(f"v_mov_b32 v{O[0]+i}, v{O[1]+i}")
    a("""
    s_add_u32 s31, s31, 1
    s_branch k2_tail2
    """)
    a.label("k2_tailB")
    a(f"""
    s_nop 15
    s_nop 3
    ds_write_b128 v{TMP+2}, {vr(O[1],4)}
    ds_write_b128 v{TMP+2}, {vr(O[1]+4,4)} offset:1024
    ds_write_b32 v{TMP+3}, v{O[1]+8} offset:2048
    """)
    a.label("k2_tail2")
    a(f"""
    s_waitcnt lgkmcnt(0)
    {"" if "soloA" in VAR else "s_barrier"}
    ds_read_b128 {vr(S[0],4)}, v{TMP+4}
    ds_read_b128 {vr(S[0]+4,4)}, v{TMP+4} offset:1024
    ds_read_b32 v{S[0]+8}, v{TMP+5} offset:2048
    s_lshl_b32 s36, s31, 5
    s_add_u32 s36, s36, s29
    s_lshl_b32 s36, s36, 10
    s_add_u32 s36, s36, {OFF_O}
    s_waitcnt lgkmcnt(0)
    """)
    for i in range(9): a(f"v_add_f32 v{O[0]+i}, v{O[0]+i}, v{S[0]+i}")
    a(f"""
    v_mov_b32 v{TMP+1}, v{O[0]+8}
    v_mov_b32 v{TMP+2}, v{O[0]+8}
    s_nop 1
    v_permlane32_swap_b32 v{TMP+1}, v{TMP+2}
    s_nop 1
    v_rcp_f32 v{TMP+1}, v{TMP+1}
    s_nop 0
    """)
    for i in range(8): a(f"v_mul_f32 v{O[0]+i}, v{O[0]+i}, v{TMP+1}")
    for i in range(4): a(f"v_cvt_pk_bf16_f32 v{TMP+4+i}, v{O[0]+2*i}, v{O[0]+2*i+1}")
    a.sc_srd="s[20:23]"
    a(f"buffer_store_dwordx4 {vr(TMP+4,4)}, v{TMP}, s[20:23], s36 offen")
    if asm.F23:
        if "wgflag" in VAR:
            a("""
            s_waitcnt vmcnt(0)
            s_barrier
            """)
            stamp(a,8)
            a(f"""
            s_cmp_eq_u32 s3, 0
            s_cbranch_scc0 ph3_start
            s_lshl_b32 s36, s30, 5
            s_add_u32 s36, s36, s29
            s_lshl_b32 s36, s36, 2
            s_add_u32 s36, s36, {OFF_F2}
            """)
            flag_store(a,36,TMP)
            a("s_branch ph3_start")
        else:
            a(f"""
            s_lshl_b32 s36, s31, 5
            s_add_u32 s36, s36, s29
            s_lshl_b32 s36, s36, 2
            s_add_u32 s36, s36, {OFF_F2}
            s_waitcnt vmcnt(0)
            """)
            stamp(a,8)
            flag_store(a,36,TMP)
            a("s_branch ph3_start")
    else:
        if asm.STAMP:
            a("s_waitcnt vmcnt(0)"); stamp(a,8); stamp_dump(a,1)
        a("s_endpgm")
    def act_tab(): a("s_call_b64 s[60:61], k2_tab")
    def act_arriveB():
        dma_arrive(a, 24 if TABIT<ARRIT or (TABIT==ARRIT) else 0)
    def act_b2():
        stamp(a,3); a("s_call_b64 s[60:61], k2_b2"); stamp(a,4)
    def act_pub(): a("s_call_b64 s[60:61], k2_pub")
    def act_prio0(): a("s_setprio 0")
    hooksB=[(TABIT,act_tab),(ARRIT,act_arriveB),(DWAIT,lambda: dma_wait(a,"hb")),(B2IT,act_b2)]
    hooksB.sort(key=lambda h:h[0])
    if asm.F23: hooksB.append((PUBIT,act_pub))
    def arriveA():
        if PF:
            a("s_cmp_eq_u32 s3, 7")
            a("s_cbranch_scc0 k2_arr_n")
            dma_arrive(a,2)
            a("s_branch k2_arr_d")
            a.label("k2_arr_n")
            dma_arrive(a)
            a.label("k2_arr_d")
        else: dma_arrive(a)
    hooksA=[(ARRIT,arriveA),(DWAIT,lambda: dma_wait(a,"ha"))]
    if asm.F23 and not asm.F12: hooksA.append((DWAIT+1,lambda: get_tag(a,"ha")))
    def emit(role,hooks):
        its=sorted(set(h[0] for h in hooks))
        for n,it in enumerate(its):
            nxt=its[n+1] if n+1<len(its) else 99
            a(f"s_cmp_eq_u32 s40, {it}")
            a(f"s_cbranch_scc0 k2_hk{role}_{n+1}")
            for (i2,f) in hooks:
                if i2==it: f()
            a(f"s_mov_b32 s40, {nxt}")
            a("s_branch k2_hookret")
            a.label(f"k2_hk{role}_{n+1}")
        a("s_branch k2_hookret")
        return its[0]
    a.label("k2_hook")
    a("""
    s_cmp_lt_u32 s3, 4
    s_cbranch_scc0 k2_hookA
    """)
    emit("B",hooksB)
    a.label("k2_hookA")
    emit("A",hooksA)
    a.label("k2_fallback")
    if DRIP: kv_dma(a,rest)
    a("""
    s_cmp_lt_u32 s3, 4
    s_cbranch_scc0 k2_fbA
    """)
    dma_arrive(a)
    dma_wait(a,"fbb")
    a("""
    s_call_b64 s[60:61], k2_tab
    s_call_b64 s[60:61], k2_b2
    """)
    if asm.F23: a("s_call_b64 s[60:61], k2_pub")
    a("""
    s_branch k2_fb_pre
    """)
    a.label("k2_fbA")
    dma_arrive(a)
    dma_wait(a,"fb")
    if asm.F23 and not asm.F12: get_tag(a,"fba")
    a.label("k2_fb_pre")
    a(f"""
    v_mov_b32 v{TMP+1}, 0xff800000
    v_mov_b32 v{TMP+2}, 0xff800000
    v_and_b32 v{TMP+3}, 31, v1
    v_lshrrev_b32 v{TMP+4}, 5, v1
    v_mul_u32_u24 v{TMP+4}, 1056, v{TMP+4}
    v_lshl_add_u32 v{TMP+3}, v{TMP+3}, 4, v{TMP+4}
    s_mov_b32 s42, 64
    """)
    a.label("k2_fb_max")
    a(f"""
    ds_read_b128 {vr(F[0][0],4)}, v{TMP+3}
    v_add_u32 v{TMP+3}, {KV_TILE}, v{TMP+3}
    s_waitcnt lgkmcnt(0)
    v_mfma_f32_32x32x16_bf16 {vr(S[0],16)}, {vr(F[0][0],4)}, {vr(Q[0],4)}, 0
    v_mfma_f32_32x32x16_bf16 {vr(CI[0],16)}, {vr(F[0][0],4)}, {vr(Q[1],4)}, 0
    s_nop 15
    """)
    for i in range(0,16,2): a(f"v_max3_f32 v{TMP+1}, v{S[0]+i}, v{S[0]+i+1}, v{TMP+1}")
    for i in range(0,16,2): a(f"v_max3_f32 v{TMP+2}, v{CI[0]+i}, v{CI[0]+i+1}, v{TMP+2}")
    a(f"""
    s_sub_u32 s42, s42, 1
    s_cmp_lg_u32 s42, 0
    s_cbranch_scc1 k2_fb_max
    v_mov_b32 v{TMP+3}, v{TMP+1}
    v_mov_b32 v{TMP+4}, v{TMP+2}
    s_nop 1
    v_permlane32_swap_b32 v{TMP+1}, v{TMP+3}
    v_permlane32_swap_b32 v{TMP+2}, v{TMP+4}
    s_nop 1
    v_max_f32 v{TMP+1}, v{TMP+1}, v{TMP+3}
    v_max_f32 v{TMP+2}, v{TMP+2}, v{TMP+4}
    """)
    for qq in range(2):
        for i in range(16): a(f"v_sub_f32 v{CI[qq]+i}, 0, v{TMP+1+qq}")
    a("s_nop 1")
    a("s_mov_b32 s43, s45")
    pipe_prologue(a,True)
    attn_loop(a,True)
    a("s_branch k2_tail")
    a.label("k2_tab")
    a.sc_srd=P1
    a(f"""
    v_lshlrev_b32 v{TMP}, 4, v1
    v_lshrrev_b32 v{TMP+3}, 4, v1
    s_lshl_b32 s32, s3, 3
    v_add_u32 v{TMP+4}, s32, v{TMP+3}        ; n2 (e=0)
    v_and_b32 v{TMP+5}, 15, v{TMP+4}
    v_and_b32 v{TMP+6}, 15, v1
    v_xor_b32 v{TMP+5}, v{TMP+5}, v{TMP+6}
    v_lshlrev_b32 v{TMP+5}, 4, v{TMP+5}
    v_lshl_add_u32 v{TMP+5}, v{TMP+4}, 8, v{TMP+5}
    v_xor_b32 v{TMP+6}, 64, v{TMP+5}
    v_add_u32 v{TMP+6}, 1024, v{TMP+6}
    s_lshl_b32 s32, s28, 13
    s_add_u32 s32, s32, {OFF_Z}
    s_lshl_b32 s33, s3, 11
    s_add_u32 m0, s33, {K2_COL}
    s_nop 0
    buffer_load_dwordx4 v{TMP+5}, s[20:23], s32 offen lds
    s_add_u32 m0, s33, {K2_COL+1024}
    s_nop 0
    buffer_load_dwordx4 v{TMP+6}, s[20:23], s32 offen lds
    """)
    a(f"s_lshl_b32 s36, s3, 13")
    a(f"s_add_u32 s36, s36, {OFF_T64}")
    for k in range(8):
        a(f"buffer_load_dwordx4 {vr(T64+4*k,4)}, v{TMP}, s[20:23], s36 offen offset:{(k%4)*1024}")
        if k==3: a("s_add_u32 s36, s36, 4096")
    a(f"s_lshl_b32 s36, s3, 12")
    a(f"s_add_u32 s36, s36, {OFF_TW}")
    for k in range(4):
        a(f"buffer_load_dwordx4 {vr(TW+4*k,4)}, v{TMP}, s[20:23], s36 offen offset:{k*1024}")
    a(f"s_mov_b32 s36, {OFF_A32}")
    for k in range(8):
        a(f"buffer_load_dwordx4 {vr(A32+4*k,4)}, v{TMP}, s[20:23], s36 offen offset:{(k%4)*1024}")
        if k==3: a("s_add_u32 s36, s36, 4096")
    a(f"""
    s_lshl_b32 s36, s28, 13
    s_lshl_b32 s37, s3, 11
    s_add_u32 s36, s36, s37
    s_add_u32 s36, s36, {OFF_WT}
    buffer_load_dwordx4 {vr(WT,4)}, v{TMP}, s[20:23], s36 offen
    buffer_load_dwordx4 {vr(WT+4,4)}, v{TMP}, s[20:23], s36 offen offset:1024
    s_setpc_b64 s[60:61]
    """)
    a.label("k2_b2")
    a.sc_srd=P1
    a.p1=P1
    b2_part1(a)
    b2_part2(a)
    if asm.F23:
        a.label("k2_pub")
        if not asm.F12: get_tag(a,"b")
        a.sc_srd="s[20:23]"
        a("s_waitcnt vmcnt(0)")
        bbar(a,"pub")
        a(f"""
        s_cmp_eq_u32 s3, 0
        s_cbranch_scc0 k2_pub1
        s_lshl_b32 s36, s28, 2
        s_add_u32 s36, s36, {OFF_F2B}
        """)
        flag_store(a,36,TMP)
        a.label("k2_pub1")
        a.sc_srd=P1
        a(f"""
        s_lshr_b32 s36, s19, 2                   ; ct
        s_lshl_b32 s36, s36, 16
        s_lshl_b32 s37, s3, 13
        s_add_u32 s36, s36, s37
        s_add_u32 s36, s36, {OFF_WOF}
        v_lshlrev_b32 v{TMP}, 4, v1
        """)
        for hh in range(8):
            a(f"s_add_u32 s37, s36, {hh*1024}")
            a(f"buffer_load_dwordx4 {vr(WOR+8*hh,4)}, v{TMP}, s[20:23], s37 offen")
            a(f"s_add_u32 s37, s37, 32768")
            a(f"buffer_load_dwordx4 {vr(WOR+8*hh+4,4)}, v{TMP}, s[20:23], s37 offen")
        a("s_setpc_b64 s[60:61]")
    a.sc_srd=None
    if own:
        a.label("k2_end")
        a("s_endpgm")
    return a
```

```python
import asm
from asm import *
from layout import *
import k1, k2
from k1 import srd, twiddle, gen_consts
from k2 import bbar, poll, flag_store, get_tag, WOR, TMP as T2
import os
OUTSC={'':'','sc1':' sc1','nt':' nt','none':''}[os.environ.get('OUTSC','sc1')]
KF_LDS=163840
PSTR=17408
S3=4*PSTR

def ph1_end(a):
    a.label("ph1_end")
    a("s_barrier")
    stamp(a,20)
    a("""
    v_mov_b32 v2, 0
    s_mov_b32 s49, 0x20000
    """)
    a.label("kf_tag")
    a("""
    global_load_dword v3, v2, s[54:55] sc1
    s_waitcnt vmcnt(0)
    v_readfirstlane_b32 s56, v3
    s_sub_u32 s49, s49, 1
    s_cmp_eq_u32 s49, 0
    s_cbranch_scc1 kf_tag_done
    s_cmp_eq_u32 s56, 0
    s_cbranch_scc0 kf_tag_done
    s_sleep 1
    s_branch kf_tag
    """)
    a.label("kf_tag_done")
    srd(a,20,16,WS_SIZE)
    a(f"""
    s_cmp_eq_u32 s3, 0
    s_cbranch_scc0 kf_noflag1
    s_cmp_ge_u32 s2, 192
    s_cbranch_scc1 kf_flagB
    s_lshl_b32 s36, s29, 4
    s_add_u32 s36, s36, s28
    s_lshl_b32 s36, s36, 2
    s_add_u32 s36, s36, {OFF_F1Q}
    s_branch kf_flag1
    """)
    a.label("kf_flagB")
    a(f"""
    s_sub_u32 s36, s2, 192
    s_lshl_b32 s36, s36, 2
    s_add_u32 s36, s36, {OFF_F1B}
    """)
    a.label("kf_flag1")
    a.sc_srd="s[20:23]"
    flag_store(a,36,4)
    a.sc_srd=None
    a.label("kf_noflag1")

def phase3(a):
    a.label("ph3_start")
    a.sc_srd="s[20:23]"
    a(f"""
    v_lshlrev_b32 v2, 4, v1                  ; lane*16
    s_cmp_ge_u32 s3, 4
    s_cbranch_scc1 ph3_B
    s_lshl_b32 s28, s18, 2
    s_and_b32 s29, s19, 3
    s_add_u32 s28, s28, s29                  ; rt
    s_lshr_b32 s29, s19, 2                   ; ct
    s_lshl_b32 s30, s28, 16
    s_lshl_b32 s31, s3, 13
    s_add_u32 s30, s30, s31
    s_add_u32 s30, s30, {OFF_O}
    v_bfe_u32 v3, v1, 3, 1
    s_lshl_b32 s32, s28, 1
    v_add_u32 v3, s32, v3                    ; tile
    v_lshlrev_b32 v3, 5, v3
    v_and_b32 v4, 7, v1
    s_lshl_b32 s32, s3, 3
    v_add3_u32 v3, v3, v4, s32               ; tile*32 + 8w + j
    v_lshlrev_b32 v3, 2, v3
    v_add_u32 v3, {OFF_F2}, v3
    """)
    poll(a,"p2",1,[(3,4)])
    stamp(a,21)
    OL=8; ACCS=[72,88,112,128]
    for hh in range(8):
        a(f"s_add_u32 s34, s30, {hh*1024}")
        a(f"buffer_load_dwordx4 {vr(OL+8*hh,4)}, v2, s[20:23], s34 offen")
        a(f"s_add_u32 s34, s34, 32768")
        a(f"buffer_load_dwordx4 {vr(OL+8*hh+4,4)}, v2, s[20:23], s34 offen")
    a(f"""
    v_and_b32 v3, 31, v1
    v_lshrrev_b32 v4, 5, v1
    v_mul_u32_u24 v3, 272, v3
    v_lshl_add_u32 v3, v4, 4, v3
    s_mul_i32 s33, s3, {PSTR}
    v_add_u32 v3, s33, v3
    v_lshrrev_b32 v4, 3, v1                  ; rl
    v_and_b32 v5, 7, v1                      ; c
    s_lshl_b32 s33, s3, 4
    v_add_u32 v6, s33, v4
    v_mul_u32_u24 v7, 272, v6
    v_lshl_add_u32 v7, v5, 5, v7
    s_lshl_b32 s33, s28, 6
    v_add_u32 v6, s33, v6
    v_lshlrev_b32 v6, 11, v6
    v_lshl_add_u32 v6, v5, 4, v6
    s_lshl_b32 s35, s29, 7
    """)
    srd(a,24,52,2048*1024*2)
    for hh in range(8):
        a(f"s_waitcnt vmcnt({2*(7-hh)})")
        for nl in range(2):
            for st in range(2):
                acc=ACCS[nl*2+st]
                a(f"v_mfma_f32_32x32x16_bf16 {vr(acc,16)}, {vr(WOR+8*hh+4*nl,4)}, {vr(OL+8*hh+4*st,4)}, {'0' if hh==0 else vr(acc,16)}")
    a("s_nop 7")
    for q in range(4):
        nl,st=q>>1,q&1
        if q==2: a("s_nop 3")
        for jj in range(4):
            a(f"ds_write_b128 v3, {vr(ACCS[q]+4*jj,4)} offset:{st*32*272+(32*nl+8*jj)*4}")
    bbar(a,"p3b")
    stamp(a,22)
    R=8
    for e in range(2):
        for w in range(4):
            for hf in range(2):
                a(f"ds_read_b128 {vr(R+32*e+8*w+4*hf,4)}, v7 offset:{w*PSTR+e*8*272+hf*16}")
    for e in range(2):
        a(f"s_waitcnt lgkmcnt({8*(1-e)})")
        b=R+32*e
        for k in range(8):
            a(f"v_add_f32 v{b+k}, v{b+k}, v{b+8+k}")
            a(f"v_add_f32 v{b+16+k}, v{b+16+k}, v{b+24+k}")
        for k in range(8): a(f"v_add_f32 v{b+k}, v{b+k}, v{b+16+k}")
        for k in range(4): a(f"v_cvt_pk_bf16_f32 v{80+4*e+k}, v{b+2*k}, v{b+2*k+1}")
        a(f"s_add_u32 s36, s35, {e*8*2048}")
        a(f"buffer_store_dwordx4 {vr(80+4*e,4)}, v6, s[24:27], s36 offen{OUTSC}")
    if asm.STAMP:
        a("s_waitcnt vmcnt(0)"); stamp(a,23); stamp_dump(a,0 if asm.F12 else 1)
    a("s_endpgm")
    a.label("ph3_B")
    VM,VQ,VMF,VQF=3,4,5,6
    R16,TWc,TWs,A32=8,16,24,32
    AB=64; P=80; D1=88; D2=112; TMP=128
    a(f"""
    s_sub_u32 s28, s3, 4                     ; jv
    s_lshr_b32 s29, s19, 3
    s_lshl_b32 s29, s29, 3
    s_add_u32 s29, s29, s18                  ; n2
    s_and_b32 s30, s19, 7                    ; a
    """)
    a(f"""
    s_cmp_eq_u32 s3, 4
    s_cbranch_scc0 ph3_nopollB
    v_lshlrev_b32 v{TMP}, 2, v1
    v_add_u32 v{TMP}, {OFF_F2B}, v{TMP}
    v_add_u32 v{TMP+1}, 256, v{TMP}
    v_add_u32 v{TMP+2}, 512, v{TMP}
    v_add_u32 v{TMP+3}, 768, v{TMP}
    """)
    poll(a,"p2b",4,[(TMP+k,TMP+4+k) for k in range(4)])
    a.label("ph3_nopollB")
    bbar(a,"p3c",8)
    a(f"""
    v_lshrrev_b32 v{TMP}, 1, v1
    v_lshlrev_b32 v{TMP}, 13, v{TMP}         ; (l>>1)*8192
    v_and_b32 v{TMP+1}, 1, v1
    v_lshl_add_u32 v{TMP}, v{TMP+1}, 4, v{TMP}
    s_lshl_b32 s31, s29, 8
    s_lshl_b32 s32, s30, 5
    s_add_u32 s31, s31, s32
    s_lshl_b32 s32, s28, 19                  ; jv*2*32*8192
    s_add_u32 s31, s31, s32
    s_add_u32 s31, s31, {OFF_Y}
    s_lshl_b32 s33, s28, 11
    s_add_u32 m0, s33, {S3}
    s_nop 0
    buffer_load_dwordx4 v{TMP}, s[20:23], s31 offen lds
    s_add_u32 m0, s33, {S3+1024}
    s_add_u32 s31, s31, {32*8192}
    buffer_load_dwordx4 v{TMP}, s[20:23], s31 offen lds
    v_and_b32 v{VM}, 15, v1
    v_lshrrev_b32 v{VQ}, 4, v1
    v_cvt_f32_u32 v{VMF}, v{VM}
    v_lshlrev_b32 v{VQF}, 2, v{VQ}
    v_cvt_f32_u32 v{VQF}, v{VQF}
    """)
    srd(a,24,52,2048*1024*2)
    gen_consts(a, True, 2.0**-21, R16, TWc, TWs, A32, TMP, VMF, VQF)
    a(f"""
    v_lshl_add_u32 v{TMP}, v{VQ}, 7, v{VM}           ; 128q + m
    v_sub_u32 v{TMP+1}, 512, v{TMP}
    v_cmp_gt_u32 vcc, 32, v1                         ; q<2 <=> lane<32
    v_mov_b32 v{TMP+2}, -1.0
    v_mov_b32 v{TMP+3}, -512
    v_cndmask_b32 v{TMP}, v{TMP+1}, v{TMP}, vcc
    v_cndmask_b32 v7, v{TMP+2}, 1.0, vcc             ; sigma
    v_mov_b32 v{TMP+4}, 512
    v_cndmask_b32 v{TMP+3}, v{TMP+3}, v{TMP+4}, vcc  ; step
    s_lshl_b32 s33, s28, 3
    s_add_u32 s33, s33, {S3}
    v_lshl_add_u32 v{TMP}, v{TMP}, 5, s33            ; base
    v_mov_b32 v{TMP+5}, s33
    v_cmp_eq_u32 vcc, 32, v1
    v_add_u32 v{TMP+7}, v{TMP}, v{TMP+3}             ; addr e=1
    s_nop 0
    v_cndmask_b32 v{TMP+6}, v{TMP}, v{TMP+5}, vcc
    s_mov_b64 s[36:37], vcc
    s_waitcnt vmcnt(0)
    """)
    bbar(a,"p3d",8)
    stamp(a,21)
    a(f"ds_read_b64 {vr(AB,2)}, v{TMP+6}")
    for e in range(1,8):
        i,t=e>>1,e&1
        a(f"ds_read_b64 {vr(AB+2*(4*t+i),2)}, v{TMP+7}")
        if e<7: a(f"v_add_u32 v{TMP+7}, v{TMP+7}, v{TMP+3}")
    a(f"""
    v_cmp_eq_u32 vcc, 0, v1
    s_nop 1
    s_or_b64 s[38:39], vcc, s[36:37]
    v_cndmask_b32 v{TMP+8}, v7, 0, s[38:39]          ; sigma0
    s_waitcnt lgkmcnt(0)
    """)
    for t in range(2):
        for i in range(4):
            A,B=AB+2*(4*t+i),AB+2*(4*t+i)+1
            ar,ai,br,bi=TMP+10,TMP+11,TMP+12,TMP+13
            a(f"v_lshlrev_b32 v{ar}, 16, v{A}")
            a(f"v_and_b32 v{ai}, 0xffff0000, v{A}")
            a(f"v_lshlrev_b32 v{br}, 16, v{B}")
            a(f"v_and_b32 v{bi}, 0xffff0000, v{B}")
            sg=7
            if t==0 and i==0:
                a(f"v_cndmask_b32 v{ar}, v{ar}, v{ai}, s[36:37]")
                a(f"v_cndmask_b32 v{br}, v{br}, v{bi}, s[36:37]")
                sg=TMP+8
            a(f"v_fma_f32 v{TMP+14}, -v{sg}, v{bi}, v{ar}")
            a(f"v_fma_f32 v{TMP+15}, v{sg}, v{ai}, v{br}")
            a(f"v_cvt_pk_bf16_f32 v{P+4*t+i}, v{TMP+14}, v{TMP+15}")
    a("s_nop 1")
    for t in range(2):
        for part in range(2):
            a(f"v_mfma_f32_16x16x32_bf16 {vr(D1+8*t+4*part,4)}, {vr(P+4*t,4)}, {vr(R16+4*part,4)}, 0")
    a("s_nop 7")
    for t in range(2):
        twiddle(a, D1+8*t, D1+8*t+4, TWc+4*t, TWs+4*t, P+4*t, TMP)
    a("s_nop 1")
    for t in range(2):
        for tp in range(2):
            for part in range(2):
                d=D2+8*tp+4*part
                a(f"v_mfma_f32_16x16x32_bf16 {vr(d,4)}, {vr(P+4*t,4)}, {vr(A32+((tp*2+part)*2+t)*4,4)}, {'0' if t==0 else vr(d,4)}")
    a(f"""
    v_lshlrev_b32 v{TMP}, 5, v{VM}
    v_lshl_add_u32 v{TMP}, v{VQ}, 3, v{TMP}
    s_lshl_b32 s33, s30, 3
    s_lshl_b32 s34, s28, 1
    s_add_u32 s33, s33, s34
    s_lshl_b32 s33, s33, 5
    s_add_u32 s33, s33, s29
    s_lshl_b32 s33, s33, 11
    s_add_u32 s33, s33, 1024
    s_nop 3
    """)
    for part in range(2):
        for tp in range(2):
            d=D2+8*tp+4*part
            o=TMP+2+2*(part*2+tp)
            a(f"v_cvt_pk_bf16_f32 v{o}, v{d}, v{d+1}")
            a(f"v_cvt_pk_bf16_f32 v{o+1}, v{d+2}, v{d+3}")
            a(f"s_add_u32 s34, s33, {part*32*2048+tp*512}")
            a(f"buffer_store_dwordx2 {vr(o,2)}, v{TMP}, s[24:27], s34 offen{OUTSC}")
    if asm.STAMP:
        a("s_waitcnt vmcnt(0)"); stamp(a,23); stamp_dump(a,0 if asm.F12 else 1)
    a.sc_srd=None

def build_k23():
    asm.FUSED=True; asm.F12=False; asm.F23=True
    a=Asm()
    asm.SMAP={0:0,1:4,2:5,3:6,4:7,6:8,8:9,21:10,22:11,23:12}
    if asm.STAMP==3: asm.SMAP={0:0,2:1,3:2,4:3,6:4,8:5,21:6,23:7}
    k2.build_k2(a)
    phase3(a)
    a.label("k2_end")
    a("s_endpgm")
    asm.FUSED=False; asm.F23=False; asm.SMAP=None
    return a

def build_fused():
    asm.FUSED=True; asm.F12=True; asm.F23=True
    a=Asm()
    asm.SMAP={0:0,1:1,3:2,20:3}
    k1.build_k1(a)
    ph1_end(a)
    asm.SMAP={9:4,2:5,3:6,4:7,6:8,8:9,21:10,22:11,23:12}
    k2.build_k2(a)
    phase3(a)
    a.label("k1_end")
    a.label("k2_end")
    a("s_endpgm")
    return a
```

```python
import struct
def f2u(x): return struct.unpack("<I",struct.pack("<f",x))[0]
FUSED=False
F12=False
F23=False
class Asm:
    def __init__(self):
        self.lines=[]
        self.sc_srd=None
    def __call__(self, s):
        for l in s.strip("\n").split("\n"):
            l=l.strip()
            if not l: continue
            if (FUSED or getattr(self,'force_sc',False)) and self.sc_srd and l.startswith("buffer_") and self.sc_srd in l:
                code,_,cm=l.partition(";")
                code=code.rstrip()
                sfx=getattr(self,'sc_sfx'," sc1")
                if code.endswith(" lds"): code=code[:-4]+sfx+" lds"
                else: code+=sfx
                l=code
            self.lines.append("    "+l)
    def label(self,name): self.lines.append(name+":")
    def comment(self,s): self.lines.append("    ; "+s)
    def raw(self,s): self.lines.append(s)
    def text(self): return "\n".join(self.lines)+"\n"
def vr(b,n=1): return f"v{b}" if n==1 else f"v[{b}:{b+n-1}]"
def sr(b,n=1): return f"s{b}" if n==1 else f"s[{b}:{b+n-1}]"

STAMP=False
OFF_DBG=0x0F00000
SMAP=None
def stamp(a,k,real=False):
    if not STAMP: return
    if SMAP is not None:
        if k not in SMAP: return
        k=SMAP[k]
    a(f"s_waitcnt lgkmcnt(0)")
    if STAMP==3:
        if k>=8: k=7
        a(f"s_memrealtime s[{70+2*k}:{71+2*k}]")
        a(f"s_memtime s[{86+2*k}:{87+2*k}]")
    else:
        a(f"{'s_memtime' if STAMP==2 else 's_memrealtime'} s[{70+2*k}:{71+2*k}]")
    a(f"s_waitcnt lgkmcnt(0)")
_dumpn=[0]
def stamp_dump(a,kid,wsreg=16):
    if not STAMP: return
    if STAMP==4:
        _dumpn[0]+=1; n=_dumpn[0]
        a("s_mov_b64 exec, -1")
        a("s_or_b32 s68, s2, s3")
        a("s_cmp_eq_u32 s68, 0")
        a(f"s_cbranch_scc0 dbgdump_skip{n}")
        a("v_mov_b32 v200, 0")
        for k in range(1,14):
            a(f"s_sub_u32 s68, s{70+2*k}, s70")
            a(f"v_mov_b32 v201, s68")
            a(f"global_store_dword v200, v201, s[54:55] offset:{4*k}")
            a("s_nop 1")
        a("s_waitcnt vmcnt(0)")
        a.label(f"dbgdump_skip{n}")
        return
    a("s_mov_b64 exec, -1")
    a("s_lshl_b32 s68, s2, 3")
    a("s_add_u32 s68, s68, s3")
    a("s_lshl_b32 s68, s68, 7")
    a(f"s_add_u32 s68, s68, {OFF_DBG+kid*0x40000}")
    a(f"s_add_u32 s64, s{wsreg}, s68")
    a(f"s_addc_u32 s65, s{wsreg+1}, 0")
    a("v_mov_b32 v200, 0")
    for k in range(32):
        a(f"v_mov_b32 v201, s{70+k}")
        a(f"global_store_dword v200, v201, s[64:65] offset:{4*k}")
        a("s_nop 1")
    a("s_waitcnt vmcnt(0)")

_pf=[0]
def code_prefetch(a, target, end, nblk, voff, vdst, back=False):
    _pf[0]+=1; n=_pf[0]
    a("s_getpc_b64 s[66:67]")
    a.label(f"pf_here{n}")
    if not back:
        a(f"s_add_u32 s66, s66, {target}-pf_here{n}")
        a("s_addc_u32 s67, s67, 0")
    else:
        a(f"s_sub_u32 s66, s66, pf_here{n}-{target}")
        a("s_subb_u32 s67, s67, 0")
    a(f"v_lshlrev_b32 v{voff}, 7, v1")
    a(f"s_mov_b32 s64, {end}-{target}-4")
    for k in range(nblk):
        a(f"v_min_u32 v{voff+1}, s64, v{voff}")
        a(f"global_load_dword v{vdst}, v{voff+1}, s[66:67]")
        if k+1<nblk: a(f"v_add_u32 v{voff}, 8192, v{voff}")
```

```python
import asm
from asm import *
from layout import *

K1_LDS = 133120

def srd(a, d, base, size):
    a(f"s_mov_b32 s{d}, s{base}")
    a(f"s_and_b32 s{d+1}, s{base+1}, 0xffff")
    a(f"s_mov_b32 s{d+2}, {size}")
    a(f"s_mov_b32 s{d+3}, 0x20000")

def fin(a, restore_exec=False):
    if asm.F12:
        if restore_exec: a("s_mov_b64 exec, -1")
        a("s_waitcnt vmcnt(0)")
        a("s_branch ph1_end")
    else: a("s_endpgm")

def k1_prologue(a):
    a("""
    s_cmp_ge_u32 s2, 256
    s_cbranch_scc1 k1_end
    s_load_dwordx4 s[4:7], s[0:1], 0
    s_load_dwordx2 s[8:9], s[0:1], 16
    s_load_dwordx2 s[10:11], s[0:1], 24
    s_load_dwordx4 s[12:15], s[0:1], 32
    s_load_dwordx2 s[16:17], s[0:1], 64
    """)
    if asm.F12:
        a("""
        s_load_dwordx4 s[52:55], s[0:1], 48
        """)
    a("""
    v_and_b32 v1, 63, v0
    v_lshrrev_b32 v2, 6, v0
    s_nop 0
    v_readfirstlane_b32 s3, v2
    """)
    if asm.F12:
        a("""
        s_or_b32 s57, s2, s3
        s_cmp_eq_u32 s57, 0
        s_cbranch_scc0 kf_nononce
        s_memrealtime s[56:57]
        s_waitcnt lgkmcnt(0)
        s_or_b32 s56, s56, 1
        v_mov_b32 v2, 0
        v_mov_b32 v3, s56
        s_mov_b64 exec, 1
        global_store_dword v2, v3, s[54:55] sc1
        s_mov_b64 exec, -1
        """)
        a.label("kf_nononce")
    stamp(a,0)
    a("""
    s_cmp_ge_u32 s2, 192
    s_cbranch_scc1 k1_B
    s_and_b32 s18, s2, 7
    s_lshr_b32 s19, s2, 3
    s_and_b32 s28, s18, 3
    s_lshl_b32 s28, s28, 2
    s_and_b32 s29, s19, 3
    s_add_u32 s28, s28, s29          ; s28 = rb
    s_lshr_b32 s29, s18, 2
    s_mul_i32 s29, s29, 6
    s_lshr_b32 s30, s19, 2
    s_add_u32 s29, s29, s30          ; s29 = cb
    s_cmp_ge_u32 s3, 4
    s_cbranch_scc0 k1_compute
    """)

def k1_loader(a):
    a.comment("---- loader waves 4..7 ----")
    a("""
    s_sub_u32 s30, s3, 4             ; lw
    v_lshrrev_b32 v2, 3, v1          ; l>>3
    v_lshrrev_b32 v3, 4, v1          ; l>>4
    v_and_b32 v4, 7, v1
    v_xor_b32 v4, v4, v3
    v_lshlrev_b32 v4, 4, v4
    v_lshl_add_u32 v4, v2, 10, v4    ; voffX0
    v_xor_b32 v5, 64, v4             ; voffX1
    v_and_b32 v6, 15, v1
    v_lshlrev_b32 v7, 2, v3
    v_xor_b32 v6, v6, v7
    v_lshlrev_b32 v6, 4, v6
    v_mul_u32_u24 v7, 3072, v3
    v_add_u32 v6, v6, v7             ; voffW
    s_lshl_b32 s31, s28, 17          ; rb*128*1024
    s_lshl_b32 s32, s30, 15          ; lw*32*1024
    s_add_u32 s31, s31, s32          ; sX0
    s_mul_i32 s32, s30, 16*3072
    s_lshl_b32 s33, s29, 8
    s_add_u32 s32, s32, s33          ; sW0
    s_lshl_b32 s33, s30, 12
    s_waitcnt lgkmcnt(0)
    """)
    stamp(a,4)
    srd(a,20,4,2097152); srd(a,24,6,1572864)
    import os
    ROT=int(os.environ.get("K1ROT","1"))
    if ROT:
        a("""
        s_lshr_b32 s35, s19, 2
        s_and_b32 s36, s19, 3
        s_lshl_b32 s36, s36, 1
        s_add_u32 s35, s35, s36
        """)
    else: a("s_mov_b32 s35, 0")
    def issue(c):
        slot=c&3
        a(f"s_add_u32 s36, s35, {c}")
        a("s_and_b32 s36, s36, 7")
        a("s_lshl_b32 s37, s36, 7")
        a("s_add_u32 s37, s37, s31")
        a(f"s_mul_i32 s38, s36, {64*3072}")
        a("s_add_u32 s38, s38, s32")
        for e in range(4):
            a(f"s_add_u32 m0, s33, {slot*32768+e*1024}")
            a(f"s_add_u32 s34, s37, {e*8192}")
            a(f"buffer_load_dwordx4 v{4+(e&1)}, s[20:23], s34 offen lds")
        for e in range(4):
            a(f"s_add_u32 m0, s33, {slot*32768+16384+e*1024}")
            a(f"s_add_u32 s34, s38, {4*e*3072}")
            a(f"buffer_load_dwordx4 v6, s[24:27], s34 offen lds")
    import os
    LA=int(os.environ.get("K1LA","2"))
    issued=-1
    for c in range(min(LA,4)):
        issue(c); issued=c
        if c==0: stamp(a,5)
    stamp(a,6)
    for c in range(8):
        n=8*(issued-c)
        a(f"s_waitcnt vmcnt({n})")
        a("s_barrier")
        if c in (0,3,7): stamp(a,{0:1,3:2,7:3}[c])
        while issued<min(7,c+LA,c+3):
            issued+=1; issue(issued)
    if not asm.F12: stamp_dump(a,0)
    fin(a)

def k1_compute(a):
    import os
    a.label("k1_compute")
    import os
    qsc=os.environ.get("K1QSC","sc1")
    a.sc_srd="s[20:23]" if (asm.F12 or qsc!="none") else None
    if qsc!="none" and not asm.F12:
        a.force_sc=True; a.sc_sfx=" "+qsc.replace("_"," ")
    XA,XB,WA,WB=2,6,10,12
    a("""
    s_lshr_b32 s30, s3, 1            ; wm
    s_and_b32 s31, s3, 1             ; wn
    v_and_b32 v14, 31, v1            ; r
    v_lshrrev_b32 v15, 5, v1         ; h
    v_lshrrev_b32 v16, 1, v14
    v_and_b32 v16, 7, v16            ; (r>>1)&7
    v_xor_b32 v16, v16, v15          ; h ^ c
    v_lshlrev_b32 v16, 4, v16
    v_lshl_add_u32 v16, v14, 7, v16  ; r*128 + slot*16
    s_lshl_b32 s32, s30, 13          ; wm*64*128
    v_add_u32 v2, s32, v16
    v_xor_b32 v3, 32, v2
    v_xor_b32 v4, 64, v2
    v_xor_b32 v5, 96, v2
    v_add_u32 v6, 0x10000, v2
    v_add_u32 v7, 0x10000, v3
    v_add_u32 v8, 0x10000, v4
    v_add_u32 v9, 0x10000, v5
    v_and_b32 v16, 15, v1
    v_lshrrev_b32 v16, 2, v16        ; r4
    v_lshl_add_u32 v17, v15, 3, v16  ; 8h + r4
    v_lshlrev_b32 v17, 8, v17        ; *256
    s_lshl_b32 s32, s31, 1
    v_xor_b32 v18, s32, v16          ; nt0 ^ r4
    v_lshl_add_u32 v17, v18, 6, v17
    v_lshrrev_b32 v18, 4, v1
    v_and_b32 v18, 1, v18
    v_lshl_add_u32 v17, v18, 5, v17  ; + cg*32
    v_and_b32 v18, 3, v1
    v_lshl_add_u32 v17, v18, 3, v17  ; + c4*8
    v_add_u32 v10, 16384, v17
    v_xor_b32 v11, 64, v10
    v_add_u32 v12, 0x10000, v10
    v_add_u32 v13, 0x10000, v11
    """)
    if os.environ.get("K1PF","0")=="1":
        a("s_cmp_eq_u32 s3, 0")
        a("s_cbranch_scc0 k1_nopf")
        code_prefetch(a,"k1_compute","k1_B",2,250,252,back=True)
        a.label("k1_nopf")
    for i in range(64): a(f"v_mov_b32 v{64+i}, 0")
    a("s_waitcnt lgkmcnt(0)")
    srd(a,20,16,WS_SIZE)
    a("""
    s_cmp_ge_u32 s29, 8
    s_cbranch_scc1 k1_vloop
    """)
    bufs=[(16,20,24,28),(32,36,40,44)]
    def reads(c,ks,buf):
        slot=c&3
        xa=(XA if slot<2 else XB)+ks; wa=(WA if slot<2 else WB)
        so=(slot&1)*32768
        X0,X1,W0,W1=buf
        a(f"ds_read_b128 {vr(X0,4)}, v{xa} offset:{so}")
        a(f"ds_read_b64_tr_b16 {vr(W0,2)}, v{wa} offset:{so+ks*4096}")
        a(f"ds_read_b64_tr_b16 {vr(W0+2,2)}, v{wa} offset:{so+ks*4096+1024}")
        a(f"ds_read_b128 {vr(X1,4)}, v{xa} offset:{so+4096}")
        a(f"ds_read_b64_tr_b16 {vr(W1,2)}, v{wa+1} offset:{so+ks*4096}")
        a(f"ds_read_b64_tr_b16 {vr(W1+2,2)}, v{wa+1} offset:{so+ks*4096+1024}")
    def loop(vtype):
        a("s_barrier")
        stamp(a,1)
        reads(0,0,bufs[0])
        for c in range(8):
            for ks in range(4):
                j=4*c+ks
                cur=bufs[j&1]; nxt=bufs[(j+1)&1]
                if ks<3:
                    reads(c,ks+1,nxt)
                    a("s_waitcnt lgkmcnt(6)")
                else:
                    a("s_waitcnt lgkmcnt(0)")
                    if c<7:
                        a("s_barrier")
                        reads(c+1,0,nxt)
                X0,X1,W0,W1=cur
                for ntl in range(2):
                    for rt in range(2):
                        acc=64+(ntl*2+rt)*16
                        W=(W0,W1)[ntl]; X=(X0,X1)[rt]
                        if not vtype: a(f"v_mfma_f32_32x32x16_bf16 {vr(acc,16)}, {vr(W,4)}, {vr(X,4)}, {vr(acc,16)}")
                        else:         a(f"v_mfma_f32_32x32x16_bf16 {vr(acc,16)}, {vr(X,4)}, {vr(W,4)}, {vr(acc,16)}")
            if c==3: stamp(a,2)
        stamp(a,3)
    loop(False)
    a("""
    s_and_b32 s33, s29, 3
    s_lshl_b32 s33, s33, 3
    s_lshl_b32 s34, s31, 2
    s_add_u32 s33, s33, s34          ; head0
    s_lshl_b32 s34, s28, 2
    s_lshl_b32 s35, s30, 1
    s_add_u32 s34, s34, s35          ; tile0
    s_cmp_ge_u32 s29, 4
    s_cbranch_scc1 k1_kepi
    """)
    a(f"""
    v_lshlrev_b32 v2, 9, v15
    v_lshl_add_u32 v2, v14, 4, v2    ; h*512 + r*16
    s_lshl_b32 s35, s33, 16
    s_lshl_b32 s36, s34, 10
    s_add_u32 s35, s35, s36
    s_add_u32 s35, s35, {OFF_Q}
    s_mov_b32 s37, {hex(f2u(QSCALE))}
    s_nop 7
    """)
    for ntl in range(2):
        for rt in range(2):
            acc=64+(ntl*2+rt)*16
            for i in range(16): a(f"v_mul_f32 v{acc+i}, s37, v{acc+i}")
            t=16+(ntl*2+rt)*8
            for i in range(8): a(f"v_cvt_pk_bf16_f32 v{t+i}, v{acc+2*i}, v{acc+2*i+1}")
            for hh in range(2):
                a(f"s_add_u32 s36, s35, {(2*ntl+hh)*65536+rt*1024}")
                a(f"buffer_store_dwordx4 {vr(t+4*hh,4)}, v2, s[20:23], s36 offen")
    if asm.STAMP and not asm.F12:
        stamp(a,5); a("s_waitcnt vmcnt(0)"); stamp(a,4); stamp_dump(a,0)
    fin(a)
    a.label("k1_kepi")
    a(f"""
    v_and_b32 v2, 0x13, v14
    v_and_b32 v3, 4, v14
    v_lshl_or_b32 v2, v3, 1, v2
    v_and_b32 v3, 8, v14
    v_lshrrev_b32 v3, 1, v3
    v_or_b32 v2, v2, v3              ; pi(r)
    v_lshlrev_b32 v2, 4, v2
    v_lshl_add_u32 v2, v15, 10, v2   ; h*1024 + pi(r)*16
    s_mul_i32 s35, s33, {KV_HEAD}
    s_mul_i32 s36, s34, {KV_TILE}
    s_add_u32 s35, s35, s36
    s_add_u32 s35, s35, {OFF_KV}
    s_nop 5
    """)
    for ntl in range(2):
        for rt in range(2):
            acc=64+(ntl*2+rt)*16
            t=16+(ntl*2+rt)*8
            for i in range(8): a(f"v_cvt_pk_bf16_f32 v{t+i}, v{acc+2*i}, v{acc+2*i+1}")
            for hh in range(2):
                a(f"s_add_u32 s36, s35, {(2*ntl+hh)*KV_HEAD+rt*KV_TILE}")
                a(f"buffer_store_dwordx4 {vr(t+4*hh,4)}, v2, s[20:23], s36 offen")
    for q in range(4):
        acc=64+q*16
        for hh in range(2):
            a(f"v_mul_f32 v{48+2*q+hh}, v{acc+8*hh}, v{acc+8*hh}")
        for i in range(1,8):
            for hh in range(2):
                a(f"v_fmac_f32 v{48+2*q+hh}, v{acc+8*hh+i}, v{acc+8*hh+i}")
    a("s_nop 1")
    for q in range(4): a(f"v_permlane32_swap_b32 v{48+2*q}, v{49+2*q}")
    a("s_nop 1")
    for q in range(4): a(f"v_add_f32 v{48+2*q}, v{48+2*q}, v{49+2*q}")
    for sh in ("row_shr:1","row_shr:2","row_shr:4","row_shr:8"):
        for q in range(4): a(f"v_max_f32_dpp v{48+2*q}, v{48+2*q}, v{48+2*q} {sh} row_mask:0xf bank_mask:0xf bound_ctrl:0")
    for q in range(4): a(f"v_max_f32_dpp v{48+2*q}, v{48+2*q}, v{48+2*q} row_bcast:15 row_mask:0xa bank_mask:0xf")
    a(f"""
    v_lshlrev_b32 v3, 8, v15
    s_lshl_b32 s35, s33, 8
    s_lshl_b32 s36, s34, 2
    s_add_u32 s35, s35, s36
    s_add_u32 s35, s35, {OFF_KN}
    s_mov_b32 exec_lo, 0x80000000
    s_mov_b32 exec_hi, 0x80000000
    """)
    for ntl in range(2):
        for rt in range(2):
            q=ntl*2+rt
            a(f"s_add_u32 s36, s35, {2*ntl*256+rt*4}")
            a(f"buffer_store_dword v{48+2*q}, v3, s[20:23], s36 offen")
    if asm.STAMP and not asm.F12:
        stamp(a,5); a("s_waitcnt vmcnt(0)"); stamp(a,4); stamp_dump(a,0)
    fin(a,True)
    a.label("k1_vloop")
    loop(True)
    a(f"""
    s_and_b32 s33, s29, 3
    s_lshl_b32 s33, s33, 3
    s_lshl_b32 s34, s31, 2
    s_add_u32 s33, s33, s34          ; head0
    s_lshl_b32 s34, s28, 2
    s_lshl_b32 s35, s30, 1
    s_add_u32 s34, s34, s35          ; tile0
    v_lshrrev_b32 v2, 4, v14         ; n>>4
    s_mov_b32 s36, {KV_HEAD}
    v_mul_lo_u32 v2, v2, s36
    v_lshl_add_u32 v2, v15, 10, v2
    v_and_b32 v3, 15, v14
    v_lshl_add_u32 v2, v3, 4, v2
    s_mul_i32 s35, s33, {KV_HEAD}
    s_mul_i32 s36, s34, {KV_TILE}
    s_add_u32 s35, s35, s36
    s_add_u32 s35, s35, {OFF_KV+512}
    """)
    for ntl in range(2):
        for rt in range(2):
            acc=64+(ntl*2+rt)*16
            t=16+(ntl*2+rt)*8
            for i in range(8): a(f"v_cvt_pk_bf16_f32 v{t+i}, v{acc+2*i}, v{acc+2*i+1}")
            for u in range(2):
                a(f"s_add_u32 s36, s35, {2*ntl*KV_HEAD+rt*KV_TILE+u*256}")
                a(f"buffer_store_dwordx4 {vr(t+4*u,4)}, v2, s[20:23], s36 offen")
    if asm.STAMP and not asm.F12:
        stamp(a,5); a("s_waitcnt vmcnt(0)"); stamp(a,4); stamp_dump(a,0)
    fin(a,True)

def gen_consts(a, inv, scale, R16, TWc, TWs, A32, tmp, vm, vq):
    T=tmp
    a(f"v_mul_f32 v{T}, {hex(f2u(1/16.))}, v{vm}")
    for i in range(4):
        a(f"v_add_f32 v{T+1+i}, {float(i)}, v{vq}" if i else f"v_mov_b32 v{T+1}, v{vq}")
    for i in range(4): a(f"v_mul_f32 v{T+1+i}, v{T+1+i}, v{T}")
    for i in range(4):
        a(f"v_cos_f32 v{T+5+i}, v{T+1+i}")
        a(f"v_sin_f32 v{T+9+i}, v{T+1+i}")
    if scale!=1.0:
        a(f"s_mov_b32 s40, {hex(f2u(scale))}")
        for i in range(8): a(f"v_mul_f32 v{T+5+i}, s40, v{T+5+i}")
    else: a("s_nop 0")
    for i in range(4):
        c,s=T+5+i,T+9+i
        if not inv:
            a(f"v_cvt_pk_bf16_f32 v{R16+i}, v{c}, v{s}")
            a(f"v_cvt_pk_bf16_f32 v{R16+4+i}, -v{s}, v{c}")
        else:
            a(f"v_cvt_pk_bf16_f32 v{R16+i}, v{c}, -v{s}")
            a(f"v_cvt_pk_bf16_f32 v{R16+4+i}, v{s}, v{c}")
    a(f"v_mul_f32 v{T}, {hex(f2u(1/512.))}, v{vm}")
    for t in range(2):
        for i in range(4):
            k=16*t+i
            if k==0: a(f"v_mov_b32 v{T+1}, v{vq}")
            else:
                a(f"v_add_f32 v{T+1+4*t+i}, {hex(f2u(float(k)))}, v{vq}")
    for e in range(8): a(f"v_mul_f32 v{T+1+e}, v{T+1+e}, v{T}")
    for e in range(8):
        a(f"v_cos_f32 v{TWc+e}, v{T+1+e}")
        a(f"v_sin_f32 v{TWs+e}, {'-' if inv else ''}v{T+1+e}")
    gen_a32(a, inv, A32, tmp, vm, vq)

def gen_a32(a, inv, A32, tmp, vm, vq):
    T=tmp
    for t in range(2):
        for i in range(4):
            k=16*t+i
            if k==0: a(f"v_mov_b32 v{T+1}, v{vq}")
            else: a(f"v_add_f32 v{T+1+4*t+i}, {hex(f2u(float(k)))}, v{vq}")
    a(f"v_mul_f32 v{T+9}, {hex(f2u(1/32.))}, v{vm}")
    a(f"v_add_f32 v{T+10}, 0.5, v{T+9}")
    for tp in range(2):
        for e in range(8): a(f"v_mul_f32 v{T+11+e}, v{T+1+e}, v{T+9+tp}")
        for e in range(8):
            a(f"v_cos_f32 v{T+19+e}, v{T+11+e}")
            a(f"v_sin_f32 v{T+11+e}, v{T+11+e}")
        a("s_nop 0")
        for t in range(2):
            for i in range(4):
                e=4*t+i; c,s=T+19+e,T+11+e
                re=A32+((tp*2+0)*2+t)*4+i; im=A32+((tp*2+1)*2+t)*4+i
                if not inv:
                    a(f"v_cvt_pk_bf16_f32 v{re}, v{c}, v{s}")
                    a(f"v_cvt_pk_bf16_f32 v{im}, -v{s}, v{c}")
                else:
                    a(f"v_cvt_pk_bf16_f32 v{re}, v{c}, -v{s}")
                    a(f"v_cvt_pk_bf16_f32 v{im}, v{s}, v{c}")

def twiddle(a, re, im, c, s, out, tmp):
    T,U=tmp,tmp+4
    for p in (0,2):
        a(f"v_pk_mul_f32 {vr(T+p,2)}, {vr(re+p,2)}, {vr(c+p,2)}")
        a(f"v_pk_mul_f32 {vr(U+p,2)}, {vr(im+p,2)}, {vr(c+p,2)}")
    for p in (0,2):
        a(f"v_pk_fma_f32 {vr(T+p,2)}, {vr(im+p,2)}, {vr(s+p,2)}, {vr(T+p,2)}")
        a(f"v_pk_fma_f32 {vr(U+p,2)}, {vr(re+p,2)}, {vr(s+p,2)}, {vr(U+p,2)} neg_lo:[1,0,0] neg_hi:[1,0,0]")
    for i in range(4): a(f"v_cvt_pk_bf16_f32 v{out+i}, v{T+i}, v{U+i}")

XR_STRIDE=1056
B1_MB=33792
B1_WTL=66560
B1_MBW=100352

def k1_B(a):
    a.label("k1_B")
    import os
    a.sc_srd="s[24:27]" if (asm.F12 or os.environ.get("K1BSC","1")=="1") else None
    a.force_sc=True; a.sc_sfx=" sc1"
    VM,VQ,VMF,VQF=2,3,4,5
    R16,TWc,TWs,A32=8,16,24,32
    PIN=64
    D1=80
    D2=112
    TMP=144
    WOL,WOH=192,196
    ABL=200
    a(f"""
    s_sub_u32 s18, s2, 192           ; b
    s_lshr_b32 s19, s18, 1           ; n2
    s_and_b32 s28, s18, 1            ; hf
    v_and_b32 v{VM}, 15, v1
    v_lshrrev_b32 v{VQ}, 4, v1
    v_lshlrev_b32 v6, 4, v1          ; lane*16
    s_waitcnt lgkmcnt(0)
    """)
    srd(a,20,10,2097152)
    srd(a,24,16,WS_SIZE)
    srd(a,44,8,524288)
    import os
    def b_loads():
        a(f"""
        s_lshl_b32 s29, s28, 5
        s_lshl_b32 s30, s3, 2
        s_add_u32 s29, s29, s30
        s_lshl_b32 s29, s29, 5
        s_add_u32 s29, s29, s19          ; s0
        s_lshl_b32 s29, s29, 10
        s_mul_i32 s30, s3, {4*XR_STRIDE}
        """)
        for e in range(4):
            a(f"s_add_u32 m0, s30, {e*XR_STRIDE}")
            a(f"s_add_u32 s31, s29, {e*32*1024}")
            a(f"buffer_load_dwordx4 v6, s[20:23], s31 offen lds")
        a(f"""
        s_lshl_b32 s32, s18, 3
        s_add_u32 s32, s32, s3           ; idx
        s_lshr_b32 s33, s32, 5
        s_lshl_b32 s33, s33, 6
        s_and_b32 s34, s32, 31
        s_lshl_b32 s34, s34, 14
        s_add_u32 s33, s33, s34
        v_and_b32 v7, 31, v1
        v_lshlrev_b32 v7, 1, v7
        v_lshrrev_b32 v{TMP}, 5, v1
        v_lshl_add_u32 v7, v{TMP}, 12, v7    ; h*4 rows*1024 + n*2
        """)
        for j8 in range(8):
            d=8*(j8>>2)+(j8&3)
            a(f"s_add_u32 s34, s33, {d*1024}")
            dst=(WOL if j8%2==0 else WOH)+j8//2
            a(f"buffer_load_ushort v{dst}, v7, s[44:47], s34 offen")
        a(f"""
        s_and_b32 s35, s18, 7
        s_lshl_b32 s35, s35, 3
        s_add_u32 s35, s35, s3
        s_lshr_b32 s36, s18, 3
        s_and_b32 s37, s36, 3            ; q
        s_lshr_b32 s36, s36, 2           ; tp
        s_lshl_b32 s36, s36, 2
        s_add_u32 s36, s36, s37          ; 4tp+q
        s_lshl_b32 s36, s36, 8           ; *4*64
        s_add_u32 s35, s35, s36          ; g(i=0)
        s_mul_i32 s35, s35, 514
        v_and_b32 v{TMP}, 31, v1
        v_lshlrev_b32 v{TMP}, 4, v{TMP}
        v_add_u32 v{TMP}, s35, v{TMP}
        v_cmp_gt_u32 vcc, 32, v1
        v_mov_b32 v{TMP+2}, s14
        v_mov_b32 v{TMP+3}, s15
        v_mov_b32 v{TMP+4}, s12
        v_mov_b32 v{TMP+5}, s13
        v_cndmask_b32 v{TMP+2}, v{TMP+2}, v{TMP+4}, vcc
        v_cndmask_b32 v{TMP+3}, v{TMP+3}, v{TMP+5}, vcc
        v_add_co_u32 v{TMP+2}, vcc, v{TMP+2}, v{TMP}
        s_mul_i32 s36, s3, {4*XR_STRIDE}
        s_nop 0
        v_addc_co_u32 v{TMP+3}, vcc, 0, v{TMP+3}, vcc
        """)
        for i in range(4):
            a(f"s_add_u32 m0, s36, {B1_WTL+i*XR_STRIDE}")
            a("s_nop 0")
            a(f"global_load_lds_dwordx4 {vr(TMP+2,2)}, off")
            if i<3:
                a(f"v_add_co_u32 v{TMP+2}, vcc, {64*514}, v{TMP+2}")
                a("s_nop 1")
                a(f"v_addc_co_u32 v{TMP+3}, vcc, 0, v{TMP+3}, vcc")
        a(f"""
        s_sub_u32 s35, s18, 32
        s_cmp_lt_u32 s35, 32
        s_cselect_b32 s39, 1, 0
        s_cmp_eq_u32 s3, 7
        s_cselect_b32 s39, s39, 0
        s_cmp_eq_u32 s39, 1
        s_cbranch_scc0 k1_B_noab
        s_lshl_b32 s36, s35, 6
        v_add_u32 v{TMP}, s36, v1        ; g
        v_sub_u32 v{TMP+1}, 2048, v{TMP}
        v_and_b32 v{TMP+1}, 2047, v{TMP+1}   ; -g
        v_mul_u32_u24 v{TMP}, 514, v{TMP}
        v_mul_u32_u24 v{TMP+1}, 514, v{TMP+1}
        """)
        srd(a,48,12,2048*257*2); srd(a,40,14,2048*257*2)
        for k,(arr,val,off) in enumerate([(48,TMP,0),(40,TMP,0),(48,TMP+1,0),(40,TMP+1,0),(48,TMP,512),(40,TMP,512),(48,TMP+1,512),(40,TMP+1,512)]):
            a(f"buffer_load_ushort v{ABL+k}, v{val}, s[{arr}:{arr+3}], 0 offen offset:{off}")
        a.label("k1_B_noab")
    def b_consts():
        a(f"""
        v_cvt_f32_u32 v{VMF}, v{VM}
        v_lshlrev_b32 v{VQF}, 2, v{VQ}
        v_cvt_f32_u32 v{VQF}, v{VQF}
        """)
        gen_consts(a, False, 1.0, R16, TWc, TWs, A32, TMP, VMF, VQF)
    if os.environ.get("K1BORD","1")=="1":
        b_consts(); b_loads()
    else:
        b_loads(); b_consts()
    if os.environ.get("K1PF","0")=="1" and getattr(asm,"NEXT_KERNEL",None):
        a("s_cmp_eq_u32 s3, 6")
        a("s_cbranch_scc0 k1_nopf2")
        code_prefetch(a,asm.NEXT_KERNEL,"k2_end",2,250,252)
        a.label("k1_nopf2")
    a(f"""
    s_cmp_lt_u32 s18, 2
    s_cbranch_scc0 k1_B_not64
    s_lshl_b32 s36, s18, 3
    s_add_u32 s36, s36, s3           ; unit
    s_lshr_b32 s37, s36, 2           ; w
    s_and_b32 s38, s36, 3            ; u
    s_lshl_b32 s37, s37, 4
    s_lshl_b32 s38, s38, 4
    v_add_u32 v{TMP}, s37, v{VM}
    v_cvt_f32_u32 v{TMP}, v{TMP}
    v_mul_f32 v{TMP}, {hex(f2u(1/64.))}, v{TMP}
    v_cvt_f32_u32 v{TMP+1}, s38
    v_add_f32 v{TMP+1}, v{TMP+1}, v{VQF}
    v_add_f32 v{TMP+2}, 1.0, v{TMP+1}
    v_add_f32 v{TMP+3}, 2.0, v{TMP+1}
    v_add_f32 v{TMP+4}, 1.0, v{TMP+3}
    """)
    for i in range(4): a(f"v_mul_f32 v{TMP+1+i}, v{TMP+1+i}, v{TMP}")
    for i in range(4):
        a(f"v_cos_f32 v{TMP+5+i}, v{TMP+1+i}")
        a(f"v_sin_f32 v{TMP+9+i}, v{TMP+1+i}")
    a("s_nop 0")
    for i in range(4):
        a(f"v_cvt_pk_bf16_f32 v{TMP+16+i}, v{TMP+5+i}, v{TMP+9+i}")
        a(f"v_cvt_pk_bf16_f32 v{TMP+20+i}, -v{TMP+9+i}, v{TMP+5+i}")
    a(f"""
    s_lshl_b32 s36, s36, 11
    s_add_u32 s36, s36, {OFF_T64}
    buffer_store_dwordx4 {vr(TMP+16,4)}, v6, s[24:27], s36 offen
    buffer_store_dwordx4 {vr(TMP+20,4)}, v6, s[24:27], s36 offen offset:1024
    """)
    a.label("k1_B_not64")
    a(f"""
    s_cmp_eq_u32 s18, 2
    s_cbranch_scc0 k1_B_notw
    s_cmp_lt_u32 s3, 4
    s_cbranch_scc0 k1_B_a32
    s_lshl_b32 s37, s3, 4
    v_add_u32 v{TMP}, s37, v{VM}
    v_cvt_f32_u32 v{TMP}, v{TMP}
    v_mul_f32 v{TMP}, {hex(f2u(1/2048.))}, v{TMP}
    """)
    for t in range(2):
        for i in range(4):
            k=16*t+i
            if k==0: a(f"v_mov_b32 v{TMP+1}, v{VQF}")
            else: a(f"v_add_f32 v{TMP+1+4*t+i}, {hex(f2u(float(k)))}, v{VQF}")
    for e in range(8): a(f"v_mul_f32 v{TMP+1+e}, v{TMP+1+e}, v{TMP}")
    for e in range(8):
        a(f"v_cos_f32 v{TMP+16+e}, v{TMP+1+e}")
        a(f"v_sin_f32 v{TMP+24+e}, v{TMP+1+e}")
    a(f"""
    s_lshl_b32 s36, s3, 12
    s_add_u32 s36, s36, {OFF_TW}
    buffer_store_dwordx4 {vr(TMP+16,4)}, v6, s[24:27], s36 offen
    buffer_store_dwordx4 {vr(TMP+20,4)}, v6, s[24:27], s36 offen offset:1024
    buffer_store_dwordx4 {vr(TMP+24,4)}, v6, s[24:27], s36 offen offset:2048
    buffer_store_dwordx4 {vr(TMP+28,4)}, v6, s[24:27], s36 offen offset:3072
    s_branch k1_B_notw
    """)
    a.label("k1_B_a32")
    a("""
    s_cmp_eq_u32 s3, 4
    s_cbranch_scc0 k1_B_notw
    """)
    for blk in range(8):
        a(f"s_mov_b32 s36, {OFF_A32+blk*1024}")
        a(f"buffer_store_dwordx4 {vr(A32+4*blk,4)}, v6, s[24:27], s36 offen")
    a.label("k1_B_notw")
    a(f"""
    v_bfe_u32 v{TMP}, v1, 2, 2       ; r4
    v_and_b32 v{TMP+1}, 1, v{TMP}
    v_mul_u32_u24 v{TMP+1}, {XR_STRIDE}, v{TMP+1}
    v_lshrrev_b32 v{TMP+2}, 1, v{TMP}
    v_lshl_add_u32 v{TMP+2}, v{VQ}, 2, v{TMP+2}    ; 4q + (r4>>1)
    v_lshl_add_u32 v{TMP+1}, v{TMP+2}, 6, v{TMP+1}
    v_and_b32 v{TMP+2}, 3, v1
    v_lshl_add_u32 v{TMP+1}, v{TMP+2}, 3, v{TMP+1}
    s_mul_i32 s30, s3, {4*XR_STRIDE}
    v_add_u32 v7, s30, v{TMP+1}
    """)
    stamp(a,1)
    a("s_waitcnt vmcnt(0)")
    stamp(a,2)
    for pp in range(2):
        for t in range(2):
            a(f"ds_read_b64_tr_b16 {vr(PIN+8*pp+4*t,2)}, v7 offset:{pp*2*XR_STRIDE+t*32}")
            a(f"ds_read_b64_tr_b16 {vr(PIN+8*pp+4*t+2,2)}, v7 offset:{pp*2*XR_STRIDE+t*32+128}")
    for j in range(4): a(f"v_lshl_or_b32 v{WOL+j}, v{WOH+j}, 16, v{WOL+j}")
    a(f"""
    s_lshl_b32 s32, s32, 10
    s_add_u32 s32, s32, {OFF_WOF}
    buffer_store_dwordx4 {vr(WOL,4)}, v6, s[24:27], s32 offen
    """)
    a(f"""
    s_cmp_eq_u32 s39, 1
    s_cbranch_scc0 k1_B_noab2
    """)
    for k in range(8): a(f"v_lshlrev_b32 v{ABL+k}, 16, v{ABL+k}")
    a(f"""
    v_add_f32 v{TMP}, v{ABL}, v{ABL+2}        ; 2*Wh0.re
    v_sub_f32 v{TMP+1}, v{ABL+1}, v{ABL+3}    ; 2*Wh0.im
    v_add_f32 v{TMP+2}, v{ABL+4}, v{ABL+6}    ; 2*Wh256.re
    v_sub_f32 v{TMP+3}, v{ABL+5}, v{ABL+7}    ; 2*Wh256.im
    v_add_f32 v{TMP+4}, v{TMP}, v{TMP+2}
    v_add_f32 v{TMP+5}, v{TMP+1}, v{TMP+3}
    v_sub_f32 v{TMP+6}, v{TMP}, v{TMP+2}
    v_sub_f32 v{TMP+7}, v{TMP+1}, v{TMP+3}
    v_mul_f32 v{TMP+4}, 0.25, v{TMP+4}
    v_mul_f32 v{TMP+5}, 0.25, v{TMP+5}
    v_mul_f32 v{TMP+6}, 0.25, v{TMP+6}
    v_mul_f32 v{TMP+7}, 0.25, v{TMP+7}
    v_cvt_pk_bf16_f32 v{TMP+4}, v{TMP+4}, v{TMP+5}
    v_cvt_pk_bf16_f32 v{TMP+5}, v{TMP+6}, v{TMP+7}
    s_lshr_b32 s36, s35, 4
    s_lshl_b32 s36, s36, 2
    s_and_b32 s37, s35, 3
    s_add_u32 s36, s36, s37          ; e
    s_and_b32 s38, s36, 1
    s_lshl_b32 s38, s38, 3           ; (e&1)*8
    s_lshr_b32 s36, s36, 1
    s_lshl_b32 s36, s36, 10          ; ep*1024
    s_add_u32 s36, s36, s38
    s_lshr_b32 s37, s35, 2
    s_and_b32 s37, s37, 3
    s_lshl_b32 s37, s37, 8           ; q*16*16
    s_add_u32 s36, s36, s37
    s_add_u32 s36, s36, {OFF_AB}
    v_lshlrev_b32 v{TMP+8}, 12, v{VQ}
    v_lshl_add_u32 v{TMP+8}, v{VM}, 4, v{TMP+8}
    buffer_store_dwordx2 {vr(TMP+4,2)}, v{TMP+8}, s[24:27], s36 offen
    """)
    a.label("k1_B_noab2")
    a("s_waitcnt lgkmcnt(0)")
    for pp in range(2):
        for t in range(2):
            for part in range(2):
                a(f"v_mfma_f32_16x16x32_bf16 {vr(D1+16*pp+8*t+4*part,4)}, {vr(PIN+8*pp+4*t,4)}, {vr(R16+4*part,4)}, 0")
    a("s_nop 4")
    for pp in range(2):
        for t in range(2):
            twiddle(a, D1+16*pp+8*t, D1+16*pp+8*t+4, TWc+4*t, TWs+4*t, PIN+8*pp+4*t, TMP)
    a("s_nop 1")
    for pp in range(2):
        for tp in range(2):
            for part in range(2):
                d=D2+16*pp+8*tp+4*part
                for t in range(2):
                    A=A32+((tp*2+part)*2+t)*4
                    a(f"v_mfma_f32_16x16x32_bf16 {vr(d,4)}, {vr(A,4)}, {vr(PIN+8*pp+4*t,4)}, {'0' if t==0 else vr(d,4)}")
    a(f"""
    v_lshl_add_u32 v{TMP}, v{VQ}, 6, v{VM}         ; m + 64q
    s_mul_i32 s30, s3, {4*XR_STRIDE}
    v_lshl_add_u32 v{TMP+1}, v{TMP}, 3, s30
    v_sub_u32 v{TMP+2}, {256-48}, v{TMP}            ; 256-48-f0
    v_lshl_add_u32 v{TMP+2}, v{TMP+2}, 3, s30
    v_add_u32 v{TMP+3}, 384, v{TMP+2}               ; i=0 address
    v_cmp_eq_u32 vcc, 0, v1
    v_mov_b32 v{TMP+4}, s30
    s_nop 0
    v_cndmask_b32 v{TMP+3}, v{TMP+3}, v{TMP+4}, vcc ; lane0 -> g=0 (Z[256])
    s_nop 1
    """)
    for pp in range(2):
        for i in range(4):
            a(f"ds_write2_b32 v{TMP+1}, v{D2+16*pp+8+i}, v{D2+16*pp+12+i} offset0:{(pp*2048+i*128)//4 if False else i*32} offset1:{i*32+1}" if pp==0 else
              f"ds_write2_b32 v{TMP+5}, v{D2+16*pp+8+i}, v{D2+16*pp+12+i} offset0:{i*32} offset1:{i*32+1}")
        if pp==0: a(f"v_add_u32 v{TMP+5}, 2048, v{TMP+1}")
    a("s_waitcnt lgkmcnt(0)")
    PR=D1
    for pp in range(2):
        a(f"ds_read_b64 {vr(PR+8*pp,2)}, v{TMP+3} offset:{pp*2048}")
        for i in range(1,4):
            a(f"ds_read_b64 {vr(PR+8*pp+2*i,2)}, v{TMP+2} offset:{pp*2048+(3-i)*128}")
    a(f"""
    v_lshrrev_b32 v{TMP+6}, 1, v{VM}               ; (f>>1)&7 = m>>1
    v_xor_b32 v{TMP+6}, s3, v{TMP+6}               ; wave ^ (m>>1)
    v_lshlrev_b32 v{TMP+6}, 4, v{TMP+6}
    v_lshl_add_u32 v{TMP+6}, v{TMP}, 7, v{TMP+6}
    v_add_u32 v{TMP+6}, {B1_MB}, v{TMP+6}
    s_waitcnt lgkmcnt(0)
    """)
    O=TMP+8
    for pp in range(2):
        for i in range(4):
            zr,zi=D2+16*pp+i, D2+16*pp+4+i
            pr,pi=PR+8*pp+2*i, PR+8*pp+2*i+1
            a(f"v_add_f32 v{O}, v{zr}, v{pr}")
            a(f"v_sub_f32 v{O+1}, v{zi}, v{pi}")
            a(f"v_add_f32 v{O+2}, v{zi}, v{pi}")
            a(f"v_sub_f32 v{O+3}, v{pr}, v{zr}")
            if i==0:
                a(f"v_add_f32 v{O+4}, v{zr}, v{zr}")
                a(f"v_add_f32 v{O+5}, v{pr}, v{pr}")
                a(f"v_add_f32 v{O+6}, v{zi}, v{zi}")
                a(f"v_add_f32 v{O+7}, v{pi}, v{pi}")
                for k in range(4): a(f"v_cndmask_b32 v{O+k}, v{O+k}, v{O+4+k}, vcc")
            o2=O+8+2*((pp*4+i)%4)
            a(f"v_cvt_pk_bf16_f32 v{o2}, v{O}, v{O+1}")
            a(f"v_cvt_pk_bf16_f32 v{o2+1}, v{O+2}, v{O+3}")
            a(f"ds_write_b64 v{TMP+6}, {vr(o2,2)} offset:{i*2048+pp*8}")
    a(f"""
    v_bfe_u32 v{TMP}, v1, 2, 2                     ; r4
    v_lshrrev_b32 v{TMP+1}, 1, v{TMP}
    v_mul_u32_u24 v{TMP+1}, {XR_STRIDE}, v{TMP+1}
    v_and_b32 v{TMP+2}, 1, v{TMP}
    v_lshl_add_u32 v{TMP+1}, v{TMP+2}, 9, v{TMP+1}
    v_lshl_add_u32 v{TMP+1}, v{VQ}, 5, v{TMP+1}
    v_and_b32 v{TMP+2}, 3, v1
    v_lshl_add_u32 v{TMP+1}, v{TMP+2}, 3, v{TMP+1} ; + c4*8
    s_mul_i32 s30, s3, {4*XR_STRIDE}
    s_add_u32 s30, s30, {B1_WTL}
    v_add_u32 v{TMP+1}, s30, v{TMP+1}
    """)
    for jj in range(4):
        a(f"ds_read_b64_tr_b16 {vr(D1+4*jj,2)}, v{TMP+1} offset:{jj*128}")
        a(f"ds_read_b64_tr_b16 {vr(D1+4*jj+2,2)}, v{TMP+1} offset:{jj*128+2*XR_STRIDE}")
    a(f"""
    v_and_b32 v{TMP+2}, 7, v1
    v_xor_b32 v{TMP+2}, s3, v{TMP+2}
    v_lshlrev_b32 v{TMP+2}, 4, v{TMP+2}
    v_lshl_add_u32 v{TMP+2}, v1, 7, v{TMP+2}
    v_add_u32 v{TMP+2}, {B1_MBW}, v{TMP+2}
    """)
    for jj in range(4):
        a(f"s_waitcnt lgkmcnt({6-2*jj})")
        a(f"ds_write_b128 v{TMP+2}, {vr(D1+4*jj,4)} offset:{jj*8192}")
    a("""
    s_waitcnt lgkmcnt(0)
    s_barrier
    """)
    a(f"""
    v_lshrrev_b32 v{TMP}, 3, v1
    v_and_b32 v{TMP+1}, 7, v1
    s_lshl_b32 s30, s3, 5
    v_add_u32 v{TMP+2}, s30, v{TMP}                ; f
    v_xor_b32 v{TMP+3}, v{TMP}, v{TMP+1}
    v_lshlrev_b32 v{TMP+3}, 4, v{TMP+3}
    v_lshl_add_u32 v{TMP+3}, v{TMP+2}, 7, v{TMP+3}
    v_add_u32 v{TMP+3}, {B1_MBW}, v{TMP+3}
    v_lshlrev_b32 v{TMP+5}, 13, v{TMP+2}
    v_lshl_add_u32 v{TMP+5}, v{TMP+1}, 4, v{TMP+5} ; f*8192 + c8*16
    s_and_b32 s31, s18, 7
    s_lshr_b32 s32, s31, 1
    s_lshl_b32 s32, s32, 11
    s_and_b32 s31, s31, 1
    s_lshl_b32 s31, s31, 7
    s_add_u32 s32, s32, s31
    s_lshr_b32 s31, s18, 5
    s_lshl_b32 s31, s31, 10
    s_add_u32 s32, s32, s31
    s_lshr_b32 s31, s18, 3
    s_and_b32 s31, s31, 3
    s_lshl_b32 s31, s31, 8
    s_add_u32 s32, s32, s31
    s_add_u32 s32, s32, {OFF_WT}
    """)
    for jj in range(4):
        a(f"ds_read_b128 {vr(D1+4*jj,4)}, v{TMP+3} offset:{jj*1024}")
    for jj in range(4):
        a(f"s_waitcnt lgkmcnt({3-jj})")
        a(f"s_add_u32 s31, s32, {jj*8*8192}")
        a(f"buffer_store_dwordx4 {vr(D1+4*jj,4)}, v{TMP+5}, s[24:27], s31 offen")
    a(f"""
    v_lshrrev_b32 v{TMP}, 3, v1                    ; fl
    v_and_b32 v{TMP+1}, 7, v1                      ; c8
    s_lshl_b32 s30, s3, 5
    v_add_u32 v{TMP+2}, s30, v{TMP}                ; f (jj=0)
    v_lshrrev_b32 v{TMP+3}, 1, v{TMP}
    v_xor_b32 v{TMP+3}, v{TMP+3}, v{TMP+1}
    v_lshlrev_b32 v{TMP+3}, 4, v{TMP+3}
    v_lshl_add_u32 v{TMP+3}, v{TMP+2}, 7, v{TMP+3}
    v_add_u32 v{TMP+3}, {B1_MB}, v{TMP+3}
    v_xor_b32 v{TMP+4}, 64, v{TMP+3}
    v_lshlrev_b32 v{TMP+5}, 13, v{TMP+2}
    v_lshl_add_u32 v{TMP+5}, v{TMP+1}, 4, v{TMP+5} ; f*8192 + c8*16
    s_lshl_b32 s31, s19, 8
    s_lshl_b32 s32, s28, 7
    s_add_u32 s31, s31, s32
    s_add_u32 s31, s31, {OFF_Z}
    """)
    for jj in range(4):
        a(f"ds_read_b128 {vr(D2+4*jj,4)}, v{TMP+3+(jj&1)} offset:{jj*1024}")
    for jj in range(4):
        a(f"s_waitcnt lgkmcnt({3-jj})")
        a(f"s_add_u32 s32, s31, {jj*8*8192}")
        a(f"buffer_store_dwordx4 {vr(D2+4*jj,4)}, v{TMP+5}, s[24:27], s32 offen")
    import os
    if os.environ.get("K1WB","0")=="1" and not asm.F12:
        a("""
        s_waitcnt vmcnt(0)
        s_barrier
        s_cmp_eq_u32 s3, 0
        s_cbranch_scc0 k1_nowb
        buffer_wbl2 sc1
        """)
        a.label("k1_nowb")
    if asm.STAMP and not asm.F12:
        stamp(a,3); a("s_waitcnt vmcnt(0)"); stamp(a,4); stamp_dump(a,0)
    fin(a)

def build_k1(a=None):
    own = a is None
    if own: a=Asm()
    k1_prologue(a)
    k1_loader(a)
    k1_compute(a)
    k1_B(a)
    a.sc_srd=None
    if own:
        a.label("k1_end")
        a("s_endpgm")
    return a
```

```python
import asm
from asm import *
from layout import *
from k1 import srd, twiddle
import os
VAR=set(os.environ.get("VAR","").split(","))
def opt(name,default):
    for v in VAR:
        if v.startswith(name+"="): return int(v.split("=")[1])
    return default
K2_COL=131072
K2_E=K2_COL+8192
K2_LDS=163840
K2_CNT=163840-64
THRESH2=4096.0/1.03
NB=opt("NB",30)
NA=64-NB
ST1R=opt("ST1R",4)
DRIP=opt("DRIP",1)
DWAIT=opt("DWAIT",5 if ST1R==6 else 3)
ARRIT=opt("ARRIT",2)
TABIT=opt("TABIT",2)
B2IT=opt("B2IT",4)
PUBIT=opt("PUBIT",6)
XB=opt("XB",11)

HB=opt("HB",PUBIT+1); HA=opt("HA",5)
XA=opt("XA",11)
assert (XA-HA)%2==0 and (NA//2-XA)%2==0 and XA>HA and NA//2>XA
assert (XB-HB)%2==0 and XB>HB and (NB//2-XB)%2==0 and NB//2>XB and (NA//2-HA)%2==0, (HB,XB,NB,HA)
VK,VV,VIDX=2,3,4
Q=[8,12]; S=[16,32]; O=[48,64]
F=[(80,84,88),(92,96,100)]
TMP=104
T64,A32,TW,WT,BUF,D1,P=112,144,176,192,200,232,248
X2=200
CI=[112,128]
VM,VQd=108,109
WOR=144

def expo(a,r): a(f"v_exp_f32 v{r}, v{r}")

def unit(a,tau,qt,fb,extra=()):
    extra=list(extra)
    def ex():
        if extra: extra.pop(0)()
    tp=tau&1
    Sc,Sn=S[qt],S[1-qt]
    def pv(Ob,V,B): a(f"v_smfmac_f32_32x32x32_bf16 {vr(Ob,16)}, {vr(V,4)}, {vr(B,8)}, v{VIDX}")
    def qk(Sd,K,qq): a(f"v_mfma_f32_32x32x16_bf16 {vr(Sd,16)}, {vr(K,4)}, {vr(Q[qq],4)}, {vr(CI[qq],16) if fb else '0'}")
    if qt==0:
        Kc,V0c,V1c=F[tp]; Kn,V0n,V1n=F[1-tp]
        expo(a,Sc); expo(a,Sc+1)
        pv(O[1],V1n,Sn+8)
        a(f"ds_read_b128 {vr(Kn,4)}, v{VK} offset:{(tau+1)*KV_TILE}")
        expo(a,Sc+2); expo(a,Sc+3)
        a("s_mov_b64 exec, s[62:63]")
        a(f"ds_read_b128 {vr(V0n,4)}, v{VK} offset:{(tau+1)*KV_TILE+512}")
        a(f"ds_read_b128 {vr(V1n,4)}, v{VK} offset:{(tau+1)*KV_TILE+768}")
        a("s_mov_b64 exec, -1")
        expo(a,Sc+4); expo(a,Sc+5)
        qk(Sn,Kc,1)
        for i in range(6,12):
            expo(a,Sc+i)
            if i==7: ex()
        pv(O[0],V0c,Sc)
        for i in range(12,16):
            expo(a,Sc+i)
            if i==13: ex()
    else:
        Kc,V0c,V1c=F[tp]; Kn,V0n,V1n=F[1-tp]
        expo(a,Sc); expo(a,Sc+1)
        pv(O[0],V1c,Sn+8)
        for i in range(2,6): expo(a,Sc+i)
        a("s_waitcnt lgkmcnt(0)")
        qk(Sn,Kn,0)
        for i in range(6,12):
            expo(a,Sc+i)
            if i==7: ex()
        pv(O[1],V0c,Sc)
        for i in range(12,16):
            expo(a,Sc+i)
            if i==13: ex()

def bbar(a,tag,cnt=0):
    a(f"""
    v_mov_b32 v111, {K2_CNT+cnt}
    v_mov_b32 v110, 1
    s_waitcnt lgkmcnt(0)
    s_mov_b64 exec, 1
    ds_add_u32 v111, v110
    s_mov_b64 exec, -1
    s_add_u32 s47, s47, 4
    """)
    a.label(f"k2_bbar_{tag}")
    a(f"""
    ds_read_b32 v109, v111
    s_waitcnt lgkmcnt(0)
    v_readfirstlane_b32 s48, v109
    s_nop 0
    s_cmp_lt_u32 s48, s47
    s_cbranch_scc1 k2_bbar_{tag}
    """)

def dma_arrive(a,younger=0):
    a(f"""
    s_waitcnt vmcnt({younger})
    v_mov_b32 v{TMP}, {K2_CNT+4}
    v_mov_b32 v{TMP+1}, 1
    s_mov_b64 exec, 1
    ds_add_u32 v{TMP}, v{TMP+1}
    s_mov_b64 exec, -1
    """)
def dma_wait(a,tag):
    a(f"v_mov_b32 v{TMP}, {K2_CNT+4}")
    a.label(f"k2_dwait_{tag}")
    a(f"""
    ds_read_b32 v{TMP+1}, v{TMP}
    s_waitcnt lgkmcnt(0)
    v_readfirstlane_b32 s48, v{TMP+1}
    s_nop 0
    s_cmp_lt_u32 s48, 8
    s_cbranch_scc1 k2_dwait_{tag}
    """)

def kv_dma(a, ns):
    for n in ns:
        a(f"s_add_u32 m0, s34, {n*1024}")
        a(f"s_add_u32 s36, s35, {n*1024}")
        a(f"buffer_load_dwordx4 v{TMP}, s[20:23], s36 offen lds")

def b2_part1(a):
    a("s_waitcnt vmcnt(0)")
    bbar(a,"col")
    a(f"""
    v_and_b32 v{VM}, 15, v1
    v_lshrrev_b32 v{VQd}, 4, v1
    v_xor_b32 v104, v{VM}, v{VQd}
    v_lshlrev_b32 v104, 4, v104
    v_lshl_add_u32 v104, v{VM}, 8, v104
    v_add_u32 v104, {K2_COL}, v104
    v_xor_b32 v105, 64, v104
    v_xor_b32 v106, 128, v104
    v_xor_b32 v107, 192, v104
    """)
    for u in range(4):
        for t in range(2):
            a(f"ds_read_b128 {vr(BUF+16*t+4*u,4)}, v{104+u} offset:{t*4096}")
    for u in range(4):
        a(f"s_waitcnt lgkmcnt({6-2*u})")
        for t in range(2):
            for part in range(2):
                d=D1+8*t+4*part
                a(f"v_mfma_f32_16x16x32_bf16 {vr(d,4)}, {vr(BUF+16*t+4*u,4)}, {vr(T64+8*u+4*part,4)}, {'0' if u==0 else vr(d,4)}")
    a("""
    s_cmp_eq_u32 s28, 0
    s_cbranch_scc0 k2_p1_noab
    """)
    a(f"v_lshlrev_b32 v110, 4, v1")
    a(f"s_lshl_b32 s36, s3, 12")
    a(f"s_add_u32 s36, s36, {OFF_AB}")
    for ep in range(4):
        a(f"buffer_load_dwordx4 {vr(216+4*ep,4)}, v110, s[20:23], s36 offen offset:{ep*1024}")
    a.label("k2_p1_noab")
    a("s_nop 6")
    for t in range(2):
        twiddle(a, D1+8*t, D1+8*t+4, TW+4*t, TW+8+4*t, P+4*t, 104)
    a("s_nop 1")
    for t in range(2):
        for tp in range(2):
            for part in range(2):
                d=X2+8*tp+4*part
                a(f"v_mfma_f32_16x16x32_bf16 {vr(d,4)}, {vr(A32+((tp*2+part)*2+t)*4,4)}, {vr(P+4*t,4)}, {'0' if t==0 else vr(d,4)}")

def b2_part2(a):
    a("s_waitcnt vmcnt(0)")
    a("""
    s_cmp_eq_u32 s28, 0
    s_cbranch_scc1 k2_p2_special
    """)
    for tp in range(2):
        xr,xi=X2+8*tp,X2+8*tp+4
        wr,wi=D1+8*tp,D1+8*tp+4
        for i in range(4):
            a(f"v_lshlrev_b32 v{wr+i}, 16, v{WT+4*tp+i}")
            a(f"v_and_b32 v{wi+i}, 0xffff0000, v{WT+4*tp+i}")
        for p in (0,2):
            a(f"v_pk_mul_f32 {vr(104+p,2)}, {vr(xr+p,2)}, {vr(wr+p,2)}")
            a(f"v_pk_mul_f32 {vr(108+p,2)}, {vr(xr+p,2)}, {vr(wi+p,2)}")
        for p in (0,2):
            a(f"v_pk_fma_f32 {vr(104+p,2)}, {vr(xi+p,2)}, {vr(wi+p,2)}, {vr(104+p,2)} neg_lo:[1,0,0] neg_hi:[1,0,0]")
            a(f"v_pk_fma_f32 {vr(108+p,2)}, {vr(xi+p,2)}, {vr(wr+p,2)}, {vr(108+p,2)}")
        for i in range(4): a(f"v_cvt_pk_bf16_f32 v{P+4*tp+i}, v{104+i}, -v{108+i}")
    a.label("k2_p2_common")
    a("s_nop 1")
    for tp in range(2):
        for t in range(2):
            for part in range(2):
                d=D1+8*t+4*part
                a(f"v_mfma_f32_16x16x32_bf16 {vr(d,4)}, {vr(A32+((t*2+part)*2+tp)*4,4)}, {vr(P+4*tp,4)}, {'0' if tp==0 else vr(d,4)}")
    t0=X2
    a(f"""
    v_and_b32 v{t0}, 15, v1                 ; m
    v_lshrrev_b32 v{t0+1}, 4, v1            ; q
    v_lshrrev_b32 v{t0+2}, 2, v{t0}         ; m>>2
    s_lshl_b32 s36, s3, 2
    v_add_u32 v{t0+2}, s36, v{t0+2}         ; 4w + (m>>2)
    v_lshlrev_b32 v{t0+3}, 2, v{t0+1}       ; 4q
    v_xor_b32 v{t0+2}, v{t0+2}, v{t0+3}
    v_lshlrev_b32 v{t0+2}, 4, v{t0+2}
    v_lshl_add_u32 v{t0+2}, v{t0+3}, 8, v{t0+2}
    v_and_b32 v{t0+4}, 3, v{t0}
    v_lshl_add_u32 v{t0+2}, v{t0+4}, 2, v{t0+2}
    v_add_u32 v{t0+8}, {K2_E}, v{t0+2}
    v_xor_b32 v{t0+9}, 16, v{t0+8}
    v_xor_b32 v{t0+10}, 32, v{t0+8}
    v_xor_b32 v{t0+11}, 48, v{t0+8}
    """)
    for t in range(2):
        twiddle(a, D1+8*t, D1+8*t+4, TW+4*t, TW+8+4*t, P+4*t, 104)
    for t in range(2):
        for i in range(4):
            a(f"ds_write_b32 v{t0+8+i}, v{P+4*t+i} offset:{t*4096+i*256}")
    bbar(a,"e")
    a(f"""
    v_and_b32 v{VM}, 15, v1
    v_lshrrev_b32 v{VQd}, 4, v1
    v_xor_b32 v104, v{VM}, v{VQd}
    v_lshlrev_b32 v104, 4, v104
    v_lshl_add_u32 v104, v{VM}, 8, v104
    v_add_u32 v104, {K2_E}, v104
    v_xor_b32 v105, 64, v104
    v_xor_b32 v106, 128, v104
    v_xor_b32 v107, 192, v104
    """)
    for u in range(4):
        for t in range(2):
            a(f"ds_read_b128 {vr(BUF+16*t+4*u,4)}, v{104+u} offset:{t*4096}")
    a(f"""
    v_lshlrev_b32 v110, 8, v{VM}
    v_lshl_add_u32 v110, v{VQd}, 4, v110
    s_lshl_b32 s36, s28, 13
    s_lshl_b32 s37, s3, 6
    s_add_u32 s36, s36, s37
    s_add_u32 s36, s36, {OFF_Y}
    """)
    for u in range(4):
        a(f"s_waitcnt lgkmcnt({6-2*u})")
        for t in range(2):
            for part in range(2):
                d=D1+8*t+4*part
                a(f"v_mfma_f32_16x16x32_bf16 {vr(d,4)}, {vr(T64+8*u+4*part,4)}, {vr(BUF+16*t+4*u,4)}, {'0' if u==0 else vr(d,4)}")
    a("s_nop 7")
    for t in range(2):
        for i in range(4): a(f"v_cvt_pk_bf16_f32 v{P+4*t+i}, v{D1+8*t+i}, -v{D1+8*t+4+i}")
        a.sc_srd="s[20:23]"
        a(f"buffer_store_dwordx4 {vr(P+4*t,4)}, v110, s[20:23], s36 offen")
        a.sc_srd=a.p1
        if t==0: a("s_add_u32 s36, s36, 4096")
    a("s_setpc_b64 s[60:61]")
    a.label("k2_p2_special")
    bbar(a,"s0")
    XCH=K2_COL
    a(f"""
    v_and_b32 v104, 15, v1
    v_lshrrev_b32 v105, 4, v1
    s_lshl_b32 s36, s3, 4
    v_add_u32 v104, s36, v104                 ; k1
    v_lshl_add_u32 v104, v105, 8, v104         ; g0 = k1 + 64*4q
    v_lshlrev_b32 v106, 3, v104
    v_add_u32 v106, {XCH}, v106
    """)
    for tp in range(2):
        for i in range(4):
            off=(i*64+tp*1024)*8
            a(f"ds_write_b32 v106, v{X2+8*tp+i} offset:{off}")
            a(f"ds_write_b32 v106, v{X2+8*tp+4+i} offset:{off+4}")
    bbar(a,"s1")
    for tp in range(2):
        for i in range(4):
            e=4*tp+i
            a(f"v_sub_u32 v107, {2048-(i*64+tp*1024)}, v104")
            a(f"v_and_b32 v107, 2047, v107")
            a(f"v_lshlrev_b32 v107, 3, v107")
            a(f"v_add_u32 v107, {XCH}, v107")
            a(f"ds_read_b64 {vr(D1+2*e,2)}, v107")
    bbar(a,"s2")
    for tp in range(2):
        for i in range(4):
            e=4*tp+i
            src=216+2*e
            ab=WT
            a(f"v_lshlrev_b32 v{ab}, 16, v{src}")
            a(f"v_and_b32 v{ab+1}, 0xffff0000, v{src}")
            a(f"v_lshlrev_b32 v{ab+2}, 16, v{src+1}")
            a(f"v_and_b32 v{ab+3}, 0xffff0000, v{src+1}")
            zr,zi=X2+8*tp+i,X2+8*tp+4+i
            pr,pi=D1+2*e,D1+2*e+1
            a(f"v_mul_f32 v104, v{zr}, v{ab}")
            a(f"v_mul_f32 v105, v{zr}, v{ab+1}")
            a(f"v_fma_f32 v104, -v{zi}, v{ab+1}, v104")
            a(f"v_fma_f32 v105, v{zi}, v{ab}, v105")
            a(f"v_fma_f32 v104, v{pr}, v{ab+2}, v104")
            a(f"v_fma_f32 v105, v{pr}, v{ab+3}, v105")
            a(f"v_fma_f32 v104, v{pi}, v{ab+3}, v104")
            a(f"v_fma_f32 v105, -v{pi}, v{ab+2}, v105")
            a(f"v_cvt_pk_bf16_f32 v{P+e}, v104, -v105")
    a("s_branch k2_p2_common")


def rounds():
    nA0=NB*KV_TILE//1024
    st1=[x for k in range(ST1R//2) for x in (8*k,nA0+8*k)]
    rest=[]
    n=8*(ST1R//2)
    while n<nA0:
        rest.append(min(n,nA0-8) if n+8>nA0 else n); n+=8
    n=nA0+8*(ST1R//2)
    while n<128:
        rest.append(min(n,120)); n+=8
    lo=[r for r in rest if r<nA0]; hi=[r for r in rest if r>=nA0]
    out=[]
    while lo or hi:
        if lo: out.append(lo.pop(0))
        if hi: out.append(hi.pop(0))
    return st1,out

def attn_loop(a,fb):
    if fb:
        a.label("k2_loop_fb")
        unit(a,0,0,fb); unit(a,0,1,fb); unit(a,1,0,fb); unit(a,1,1,fb)
        a(f"""
        v_add_u32 v{VK}, {2*KV_TILE}, v{VK}
        s_add_u32 s42, s42, 1
        s_cmp_lt_u32 s42, s43
        s_cbranch_scc1 k2_loop_fb
        """)
        return
    a.label("k2_loop")
    a("""
    s_cmp_eq_u32 s42, s40
    s_cbranch_scc1 k2_hook
    """)
    a.label("k2_hookret")
    unit(a,0,0,fb); unit(a,0,1,fb); unit(a,1,0,fb); unit(a,1,1,fb)
    a(f"""
    v_add_u32 v{VK}, {2*KV_TILE}, v{VK}
    s_add_u32 s42, s42, 1
    s_cmp_lt_u32 s42, s44
    s_cbranch_scc1 k2_loop
    """)
    a(".p2align 3, 0xbf800000" if False else "s_nop 0") if False else None
    a.label("k2_lean")
    for tau in range(4):
        unit(a,tau,0,fb); unit(a,tau,1,fb)
    a(f"""
    v_add_u32 v{VK}, {4*KV_TILE}, v{VK}
    s_sub_u32 s43, s43, 1
    s_cmp_lg_u32 s43, 0
    s_cbranch_scc1 k2_lean
    s_cmp_eq_u32 s41, 0
    s_cbranch_scc1 k2_lean_done
    """)
    if asm.F23: a("s_call_b64 s[60:61], k2_mid")
    else: a("s_setprio 0")
    a(f"""
    s_mov_b32 s43, s41
    s_mov_b32 s41, 0
    s_branch k2_lean
    """)
    a.label("k2_lean_done")

def pipe_prologue(a,fb):
    K,V0,V1=F[0]
    a(f"""
    ds_read_b128 {vr(K,4)}, v{VK}
    s_mov_b64 exec, s[62:63]
    ds_read_b128 {vr(V0,4)}, v{VK} offset:512
    ds_read_b128 {vr(V1,4)}, v{VK} offset:768
    s_mov_b64 exec, -1
    s_waitcnt lgkmcnt(2)
    v_mfma_f32_32x32x16_bf16 {vr(S[0],16)}, {vr(K,4)}, {vr(Q[0],4)}, {vr(CI[0],16) if fb else '0'}
    s_mov_b32 s42, 0
    s_waitcnt lgkmcnt(0)
    s_nop 11
    """)

def poll(a,tag,nloads,addr_regs,srdreg="s[20:23]",soff="0"):
    a(f"s_mov_b32 s49, 0x20000")
    a.label(f"poll_{tag}")
    for k in range(nloads):
        a(f"buffer_load_dword v{addr_regs[k][1]}, v{addr_regs[k][0]}, {srdreg}, {soff} offen")
    a("s_waitcnt vmcnt(0)")
    for k in range(nloads):
        a(f"v_cmp_eq_u32 {'vcc' if k==0 else 's[50:51]'}, s56, v{addr_regs[k][1]}")
        if k>0:
            a("s_nop 1"); a("s_and_b64 vcc, vcc, s[50:51]")
    a(f"""
    s_nop 1
    s_cmp_eq_u64 vcc, -1
    s_cbranch_scc1 poll_{tag}_done
    s_sub_u32 s49, s49, 1
    s_cmp_eq_u32 s49, 0
    s_cbranch_scc1 poll_{tag}_done
    s_sleep 1
    s_branch poll_{tag}
    """)
    a.label(f"poll_{tag}_done")

def get_tag(a,tagname):
    a(f"""
    v_mov_b32 v{TMP}, 0
    s_mov_b32 s49, 0x20000
    """)
    a.label(f"kf_tag_{tagname}")
    a(f"""
    global_load_dword v{TMP+1}, v{TMP}, s[54:55] sc1
    s_waitcnt vmcnt(0)
    v_readfirstlane_b32 s56, v{TMP+1}
    s_sub_u32 s49, s49, 1
    s_cmp_eq_u32 s49, 0
    s_cbranch_scc1 kf_tag_{tagname}_done
    s_cmp_eq_u32 s56, 0
    s_cbranch_scc0 kf_tag_{tagname}_done
    s_sleep 1
    s_branch kf_tag_{tagname}
    """)
    a.label(f"kf_tag_{tagname}_done")

def flag_store(a, soff_expr_reg, vtmp):
    a(f"""
    v_mov_b32 v{vtmp}, 0
    v_mov_b32 v{vtmp+1}, s56
    s_mov_b64 exec, 1
    buffer_store_dword v{vtmp+1}, v{vtmp}, s[20:23], s{soff_expr_reg} offen
    s_mov_b64 exec, -1
    """)

def build_k2(a=None):
    own = a is None
    if own: a=Asm()
    P1="s[20:23]" if asm.F12 else None
    a.sc_srd=P1
    st1,rest=rounds()
    R=len(rest)
    if not asm.F12:
        a(f"""
        s_cmp_ge_u32 s2, 256
        s_cbranch_scc1 k2_end
        s_load_dwordx2 s[16:17], s[0:1], 64      ; ws
        {"s_load_dwordx4 s[52:55], s[0:1], 48      ; out, debug" if asm.F23 else ""}
        v_and_b32 v1, 63, v0
        v_lshrrev_b32 v{TMP}, 6, v0
        s_nop 0
        v_readfirstlane_b32 s3, v{TMP}
        """)
        if asm.F23:
            a("""
            s_or_b32 s57, s2, s3
            s_cmp_eq_u32 s57, 0
            s_cbranch_scc0 kf_nononce
            s_memrealtime s[56:57]
            s_waitcnt lgkmcnt(0)
            s_or_b32 s56, s56, 1
            v_mov_b32 v2, 0
            v_mov_b32 v3, s56
            s_mov_b64 exec, 1
            global_store_dword v2, v3, s[54:55] sc1
            s_mov_b64 exec, -1
            """)
            a.label("kf_nononce")
    stamp(a,0)
    a(f"""
    s_and_b32 s18, s2, 7
    s_lshr_b32 s19, s2, 3
    s_lshl_b32 s29, s18, 2
    s_and_b32 s30, s19, 3
    s_add_u32 s29, s29, s30                  ; hd
    s_lshr_b32 s30, s19, 2                   ; qb
    s_lshl_b32 s28, s18, 5
    s_add_u32 s28, s28, s19                  ; f
    v_lshlrev_b32 v{TMP}, 4, v1              ; lane*16
    s_and_b32 s33, s3, 3                     ; qg
    s_lshl_b32 s31, s30, 3
    s_lshl_b32 s33, s33, 1
    s_add_u32 s31, s31, s33
    s_waitcnt lgkmcnt(0)
    """)
    srd(a,20,16,WS_SIZE)
    if asm.F12:
        a(f"""
        s_cmp_eq_u32 s3, 0
        s_cbranch_scc0 k2_nopoll
        s_lshr_b32 s32, s29, 3                   ; hd>>3
        v_and_b32 v{TMP+1}, 15, v1
        v_lshrrev_b32 v{TMP+2}, 4, v1            ; group 0:K 1:V 2,3:Q
        v_and_b32 v{TMP+3}, 1, v1
        s_lshl_b32 s33, s30, 1
        v_add_u32 v{TMP+3}, s33, v{TMP+3}
        v_cmp_gt_u32 vcc, 2, v{TMP+2}
        v_mov_b32 v{TMP+4}, 4
        v_mov_b32 v{TMP+5}, 8
        v_cndmask_b32 v{TMP+1}, v{TMP+3}, v{TMP+1}, vcc   ; rb
        v_cmp_eq_u32 vcc, 0, v{TMP+2}
        v_mov_b32 v{TMP+6}, 0
        s_nop 0
        v_cndmask_b32 v{TMP+6}, v{TMP+6}, v{TMP+4}, vcc
        v_cmp_eq_u32 vcc, 1, v{TMP+2}
        s_nop 1
        v_cndmask_b32 v{TMP+6}, v{TMP+6}, v{TMP+5}, vcc   ; type*4
        v_add_u32 v{TMP+6}, s32, v{TMP+6}        ; cb
        v_lshl_add_u32 v{TMP+1}, v{TMP+6}, 4, v{TMP+1}
        v_lshlrev_b32 v{TMP+1}, 2, v{TMP+1}
        v_add_u32 v{TMP+1}, {OFF_F1Q}, v{TMP+1}
        v_lshlrev_b32 v{TMP+2}, 2, v1
        v_add_u32 v{TMP+2}, {OFF_F1B}, v{TMP+2}
        """)
        poll(a,"p1",2,[(TMP+1,TMP+3),(TMP+2,TMP+4)])
        a.label("k2_nopoll")
        a("s_barrier")
        stamp(a,9)
    a(f"""
    s_lshl_b32 s32, s29, 16
    s_lshl_b32 s33, s31, 10
    s_add_u32 s32, s32, s33
    s_add_u32 s32, s32, {OFF_Q}
    buffer_load_dwordx4 {vr(Q[0],4)}, v{TMP}, s[20:23], s32 offen
    buffer_load_dwordx4 {vr(Q[1],4)}, v{TMP}, s[20:23], s32 offen offset:1024
    v_lshlrev_b32 v{TMP+1}, 2, v1
    s_lshl_b32 s32, s29, 8
    s_add_u32 s32, s32, {OFF_KN}
    buffer_load_dword v{TMP+2}, v{TMP+1}, s[20:23], s32 offen
    s_lshl_b32 s34, s3, 10                   ; wave*1024
    s_mul_i32 s35, s29, {KV_HEAD}
    s_add_u32 s35, s35, s34
    s_add_u32 s35, s35, {OFF_KV}
    """)
    kv_dma(a,st1)
    a("s_waitcnt vmcnt(4)")
    a.label("k2_loaded")
    for qq in range(2):
        acc=TMP+5+qq
        for k in range(4):
            a(f"v_lshlrev_b32 v{TMP+3}, 16, v{Q[qq]+k}")
            a(f"v_and_b32 v{TMP+4}, 0xffff0000, v{Q[qq]+k}")
            a(f"v_mul_f32 v{acc}, v{TMP+3}, v{TMP+3}" if k==0 else f"v_fmac_f32 v{acc}, v{TMP+3}, v{TMP+3}")
            a(f"v_fmac_f32 v{acc}, v{TMP+4}, v{TMP+4}")
    a(f"""
    s_nop 1
    v_permlane32_swap_b32 v{TMP+5}, v{TMP+6}
    s_nop 1
    v_add_f32 v{TMP+5}, v{TMP+5}, v{TMP+6}
    """)
    for sh in ("row_shr:1","row_shr:2","row_shr:4","row_shr:8"):
        a("s_nop 0")
        a(f"v_max_f32_dpp v{TMP+2}, v{TMP+2}, v{TMP+2} {sh} row_mask:0xf bank_mask:0xf bound_ctrl:0")
        a(f"v_max_f32_dpp v{TMP+5}, v{TMP+5}, v{TMP+5} {sh} row_mask:0xf bank_mask:0xf bound_ctrl:0")
    for sh in ("row_bcast:15 row_mask:0xa","row_bcast:31 row_mask:0xc"):
        a("s_nop 0")
        a(f"v_max_f32_dpp v{TMP+2}, v{TMP+2}, v{TMP+2} {sh} bank_mask:0xf")
        a(f"v_max_f32_dpp v{TMP+5}, v{TMP+5}, v{TMP+5} {sh} bank_mask:0xf")
    a(f"""
    s_nop 0
    v_mul_f32 v{TMP+2}, v{TMP+2}, v{TMP+5}
    s_nop 0
    v_readlane_b32 s38, v{TMP+2}, 63
    v_and_b32 v{TMP+3}, 31, v1
    v_lshrrev_b32 v{TMP+4}, 5, v1
    v_lshlrev_b32 v{TMP+4}, 10, v{TMP+4}
    v_lshl_add_u32 v{VK}, v{TMP+3}, 4, v{TMP+4}
    s_cmp_lt_u32 s3, 4
    s_cselect_b32 s36, 0, {NB*KV_TILE}
    s_cselect_b32 s45, {NB//2}, {NA//2}
    s_cselect_b32 s44, {HB}, {HA}
    s_cselect_b32 s43, {(XB-HB)//2}, {(XA-HA)//2 if asm.F23 else (NA//2-HA)//2}
    s_cselect_b32 s41, {(NB//2-XB)//2}, {(NA//2-XA)//2 if asm.F23 else 0}
    s_cselect_b32 s40, {min(TABIT,ARRIT)}, {ARRIT}
    v_add_u32 v{VK}, s36, v{VK}
    v_cmp_eq_u32 vcc, 16, v{TMP+3}
    v_mov_b32 v{TMP+4}, 0x3f803f80
    v_mov_b32 v{VIDX}, 0xdddd
    v_cndmask_b32 v{TMP+4}, 0, v{TMP+4}, vcc
    s_mov_b32 s62, 0xffff
    s_mov_b32 s63, 0xffff
    """)
    for r in (F[0][1],F[0][2],F[1][1]):
        for i in range(4): a(f"v_mov_b32 v{r+i}, v{TMP+4}")
    for qq in range(2):
        for i in range(16): a(f"v_mov_b32 v{O[qq]+i}, 0")
    for i in range(8): a(f"v_mov_b32 v{S[1]+8+i}, 0")
    for i in range(4): a(f"v_mov_b32 v{F[1][2]+i}, v{TMP+4}")
    if "nohook" in VAR:
        a("s_waitcnt vmcnt(0)"); a("s_mov_b32 s40, 99")
    a(f"""
    v_mov_b32 v{TMP+3}, {K2_CNT}
    v_mov_b32 v{TMP+4}, 0
    v_mov_b32 v{TMP+5}, 0
    v_mov_b32 v{TMP+6}, 0
    v_mov_b32 v{TMP+7}, 0
    s_mov_b32 s47, 0
    s_cmp_eq_u32 s3, 0
    s_cbranch_scc0 k2_noinit
    ds_write_b128 v{TMP+3}, {vr(TMP+4,4)}
    s_waitcnt lgkmcnt(0)
    """)
    a.label("k2_noinit")
    a("s_waitcnt vmcnt(0)")
    stamp(a,1)
    a("s_barrier")
    a(f"v_lshlrev_b32 v{TMP}, 4, v1")
    if not DRIP: kv_dma(a,rest)
    PF = "pf" in VAR and asm.F23
    if PF:
        a("s_cmp_eq_u32 s3, 7")
        a("s_cbranch_scc0 k2_nopf")
        code_prefetch(a,"k2_tail","k2_end",2,TMP+1,5)
        a.label("k2_nopf")
    a("""
    s_cmp_lt_u32 s3, 4
    s_cbranch_scc1 k2_prioB
    s_setprio 1
    s_branch k2_priodone
    """)
    a.label("k2_prioB")
    a("s_setprio 2" if "noprio" not in VAR else "s_setprio 0")
    a.label("k2_priodone")
    if "soloA" in VAR:
        a("s_cmp_lt_u32 s3, 4"); a("s_cbranch_scc1 k2_end")
    stamp(a,2)
    a(f"""
    s_cmp_le_u32 s38, {hex(f2u(THRESH2))}
    s_cbranch_scc0 k2_fallback
    """)
    pipe_prologue(a,False)
    if DRIP:
        todo=[(lambda n=n: kv_dma(a,[n])) for n in rest]
        per=-(-len(todo)//8)
        for trip in range(2):
            for tau in range(2):
                for qt in range(2):
                    take=todo[:per]; todo=todo[per:]
                    unit(a,tau,qt,False,take)
            a(f"v_add_u32 v{VK}, {2*KV_TILE}, v{VK}")
        assert not todo
        a("s_mov_b32 s42, 2")
    attn_loop(a,False)
    a.label("k2_tail")
    stamp(a,6)
    a(f"""
    s_nop 1
    v_smfmac_f32_32x32x32_bf16 {vr(O[1],16)}, {vr(F[1][2],4)}, {vr(S[1]+8,8)}, v{VIDX}
    s_setprio 0
    s_mul_i32 s36, s3, 2304
    s_add_u32 s37, s36, {K2_E+8192-3*2304}
    s_add_u32 s36, s36, {K2_COL}
    s_cmp_lt_u32 s3, 3
    s_cselect_b32 s36, s36, s37
    s_xor_b32 s44, s3, 4
    s_mul_i32 s45, s44, 2304
    s_add_u32 s46, s45, {K2_E+8192-3*2304}
    s_add_u32 s45, s45, {K2_COL}
    s_cmp_lt_u32 s44, 3
    s_cselect_b32 s45, s45, s46
    v_lshlrev_b32 v{TMP}, 4, v1
    v_lshlrev_b32 v{TMP+1}, 2, v1
    v_add_u32 v{TMP+2}, s36, v{TMP}
    v_add_u32 v{TMP+3}, s36, v{TMP+1}
    v_add_u32 v{TMP+4}, s45, v{TMP}
    v_add_u32 v{TMP+5}, s45, v{TMP+1}
    s_cmp_lt_u32 s3, 4
    s_cbranch_scc1 k2_tailB
    """)
    a(f"""
    s_nop 9
    ds_write_b128 v{TMP+2}, {vr(O[0],4)}
    ds_write_b128 v{TMP+2}, {vr(O[0]+4,4)} offset:1024
    ds_write_b32 v{TMP+3}, v{O[0]+8} offset:2048
    s_nop 7
    """)
    for i in range(9): a(f"v_mov_b32 v{O[0]+i}, v{O[1]+i}")
    a("""
    s_add_u32 s31, s31, 1
    s_branch k2_tail2
    """)
    a.label("k2_tailB")
    a(f"""
    s_nop 15
    s_nop 3
    ds_write_b128 v{TMP+2}, {vr(O[1],4)}
    ds_write_b128 v{TMP+2}, {vr(O[1]+4,4)} offset:1024
    ds_write_b32 v{TMP+3}, v{O[1]+8} offset:2048
    """)
    a.label("k2_tail2")
    a(f"""
    s_waitcnt lgkmcnt(0)
    {"" if "soloA" in VAR else "s_barrier"}
    ds_read_b128 {vr(S[0],4)}, v{TMP+4}
    ds_read_b128 {vr(S[0]+4,4)}, v{TMP+4} offset:1024
    ds_read_b32 v{S[0]+8}, v{TMP+5} offset:2048
    s_lshl_b32 s36, s31, 5
    s_add_u32 s36, s36, s29
    s_lshl_b32 s36, s36, 10
    s_add_u32 s36, s36, {OFF_O}
    s_waitcnt lgkmcnt(0)
    """)
    for i in range(9): a(f"v_add_f32 v{O[0]+i}, v{O[0]+i}, v{S[0]+i}")
    a(f"""
    v_mov_b32 v{TMP+1}, v{O[0]+8}
    v_mov_b32 v{TMP+2}, v{O[0]+8}
    s_nop 1
    v_permlane32_swap_b32 v{TMP+1}, v{TMP+2}
    s_nop 1
    v_rcp_f32 v{TMP+1}, v{TMP+1}
    s_nop 0
    """)
    for i in range(8): a(f"v_mul_f32 v{O[0]+i}, v{O[0]+i}, v{TMP+1}")
    for i in range(4): a(f"v_cvt_pk_bf16_f32 v{TMP+4+i}, v{O[0]+2*i}, v{O[0]+2*i+1}")
    a.sc_srd="s[20:23]"
    a(f"buffer_store_dwordx4 {vr(TMP+4,4)}, v{TMP}, s[20:23], s36 offen")
    if asm.F23:
        if "wgflag" in VAR:
            a("""
            s_waitcnt vmcnt(0)
            s_barrier
            """)
            stamp(a,8)
            a(f"""
            s_cmp_eq_u32 s3, 0
            s_cbranch_scc0 ph3_start
            s_lshl_b32 s36, s30, 5
            s_add_u32 s36, s36, s29
            s_lshl_b32 s36, s36, 2
            s_add_u32 s36, s36, {OFF_F2}
            """)
            flag_store(a,36,TMP)
            a("s_branch ph3_start")
        elif "oflag" in VAR:
            a(f"""
            s_lshl_b32 s36, s31, 5
            s_add_u32 s36, s36, s29
            s_lshl_b32 s36, s36, 2
            s_add_u32 s36, s36, {OFF_F2}
            s_waitcnt vmcnt(0)
            """)
            stamp(a,8)
            flag_store(a,36,TMP)
            a("s_branch ph3_start")
        else:
            stamp(a,8)
            a("s_branch ph3_start")
    else:
        if asm.STAMP:
            a("s_waitcnt vmcnt(0)"); stamp(a,8); stamp_dump(a,1)
        a("s_endpgm")
    def act_tab(): a("s_call_b64 s[60:61], k2_tab")
    def act_arriveB():
        dma_arrive(a, (26 if asm.F23 else 24) if TABIT<=ARRIT else 0)
    def act_b2():
        stamp(a,3); a("s_call_b64 s[60:61], k2_b2"); stamp(a,4)
    def act_pub(): a("s_call_b64 s[60:61], k2_pub")
    def act_prio0(): a("s_setprio 0")
    hooksB=[(TABIT,act_tab),(ARRIT,act_arriveB),(DWAIT,lambda: dma_wait(a,"hb")),(B2IT,act_b2)]
    hooksB.sort(key=lambda h:h[0])
    if asm.F23: hooksB.append((PUBIT,act_pub))
    def arriveA():
        if PF:
            a("s_cmp_eq_u32 s3, 7")
            a("s_cbranch_scc0 k2_arr_n")
            dma_arrive(a,2)
            a("s_branch k2_arr_d")
            a.label("k2_arr_n")
            dma_arrive(a)
            a.label("k2_arr_d")
        else: dma_arrive(a)
    hooksA=[(ARRIT,arriveA),(DWAIT,lambda: dma_wait(a,"ha"))]
    if asm.F23 and not asm.F12: hooksA.append((DWAIT+1,lambda: get_tag(a,"ha")))
    def emit(role,hooks):
        its=sorted(set(h[0] for h in hooks))
        for n,it in enumerate(its):
            nxt=its[n+1] if n+1<len(its) else 99
            a(f"s_cmp_eq_u32 s40, {it}")
            a(f"s_cbranch_scc0 k2_hk{role}_{n+1}")
            for (i2,f) in hooks:
                if i2==it: f()
            a(f"s_mov_b32 s40, {nxt}")
            a("s_branch k2_hookret")
            a.label(f"k2_hk{role}_{n+1}")
        a("s_branch k2_hookret")
        return its[0]
    a.label("k2_hook")
    a("""
    s_cmp_lt_u32 s3, 4
    s_cbranch_scc0 k2_hookA
    """)
    emit("B",hooksB)
    a.label("k2_hookA")
    emit("A",hooksA)
    a.label("k2_fallback")
    if DRIP: kv_dma(a,rest)
    a("""
    s_cmp_lt_u32 s3, 4
    s_cbranch_scc0 k2_fbA
    """)
    dma_arrive(a)
    dma_wait(a,"fbb")
    a("""
    s_call_b64 s[60:61], k2_tab
    s_call_b64 s[60:61], k2_b2
    """)
    if asm.F23: a("s_call_b64 s[60:61], k2_pub")
    a("""
    s_branch k2_fb_pre
    """)
    a.label("k2_fbA")
    dma_arrive(a)
    dma_wait(a,"fb")
    if asm.F23 and not asm.F12: get_tag(a,"fba")
    a.label("k2_fb_pre")
    if asm.F23: a("s_call_b64 s[60:61], k2_mid")
    a(f"""
    v_mov_b32 v{TMP+1}, 0xff800000
    v_mov_b32 v{TMP+2}, 0xff800000
    v_and_b32 v{TMP+3}, 31, v1
    v_lshrrev_b32 v{TMP+4}, 5, v1
    v_lshlrev_b32 v{TMP+4}, 10, v{TMP+4}
    v_lshl_add_u32 v{TMP+3}, v{TMP+3}, 4, v{TMP+4}
    s_mov_b32 s42, 64
    """)
    a.label("k2_fb_max")
    a(f"""
    ds_read_b128 {vr(F[0][0],4)}, v{TMP+3}
    v_add_u32 v{TMP+3}, {KV_TILE}, v{TMP+3}
    s_waitcnt lgkmcnt(0)
    v_mfma_f32_32x32x16_bf16 {vr(S[0],16)}, {vr(F[0][0],4)}, {vr(Q[0],4)}, 0
    v_mfma_f32_32x32x16_bf16 {vr(CI[0],16)}, {vr(F[0][0],4)}, {vr(Q[1],4)}, 0
    s_nop 15
    """)
    for i in range(0,16,2): a(f"v_max3_f32 v{TMP+1}, v{S[0]+i}, v{S[0]+i+1}, v{TMP+1}")
    for i in range(0,16,2): a(f"v_max3_f32 v{TMP+2}, v{CI[0]+i}, v{CI[0]+i+1}, v{TMP+2}")
    a(f"""
    s_sub_u32 s42, s42, 1
    s_cmp_lg_u32 s42, 0
    s_cbranch_scc1 k2_fb_max
    v_mov_b32 v{TMP+3}, v{TMP+1}
    v_mov_b32 v{TMP+4}, v{TMP+2}
    s_nop 1
    v_permlane32_swap_b32 v{TMP+1}, v{TMP+3}
    v_permlane32_swap_b32 v{TMP+2}, v{TMP+4}
    s_nop 1
    v_max_f32 v{TMP+1}, v{TMP+1}, v{TMP+3}
    v_max_f32 v{TMP+2}, v{TMP+2}, v{TMP+4}
    """)
    for qq in range(2):
        for i in range(16): a(f"v_sub_f32 v{CI[qq]+i}, 0, v{TMP+1+qq}")
    a("s_nop 1")
    a("s_mov_b32 s43, s45")
    pipe_prologue(a,True)
    attn_loop(a,True)
    a("s_branch k2_tail")
    if asm.F23:
        a.label("k2_mid")
        a.sc_srd="s[20:23]"
        a(f"""
        s_cmp_lt_u32 s3, 4
        s_cbranch_scc0 k2_mid_p
        s_setprio 0
        """)
        a.label("k2_mid_p")
        a(f"""
        v_lshlrev_b32 v{TMP}, 4, v1
        v_add_u32 v{TMP}, {OFF_F2B}, v{TMP}
        s_mov_b32 s49, 0x20000
        """)
        a.label("k2_mid_poll")
        a(f"""
        buffer_load_dwordx4 {vr(TMP+4,4)}, v{TMP}, s[20:23], 0 offen
        s_waitcnt vmcnt(0)
        v_cmp_eq_u32 vcc, s56, v{TMP+4}
        v_cmp_eq_u32 s[50:51], s56, v{TMP+5}
        s_nop 1
        s_and_b64 vcc, vcc, s[50:51]
        v_cmp_eq_u32 s[50:51], s56, v{TMP+6}
        s_nop 1
        s_and_b64 vcc, vcc, s[50:51]
        v_cmp_eq_u32 s[50:51], s56, v{TMP+7}
        s_nop 1
        s_and_b64 vcc, vcc, s[50:51]
        s_cmp_eq_u64 vcc, -1
        s_cbranch_scc1 k2_mid_ok
        s_sub_u32 s49, s49, 1
        s_cmp_eq_u32 s49, 0
        s_cbranch_scc1 k2_mid_ok
        s_sleep 1
        s_branch k2_mid_poll
        """)
        a.label("k2_mid_ok")
        a(f"""
        s_cmp_lt_u32 s3, 4
        s_cbranch_scc1 k2_mid_ret
        s_sub_u32 s32, s3, 4                     ; jv
        s_lshr_b32 s33, s19, 3
        s_lshl_b32 s33, s33, 3
        s_add_u32 s33, s33, s18                  ; n2
        s_and_b32 s36, s19, 7                    ; a
        v_lshrrev_b32 v{TMP}, 1, v1
        v_lshlrev_b32 v{TMP}, 13, v{TMP}
        v_and_b32 v{TMP+1}, 1, v1
        v_lshl_add_u32 v{TMP}, v{TMP+1}, 4, v{TMP}
        s_lshl_b32 s33, s33, 8
        s_lshl_b32 s36, s36, 5
        s_add_u32 s33, s33, s36
        s_lshl_b32 s36, s32, 19
        s_add_u32 s33, s33, s36
        s_add_u32 s33, s33, {OFF_Y}
        s_lshl_b32 s32, s32, 11
        s_add_u32 m0, s32, {K2_E}
        s_nop 0
        buffer_load_dwordx4 v{TMP}, s[20:23], s33 offen lds
        s_add_u32 m0, s32, {K2_E+1024}
        s_add_u32 s33, s33, {32*8192}
        buffer_load_dwordx4 v{TMP}, s[20:23], s33 offen lds
        """)
        a.label("k2_mid_ret")
        a("s_setpc_b64 s[60:61]")
    a.label("k2_tab")
    a.sc_srd=P1
    a(f"""
    v_lshlrev_b32 v{TMP}, 4, v1
    v_lshrrev_b32 v{TMP+3}, 4, v1
    s_lshl_b32 s32, s3, 3
    v_add_u32 v{TMP+4}, s32, v{TMP+3}        ; n2 (e=0)
    v_and_b32 v{TMP+5}, 15, v{TMP+4}
    v_and_b32 v{TMP+6}, 15, v1
    v_xor_b32 v{TMP+5}, v{TMP+5}, v{TMP+6}
    v_lshlrev_b32 v{TMP+5}, 4, v{TMP+5}
    v_lshl_add_u32 v{TMP+5}, v{TMP+4}, 8, v{TMP+5}
    v_xor_b32 v{TMP+6}, 64, v{TMP+5}
    v_add_u32 v{TMP+6}, 1024, v{TMP+6}
    s_lshl_b32 s32, s28, 13
    s_add_u32 s32, s32, {OFF_Z}
    s_lshl_b32 s33, s3, 11
    s_add_u32 m0, s33, {K2_COL}
    s_nop 0
    buffer_load_dwordx4 v{TMP+5}, s[20:23], s32 offen lds
    s_add_u32 m0, s33, {K2_COL+1024}
    s_nop 0
    buffer_load_dwordx4 v{TMP+6}, s[20:23], s32 offen lds
    """)
    a(f"s_lshl_b32 s36, s3, 13")
    a(f"s_add_u32 s36, s36, {OFF_T64}")
    for k in range(8):
        a(f"buffer_load_dwordx4 {vr(T64+4*k,4)}, v{TMP}, s[20:23], s36 offen offset:{(k%4)*1024}")
        if k==3: a("s_add_u32 s36, s36, 4096")
    a(f"s_lshl_b32 s36, s3, 12")
    a(f"s_add_u32 s36, s36, {OFF_TW}")
    for k in range(4):
        a(f"buffer_load_dwordx4 {vr(TW+4*k,4)}, v{TMP}, s[20:23], s36 offen offset:{k*1024}")
    a(f"s_mov_b32 s36, {OFF_A32}")
    for k in range(8):
        a(f"buffer_load_dwordx4 {vr(A32+4*k,4)}, v{TMP}, s[20:23], s36 offen offset:{(k%4)*1024}")
        if k==3: a("s_add_u32 s36, s36, 4096")
    a(f"""
    s_lshl_b32 s36, s28, 13
    s_lshl_b32 s37, s3, 11
    s_add_u32 s36, s36, s37
    s_add_u32 s36, s36, {OFF_WT}
    buffer_load_dwordx4 {vr(WT,4)}, v{TMP}, s[20:23], s36 offen
    buffer_load_dwordx4 {vr(WT+4,4)}, v{TMP}, s[20:23], s36 offen offset:1024
    """)
    if asm.F23:
        a.sc_srd="s[20:23]"
        a(f"""
        v_mov_b32 v{TMP+4}, -1
        v_mov_b32 v{TMP+5}, -1
        v_mov_b32 v{TMP+6}, -1
        v_mov_b32 v{TMP+7}, -1
        s_lshl_b32 s36, s31, 5
        s_add_u32 s36, s36, s29
        s_lshl_b32 s36, s36, 10
        s_add_u32 s36, s36, {OFF_O}
        buffer_store_dwordx4 {vr(TMP+4,4)}, v{TMP}, s[20:23], s36 offen
        s_add_u32 s36, s36, 32768
        buffer_store_dwordx4 {vr(TMP+4,4)}, v{TMP}, s[20:23], s36 offen
        """)
        a.sc_srd=P1
    a("s_setpc_b64 s[60:61]")
    a.label("k2_b2")
    a.sc_srd=P1
    a.p1=P1
    b2_part1(a)
    b2_part2(a)
    if asm.F23:
        a.label("k2_pub")
        if not asm.F12: get_tag(a,"b")
        a.sc_srd="s[20:23]"
        a("s_waitcnt vmcnt(0)")
        bbar(a,"pub")
        a(f"""
        s_cmp_eq_u32 s3, 0
        s_cbranch_scc0 k2_pub1
        s_lshl_b32 s36, s28, 2
        s_add_u32 s36, s36, {OFF_F2B}
        """)
        flag_store(a,36,TMP)
        a.label("k2_pub1")
        a.sc_srd=P1
        a(f"""
        s_lshr_b32 s36, s19, 2                   ; ct
        s_lshl_b32 s36, s36, 16
        s_lshl_b32 s37, s3, 13
        s_add_u32 s36, s36, s37
        s_add_u32 s36, s36, {OFF_WOF}
        v_lshlrev_b32 v{TMP}, 4, v1
        """)
        for hh in range(8):
            a(f"s_add_u32 s37, s36, {hh*1024}")
            a(f"buffer_load_dwordx4 {vr(WOR+8*hh,4)}, v{TMP}, s[20:23], s37 offen")
            a(f"s_add_u32 s37, s37, 32768")
            a(f"buffer_load_dwordx4 {vr(WOR+8*hh+4,4)}, v{TMP}, s[20:23], s37 offen")
        a("s_setpc_b64 s[60:61]")
    a.sc_srd=None
    if own:
        a.label("k2_end")
        a("s_endpgm")
    return a
```

```python
import asm
from asm import *
from layout import *
import k1, k2
from k1 import srd, twiddle, gen_consts
from k2 import bbar, poll, flag_store, get_tag, WOR, TMP as T2
import os
OUTSC={'':'','sc1':' sc1','nt':' nt','none':''}[os.environ.get('OUTSC','sc1')]
KF_LDS=163840
PSTR=17408
S3=4*PSTR

def ph1_end(a):
    a.label("ph1_end")
    a("s_barrier")
    stamp(a,20)
    a("""
    v_mov_b32 v2, 0
    s_mov_b32 s49, 0x20000
    """)
    a.label("kf_tag")
    a("""
    global_load_dword v3, v2, s[54:55] sc1
    s_waitcnt vmcnt(0)
    v_readfirstlane_b32 s56, v3
    s_sub_u32 s49, s49, 1
    s_cmp_eq_u32 s49, 0
    s_cbranch_scc1 kf_tag_done
    s_cmp_eq_u32 s56, 0
    s_cbranch_scc0 kf_tag_done
    s_sleep 1
    s_branch kf_tag
    """)
    a.label("kf_tag_done")
    srd(a,20,16,WS_SIZE)
    a(f"""
    s_cmp_eq_u32 s3, 0
    s_cbranch_scc0 kf_noflag1
    s_cmp_ge_u32 s2, 192
    s_cbranch_scc1 kf_flagB
    s_lshl_b32 s36, s29, 4
    s_add_u32 s36, s36, s28
    s_lshl_b32 s36, s36, 2
    s_add_u32 s36, s36, {OFF_F1Q}
    s_branch kf_flag1
    """)
    a.label("kf_flagB")
    a(f"""
    s_sub_u32 s36, s2, 192
    s_lshl_b32 s36, s36, 2
    s_add_u32 s36, s36, {OFF_F1B}
    """)
    a.label("kf_flag1")
    a.sc_srd="s[20:23]"
    flag_store(a,36,4)
    a.sc_srd=None
    a.label("kf_noflag1")

def phase3(a):
    a.label("ph3_start")
    a.sc_srd="s[20:23]"
    a(f"""
    v_lshlrev_b32 v2, 4, v1                  ; lane*16
    s_cmp_ge_u32 s3, 4
    s_cbranch_scc1 ph3_B
    s_lshl_b32 s28, s18, 2
    s_and_b32 s29, s19, 3
    s_add_u32 s28, s28, s29                  ; rt
    s_lshr_b32 s29, s19, 2                   ; ct
    s_lshl_b32 s30, s28, 16
    s_lshl_b32 s31, s3, 13
    s_add_u32 s30, s30, s31
    s_add_u32 s30, s30, {OFF_O}
    s_mov_b32 s49, 0x20000
    """)
    OL=8; ACCS=[72,88,112,128]
    a.label("ph3_opoll")
    for hh in range(8):
        a(f"s_add_u32 s34, s30, {hh*1024}")
        a(f"buffer_load_dwordx4 {vr(OL+8*hh,4)}, v2, s[20:23], s34 offen")
        a(f"s_add_u32 s34, s34, 32768")
        a(f"buffer_load_dwordx4 {vr(OL+8*hh+4,4)}, v2, s[20:23], s34 offen")
    for hh in range(8):
        a(f"s_waitcnt vmcnt({2*(7-hh)})")
        b=OL+8*hh
        if hh==0:
            a(f"v_max3_u32 v3, v{b}, v{b+1}, v{b+2}")
            rest=[b+3,b+4,b+5,b+6,b+7]
            a(f"v_max3_u32 v3, v3, v{b+3}, v{b+4}")
            a(f"v_max3_u32 v3, v3, v{b+5}, v{b+6}")
            a(f"v_max_u32 v3, v3, v{b+7}")
        else:
            for k in range(0,8,2): a(f"v_max3_u32 v3, v3, v{b+k}, v{b+k+1}")
    a("""
    v_cmp_eq_u32 vcc, -1, v3
    s_nop 1
    s_cmp_eq_u64 vcc, 0
    s_cbranch_scc1 ph3_ook
    s_sub_u32 s49, s49, 1
    s_cmp_eq_u32 s49, 0
    s_cbranch_scc1 ph3_ook
    s_branch ph3_opoll
    """)
    a.label("ph3_ook")
    stamp(a,21)
    a(f"""
    v_and_b32 v3, 31, v1
    v_lshrrev_b32 v4, 5, v1
    v_mul_u32_u24 v3, 272, v3
    v_lshl_add_u32 v3, v4, 4, v3
    s_mul_i32 s33, s3, {PSTR}
    v_add_u32 v3, s33, v3
    v_lshrrev_b32 v4, 3, v1                  ; rl
    v_and_b32 v5, 7, v1                      ; c
    s_lshl_b32 s33, s3, 4
    v_add_u32 v6, s33, v4
    v_mul_u32_u24 v7, 272, v6
    v_lshl_add_u32 v7, v5, 5, v7
    s_lshl_b32 s33, s28, 6
    v_add_u32 v6, s33, v6
    v_lshlrev_b32 v6, 11, v6
    v_lshl_add_u32 v6, v5, 4, v6
    s_lshl_b32 s35, s29, 7
    """)
    srd(a,24,52,2048*1024*2)
    for hh in range(8):
        for nl in range(2):
            for st in range(2):
                acc=ACCS[nl*2+st]
                a(f"v_mfma_f32_32x32x16_bf16 {vr(acc,16)}, {vr(WOR+8*hh+4*nl,4)}, {vr(OL+8*hh+4*st,4)}, {'0' if hh==0 else vr(acc,16)}")
    a("s_nop 7")
    for q in range(4):
        nl,st=q>>1,q&1
        if q==2: a("s_nop 3")
        for jj in range(4):
            a(f"ds_write_b128 v3, {vr(ACCS[q]+4*jj,4)} offset:{st*32*272+(32*nl+8*jj)*4}")
    bbar(a,"p3b")
    stamp(a,22)
    R=8
    for e in range(2):
        for w in range(4):
            for hf in range(2):
                a(f"ds_read_b128 {vr(R+32*e+8*w+4*hf,4)}, v7 offset:{w*PSTR+e*8*272+hf*16}")
    for e in range(2):
        a(f"s_waitcnt lgkmcnt({8*(1-e)})")
        b=R+32*e
        for k in range(8):
            a(f"v_add_f32 v{b+k}, v{b+k}, v{b+8+k}")
            a(f"v_add_f32 v{b+16+k}, v{b+16+k}, v{b+24+k}")
        for k in range(8): a(f"v_add_f32 v{b+k}, v{b+k}, v{b+16+k}")
        for k in range(4): a(f"v_cvt_pk_bf16_f32 v{80+4*e+k}, v{b+2*k}, v{b+2*k+1}")
        a(f"s_add_u32 s36, s35, {e*8*2048}")
        a(f"buffer_store_dwordx4 {vr(80+4*e,4)}, v6, s[24:27], s36 offen{OUTSC}")
    if asm.STAMP:
        a("s_waitcnt vmcnt(0)"); stamp(a,23); stamp_dump(a,0 if asm.F12 else 1)
    a("s_endpgm")
    a.label("ph3_B")
    VM,VQ,VMF,VQF=3,4,5,6
    R16,TWc,TWs,A32=8,16,24,32
    AB=64; P=80; D1=88; D2=112; TMP=128
    a(f"""
    s_sub_u32 s28, s3, 4                     ; jv
    s_lshr_b32 s29, s19, 3
    s_lshl_b32 s29, s29, 3
    s_add_u32 s29, s29, s18                  ; n2
    s_and_b32 s30, s19, 7                    ; a
    """)
    a(f"""
    v_and_b32 v{VM}, 15, v1
    v_lshrrev_b32 v{VQ}, 4, v1
    v_cvt_f32_u32 v{VMF}, v{VM}
    v_lshlrev_b32 v{VQF}, 2, v{VQ}
    v_cvt_f32_u32 v{VQF}, v{VQF}
    """)
    srd(a,24,52,2048*1024*2)
    gen_consts(a, True, 2.0**-21, R16, TWc, TWs, A32, TMP, VMF, VQF)
    a(f"""
    v_lshl_add_u32 v{TMP}, v{VQ}, 7, v{VM}           ; 128q + m
    v_sub_u32 v{TMP+1}, 512, v{TMP}
    v_cmp_gt_u32 vcc, 32, v1                         ; q<2 <=> lane<32
    v_mov_b32 v{TMP+2}, -1.0
    v_mov_b32 v{TMP+3}, -512
    v_cndmask_b32 v{TMP}, v{TMP+1}, v{TMP}, vcc
    v_cndmask_b32 v7, v{TMP+2}, 1.0, vcc             ; sigma
    v_mov_b32 v{TMP+4}, 512
    v_cndmask_b32 v{TMP+3}, v{TMP+3}, v{TMP+4}, vcc  ; step
    s_lshl_b32 s33, s28, 3
    s_add_u32 s33, s33, {k2.K2_E}
    v_lshl_add_u32 v{TMP}, v{TMP}, 5, s33            ; base
    v_mov_b32 v{TMP+5}, s33
    v_cmp_eq_u32 vcc, 32, v1
    v_add_u32 v{TMP+7}, v{TMP}, v{TMP+3}             ; addr e=1
    s_nop 0
    v_cndmask_b32 v{TMP+6}, v{TMP}, v{TMP+5}, vcc
    s_mov_b64 s[36:37], vcc
    s_waitcnt vmcnt(0)
    """)
    bbar(a,"p3d",8)
    stamp(a,21)
    a(f"ds_read_b64 {vr(AB,2)}, v{TMP+6}")
    for e in range(1,8):
        i,t=e>>1,e&1
        a(f"ds_read_b64 {vr(AB+2*(4*t+i),2)}, v{TMP+7}")
        if e<7: a(f"v_add_u32 v{TMP+7}, v{TMP+7}, v{TMP+3}")
    a(f"""
    v_cmp_eq_u32 vcc, 0, v1
    s_nop 1
    s_or_b64 s[38:39], vcc, s[36:37]
    v_cndmask_b32 v{TMP+8}, v7, 0, s[38:39]          ; sigma0
    s_waitcnt lgkmcnt(0)
    """)
    for t in range(2):
        for i in range(4):
            A,B=AB+2*(4*t+i),AB+2*(4*t+i)+1
            ar,ai,br,bi=TMP+10,TMP+11,TMP+12,TMP+13
            a(f"v_lshlrev_b32 v{ar}, 16, v{A}")
            a(f"v_and_b32 v{ai}, 0xffff0000, v{A}")
            a(f"v_lshlrev_b32 v{br}, 16, v{B}")
            a(f"v_and_b32 v{bi}, 0xffff0000, v{B}")
            sg=7
            if t==0 and i==0:
                a(f"v_cndmask_b32 v{ar}, v{ar}, v{ai}, s[36:37]")
                a(f"v_cndmask_b32 v{br}, v{br}, v{bi}, s[36:37]")
                sg=TMP+8
            a(f"v_fma_f32 v{TMP+14}, -v{sg}, v{bi}, v{ar}")
            a(f"v_fma_f32 v{TMP+15}, v{sg}, v{ai}, v{br}")
            a(f"v_cvt_pk_bf16_f32 v{P+4*t+i}, v{TMP+14}, v{TMP+15}")
    a("s_nop 1")
    for t in range(2):
        for part in range(2):
            a(f"v_mfma_f32_16x16x32_bf16 {vr(D1+8*t+4*part,4)}, {vr(P+4*t,4)}, {vr(R16+4*part,4)}, 0")
    a("s_nop 7")
    for t in range(2):
        twiddle(a, D1+8*t, D1+8*t+4, TWc+4*t, TWs+4*t, P+4*t, TMP)
    a("s_nop 1")
    for t in range(2):
        for tp in range(2):
            for part in range(2):
                d=D2+8*tp+4*part
                a(f"v_mfma_f32_16x16x32_bf16 {vr(d,4)}, {vr(P+4*t,4)}, {vr(A32+((tp*2+part)*2+t)*4,4)}, {'0' if t==0 else vr(d,4)}")
    a(f"""
    v_lshlrev_b32 v{TMP}, 5, v{VM}
    v_lshl_add_u32 v{TMP}, v{VQ}, 3, v{TMP}
    s_lshl_b32 s33, s30, 3
    s_lshl_b32 s34, s28, 1
    s_add_u32 s33, s33, s34
    s_lshl_b32 s33, s33, 5
    s_add_u32 s33, s33, s29
    s_lshl_b32 s33, s33, 11
    s_add_u32 s33, s33, 1024
    s_nop 3
    """)
    for part in range(2):
        for tp in range(2):
            d=D2+8*tp+4*part
            o=TMP+2+2*(part*2+tp)
            a(f"v_cvt_pk_bf16_f32 v{o}, v{d}, v{d+1}")
            a(f"v_cvt_pk_bf16_f32 v{o+1}, v{d+2}, v{d+3}")
            a(f"s_add_u32 s34, s33, {part*32*2048+tp*512}")
            a(f"buffer_store_dwordx2 {vr(o,2)}, v{TMP}, s[24:27], s34 offen{OUTSC}")
    if asm.STAMP:
        a("s_waitcnt vmcnt(0)"); stamp(a,23); stamp_dump(a,0 if asm.F12 else 1)
    a.sc_srd=None

def build_k23():
    asm.FUSED=True; asm.F12=False; asm.F23=True
    a=Asm()
    asm.SMAP={0:0,1:4,2:5,3:6,4:7,6:8,8:9,21:10,22:11,23:12}
    if asm.STAMP==3: asm.SMAP={0:0,2:1,3:2,4:3,6:4,8:5,21:6,23:7}
    k2.build_k2(a)
    phase3(a)
    a.label("k2_end")
    a("s_endpgm")
    asm.FUSED=False; asm.F23=False; asm.SMAP=None
    return a

def build_fused():
    asm.FUSED=True; asm.F12=True; asm.F23=True
    a=Asm()
    asm.SMAP={0:0,1:1,3:2,20:3}
    k1.build_k1(a)
    ph1_end(a)
    asm.SMAP={9:4,2:5,3:6,4:7,6:8,8:9,21:10,22:11,23:12}
    k2.build_k2(a)
    phase3(a)
    a.label("k1_end")
    a.label("k2_end")
    a("s_endpgm")
    return a
```

```python
import asm
from asm import *
from layout import *
import k1, k2
from k1 import srd, twiddle, gen_consts
from k2 import bbar, poll, flag_store, get_tag, WOR, TMP as T2
import os
OUTSC={'':'','sc1':' sc1','nt':' nt','none':''}[os.environ.get('OUTSC','sc1')]
PREPOLL=int(os.environ.get('PREPOLL','1'))
KF_LDS=163840
PSTR=17408
S3=4*PSTR

def ph1_end(a):
    a.label("ph1_end")
    a("s_barrier")
    stamp(a,20)
    a("""
    v_mov_b32 v2, 0
    s_mov_b32 s49, 0x20000
    """)
    a.label("kf_tag")
    a("""
    global_load_dword v3, v2, s[54:55] sc1
    s_waitcnt vmcnt(0)
    v_readfirstlane_b32 s56, v3
    s_sub_u32 s49, s49, 1
    s_cmp_eq_u32 s49, 0
    s_cbranch_scc1 kf_tag_done
    s_cmp_eq_u32 s56, 0
    s_cbranch_scc0 kf_tag_done
    s_sleep 1
    s_branch kf_tag
    """)
    a.label("kf_tag_done")
    srd(a,20,16,WS_SIZE)
    a(f"""
    s_cmp_eq_u32 s3, 0
    s_cbranch_scc0 kf_noflag1
    s_cmp_ge_u32 s2, 192
    s_cbranch_scc1 kf_flagB
    s_lshl_b32 s36, s29, 4
    s_add_u32 s36, s36, s28
    s_lshl_b32 s36, s36, 2
    s_add_u32 s36, s36, {OFF_F1Q}
    s_branch kf_flag1
    """)
    a.label("kf_flagB")
    a(f"""
    s_sub_u32 s36, s2, 192
    s_lshl_b32 s36, s36, 2
    s_add_u32 s36, s36, {OFF_F1B}
    """)
    a.label("kf_flag1")
    a.sc_srd="s[20:23]"
    flag_store(a,36,4)
    a.sc_srd=None
    a.label("kf_noflag1")

def phase3(a):
    a.label("ph3_start")
    a.sc_srd="s[20:23]"
    a(f"""
    v_lshlrev_b32 v2, 4, v1                  ; lane*16
    s_cmp_ge_u32 s3, 4
    s_cbranch_scc1 ph3_B
    s_lshl_b32 s28, s18, 2
    s_and_b32 s29, s19, 3
    s_add_u32 s28, s28, s29                  ; rt
    s_lshr_b32 s29, s19, 2                   ; ct
    s_lshl_b32 s30, s28, 16
    s_lshl_b32 s31, s3, 13
    s_add_u32 s30, s30, s31
    s_add_u32 s30, s30, {OFF_O}
    s_mov_b32 s49, 0x20000
    v_and_b32 v3, 7, v1
    v_lshlrev_b32 v3, 10, v3
    v_bfe_u32 v4, v1, 3, 1
    v_lshl_add_u32 v3, v4, 15, v3
    v_add_u32 v3, 1020, v3
    """)
    if PREPOLL:
        a.label("ph3_pre")
        a("""
        buffer_load_dword v4, v3, s[20:23], s30 offen
        s_waitcnt vmcnt(0)
        v_cmp_eq_u32 vcc, -1, v4
        s_nop 1
        s_cmp_eq_u64 vcc, 0
        s_cbranch_scc1 ph3_pre_ok
        s_sub_u32 s49, s49, 1
        s_cmp_eq_u32 s49, 0
        s_cbranch_scc1 ph3_pre_ok
        s_sleep 1
        s_branch ph3_pre
        """)
        a.label("ph3_pre_ok")
        a("s_mov_b32 s49, 0x20000")
    OL=8; ACCS=[72,88,112,128]
    a.label("ph3_opoll")
    for hh in range(8):
        a(f"s_add_u32 s34, s30, {hh*1024}")
        a(f"buffer_load_dwordx4 {vr(OL+8*hh,4)}, v2, s[20:23], s34 offen")
        a(f"s_add_u32 s34, s34, 32768")
        a(f"buffer_load_dwordx4 {vr(OL+8*hh+4,4)}, v2, s[20:23], s34 offen")
    for hh in range(8):
        a(f"s_waitcnt vmcnt({2*(7-hh)})")
        b=OL+8*hh
        if hh==0:
            a(f"v_max3_u32 v3, v{b}, v{b+1}, v{b+2}")
            rest=[b+3,b+4,b+5,b+6,b+7]
            a(f"v_max3_u32 v3, v3, v{b+3}, v{b+4}")
            a(f"v_max3_u32 v3, v3, v{b+5}, v{b+6}")
            a(f"v_max_u32 v3, v3, v{b+7}")
        else:
            for k in range(0,8,2): a(f"v_max3_u32 v3, v3, v{b+k}, v{b+k+1}")
    a("""
    v_cmp_eq_u32 vcc, -1, v3
    s_nop 1
    s_cmp_eq_u64 vcc, 0
    s_cbranch_scc1 ph3_ook
    s_sub_u32 s49, s49, 1
    s_cmp_eq_u32 s49, 0
    s_cbranch_scc1 ph3_ook
    s_sleep 2
    s_branch ph3_opoll
    """)
    a.label("ph3_ook")
    stamp(a,21)
    a(f"""
    v_and_b32 v3, 31, v1
    v_lshrrev_b32 v4, 5, v1
    v_mul_u32_u24 v3, 272, v3
    v_lshl_add_u32 v3, v4, 4, v3
    s_mul_i32 s33, s3, {PSTR}
    v_add_u32 v3, s33, v3
    v_lshrrev_b32 v4, 3, v1                  ; rl
    v_and_b32 v5, 7, v1                      ; c
    s_lshl_b32 s33, s3, 4
    v_add_u32 v6, s33, v4
    v_mul_u32_u24 v7, 272, v6
    v_lshl_add_u32 v7, v5, 5, v7
    s_lshl_b32 s33, s28, 6
    v_add_u32 v6, s33, v6
    v_lshlrev_b32 v6, 11, v6
    v_lshl_add_u32 v6, v5, 4, v6
    s_lshl_b32 s35, s29, 7
    """)
    srd(a,24,52,2048*1024*2)
    for hh in range(8):
        for nl in range(2):
            for st in range(2):
                acc=ACCS[nl*2+st]
                a(f"v_mfma_f32_32x32x16_bf16 {vr(acc,16)}, {vr(WOR+8*hh+4*nl,4)}, {vr(OL+8*hh+4*st,4)}, {'0' if hh==0 else vr(acc,16)}")
    a("s_nop 7")
    for q in range(4):
        nl,st=q>>1,q&1
        if q==2: a("s_nop 3")
        for jj in range(4):
            a(f"ds_write_b128 v3, {vr(ACCS[q]+4*jj,4)} offset:{st*32*272+(32*nl+8*jj)*4}")
    bbar(a,"p3b")
    stamp(a,22)
    R=8
    for e in range(2):
        for w in range(4):
            for hf in range(2):
                a(f"ds_read_b128 {vr(R+32*e+8*w+4*hf,4)}, v7 offset:{w*PSTR+e*8*272+hf*16}")
    for e in range(2):
        a(f"s_waitcnt lgkmcnt({8*(1-e)})")
        b=R+32*e
        for k in range(8):
            a(f"v_add_f32 v{b+k}, v{b+k}, v{b+8+k}")
            a(f"v_add_f32 v{b+16+k}, v{b+16+k}, v{b+24+k}")
        for k in range(8): a(f"v_add_f32 v{b+k}, v{b+k}, v{b+16+k}")
        for k in range(4): a(f"v_cvt_pk_bf16_f32 v{80+4*e+k}, v{b+2*k}, v{b+2*k+1}")
        a(f"s_add_u32 s36, s35, {e*8*2048}")
        a(f"buffer_store_dwordx4 {vr(80+4*e,4)}, v6, s[24:27], s36 offen{OUTSC}")
    if asm.STAMP:
        a("s_waitcnt vmcnt(0)"); stamp(a,23); stamp_dump(a,0 if asm.F12 else 1)
    a("s_endpgm")
    a.label("ph3_B")
    VM,VQ,VMF,VQF=3,4,5,6
    R16,TWc,TWs,A32=8,16,24,32
    AB=64; P=80; D1=88; D2=112; TMP=128
    a(f"""
    s_sub_u32 s28, s3, 4                     ; jv
    s_lshr_b32 s29, s19, 3
    s_lshl_b32 s29, s29, 3
    s_add_u32 s29, s29, s18                  ; n2
    s_and_b32 s30, s19, 7                    ; a
    """)
    a(f"""
    v_and_b32 v{VM}, 15, v1
    v_lshrrev_b32 v{VQ}, 4, v1
    v_cvt_f32_u32 v{VMF}, v{VM}
    v_lshlrev_b32 v{VQF}, 2, v{VQ}
    v_cvt_f32_u32 v{VQF}, v{VQF}
    """)
    srd(a,24,52,2048*1024*2)
    gen_consts(a, True, 2.0**-21, R16, TWc, TWs, A32, TMP, VMF, VQF)
    a(f"""
    v_lshl_add_u32 v{TMP}, v{VQ}, 7, v{VM}           ; 128q + m
    v_sub_u32 v{TMP+1}, 512, v{TMP}
    v_cmp_gt_u32 vcc, 32, v1                         ; q<2 <=> lane<32
    v_mov_b32 v{TMP+2}, -1.0
    v_mov_b32 v{TMP+3}, -512
    v_cndmask_b32 v{TMP}, v{TMP+1}, v{TMP}, vcc
    v_cndmask_b32 v7, v{TMP+2}, 1.0, vcc             ; sigma
    v_mov_b32 v{TMP+4}, 512
    v_cndmask_b32 v{TMP+3}, v{TMP+3}, v{TMP+4}, vcc  ; step
    s_lshl_b32 s33, s28, 3
    s_add_u32 s33, s33, {k2.K2_E}
    v_lshl_add_u32 v{TMP}, v{TMP}, 5, s33            ; base
    v_mov_b32 v{TMP+5}, s33
    v_cmp_eq_u32 vcc, 32, v1
    v_add_u32 v{TMP+7}, v{TMP}, v{TMP+3}             ; addr e=1
    s_nop 0
    v_cndmask_b32 v{TMP+6}, v{TMP}, v{TMP+5}, vcc
    s_mov_b64 s[36:37], vcc
    s_waitcnt vmcnt(0)
    """)
    bbar(a,"p3d",8)
    stamp(a,21)
    a(f"ds_read_b64 {vr(AB,2)}, v{TMP+6}")
    for e in range(1,8):
        i,t=e>>1,e&1
        a(f"ds_read_b64 {vr(AB+2*(4*t+i),2)}, v{TMP+7}")
        if e<7: a(f"v_add_u32 v{TMP+7}, v{TMP+7}, v{TMP+3}")
    a(f"""
    v_cmp_eq_u32 vcc, 0, v1
    s_nop 1
    s_or_b64 s[38:39], vcc, s[36:37]
    v_cndmask_b32 v{TMP+8}, v7, 0, s[38:39]          ; sigma0
    s_waitcnt lgkmcnt(0)
    """)
    for t in range(2):
        for i in range(4):
            A,B=AB+2*(4*t+i),AB+2*(4*t+i)+1
            ar,ai,br,bi=TMP+10,TMP+11,TMP+12,TMP+13
            a(f"v_lshlrev_b32 v{ar}, 16, v{A}")
            a(f"v_and_b32 v{ai}, 0xffff0000, v{A}")
            a(f"v_lshlrev_b32 v{br}, 16, v{B}")
            a(f"v_and_b32 v{bi}, 0xffff0000, v{B}")
            sg=7
            if t==0 and i==0:
                a(f"v_cndmask_b32 v{ar}, v{ar}, v{ai}, s[36:37]")
                a(f"v_cndmask_b32 v{br}, v{br}, v{bi}, s[36:37]")
                sg=TMP+8
            a(f"v_fma_f32 v{TMP+14}, -v{sg}, v{bi}, v{ar}")
            a(f"v_fma_f32 v{TMP+15}, v{sg}, v{ai}, v{br}")
            a(f"v_cvt_pk_bf16_f32 v{P+4*t+i}, v{TMP+14}, v{TMP+15}")
    a("s_nop 1")
    for t in range(2):
        for part in range(2):
            a(f"v_mfma_f32_16x16x32_bf16 {vr(D1+8*t+4*part,4)}, {vr(P+4*t,4)}, {vr(R16+4*part,4)}, 0")
    a("s_nop 7")
    for t in range(2):
        twiddle(a, D1+8*t, D1+8*t+4, TWc+4*t, TWs+4*t, P+4*t, TMP)
    a("s_nop 1")
    for t in range(2):
        for tp in range(2):
            for part in range(2):
                d=D2+8*tp+4*part
                a(f"v_mfma_f32_16x16x32_bf16 {vr(d,4)}, {vr(P+4*t,4)}, {vr(A32+((tp*2+part)*2+t)*4,4)}, {'0' if t==0 else vr(d,4)}")
    a(f"""
    v_lshlrev_b32 v{TMP}, 5, v{VM}
    v_lshl_add_u32 v{TMP}, v{VQ}, 3, v{TMP}
    s_lshl_b32 s33, s30, 3
    s_lshl_b32 s34, s28, 1
    s_add_u32 s33, s33, s34
    s_lshl_b32 s33, s33, 5
    s_add_u32 s33, s33, s29
    s_lshl_b32 s33, s33, 11
    s_add_u32 s33, s33, 1024
    s_nop 3
    """)
    for part in range(2):
        for tp in range(2):
            d=D2+8*tp+4*part
            o=TMP+2+2*(part*2+tp)
            a(f"v_cvt_pk_bf16_f32 v{o}, v{d}, v{d+1}")
            a(f"v_cvt_pk_bf16_f32 v{o+1}, v{d+2}, v{d+3}")
            a(f"s_add_u32 s34, s33, {part*32*2048+tp*512}")
            a(f"buffer_store_dwordx2 {vr(o,2)}, v{TMP}, s[24:27], s34 offen{OUTSC}")
    if asm.STAMP:
        a("s_waitcnt vmcnt(0)"); stamp(a,23); stamp_dump(a,0 if asm.F12 else 1)
    a.sc_srd=None

def build_k23():
    asm.FUSED=True; asm.F12=False; asm.F23=True
    a=Asm()
    asm.SMAP={0:0,1:4,2:5,3:6,4:7,6:8,8:9,21:10,22:11,23:12}
    if asm.STAMP==3: asm.SMAP={0:0,2:1,3:2,4:3,6:4,8:5,21:6,23:7}
    k2.build_k2(a)
    phase3(a)
    a.label("k2_end")
    a("s_endpgm")
    asm.FUSED=False; asm.F23=False; asm.SMAP=None
    return a

def build_fused():
    asm.FUSED=True; asm.F12=True; asm.F23=True
    a=Asm()
    asm.SMAP={0:0,1:1,3:2,20:3}
    k1.build_k1(a)
    ph1_end(a)
    asm.SMAP={9:4,2:5,3:6,4:7,6:8,8:9,21:10,22:11,23:12}
    k2.build_k2(a)
    phase3(a)
    a.label("k1_end")
    a.label("k2_end")
    a("s_endpgm")
    return a
```

```python
import asm
from asm import *
from layout import *

K1_LDS = 133120

def srd(a, d, base, size):
    a(f"s_mov_b32 s{d}, s{base}")
    a(f"s_and_b32 s{d+1}, s{base+1}, 0xffff")
    a(f"s_mov_b32 s{d+2}, {size}")
    a(f"s_mov_b32 s{d+3}, 0x20000")

_fin=[0]
def fin(a, restore_exec=False):
    if asm.F12:
        if restore_exec: a("s_mov_b64 exec, -1")
        _fin[0]+=1
        a("s_cmp_eq_u32 s3, 0")
        a(f"s_cbranch_scc0 k1_fin{_fin[0]}")
        a("v_mov_b32 v253, 0")
        a("global_load_dword v252, v253, s[54:55] sc1")
        a.label(f"k1_fin{_fin[0]}")
        a("s_waitcnt vmcnt(0)")
        a("s_branch ph1_end")
    else: a("s_endpgm")

def k1_prologue(a):
    a("""
    s_cmp_ge_u32 s2, 256
    s_cbranch_scc1 k1_end
    s_load_dwordx4 s[4:7], s[0:1], 0
    s_load_dwordx2 s[8:9], s[0:1], 16
    s_load_dwordx2 s[10:11], s[0:1], 24
    s_load_dwordx4 s[12:15], s[0:1], 32
    s_load_dwordx2 s[16:17], s[0:1], 64
    """)
    if asm.F12:
        a("""
        s_load_dwordx4 s[52:55], s[0:1], 48
        """)
    a("""
    v_and_b32 v1, 63, v0
    v_lshrrev_b32 v2, 6, v0
    s_nop 0
    v_readfirstlane_b32 s3, v2
    """)
    if asm.F12:
        a("""
        s_or_b32 s57, s2, s3
        s_cmp_eq_u32 s57, 0
        s_cbranch_scc0 kf_nononce
        s_memrealtime s[56:57]
        s_waitcnt lgkmcnt(0)
        s_or_b32 s56, s56, 1
        v_mov_b32 v2, 0
        v_mov_b32 v3, s56
        s_mov_b64 exec, 1
        global_store_dword v2, v3, s[54:55] sc1
        s_mov_b64 exec, -1
        """)
        a.label("kf_nononce")
    stamp(a,0)
    a("""
    s_cmp_ge_u32 s2, 192
    s_cbranch_scc1 k1_B
    s_and_b32 s18, s2, 7
    s_lshr_b32 s19, s2, 3
    s_and_b32 s28, s18, 3
    s_lshl_b32 s28, s28, 2
    s_and_b32 s29, s19, 3
    s_add_u32 s28, s28, s29          ; s28 = rb
    s_lshr_b32 s29, s18, 2
    s_mul_i32 s29, s29, 6
    s_lshr_b32 s30, s19, 2
    s_add_u32 s29, s29, s30          ; s29 = cb
    s_cmp_ge_u32 s3, 4
    s_cbranch_scc0 k1_compute
    """)

def k1_loader(a):
    a.comment("---- loader waves 4..7 ----")
    a("""
    s_sub_u32 s30, s3, 4             ; lw
    v_lshrrev_b32 v2, 3, v1          ; l>>3
    v_lshrrev_b32 v3, 4, v1          ; l>>4
    v_and_b32 v4, 7, v1
    v_xor_b32 v4, v4, v3
    v_lshlrev_b32 v4, 4, v4
    v_lshl_add_u32 v4, v2, 10, v4    ; voffX0
    v_xor_b32 v5, 64, v4             ; voffX1
    v_and_b32 v6, 15, v1
    v_lshlrev_b32 v7, 2, v3
    v_xor_b32 v6, v6, v7
    v_lshlrev_b32 v6, 4, v6
    v_mul_u32_u24 v7, 3072, v3
    v_add_u32 v6, v6, v7             ; voffW
    s_lshl_b32 s31, s28, 17          ; rb*128*1024
    s_lshl_b32 s32, s30, 15          ; lw*32*1024
    s_add_u32 s31, s31, s32          ; sX0
    s_mul_i32 s32, s30, 16*3072
    s_lshl_b32 s33, s29, 8
    s_add_u32 s32, s32, s33          ; sW0
    s_lshl_b32 s33, s30, 12
    s_waitcnt lgkmcnt(0)
    """)
    stamp(a,4)
    srd(a,20,4,2097152); srd(a,24,6,1572864)
    import os
    ROT=int(os.environ.get("K1ROT","1"))
    if ROT:
        a("""
        s_lshr_b32 s35, s19, 2
        s_and_b32 s36, s19, 3
        s_lshl_b32 s36, s36, 1
        s_add_u32 s35, s35, s36
        """)
    else: a("s_mov_b32 s35, 0")
    def issue(c):
        slot=c&3
        a(f"s_add_u32 s36, s35, {c}")
        a("s_and_b32 s36, s36, 7")
        a("s_lshl_b32 s37, s36, 7")
        a("s_add_u32 s37, s37, s31")
        a(f"s_mul_i32 s38, s36, {64*3072}")
        a("s_add_u32 s38, s38, s32")
        for e in range(4):
            a(f"s_add_u32 m0, s33, {slot*32768+e*1024}")
            a(f"s_add_u32 s34, s37, {e*8192}")
            a(f"buffer_load_dwordx4 v{4+(e&1)}, s[20:23], s34 offen lds")
        for e in range(4):
            a(f"s_add_u32 m0, s33, {slot*32768+16384+e*1024}")
            a(f"s_add_u32 s34, s38, {4*e*3072}")
            a(f"buffer_load_dwordx4 v6, s[24:27], s34 offen lds")
    import os
    LA=int(os.environ.get("K1LA","2"))
    issued=-1
    for c in range(min(LA,4)):
        issue(c); issued=c
        if c==0: stamp(a,5)
    stamp(a,6)
    for c in range(8):
        n=8*(issued-c)
        a(f"s_waitcnt vmcnt({n})")
        a("s_barrier")
        if c in (0,3,7): stamp(a,{0:1,3:2,7:3}[c])
        while issued<min(7,c+LA,c+3):
            issued+=1; issue(issued)
    if not asm.F12: stamp_dump(a,0)
    fin(a)

def k1_compute(a):
    import os
    a.label("k1_compute")
    import os
    qsc=os.environ.get("K1QSC","sc1")
    a.sc_srd="s[20:23]" if (asm.F12 or qsc!="none") else None
    if qsc!="none" and not asm.F12:
        a.force_sc=True; a.sc_sfx=" "+qsc.replace("_"," ")
    XA,XB,WA,WB=2,6,10,12
    a("""
    s_lshr_b32 s30, s3, 1            ; wm
    s_and_b32 s31, s3, 1             ; wn
    v_and_b32 v14, 31, v1            ; r
    v_lshrrev_b32 v15, 5, v1         ; h
    v_lshrrev_b32 v16, 1, v14
    v_and_b32 v16, 7, v16            ; (r>>1)&7
    v_xor_b32 v16, v16, v15          ; h ^ c
    v_lshlrev_b32 v16, 4, v16
    v_lshl_add_u32 v16, v14, 7, v16  ; r*128 + slot*16
    s_lshl_b32 s32, s30, 13          ; wm*64*128
    v_add_u32 v2, s32, v16
    v_xor_b32 v3, 32, v2
    v_xor_b32 v4, 64, v2
    v_xor_b32 v5, 96, v2
    v_add_u32 v6, 0x10000, v2
    v_add_u32 v7, 0x10000, v3
    v_add_u32 v8, 0x10000, v4
    v_add_u32 v9, 0x10000, v5
    v_and_b32 v16, 15, v1
    v_lshrrev_b32 v16, 2, v16        ; r4
    v_lshl_add_u32 v17, v15, 3, v16  ; 8h + r4
    v_lshlrev_b32 v17, 8, v17        ; *256
    s_lshl_b32 s32, s31, 1
    v_xor_b32 v18, s32, v16          ; nt0 ^ r4
    v_lshl_add_u32 v17, v18, 6, v17
    v_lshrrev_b32 v18, 4, v1
    v_and_b32 v18, 1, v18
    v_lshl_add_u32 v17, v18, 5, v17  ; + cg*32
    v_and_b32 v18, 3, v1
    v_lshl_add_u32 v17, v18, 3, v17  ; + c4*8
    v_add_u32 v10, 16384, v17
    v_xor_b32 v11, 64, v10
    v_add_u32 v12, 0x10000, v10
    v_add_u32 v13, 0x10000, v11
    """)
    if os.environ.get("K1PF","0")=="1":
        a("s_cmp_eq_u32 s3, 0")
        a("s_cbranch_scc0 k1_nopf")
        code_prefetch(a,"k1_compute","k1_B",2,250,252,back=True)
        a.label("k1_nopf")
    for i in range(64): a(f"v_mov_b32 v{64+i}, 0")
    a("s_waitcnt lgkmcnt(0)")
    srd(a,20,16,WS_SIZE)
    a("""
    s_cmp_ge_u32 s29, 8
    s_cbranch_scc1 k1_vloop
    """)
    bufs=[(16,20,24,28),(32,36,40,44)]
    def reads(c,ks,buf):
        slot=c&3
        xa=(XA if slot<2 else XB)+ks; wa=(WA if slot<2 else WB)
        so=(slot&1)*32768
        X0,X1,W0,W1=buf
        a(f"ds_read_b128 {vr(X0,4)}, v{xa} offset:{so}")
        a(f"ds_read_b64_tr_b16 {vr(W0,2)}, v{wa} offset:{so+ks*4096}")
        a(f"ds_read_b64_tr_b16 {vr(W0+2,2)}, v{wa} offset:{so+ks*4096+1024}")
        a(f"ds_read_b128 {vr(X1,4)}, v{xa} offset:{so+4096}")
        a(f"ds_read_b64_tr_b16 {vr(W1,2)}, v{wa+1} offset:{so+ks*4096}")
        a(f"ds_read_b64_tr_b16 {vr(W1+2,2)}, v{wa+1} offset:{so+ks*4096+1024}")
    def loop(vtype):
        a("s_barrier")
        stamp(a,1)
        reads(0,0,bufs[0])
        for c in range(8):
            for ks in range(4):
                j=4*c+ks
                cur=bufs[j&1]; nxt=bufs[(j+1)&1]
                if ks<3:
                    reads(c,ks+1,nxt)
                    a("s_waitcnt lgkmcnt(6)")
                else:
                    a("s_waitcnt lgkmcnt(0)")
                    if c<7:
                        a("s_barrier")
                        reads(c+1,0,nxt)
                X0,X1,W0,W1=cur
                for ntl in range(2):
                    for rt in range(2):
                        acc=64+(ntl*2+rt)*16
                        W=(W0,W1)[ntl]; X=(X0,X1)[rt]
                        if not vtype: a(f"v_mfma_f32_32x32x16_bf16 {vr(acc,16)}, {vr(W,4)}, {vr(X,4)}, {vr(acc,16)}")
                        else:         a(f"v_mfma_f32_32x32x16_bf16 {vr(acc,16)}, {vr(X,4)}, {vr(W,4)}, {vr(acc,16)}")
            if c==3: stamp(a,2)
        stamp(a,3)
    loop(False)
    a("""
    s_and_b32 s33, s29, 3
    s_lshl_b32 s33, s33, 3
    s_lshl_b32 s34, s31, 2
    s_add_u32 s33, s33, s34          ; head0
    s_lshl_b32 s34, s28, 2
    s_lshl_b32 s35, s30, 1
    s_add_u32 s34, s34, s35          ; tile0
    s_cmp_ge_u32 s29, 4
    s_cbranch_scc1 k1_kepi
    """)
    a(f"""
    v_lshlrev_b32 v2, 9, v15
    v_lshl_add_u32 v2, v14, 4, v2    ; h*512 + r*16
    s_lshl_b32 s35, s33, 16
    s_lshl_b32 s36, s34, 10
    s_add_u32 s35, s35, s36
    s_add_u32 s35, s35, {OFF_Q}
    s_mov_b32 s37, {hex(f2u(QSCALE))}
    s_nop 7
    """)
    for ntl in range(2):
        for rt in range(2):
            acc=64+(ntl*2+rt)*16
            for i in range(16): a(f"v_mul_f32 v{acc+i}, s37, v{acc+i}")
            t=16+(ntl*2+rt)*8
            for i in range(8): a(f"v_cvt_pk_bf16_f32 v{t+i}, v{acc+2*i}, v{acc+2*i+1}")
            for hh in range(2):
                a(f"s_add_u32 s36, s35, {(2*ntl+hh)*65536+rt*1024}")
                a(f"buffer_store_dwordx4 {vr(t+4*hh,4)}, v2, s[20:23], s36 offen")
    if asm.STAMP and not asm.F12:
        stamp(a,5); a("s_waitcnt vmcnt(0)"); stamp(a,4); stamp_dump(a,0)
    fin(a)
    a.label("k1_kepi")
    a(f"""
    v_and_b32 v2, 0x13, v14
    v_and_b32 v3, 4, v14
    v_lshl_or_b32 v2, v3, 1, v2
    v_and_b32 v3, 8, v14
    v_lshrrev_b32 v3, 1, v3
    v_or_b32 v2, v2, v3              ; pi(r)
    v_lshlrev_b32 v2, 4, v2
    v_lshl_add_u32 v2, v15, 10, v2   ; h*1024 + pi(r)*16
    s_mul_i32 s35, s33, {KV_HEAD}
    s_mul_i32 s36, s34, {KV_TILE}
    s_add_u32 s35, s35, s36
    s_add_u32 s35, s35, {OFF_KV}
    s_nop 5
    """)
    for ntl in range(2):
        for rt in range(2):
            acc=64+(ntl*2+rt)*16
            t=16+(ntl*2+rt)*8
            for i in range(8): a(f"v_cvt_pk_bf16_f32 v{t+i}, v{acc+2*i}, v{acc+2*i+1}")
            for hh in range(2):
                a(f"s_add_u32 s36, s35, {(2*ntl+hh)*KV_HEAD+rt*KV_TILE}")
                a(f"buffer_store_dwordx4 {vr(t+4*hh,4)}, v2, s[20:23], s36 offen")
    for q in range(4):
        acc=64+q*16
        for hh in range(2):
            a(f"v_mul_f32 v{48+2*q+hh}, v{acc+8*hh}, v{acc+8*hh}")
        for i in range(1,8):
            for hh in range(2):
                a(f"v_fmac_f32 v{48+2*q+hh}, v{acc+8*hh+i}, v{acc+8*hh+i}")
    a("s_nop 1")
    for q in range(4): a(f"v_permlane32_swap_b32 v{48+2*q}, v{49+2*q}")
    a("s_nop 1")
    for q in range(4): a(f"v_add_f32 v{48+2*q}, v{48+2*q}, v{49+2*q}")
    for sh in ("row_shr:1","row_shr:2","row_shr:4","row_shr:8"):
        for q in range(4): a(f"v_max_f32_dpp v{48+2*q}, v{48+2*q}, v{48+2*q} {sh} row_mask:0xf bank_mask:0xf bound_ctrl:0")
    for q in range(4): a(f"v_max_f32_dpp v{48+2*q}, v{48+2*q}, v{48+2*q} row_bcast:15 row_mask:0xa bank_mask:0xf")
    a(f"""
    v_lshlrev_b32 v3, 8, v15
    s_lshl_b32 s35, s33, 8
    s_lshl_b32 s36, s34, 2
    s_add_u32 s35, s35, s36
    s_add_u32 s35, s35, {OFF_KN}
    s_mov_b32 exec_lo, 0x80000000
    s_mov_b32 exec_hi, 0x80000000
    """)
    for ntl in range(2):
        for rt in range(2):
            q=ntl*2+rt
            a(f"s_add_u32 s36, s35, {2*ntl*256+rt*4}")
            a(f"buffer_store_dword v{48+2*q}, v3, s[20:23], s36 offen")
    if asm.STAMP and not asm.F12:
        stamp(a,5); a("s_waitcnt vmcnt(0)"); stamp(a,4); stamp_dump(a,0)
    fin(a,True)
    a.label("k1_vloop")
    loop(True)
    a(f"""
    s_and_b32 s33, s29, 3
    s_lshl_b32 s33, s33, 3
    s_lshl_b32 s34, s31, 2
    s_add_u32 s33, s33, s34          ; head0
    s_lshl_b32 s34, s28, 2
    s_lshl_b32 s35, s30, 1
    s_add_u32 s34, s34, s35          ; tile0
    v_lshrrev_b32 v2, 4, v14         ; n>>4
    s_mov_b32 s36, {KV_HEAD}
    v_mul_lo_u32 v2, v2, s36
    v_lshl_add_u32 v2, v15, 10, v2
    v_and_b32 v3, 15, v14
    v_lshl_add_u32 v2, v3, 4, v2
    s_mul_i32 s35, s33, {KV_HEAD}
    s_mul_i32 s36, s34, {KV_TILE}
    s_add_u32 s35, s35, s36
    s_add_u32 s35, s35, {OFF_KV+512}
    """)
    for ntl in range(2):
        for rt in range(2):
            acc=64+(ntl*2+rt)*16
            t=16+(ntl*2+rt)*8
            for i in range(8): a(f"v_cvt_pk_bf16_f32 v{t+i}, v{acc+2*i}, v{acc+2*i+1}")
            for u in range(2):
                a(f"s_add_u32 s36, s35, {2*ntl*KV_HEAD+rt*KV_TILE+u*256}")
                a(f"buffer_store_dwordx4 {vr(t+4*u,4)}, v2, s[20:23], s36 offen")
    if asm.STAMP and not asm.F12:
        stamp(a,5); a("s_waitcnt vmcnt(0)"); stamp(a,4); stamp_dump(a,0)
    fin(a,True)

def gen_consts(a, inv, scale, R16, TWc, TWs, A32, tmp, vm, vq):
    T=tmp
    a(f"v_mul_f32 v{T}, {hex(f2u(1/16.))}, v{vm}")
    for i in range(4):
        a(f"v_add_f32 v{T+1+i}, {float(i)}, v{vq}" if i else f"v_mov_b32 v{T+1}, v{vq}")
    for i in range(4): a(f"v_mul_f32 v{T+1+i}, v{T+1+i}, v{T}")
    for i in range(4):
        a(f"v_cos_f32 v{T+5+i}, v{T+1+i}")
        a(f"v_sin_f32 v{T+9+i}, v{T+1+i}")
    if scale!=1.0:
        a(f"s_mov_b32 s40, {hex(f2u(scale))}")
        for i in range(8): a(f"v_mul_f32 v{T+5+i}, s40, v{T+5+i}")
    else: a("s_nop 0")
    for i in range(4):
        c,s=T+5+i,T+9+i
        if not inv:
            a(f"v_cvt_pk_bf16_f32 v{R16+i}, v{c}, v{s}")
            a(f"v_cvt_pk_bf16_f32 v{R16+4+i}, -v{s}, v{c}")
        else:
            a(f"v_cvt_pk_bf16_f32 v{R16+i}, v{c}, -v{s}")
            a(f"v_cvt_pk_bf16_f32 v{R16+4+i}, v{s}, v{c}")
    a(f"v_mul_f32 v{T}, {hex(f2u(1/512.))}, v{vm}")
    for t in range(2):
        for i in range(4):
            k=16*t+i
            if k==0: a(f"v_mov_b32 v{T+1}, v{vq}")
            else:
                a(f"v_add_f32 v{T+1+4*t+i}, {hex(f2u(float(k)))}, v{vq}")
    for e in range(8): a(f"v_mul_f32 v{T+1+e}, v{T+1+e}, v{T}")
    for e in range(8):
        a(f"v_cos_f32 v{TWc+e}, v{T+1+e}")
        a(f"v_sin_f32 v{TWs+e}, {'-' if inv else ''}v{T+1+e}")
    gen_a32(a, inv, A32, tmp, vm, vq)

def gen_a32(a, inv, A32, tmp, vm, vq):
    T=tmp
    for t in range(2):
        for i in range(4):
            k=16*t+i
            if k==0: a(f"v_mov_b32 v{T+1}, v{vq}")
            else: a(f"v_add_f32 v{T+1+4*t+i}, {hex(f2u(float(k)))}, v{vq}")
    a(f"v_mul_f32 v{T+9}, {hex(f2u(1/32.))}, v{vm}")
    a(f"v_add_f32 v{T+10}, 0.5, v{T+9}")
    for tp in range(2):
        for e in range(8): a(f"v_mul_f32 v{T+11+e}, v{T+1+e}, v{T+9+tp}")
        for e in range(8):
            a(f"v_cos_f32 v{T+19+e}, v{T+11+e}")
            a(f"v_sin_f32 v{T+11+e}, v{T+11+e}")
        a("s_nop 0")
        for t in range(2):
            for i in range(4):
                e=4*t+i; c,s=T+19+e,T+11+e
                re=A32+((tp*2+0)*2+t)*4+i; im=A32+((tp*2+1)*2+t)*4+i
                if not inv:
                    a(f"v_cvt_pk_bf16_f32 v{re}, v{c}, v{s}")
                    a(f"v_cvt_pk_bf16_f32 v{im}, -v{s}, v{c}")
                else:
                    a(f"v_cvt_pk_bf16_f32 v{re}, v{c}, -v{s}")
                    a(f"v_cvt_pk_bf16_f32 v{im}, v{s}, v{c}")

def twiddle(a, re, im, c, s, out, tmp):
    T,U=tmp,tmp+4
    for p in (0,2):
        a(f"v_pk_mul_f32 {vr(T+p,2)}, {vr(re+p,2)}, {vr(c+p,2)}")
        a(f"v_pk_mul_f32 {vr(U+p,2)}, {vr(im+p,2)}, {vr(c+p,2)}")
    for p in (0,2):
        a(f"v_pk_fma_f32 {vr(T+p,2)}, {vr(im+p,2)}, {vr(s+p,2)}, {vr(T+p,2)}")
        a(f"v_pk_fma_f32 {vr(U+p,2)}, {vr(re+p,2)}, {vr(s+p,2)}, {vr(U+p,2)} neg_lo:[1,0,0] neg_hi:[1,0,0]")
    for i in range(4): a(f"v_cvt_pk_bf16_f32 v{out+i}, v{T+i}, v{U+i}")

XR_STRIDE=1056
B1_MB=33792
B1_WTL=66560
B1_MBW=100352

def k1_B(a):
    a.label("k1_B")
    import os
    a.sc_srd="s[24:27]" if (asm.F12 or os.environ.get("K1BSC","1")=="1") else None
    a.force_sc=True; a.sc_sfx=" sc1"
    VM,VQ,VMF,VQF=2,3,4,5
    R16,TWc,TWs,A32=8,16,24,32
    PIN=64
    D1=80
    D2=112
    TMP=144
    WOL,WOH=192,196
    ABL=200
    a(f"""
    s_sub_u32 s18, s2, 192           ; b
    s_lshr_b32 s19, s18, 1           ; n2
    s_and_b32 s28, s18, 1            ; hf
    v_and_b32 v{VM}, 15, v1
    v_lshrrev_b32 v{VQ}, 4, v1
    v_lshlrev_b32 v6, 4, v1          ; lane*16
    s_waitcnt lgkmcnt(0)
    """)
    srd(a,20,10,2097152)
    srd(a,24,16,WS_SIZE)
    srd(a,44,8,524288)
    import os
    def b_loads():
        a(f"""
        s_lshl_b32 s29, s28, 5
        s_lshl_b32 s30, s3, 2
        s_add_u32 s29, s29, s30
        s_lshl_b32 s29, s29, 5
        s_add_u32 s29, s29, s19          ; s0
        s_lshl_b32 s29, s29, 10
        s_mul_i32 s30, s3, {4*XR_STRIDE}
        """)
        for e in range(4):
            a(f"s_add_u32 m0, s30, {e*XR_STRIDE}")
            a(f"s_add_u32 s31, s29, {e*32*1024}")
            a(f"buffer_load_dwordx4 v6, s[20:23], s31 offen lds")
        a(f"""
        s_lshl_b32 s32, s18, 3
        s_add_u32 s32, s32, s3           ; idx
        s_lshr_b32 s33, s32, 5
        s_lshl_b32 s33, s33, 6
        s_and_b32 s34, s32, 31
        s_lshl_b32 s34, s34, 14
        s_add_u32 s33, s33, s34
        v_and_b32 v7, 31, v1
        v_lshlrev_b32 v7, 1, v7
        v_lshrrev_b32 v{TMP}, 5, v1
        v_lshl_add_u32 v7, v{TMP}, 12, v7    ; h*4 rows*1024 + n*2
        """)
        for j8 in range(8):
            d=8*(j8>>2)+(j8&3)
            a(f"s_add_u32 s34, s33, {d*1024}")
            dst=(WOL if j8%2==0 else WOH)+j8//2
            a(f"buffer_load_ushort v{dst}, v7, s[44:47], s34 offen")
        a(f"""
        s_and_b32 s35, s18, 7
        s_lshl_b32 s35, s35, 3
        s_add_u32 s35, s35, s3
        s_lshr_b32 s36, s18, 3
        s_and_b32 s37, s36, 3            ; q
        s_lshr_b32 s36, s36, 2           ; tp
        s_lshl_b32 s36, s36, 2
        s_add_u32 s36, s36, s37          ; 4tp+q
        s_lshl_b32 s36, s36, 8           ; *4*64
        s_add_u32 s35, s35, s36          ; g(i=0)
        s_mul_i32 s35, s35, 514
        v_and_b32 v{TMP}, 31, v1
        v_lshlrev_b32 v{TMP}, 4, v{TMP}
        v_add_u32 v{TMP}, s35, v{TMP}
        v_cmp_gt_u32 vcc, 32, v1
        v_mov_b32 v{TMP+2}, s14
        v_mov_b32 v{TMP+3}, s15
        v_mov_b32 v{TMP+4}, s12
        v_mov_b32 v{TMP+5}, s13
        v_cndmask_b32 v{TMP+2}, v{TMP+2}, v{TMP+4}, vcc
        v_cndmask_b32 v{TMP+3}, v{TMP+3}, v{TMP+5}, vcc
        v_add_co_u32 v{TMP+2}, vcc, v{TMP+2}, v{TMP}
        s_mul_i32 s36, s3, {4*XR_STRIDE}
        s_nop 0
        v_addc_co_u32 v{TMP+3}, vcc, 0, v{TMP+3}, vcc
        """)
        for i in range(4):
            a(f"s_add_u32 m0, s36, {B1_WTL+i*XR_STRIDE}")
            a("s_nop 0")
            a(f"global_load_lds_dwordx4 {vr(TMP+2,2)}, off")
            if i<3:
                a(f"v_add_co_u32 v{TMP+2}, vcc, {64*514}, v{TMP+2}")
                a("s_nop 1")
                a(f"v_addc_co_u32 v{TMP+3}, vcc, 0, v{TMP+3}, vcc")
        a(f"""
        s_sub_u32 s35, s18, 32
        s_cmp_lt_u32 s35, 32
        s_cselect_b32 s39, 1, 0
        s_cmp_eq_u32 s3, 7
        s_cselect_b32 s39, s39, 0
        s_cmp_eq_u32 s39, 1
        s_cbranch_scc0 k1_B_noab
        s_lshl_b32 s36, s35, 6
        v_add_u32 v{TMP}, s36, v1        ; g
        v_sub_u32 v{TMP+1}, 2048, v{TMP}
        v_and_b32 v{TMP+1}, 2047, v{TMP+1}   ; -g
        v_mul_u32_u24 v{TMP}, 514, v{TMP}
        v_mul_u32_u24 v{TMP+1}, 514, v{TMP+1}
        """)
        srd(a,48,12,2048*257*2); srd(a,40,14,2048*257*2)
        for k,(arr,val,off) in enumerate([(48,TMP,0),(40,TMP,0),(48,TMP+1,0),(40,TMP+1,0),(48,TMP,512),(40,TMP,512),(48,TMP+1,512),(40,TMP+1,512)]):
            a(f"buffer_load_ushort v{ABL+k}, v{val}, s[{arr}:{arr+3}], 0 offen offset:{off}")
        a.label("k1_B_noab")
    def b_consts():
        a(f"""
        v_cvt_f32_u32 v{VMF}, v{VM}
        v_lshlrev_b32 v{VQF}, 2, v{VQ}
        v_cvt_f32_u32 v{VQF}, v{VQF}
        """)
        gen_consts(a, False, 1.0, R16, TWc, TWs, A32, TMP, VMF, VQF)
    if os.environ.get("K1BORD","1")=="1":
        b_consts(); b_loads()
    else:
        b_loads(); b_consts()
    if os.environ.get("K1PF","0")=="1" and getattr(asm,"NEXT_KERNEL",None):
        a("s_cmp_eq_u32 s3, 6")
        a("s_cbranch_scc0 k1_nopf2")
        code_prefetch(a,asm.NEXT_KERNEL,"k2_end",2,250,252)
        a.label("k1_nopf2")
    a(f"""
    s_cmp_lt_u32 s18, 2
    s_cbranch_scc0 k1_B_not64
    s_lshl_b32 s36, s18, 3
    s_add_u32 s36, s36, s3           ; unit
    s_lshr_b32 s37, s36, 2           ; w
    s_and_b32 s38, s36, 3            ; u
    s_lshl_b32 s37, s37, 4
    s_lshl_b32 s38, s38, 4
    v_add_u32 v{TMP}, s37, v{VM}
    v_cvt_f32_u32 v{TMP}, v{TMP}
    v_mul_f32 v{TMP}, {hex(f2u(1/64.))}, v{TMP}
    v_cvt_f32_u32 v{TMP+1}, s38
    v_add_f32 v{TMP+1}, v{TMP+1}, v{VQF}
    v_add_f32 v{TMP+2}, 1.0, v{TMP+1}
    v_add_f32 v{TMP+3}, 2.0, v{TMP+1}
    v_add_f32 v{TMP+4}, 1.0, v{TMP+3}
    """)
    for i in range(4): a(f"v_mul_f32 v{TMP+1+i}, v{TMP+1+i}, v{TMP}")
    for i in range(4):
        a(f"v_cos_f32 v{TMP+5+i}, v{TMP+1+i}")
        a(f"v_sin_f32 v{TMP+9+i}, v{TMP+1+i}")
    a("s_nop 0")
    for i in range(4):
        a(f"v_cvt_pk_bf16_f32 v{TMP+16+i}, v{TMP+5+i}, v{TMP+9+i}")
        a(f"v_cvt_pk_bf16_f32 v{TMP+20+i}, -v{TMP+9+i}, v{TMP+5+i}")
    a(f"""
    s_lshl_b32 s36, s36, 11
    s_add_u32 s36, s36, {OFF_T64}
    buffer_store_dwordx4 {vr(TMP+16,4)}, v6, s[24:27], s36 offen
    buffer_store_dwordx4 {vr(TMP+20,4)}, v6, s[24:27], s36 offen offset:1024
    """)
    a.label("k1_B_not64")
    a(f"""
    s_cmp_eq_u32 s18, 2
    s_cbranch_scc0 k1_B_notw
    s_cmp_lt_u32 s3, 4
    s_cbranch_scc0 k1_B_a32
    s_lshl_b32 s37, s3, 4
    v_add_u32 v{TMP}, s37, v{VM}
    v_cvt_f32_u32 v{TMP}, v{TMP}
    v_mul_f32 v{TMP}, {hex(f2u(1/2048.))}, v{TMP}
    """)
    for t in range(2):
        for i in range(4):
            k=16*t+i
            if k==0: a(f"v_mov_b32 v{TMP+1}, v{VQF}")
            else: a(f"v_add_f32 v{TMP+1+4*t+i}, {hex(f2u(float(k)))}, v{VQF}")
    for e in range(8): a(f"v_mul_f32 v{TMP+1+e}, v{TMP+1+e}, v{TMP}")
    for e in range(8):
        a(f"v_cos_f32 v{TMP+16+e}, v{TMP+1+e}")
        a(f"v_sin_f32 v{TMP+24+e}, v{TMP+1+e}")
    a(f"""
    s_lshl_b32 s36, s3, 12
    s_add_u32 s36, s36, {OFF_TW}
    buffer_store_dwordx4 {vr(TMP+16,4)}, v6, s[24:27], s36 offen
    buffer_store_dwordx4 {vr(TMP+20,4)}, v6, s[24:27], s36 offen offset:1024
    buffer_store_dwordx4 {vr(TMP+24,4)}, v6, s[24:27], s36 offen offset:2048
    buffer_store_dwordx4 {vr(TMP+28,4)}, v6, s[24:27], s36 offen offset:3072
    s_branch k1_B_notw
    """)
    a.label("k1_B_a32")
    a("""
    s_cmp_eq_u32 s3, 4
    s_cbranch_scc0 k1_B_notw
    """)
    for blk in range(8):
        a(f"s_mov_b32 s36, {OFF_A32+blk*1024}")
        a(f"buffer_store_dwordx4 {vr(A32+4*blk,4)}, v6, s[24:27], s36 offen")
    a.label("k1_B_notw")
    a(f"""
    v_bfe_u32 v{TMP}, v1, 2, 2       ; r4
    v_and_b32 v{TMP+1}, 1, v{TMP}
    v_mul_u32_u24 v{TMP+1}, {XR_STRIDE}, v{TMP+1}
    v_lshrrev_b32 v{TMP+2}, 1, v{TMP}
    v_lshl_add_u32 v{TMP+2}, v{VQ}, 2, v{TMP+2}    ; 4q + (r4>>1)
    v_lshl_add_u32 v{TMP+1}, v{TMP+2}, 6, v{TMP+1}
    v_and_b32 v{TMP+2}, 3, v1
    v_lshl_add_u32 v{TMP+1}, v{TMP+2}, 3, v{TMP+1}
    s_mul_i32 s30, s3, {4*XR_STRIDE}
    v_add_u32 v7, s30, v{TMP+1}
    """)
    stamp(a,1)
    a("s_waitcnt vmcnt(0)")
    stamp(a,2)
    for pp in range(2):
        for t in range(2):
            a(f"ds_read_b64_tr_b16 {vr(PIN+8*pp+4*t,2)}, v7 offset:{pp*2*XR_STRIDE+t*32}")
            a(f"ds_read_b64_tr_b16 {vr(PIN+8*pp+4*t+2,2)}, v7 offset:{pp*2*XR_STRIDE+t*32+128}")
    for j in range(4): a(f"v_lshl_or_b32 v{WOL+j}, v{WOH+j}, 16, v{WOL+j}")
    a(f"""
    s_lshl_b32 s32, s32, 10
    s_add_u32 s32, s32, {OFF_WOF}
    buffer_store_dwordx4 {vr(WOL,4)}, v6, s[24:27], s32 offen
    """)
    a(f"""
    s_cmp_eq_u32 s39, 1
    s_cbranch_scc0 k1_B_noab2
    """)
    for k in range(8): a(f"v_lshlrev_b32 v{ABL+k}, 16, v{ABL+k}")
    a(f"""
    v_add_f32 v{TMP}, v{ABL}, v{ABL+2}        ; 2*Wh0.re
    v_sub_f32 v{TMP+1}, v{ABL+1}, v{ABL+3}    ; 2*Wh0.im
    v_add_f32 v{TMP+2}, v{ABL+4}, v{ABL+6}    ; 2*Wh256.re
    v_sub_f32 v{TMP+3}, v{ABL+5}, v{ABL+7}    ; 2*Wh256.im
    v_add_f32 v{TMP+4}, v{TMP}, v{TMP+2}
    v_add_f32 v{TMP+5}, v{TMP+1}, v{TMP+3}
    v_sub_f32 v{TMP+6}, v{TMP}, v{TMP+2}
    v_sub_f32 v{TMP+7}, v{TMP+1}, v{TMP+3}
    v_mul_f32 v{TMP+4}, 0.25, v{TMP+4}
    v_mul_f32 v{TMP+5}, 0.25, v{TMP+5}
    v_mul_f32 v{TMP+6}, 0.25, v{TMP+6}
    v_mul_f32 v{TMP+7}, 0.25, v{TMP+7}
    v_cvt_pk_bf16_f32 v{TMP+4}, v{TMP+4}, v{TMP+5}
    v_cvt_pk_bf16_f32 v{TMP+5}, v{TMP+6}, v{TMP+7}
    s_lshr_b32 s36, s35, 4
    s_lshl_b32 s36, s36, 2
    s_and_b32 s37, s35, 3
    s_add_u32 s36, s36, s37          ; e
    s_and_b32 s38, s36, 1
    s_lshl_b32 s38, s38, 3           ; (e&1)*8
    s_lshr_b32 s36, s36, 1
    s_lshl_b32 s36, s36, 10          ; ep*1024
    s_add_u32 s36, s36, s38
    s_lshr_b32 s37, s35, 2
    s_and_b32 s37, s37, 3
    s_lshl_b32 s37, s37, 8           ; q*16*16
    s_add_u32 s36, s36, s37
    s_add_u32 s36, s36, {OFF_AB}
    v_lshlrev_b32 v{TMP+8}, 12, v{VQ}
    v_lshl_add_u32 v{TMP+8}, v{VM}, 4, v{TMP+8}
    buffer_store_dwordx2 {vr(TMP+4,2)}, v{TMP+8}, s[24:27], s36 offen
    """)
    a.label("k1_B_noab2")
    a("s_waitcnt lgkmcnt(0)")
    for pp in range(2):
        for t in range(2):
            for part in range(2):
                a(f"v_mfma_f32_16x16x32_bf16 {vr(D1+16*pp+8*t+4*part,4)}, {vr(PIN+8*pp+4*t,4)}, {vr(R16+4*part,4)}, 0")
    a("s_nop 4")
    for pp in range(2):
        for t in range(2):
            twiddle(a, D1+16*pp+8*t, D1+16*pp+8*t+4, TWc+4*t, TWs+4*t, PIN+8*pp+4*t, TMP)
    a("s_nop 1")
    for pp in range(2):
        for tp in range(2):
            for part in range(2):
                d=D2+16*pp+8*tp+4*part
                for t in range(2):
                    A=A32+((tp*2+part)*2+t)*4
                    a(f"v_mfma_f32_16x16x32_bf16 {vr(d,4)}, {vr(A,4)}, {vr(PIN+8*pp+4*t,4)}, {'0' if t==0 else vr(d,4)}")
    a(f"""
    v_lshl_add_u32 v{TMP}, v{VQ}, 6, v{VM}         ; m + 64q
    s_mul_i32 s30, s3, {4*XR_STRIDE}
    v_lshl_add_u32 v{TMP+1}, v{TMP}, 3, s30
    v_sub_u32 v{TMP+2}, {256-48}, v{TMP}            ; 256-48-f0
    v_lshl_add_u32 v{TMP+2}, v{TMP+2}, 3, s30
    v_add_u32 v{TMP+3}, 384, v{TMP+2}               ; i=0 address
    v_cmp_eq_u32 vcc, 0, v1
    v_mov_b32 v{TMP+4}, s30
    s_nop 0
    v_cndmask_b32 v{TMP+3}, v{TMP+3}, v{TMP+4}, vcc ; lane0 -> g=0 (Z[256])
    s_nop 1
    """)
    for pp in range(2):
        for i in range(4):
            a(f"ds_write2_b32 v{TMP+1}, v{D2+16*pp+8+i}, v{D2+16*pp+12+i} offset0:{(pp*2048+i*128)//4 if False else i*32} offset1:{i*32+1}" if pp==0 else
              f"ds_write2_b32 v{TMP+5}, v{D2+16*pp+8+i}, v{D2+16*pp+12+i} offset0:{i*32} offset1:{i*32+1}")
        if pp==0: a(f"v_add_u32 v{TMP+5}, 2048, v{TMP+1}")
    a("s_waitcnt lgkmcnt(0)")
    PR=D1
    for pp in range(2):
        a(f"ds_read_b64 {vr(PR+8*pp,2)}, v{TMP+3} offset:{pp*2048}")
        for i in range(1,4):
            a(f"ds_read_b64 {vr(PR+8*pp+2*i,2)}, v{TMP+2} offset:{pp*2048+(3-i)*128}")
    a(f"""
    v_lshrrev_b32 v{TMP+6}, 1, v{VM}               ; (f>>1)&7 = m>>1
    v_xor_b32 v{TMP+6}, s3, v{TMP+6}               ; wave ^ (m>>1)
    v_lshlrev_b32 v{TMP+6}, 4, v{TMP+6}
    v_lshl_add_u32 v{TMP+6}, v{TMP}, 7, v{TMP+6}
    v_add_u32 v{TMP+6}, {B1_MB}, v{TMP+6}
    s_waitcnt lgkmcnt(0)
    """)
    O=TMP+8
    for pp in range(2):
        for i in range(4):
            zr,zi=D2+16*pp+i, D2+16*pp+4+i
            pr,pi=PR+8*pp+2*i, PR+8*pp+2*i+1
            a(f"v_add_f32 v{O}, v{zr}, v{pr}")
            a(f"v_sub_f32 v{O+1}, v{zi}, v{pi}")
            a(f"v_add_f32 v{O+2}, v{zi}, v{pi}")
            a(f"v_sub_f32 v{O+3}, v{pr}, v{zr}")
            if i==0:
                a(f"v_add_f32 v{O+4}, v{zr}, v{zr}")
                a(f"v_add_f32 v{O+5}, v{pr}, v{pr}")
                a(f"v_add_f32 v{O+6}, v{zi}, v{zi}")
                a(f"v_add_f32 v{O+7}, v{pi}, v{pi}")
                for k in range(4): a(f"v_cndmask_b32 v{O+k}, v{O+k}, v{O+4+k}, vcc")
            o2=O+8+2*((pp*4+i)%4)
            a(f"v_cvt_pk_bf16_f32 v{o2}, v{O}, v{O+1}")
            a(f"v_cvt_pk_bf16_f32 v{o2+1}, v{O+2}, v{O+3}")
            a(f"ds_write_b64 v{TMP+6}, {vr(o2,2)} offset:{i*2048+pp*8}")
    a(f"""
    v_bfe_u32 v{TMP}, v1, 2, 2                     ; r4
    v_lshrrev_b32 v{TMP+1}, 1, v{TMP}
    v_mul_u32_u24 v{TMP+1}, {XR_STRIDE}, v{TMP+1}
    v_and_b32 v{TMP+2}, 1, v{TMP}
    v_lshl_add_u32 v{TMP+1}, v{TMP+2}, 9, v{TMP+1}
    v_lshl_add_u32 v{TMP+1}, v{VQ}, 5, v{TMP+1}
    v_and_b32 v{TMP+2}, 3, v1
    v_lshl_add_u32 v{TMP+1}, v{TMP+2}, 3, v{TMP+1} ; + c4*8
    s_mul_i32 s30, s3, {4*XR_STRIDE}
    s_add_u32 s30, s30, {B1_WTL}
    v_add_u32 v{TMP+1}, s30, v{TMP+1}
    """)
    for jj in range(4):
        a(f"ds_read_b64_tr_b16 {vr(D1+4*jj,2)}, v{TMP+1} offset:{jj*128}")
        a(f"ds_read_b64_tr_b16 {vr(D1+4*jj+2,2)}, v{TMP+1} offset:{jj*128+2*XR_STRIDE}")
    a(f"""
    v_and_b32 v{TMP+2}, 7, v1
    v_xor_b32 v{TMP+2}, s3, v{TMP+2}
    v_lshlrev_b32 v{TMP+2}, 4, v{TMP+2}
    v_lshl_add_u32 v{TMP+2}, v1, 7, v{TMP+2}
    v_add_u32 v{TMP+2}, {B1_MBW}, v{TMP+2}
    """)
    for jj in range(4):
        a(f"s_waitcnt lgkmcnt({6-2*jj})")
        a(f"ds_write_b128 v{TMP+2}, {vr(D1+4*jj,4)} offset:{jj*8192}")
    a("""
    s_waitcnt lgkmcnt(0)
    s_barrier
    """)
    a(f"""
    v_lshrrev_b32 v{TMP}, 3, v1
    v_and_b32 v{TMP+1}, 7, v1
    s_lshl_b32 s30, s3, 5
    v_add_u32 v{TMP+2}, s30, v{TMP}                ; f
    v_xor_b32 v{TMP+3}, v{TMP}, v{TMP+1}
    v_lshlrev_b32 v{TMP+3}, 4, v{TMP+3}
    v_lshl_add_u32 v{TMP+3}, v{TMP+2}, 7, v{TMP+3}
    v_add_u32 v{TMP+3}, {B1_MBW}, v{TMP+3}
    v_lshlrev_b32 v{TMP+5}, 13, v{TMP+2}
    v_lshl_add_u32 v{TMP+5}, v{TMP+1}, 4, v{TMP+5} ; f*8192 + c8*16
    s_and_b32 s31, s18, 7
    s_lshr_b32 s32, s31, 1
    s_lshl_b32 s32, s32, 11
    s_and_b32 s31, s31, 1
    s_lshl_b32 s31, s31, 7
    s_add_u32 s32, s32, s31
    s_lshr_b32 s31, s18, 5
    s_lshl_b32 s31, s31, 10
    s_add_u32 s32, s32, s31
    s_lshr_b32 s31, s18, 3
    s_and_b32 s31, s31, 3
    s_lshl_b32 s31, s31, 8
    s_add_u32 s32, s32, s31
    s_add_u32 s32, s32, {OFF_WT}
    """)
    for jj in range(4):
        a(f"ds_read_b128 {vr(D1+4*jj,4)}, v{TMP+3} offset:{jj*1024}")
    for jj in range(4):
        a(f"s_waitcnt lgkmcnt({3-jj})")
        a(f"s_add_u32 s31, s32, {jj*8*8192}")
        a(f"buffer_store_dwordx4 {vr(D1+4*jj,4)}, v{TMP+5}, s[24:27], s31 offen")
    a(f"""
    v_lshrrev_b32 v{TMP}, 3, v1                    ; fl
    v_and_b32 v{TMP+1}, 7, v1                      ; c8
    s_lshl_b32 s30, s3, 5
    v_add_u32 v{TMP+2}, s30, v{TMP}                ; f (jj=0)
    v_lshrrev_b32 v{TMP+3}, 1, v{TMP}
    v_xor_b32 v{TMP+3}, v{TMP+3}, v{TMP+1}
    v_lshlrev_b32 v{TMP+3}, 4, v{TMP+3}
    v_lshl_add_u32 v{TMP+3}, v{TMP+2}, 7, v{TMP+3}
    v_add_u32 v{TMP+3}, {B1_MB}, v{TMP+3}
    v_xor_b32 v{TMP+4}, 64, v{TMP+3}
    v_lshlrev_b32 v{TMP+5}, 13, v{TMP+2}
    v_lshl_add_u32 v{TMP+5}, v{TMP+1}, 4, v{TMP+5} ; f*8192 + c8*16
    s_lshl_b32 s31, s19, 8
    s_lshl_b32 s32, s28, 7
    s_add_u32 s31, s31, s32
    s_add_u32 s31, s31, {OFF_Z}
    """)
    for jj in range(4):
        a(f"ds_read_b128 {vr(D2+4*jj,4)}, v{TMP+3+(jj&1)} offset:{jj*1024}")
    for jj in range(4):
        a(f"s_waitcnt lgkmcnt({3-jj})")
        a(f"s_add_u32 s32, s31, {jj*8*8192}")
        a(f"buffer_store_dwordx4 {vr(D2+4*jj,4)}, v{TMP+5}, s[24:27], s32 offen")
    import os
    if os.environ.get("K1WB","0")=="1" and not asm.F12:
        a("""
        s_waitcnt vmcnt(0)
        s_barrier
        s_cmp_eq_u32 s3, 0
        s_cbranch_scc0 k1_nowb
        buffer_wbl2 sc1
        """)
        a.label("k1_nowb")
    if asm.STAMP and not asm.F12:
        stamp(a,3); a("s_waitcnt vmcnt(0)"); stamp(a,4); stamp_dump(a,0)
    fin(a)

def build_k1(a=None):
    own = a is None
    if own: a=Asm()
    k1_prologue(a)
    k1_loader(a)
    k1_compute(a)
    k1_B(a)
    a.sc_srd=None
    if own:
        a.label("k1_end")
        a("s_endpgm")
    return a
```

```python
import asm
from asm import *
from layout import *
from k1 import srd, twiddle
import os
VAR=set(os.environ.get("VAR","").split(","))
def opt(name,default):
    for v in VAR:
        if v.startswith(name+"="): return int(v.split("=")[1])
    return default
K2_COL=131072
K2_E=K2_COL+8192
K2_LDS=163840
K2_CNT=163840-64
THRESH2=4096.0/1.03
NB=opt("NB",30)
NA=64-NB
AUP=opt("AUP",1)
ARRA=opt("ARRA",1)
ST1R=opt("ST1R",4)
DRIP=opt("DRIP",1)
DWAIT=opt("DWAIT",5 if ST1R==6 else 3)
ARRIT=opt("ARRIT",2)
TABIT=opt("TABIT",2)
B2IT=opt("B2IT",4)
PUBIT=opt("PUBIT",6)
XB=opt("XB",13)

HB=opt("HB",PUBIT+1); HA=opt("HA",9)
XA=opt("XA",11)
assert (XA-HA)%2==0 and (NA//2-XA)%2==0 and XA>HA and NA//2>XA
assert (XB-HB)%2==0 and XB>HB and (NB//2-XB)%2==0 and NB//2>XB and (NA//2-HA)%2==0, (HB,XB,NB,HA)
VK,VV,VIDX=2,3,4
Q=[8,12]; S=[16,32]; O=[48,64]
F=[(80,84,88),(92,96,100)]
TMP=104
T64,A32,TW,WT,BUF,D1,P=112,144,176,192,200,232,248
X2=200
CI=[112,128]
VM,VQd=108,109
WOR=144

ALIGN="noalign" not in VAR
def expo(a,r,wide=False): a(f"v_exp_f32{'_e64' if wide else ''} v{r}, v{r}")

def unit(a,tau,qt,fb,extra=()):
    extra=list(extra)
    def ex():
        if extra: extra.pop(0)()
    tp=tau&1
    Sc,Sn=S[qt],S[1-qt]
    def pv(Ob,V,B): a(f"v_smfmac_f32_32x32x32_bf16 {vr(Ob,16)}, {vr(V,4)}, {vr(B,8)}, v{VIDX}")
    def qk(Sd,K,qq): a(f"v_mfma_f32_32x32x16_bf16 {vr(Sd,16)}, {vr(K,4)}, {vr(Q[qq],4)}, {vr(CI[qq],16) if fb else '0'}")
    if qt==0:
        Kc,V0c,V1c=F[tp]; Kn,V0n,V1n=F[1-tp]
        expo(a,Sc); expo(a,Sc+1)
        pv(O[1],V1n,Sn+8)
        a(f"ds_read_b128 {vr(Kn,4)}, v{VK} offset:{(tau+1)*KV_TILE}")
        expo(a,Sc+2)
        a("s_mov_b64 exec, s[62:63]")
        a(f"ds_read_b128 {vr(V0n,4)}, v{VK} offset:{(tau+1)*KV_TILE+512}")
        a(f"ds_read_b128 {vr(V1n,4)}, v{VK} offset:{(tau+1)*KV_TILE+768}")
        a("s_mov_b64 exec, -1")
        expo(a,Sc+3); expo(a,Sc+4); expo(a,Sc+5)
        qk(Sn,Kc,1)
        for i in range(6,12):
            expo(a,Sc+i)
            if i==7: ex()
        pv(O[0],V0c,Sc)
        for i in range(12,16):
            expo(a,Sc+i)
            if i==13: ex()
    else:
        Kc,V0c,V1c=F[tp]; Kn,V0n,V1n=F[1-tp]
        expo(a,Sc); expo(a,Sc+1)
        pv(O[0],V1c,Sn+8)
        expo(a,Sc+2); expo(a,Sc+3); expo(a,Sc+4)
        a("s_waitcnt lgkmcnt(0)")
        expo(a,Sc+5,ALIGN)
        qk(Sn,Kn,0)
        for i in range(6,12):
            expo(a,Sc+i)
            if i==7: ex()
        pv(O[1],V0c,Sc)
        for i in range(12,16):
            expo(a,Sc+i)
            if i==13: ex()

def bbar(a,tag,cnt=0):
    a(f"""
    v_mov_b32 v111, {K2_CNT+cnt}
    v_mov_b32 v110, 1
    s_waitcnt lgkmcnt(0)
    s_mov_b64 exec, 1
    ds_add_u32 v111, v110
    s_mov_b64 exec, -1
    s_add_u32 s47, s47, 4
    """)
    a.label(f"k2_bbar_{tag}")
    a(f"""
    ds_read_b32 v109, v111
    s_waitcnt lgkmcnt(0)
    v_readfirstlane_b32 s48, v109
    s_nop 0
    s_cmp_lt_u32 s48, s47
    s_cbranch_scc1 k2_bbar_{tag}
    """)

def dma_arrive(a,younger=0):
    a(f"""
    s_waitcnt vmcnt({younger})
    v_mov_b32 v{TMP}, {K2_CNT+4}
    v_mov_b32 v{TMP+1}, 1
    s_mov_b64 exec, 1
    ds_add_u32 v{TMP}, v{TMP+1}
    s_mov_b64 exec, -1
    """)
def dma_wait(a,tag):
    a(f"v_mov_b32 v{TMP}, {K2_CNT+4}")
    a.label(f"k2_dwait_{tag}")
    a(f"""
    ds_read_b32 v{TMP+1}, v{TMP}
    s_waitcnt lgkmcnt(0)
    v_readfirstlane_b32 s48, v{TMP+1}
    s_nop 0
    s_cmp_lt_u32 s48, 8
    s_cbranch_scc1 k2_dwait_{tag}
    """)

def kv_dma(a, ns):
    for n in ns:
        a(f"s_add_u32 m0, s34, {n*1024}")
        a(f"s_add_u32 s36, s35, {n*1024}")
        a(f"buffer_load_dwordx4 v{TMP}, s[20:23], s36 offen lds")

def b2_part1(a):
    a("s_waitcnt vmcnt(0)")
    if asm.F23 and not asm.F12:
        a("s_cmp_eq_u32 s3, 0")
        a("s_cbranch_scc0 k2_notagreq")
        tag_request(a)
        a.label("k2_notagreq")
    bbar(a,"col")
    a(f"""
    v_and_b32 v{VM}, 15, v1
    v_lshrrev_b32 v{VQd}, 4, v1
    v_xor_b32 v104, v{VM}, v{VQd}
    v_lshlrev_b32 v104, 4, v104
    v_lshl_add_u32 v104, v{VM}, 8, v104
    v_add_u32 v104, {K2_COL}, v104
    v_xor_b32 v105, 64, v104
    v_xor_b32 v106, 128, v104
    v_xor_b32 v107, 192, v104
    """)
    for u in range(4):
        for t in range(2):
            a(f"ds_read_b128 {vr(BUF+16*t+4*u,4)}, v{104+u} offset:{t*4096}")
    for u in range(4):
        a(f"s_waitcnt lgkmcnt({6-2*u})")
        for t in range(2):
            for part in range(2):
                d=D1+8*t+4*part
                a(f"v_mfma_f32_16x16x32_bf16 {vr(d,4)}, {vr(BUF+16*t+4*u,4)}, {vr(T64+8*u+4*part,4)}, {'0' if u==0 else vr(d,4)}")
    a("""
    s_cmp_eq_u32 s28, 0
    s_cbranch_scc0 k2_p1_noab
    """)
    a(f"v_lshlrev_b32 v110, 4, v1")
    a(f"s_lshl_b32 s36, s3, 12")
    a(f"s_add_u32 s36, s36, {OFF_AB}")
    for ep in range(4):
        a(f"buffer_load_dwordx4 {vr(216+4*ep,4)}, v110, s[20:23], s36 offen offset:{ep*1024}")
    a.label("k2_p1_noab")
    a("s_nop 6")
    for t in range(2):
        twiddle(a, D1+8*t, D1+8*t+4, TW+4*t, TW+8+4*t, P+4*t, 104)
    a("s_nop 1")
    for t in range(2):
        for tp in range(2):
            for part in range(2):
                d=X2+8*tp+4*part
                a(f"v_mfma_f32_16x16x32_bf16 {vr(d,4)}, {vr(A32+((tp*2+part)*2+t)*4,4)}, {vr(P+4*t,4)}, {'0' if t==0 else vr(d,4)}")

def b2_part2(a):
    a("s_waitcnt vmcnt(0)")
    a("""
    s_cmp_eq_u32 s28, 0
    s_cbranch_scc1 k2_p2_special
    """)
    for tp in range(2):
        xr,xi=X2+8*tp,X2+8*tp+4
        wr,wi=D1+8*tp,D1+8*tp+4
        for i in range(4):
            a(f"v_lshlrev_b32 v{wr+i}, 16, v{WT+4*tp+i}")
            a(f"v_and_b32 v{wi+i}, 0xffff0000, v{WT+4*tp+i}")
        for p in (0,2):
            a(f"v_pk_mul_f32 {vr(104+p,2)}, {vr(xr+p,2)}, {vr(wr+p,2)}")
            a(f"v_pk_mul_f32 {vr(108+p,2)}, {vr(xr+p,2)}, {vr(wi+p,2)}")
        for p in (0,2):
            a(f"v_pk_fma_f32 {vr(104+p,2)}, {vr(xi+p,2)}, {vr(wi+p,2)}, {vr(104+p,2)} neg_lo:[1,0,0] neg_hi:[1,0,0]")
            a(f"v_pk_fma_f32 {vr(108+p,2)}, {vr(xi+p,2)}, {vr(wr+p,2)}, {vr(108+p,2)}")
        for i in range(4): a(f"v_cvt_pk_bf16_f32 v{P+4*tp+i}, v{104+i}, -v{108+i}")
    a.label("k2_p2_common")
    a("s_nop 1")
    for tp in range(2):
        for t in range(2):
            for part in range(2):
                d=D1+8*t+4*part
                a(f"v_mfma_f32_16x16x32_bf16 {vr(d,4)}, {vr(A32+((t*2+part)*2+tp)*4,4)}, {vr(P+4*tp,4)}, {'0' if tp==0 else vr(d,4)}")
    t0=X2
    a(f"""
    v_and_b32 v{t0}, 15, v1                 ; m
    v_lshrrev_b32 v{t0+1}, 4, v1            ; q
    v_lshrrev_b32 v{t0+2}, 2, v{t0}         ; m>>2
    s_lshl_b32 s36, s3, 2
    v_add_u32 v{t0+2}, s36, v{t0+2}         ; 4w + (m>>2)
    v_lshlrev_b32 v{t0+3}, 2, v{t0+1}       ; 4q
    v_xor_b32 v{t0+2}, v{t0+2}, v{t0+3}
    v_lshlrev_b32 v{t0+2}, 4, v{t0+2}
    v_lshl_add_u32 v{t0+2}, v{t0+3}, 8, v{t0+2}
    v_and_b32 v{t0+4}, 3, v{t0}
    v_lshl_add_u32 v{t0+2}, v{t0+4}, 2, v{t0+2}
    v_add_u32 v{t0+8}, {K2_E}, v{t0+2}
    v_xor_b32 v{t0+9}, 16, v{t0+8}
    v_xor_b32 v{t0+10}, 32, v{t0+8}
    v_xor_b32 v{t0+11}, 48, v{t0+8}
    """)
    for t in range(2):
        twiddle(a, D1+8*t, D1+8*t+4, TW+4*t, TW+8+4*t, P+4*t, 104)
    for t in range(2):
        for i in range(4):
            a(f"ds_write_b32 v{t0+8+i}, v{P+4*t+i} offset:{t*4096+i*256}")
    bbar(a,"e")
    a(f"""
    v_and_b32 v{VM}, 15, v1
    v_lshrrev_b32 v{VQd}, 4, v1
    v_xor_b32 v104, v{VM}, v{VQd}
    v_lshlrev_b32 v104, 4, v104
    v_lshl_add_u32 v104, v{VM}, 8, v104
    v_add_u32 v104, {K2_E}, v104
    v_xor_b32 v105, 64, v104
    v_xor_b32 v106, 128, v104
    v_xor_b32 v107, 192, v104
    """)
    for u in range(4):
        for t in range(2):
            a(f"ds_read_b128 {vr(BUF+16*t+4*u,4)}, v{104+u} offset:{t*4096}")
    a(f"""
    v_lshlrev_b32 v110, 8, v{VM}
    v_lshl_add_u32 v110, v{VQd}, 4, v110
    s_lshl_b32 s36, s28, 13
    s_lshl_b32 s37, s3, 6
    s_add_u32 s36, s36, s37
    s_add_u32 s36, s36, {OFF_Y}
    """)
    for u in range(4):
        a(f"s_waitcnt lgkmcnt({6-2*u})")
        for t in range(2):
            for part in range(2):
                d=D1+8*t+4*part
                a(f"v_mfma_f32_16x16x32_bf16 {vr(d,4)}, {vr(T64+8*u+4*part,4)}, {vr(BUF+16*t+4*u,4)}, {'0' if u==0 else vr(d,4)}")
    a("s_nop 7")
    for t in range(2):
        for i in range(4): a(f"v_cvt_pk_bf16_f32 v{P+4*t+i}, v{D1+8*t+i}, -v{D1+8*t+4+i}")
        a.sc_srd="s[20:23]"
        a(f"buffer_store_dwordx4 {vr(P+4*t,4)}, v110, s[20:23], s36 offen")
        a.sc_srd=a.p1
        if t==0: a("s_add_u32 s36, s36, 4096")
    a("s_setpc_b64 s[60:61]")
    a.label("k2_p2_special")
    bbar(a,"s0")
    XCH=K2_COL
    a(f"""
    v_and_b32 v104, 15, v1
    v_lshrrev_b32 v105, 4, v1
    s_lshl_b32 s36, s3, 4
    v_add_u32 v104, s36, v104                 ; k1
    v_lshl_add_u32 v104, v105, 8, v104         ; g0 = k1 + 64*4q
    v_lshlrev_b32 v106, 3, v104
    v_add_u32 v106, {XCH}, v106
    """)
    for tp in range(2):
        for i in range(4):
            off=(i*64+tp*1024)*8
            a(f"ds_write_b32 v106, v{X2+8*tp+i} offset:{off}")
            a(f"ds_write_b32 v106, v{X2+8*tp+4+i} offset:{off+4}")
    bbar(a,"s1")
    for tp in range(2):
        for i in range(4):
            e=4*tp+i
            a(f"v_sub_u32 v107, {2048-(i*64+tp*1024)}, v104")
            a(f"v_and_b32 v107, 2047, v107")
            a(f"v_lshlrev_b32 v107, 3, v107")
            a(f"v_add_u32 v107, {XCH}, v107")
            a(f"ds_read_b64 {vr(D1+2*e,2)}, v107")
    bbar(a,"s2")
    for tp in range(2):
        for i in range(4):
            e=4*tp+i
            src=216+2*e
            ab=WT
            a(f"v_lshlrev_b32 v{ab}, 16, v{src}")
            a(f"v_and_b32 v{ab+1}, 0xffff0000, v{src}")
            a(f"v_lshlrev_b32 v{ab+2}, 16, v{src+1}")
            a(f"v_and_b32 v{ab+3}, 0xffff0000, v{src+1}")
            zr,zi=X2+8*tp+i,X2+8*tp+4+i
            pr,pi=D1+2*e,D1+2*e+1
            a(f"v_mul_f32 v104, v{zr}, v{ab}")
            a(f"v_mul_f32 v105, v{zr}, v{ab+1}")
            a(f"v_fma_f32 v104, -v{zi}, v{ab+1}, v104")
            a(f"v_fma_f32 v105, v{zi}, v{ab}, v105")
            a(f"v_fma_f32 v104, v{pr}, v{ab+2}, v104")
            a(f"v_fma_f32 v105, v{pr}, v{ab+3}, v105")
            a(f"v_fma_f32 v104, v{pi}, v{ab+3}, v104")
            a(f"v_fma_f32 v105, -v{pi}, v{ab+2}, v105")
            a(f"v_cvt_pk_bf16_f32 v{P+e}, v104, -v105")
    a("s_branch k2_p2_common")


def rounds():
    nA0=NB*KV_TILE//1024
    st1=[x for k in range(ST1R//2) for x in (8*k,nA0+8*k)]
    rest=[]
    n=8*(ST1R//2)
    while n<nA0:
        rest.append(min(n,nA0-8) if n+8>nA0 else n); n+=8
    n=nA0+8*(ST1R//2)
    while n<128:
        rest.append(min(n,120)); n+=8
    lo=[r for r in rest if r<nA0]; hi=[r for r in rest if r>=nA0]
    out=[]
    while lo or hi:
        if lo: out.append(lo.pop(0))
        if hi: out.append(hi.pop(0))
    return st1,out

def attn_loop(a,fb):
    if fb:
        a.label("k2_loop_fb")
        unit(a,0,0,fb); unit(a,0,1,fb); unit(a,1,0,fb); unit(a,1,1,fb)
        a(f"""
        v_add_u32 v{VK}, {2*KV_TILE}, v{VK}
        s_add_u32 s42, s42, 1
        s_cmp_lt_u32 s42, s43
        s_cbranch_scc1 k2_loop_fb
        """)
        return
    if ALIGN: a.raw(".p2align 6")
    a.label("k2_loop")
    a("""
    s_cmp_eq_u32 s42, s40
    s_cbranch_scc1 k2_hook
    """)
    a.label("k2_hookret")
    unit(a,0,0,fb); unit(a,0,1,fb); unit(a,1,0,fb); unit(a,1,1,fb)
    a(f"""
    v_add_u32 v{VK}, {2*KV_TILE}, v{VK}
    s_add_u32 s42, s42, 1
    s_cmp_lt_u32 s42, s44
    s_cbranch_scc1 k2_loop
    """)
    a(".p2align 3, 0xbf800000" if False else "s_nop 0") if False else None
    stamp(a,31)
    if ALIGN: a.raw(".p2align 6")
    if "shift4" in VAR: a("s_nop 0")
    a.label("k2_lean")
    for tau in range(4):
        unit(a,tau,0,fb); unit(a,tau,1,fb)
    a(f"""
    v_add_u32 v{VK}, {4*KV_TILE}, v{VK}
    s_sub_u32 s43, s43, 1
    s_cmp_lg_u32 s43, 0
    s_cbranch_scc1 k2_lean
    s_cmp_eq_u32 s41, 0
    s_cbranch_scc1 k2_lean_done
    """)
    stamp(a,32)
    if asm.F23: a("s_call_b64 s[60:61], k2_mid")
    else: a("s_setprio 0")
    a(f"""
    s_mov_b32 s43, s41
    s_mov_b32 s41, 0
    s_branch k2_lean
    """)
    a.label("k2_lean_done")

def pipe_prologue(a,fb):
    K,V0,V1=F[0]
    a(f"""
    ds_read_b128 {vr(K,4)}, v{VK}
    s_mov_b64 exec, s[62:63]
    ds_read_b128 {vr(V0,4)}, v{VK} offset:512
    ds_read_b128 {vr(V1,4)}, v{VK} offset:768
    s_mov_b64 exec, -1
    s_waitcnt lgkmcnt(2)
    v_mfma_f32_32x32x16_bf16 {vr(S[0],16)}, {vr(K,4)}, {vr(Q[0],4)}, {vr(CI[0],16) if fb else '0'}
    s_mov_b32 s42, 0
    s_waitcnt lgkmcnt(0)
    s_nop 11
    """)

def poll(a,tag,nloads,addr_regs,srdreg="s[20:23]",soff="0"):
    a(f"s_mov_b32 s49, 0x20000")
    a.label(f"poll_{tag}")
    for k in range(nloads):
        a(f"buffer_load_dword v{addr_regs[k][1]}, v{addr_regs[k][0]}, {srdreg}, {soff} offen")
    a("s_waitcnt vmcnt(0)")
    for k in range(nloads):
        a(f"v_cmp_eq_u32 {'vcc' if k==0 else 's[50:51]'}, s56, v{addr_regs[k][1]}")
        if k>0:
            a("s_nop 1"); a("s_and_b64 vcc, vcc, s[50:51]")
    a(f"""
    s_nop 1
    s_cmp_eq_u64 vcc, -1
    s_cbranch_scc1 poll_{tag}_done
    s_sub_u32 s49, s49, 1
    s_cmp_eq_u32 s49, 0
    s_cbranch_scc1 poll_{tag}_done
    s_sleep 1
    s_branch poll_{tag}
    """)
    a.label(f"poll_{tag}_done")

def get_tag(a,tagname):
    a(f"""
    v_mov_b32 v{TMP}, 0
    s_mov_b32 s49, 0x20000
    """)
    a.label(f"kf_tag_{tagname}")
    a(f"""
    global_load_dword v{TMP+1}, v{TMP}, s[54:55] sc1
    s_waitcnt vmcnt(0)
    v_readfirstlane_b32 s56, v{TMP+1}
    s_sub_u32 s49, s49, 1
    s_cmp_eq_u32 s49, 0
    s_cbranch_scc1 kf_tag_{tagname}_done
    s_cmp_eq_u32 s56, 0
    s_cbranch_scc0 kf_tag_{tagname}_done
    s_sleep 1
    s_branch kf_tag_{tagname}
    """)
    a.label(f"kf_tag_{tagname}_done")

def tag_request(a):
    a(f"""
    v_mov_b32 v{TMP}, 0
    global_load_dword v5, v{TMP}, s[54:55] sc1
    """)
def tag_resolve(a,tagname):
    a(f"""
    v_readfirstlane_b32 s56, v5
    s_nop 0
    s_cmp_eq_u32 s56, 0
    s_cbranch_scc0 kf_tagok_{tagname}
    """)
    get_tag(a,tagname)
    a.label(f"kf_tagok_{tagname}")

def flag_store(a, soff_expr_reg, vtmp):
    a(f"""
    v_mov_b32 v{vtmp}, 0
    v_mov_b32 v{vtmp+1}, s56
    s_mov_b64 exec, 1
    buffer_store_dword v{vtmp+1}, v{vtmp}, s[20:23], s{soff_expr_reg} offen
    s_mov_b64 exec, -1
    """)

def build_k2(a=None):
    own = a is None
    if own: a=Asm()
    P1="s[20:23]" if asm.F12 else None
    a.sc_srd=P1
    st1,rest=rounds()
    R=len(rest)
    if not asm.F12:
        a(f"""
        s_cmp_ge_u32 s2, 256
        s_cbranch_scc1 k2_end
        s_load_dwordx2 s[16:17], s[0:1], 64      ; ws
        {"s_load_dwordx4 s[52:55], s[0:1], 48      ; out, debug" if asm.F23 else ""}
        v_and_b32 v1, 63, v0
        v_lshrrev_b32 v{TMP}, 6, v0
        s_nop 0
        v_readfirstlane_b32 s3, v{TMP}
        """)
        if asm.F23:
            a("""
            s_or_b32 s57, s2, s3
            s_cmp_eq_u32 s57, 0
            s_cbranch_scc0 kf_nononce
            s_memrealtime s[56:57]
            s_waitcnt lgkmcnt(0)
            s_or_b32 s56, s56, 1
            v_mov_b32 v2, 0
            v_mov_b32 v3, s56
            s_mov_b64 exec, 1
            global_store_dword v2, v3, s[54:55] sc1
            s_mov_b64 exec, -1
            """)
            a.label("kf_nononce")
    stamp(a,0)
    a(f"""
    s_and_b32 s18, s2, 7
    s_lshr_b32 s19, s2, 3
    s_lshl_b32 s29, s18, 2
    s_and_b32 s30, s19, 3
    s_add_u32 s29, s29, s30                  ; hd
    s_lshr_b32 s30, s19, 2                   ; qb
    s_lshl_b32 s28, s18, 5
    s_add_u32 s28, s28, s19                  ; f
    v_lshlrev_b32 v{TMP}, 4, v1              ; lane*16
    s_and_b32 s33, s3, 3                     ; qg
    s_lshl_b32 s31, s30, 3
    s_lshl_b32 s33, s33, 1
    s_add_u32 s31, s31, s33
    s_waitcnt lgkmcnt(0)
    """)
    srd(a,20,16,WS_SIZE)
    if asm.F12:
        a(f"""
        s_cmp_eq_u32 s3, 0
        s_cbranch_scc0 k2_nopoll
        s_lshr_b32 s32, s29, 3                   ; hd>>3
        v_and_b32 v{TMP+1}, 15, v1
        v_lshrrev_b32 v{TMP+2}, 4, v1            ; group 0:K 1:V 2,3:Q
        v_and_b32 v{TMP+3}, 1, v1
        s_lshl_b32 s33, s30, 1
        v_add_u32 v{TMP+3}, s33, v{TMP+3}
        v_cmp_gt_u32 vcc, 2, v{TMP+2}
        v_mov_b32 v{TMP+4}, 4
        v_mov_b32 v{TMP+5}, 8
        v_cndmask_b32 v{TMP+1}, v{TMP+3}, v{TMP+1}, vcc   ; rb
        v_cmp_eq_u32 vcc, 0, v{TMP+2}
        v_mov_b32 v{TMP+6}, 0
        s_nop 0
        v_cndmask_b32 v{TMP+6}, v{TMP+6}, v{TMP+4}, vcc
        v_cmp_eq_u32 vcc, 1, v{TMP+2}
        s_nop 1
        v_cndmask_b32 v{TMP+6}, v{TMP+6}, v{TMP+5}, vcc   ; type*4
        v_add_u32 v{TMP+6}, s32, v{TMP+6}        ; cb
        v_lshl_add_u32 v{TMP+1}, v{TMP+6}, 4, v{TMP+1}
        v_lshlrev_b32 v{TMP+1}, 2, v{TMP+1}
        v_add_u32 v{TMP+1}, {OFF_F1Q}, v{TMP+1}
        """)
        poll(a,"p1",1,[(TMP+1,TMP+3)])
        a.label("k2_nopoll")
        a("s_barrier")
        stamp(a,9)
    a(f"""
    s_lshl_b32 s32, s29, 16
    s_lshl_b32 s33, s31, 10
    s_add_u32 s32, s32, s33
    s_add_u32 s32, s32, {OFF_Q}
    buffer_load_dwordx4 {vr(Q[0],4)}, v{TMP}, s[20:23], s32 offen
    buffer_load_dwordx4 {vr(Q[1],4)}, v{TMP}, s[20:23], s32 offen offset:1024
    v_lshlrev_b32 v{TMP+1}, 2, v1
    s_lshl_b32 s32, s29, 8
    s_add_u32 s32, s32, {OFF_KN}
    buffer_load_dword v{TMP+2}, v{TMP+1}, s[20:23], s32 offen
    s_lshl_b32 s34, s3, 10                   ; wave*1024
    s_mul_i32 s35, s29, {KV_HEAD}
    s_add_u32 s35, s35, s34
    s_add_u32 s35, s35, {OFF_KV}
    """)
    kv_dma(a,st1)
    a("s_waitcnt vmcnt(4)")
    a.label("k2_loaded")
    for qq in range(2):
        acc=TMP+5+qq
        for k in range(4):
            a(f"v_lshlrev_b32 v{TMP+3}, 16, v{Q[qq]+k}")
            a(f"v_and_b32 v{TMP+4}, 0xffff0000, v{Q[qq]+k}")
            a(f"v_mul_f32 v{acc}, v{TMP+3}, v{TMP+3}" if k==0 else f"v_fmac_f32 v{acc}, v{TMP+3}, v{TMP+3}")
            a(f"v_fmac_f32 v{acc}, v{TMP+4}, v{TMP+4}")
    a(f"""
    s_nop 1
    v_permlane32_swap_b32 v{TMP+5}, v{TMP+6}
    s_nop 1
    v_add_f32 v{TMP+5}, v{TMP+5}, v{TMP+6}
    """)
    for sh in ("row_shr:1","row_shr:2","row_shr:4","row_shr:8"):
        a("s_nop 0")
        a(f"v_max_f32_dpp v{TMP+2}, v{TMP+2}, v{TMP+2} {sh} row_mask:0xf bank_mask:0xf bound_ctrl:0")
        a(f"v_max_f32_dpp v{TMP+5}, v{TMP+5}, v{TMP+5} {sh} row_mask:0xf bank_mask:0xf bound_ctrl:0")
    for sh in ("row_bcast:15 row_mask:0xa","row_bcast:31 row_mask:0xc"):
        a("s_nop 0")
        a(f"v_max_f32_dpp v{TMP+2}, v{TMP+2}, v{TMP+2} {sh} bank_mask:0xf")
        a(f"v_max_f32_dpp v{TMP+5}, v{TMP+5}, v{TMP+5} {sh} bank_mask:0xf")
    a(f"""
    s_nop 0
    v_mul_f32 v{TMP+2}, v{TMP+2}, v{TMP+5}
    s_nop 0
    v_readlane_b32 s38, v{TMP+2}, 63
    v_and_b32 v{TMP+3}, 31, v1
    v_lshrrev_b32 v{TMP+4}, 5, v1
    v_lshlrev_b32 v{TMP+4}, 10, v{TMP+4}
    v_lshl_add_u32 v{VK}, v{TMP+3}, 4, v{TMP+4}
    s_cmp_lt_u32 s3, 4
    s_cselect_b32 s36, 0, {NB*KV_TILE}
    s_cselect_b32 s45, {NB//2}, {NA//2}
    s_cselect_b32 s44, {HB}, {HA}
    s_cselect_b32 s43, {(XB-HB)//2}, {(XA-HA)//2 if asm.F23 else (NA//2-HA)//2}
    s_cselect_b32 s41, {(NB//2-XB)//2}, {(NA//2-XA)//2 if asm.F23 else 0}
    s_cselect_b32 s40, {min(TABIT,ARRIT)}, {ARRA if AUP else ARRIT}
    v_add_u32 v{VK}, s36, v{VK}
    v_cmp_eq_u32 vcc, 16, v{TMP+3}
    v_mov_b32 v{TMP+4}, 0x3f803f80
    v_mov_b32 v{VIDX}, 0xdddd
    v_cndmask_b32 v{TMP+4}, 0, v{TMP+4}, vcc
    s_mov_b32 s62, 0xffff
    s_mov_b32 s63, 0xffff
    """)
    for r in (F[0][1],F[0][2],F[1][1]):
        for i in range(4): a(f"v_mov_b32 v{r+i}, v{TMP+4}")
    for qq in range(2):
        for i in range(16): a(f"v_mov_b32 v{O[qq]+i}, 0")
    for i in range(8): a(f"v_mov_b32 v{S[1]+8+i}, 0")
    for i in range(4): a(f"v_mov_b32 v{F[1][2]+i}, v{TMP+4}")
    if "nohook" in VAR:
        a("s_waitcnt vmcnt(0)"); a("s_mov_b32 s40, 99")
    a(f"""
    v_mov_b32 v{TMP+3}, {K2_CNT}
    v_mov_b32 v{TMP+4}, 0
    v_mov_b32 v{TMP+5}, 0
    v_mov_b32 v{TMP+6}, 0
    v_mov_b32 v{TMP+7}, 0
    s_mov_b32 s47, 0
    s_cmp_eq_u32 s3, 0
    s_cbranch_scc0 k2_noinit
    ds_write_b128 v{TMP+3}, {vr(TMP+4,4)}
    ds_write_b128 v{TMP+3}, {vr(TMP+4,4)} offset:16
    s_waitcnt lgkmcnt(0)
    """)
    a.label("k2_noinit")
    a("s_waitcnt vmcnt(0)")
    stamp(a,1)
    a("s_barrier")
    a(f"v_lshlrev_b32 v{TMP}, 4, v1")
    if not DRIP: kv_dma(a,rest)
    PF = "pf" in VAR and asm.F23
    if PF:
        a("s_cmp_eq_u32 s3, 7")
        a("s_cbranch_scc0 k2_nopf")
        code_prefetch(a,"k2_tail","k2_end",2,TMP+1,5)
        a.label("k2_nopf")
    a("""
    s_cmp_lt_u32 s3, 4
    s_cbranch_scc1 k2_prioB
    s_setprio 1
    s_branch k2_priodone
    """)
    a.label("k2_prioB")
    a("s_setprio 2" if "noprio" not in VAR else "s_setprio 0")
    a.label("k2_priodone")
    if "soloA" in VAR:
        a("s_cmp_lt_u32 s3, 4"); a("s_cbranch_scc1 k2_end")
    stamp(a,2)
    a(f"""
    s_cmp_le_u32 s38, {hex(f2u(THRESH2))}
    s_cbranch_scc0 k2_fallback
    """)
    a("s_mov_b32 s57, 0")
    pipe_prologue(a,False)
    if DRIP and AUP:
        a("""
        s_cmp_lt_u32 s3, 4
        s_cbranch_scc1 k2_drip
        """)
        kv_dma(a,rest)
        a("s_branch k2_loop")
        if ALIGN: a.raw(".p2align 3")
        a.label("k2_drip")
    if DRIP:
        todo=[(lambda n=n: kv_dma(a,[n])) for n in rest]
        per=-(-len(todo)//8)
        for trip in range(2):
            for tau in range(2):
                for qt in range(2):
                    take=todo[:per]; todo=todo[per:]
                    unit(a,tau,qt,False,take)
            a(f"v_add_u32 v{VK}, {2*KV_TILE}, v{VK}")
        assert not todo
        a("s_mov_b32 s42, 2")
        stamp(a,30)
    attn_loop(a,False)
    a.label("k2_tail")
    if asm.F23:
        a(f"""
        s_cmp_lt_u32 s3, 4
        s_cbranch_scc0 k2_tail_nf
        v_mov_b32 v{TMP+2}, {K2_CNT+20}
        s_mov_b32 s49, 0x1000000
        """)
        a.label("k2_tail_w")
        a(f"""
        ds_read_b32 v{TMP+3}, v{TMP+2}
        s_waitcnt lgkmcnt(0)
        v_readfirstlane_b32 s48, v{TMP+3}
        s_sub_u32 s49, s49, 1
        s_cmp_eq_u32 s49, 0
        s_cbranch_scc1 k2_tail_nf
        s_cmp_eq_u32 s48, 0
        s_cbranch_scc1 k2_tail_w
        """)
        a.label("k2_tail_nf")
    stamp(a,6)
    a(f"""
    s_nop 1
    v_smfmac_f32_32x32x32_bf16 {vr(O[1],16)}, {vr(F[1][2],4)}, {vr(S[1]+8,8)}, v{VIDX}
    s_setprio 0
    s_mul_i32 s36, s3, 2304
    s_add_u32 s37, s36, {K2_E+8192-3*2304}
    s_add_u32 s36, s36, {K2_COL}
    s_cmp_lt_u32 s3, 3
    s_cselect_b32 s36, s36, s37
    s_xor_b32 s44, s3, 4
    s_mul_i32 s45, s44, 2304
    s_add_u32 s46, s45, {K2_E+8192-3*2304}
    s_add_u32 s45, s45, {K2_COL}
    s_cmp_lt_u32 s44, 3
    s_cselect_b32 s45, s45, s46
    v_lshlrev_b32 v{TMP}, 4, v1
    v_lshlrev_b32 v{TMP+1}, 2, v1
    v_add_u32 v{TMP+2}, s36, v{TMP}
    v_add_u32 v{TMP+3}, s36, v{TMP+1}
    v_add_u32 v{TMP+4}, s45, v{TMP}
    v_add_u32 v{TMP+5}, s45, v{TMP+1}
    s_cmp_lt_u32 s3, 4
    s_cbranch_scc1 k2_tailB
    """)
    a(f"""
    s_nop 9
    ds_write_b128 v{TMP+2}, {vr(O[0],4)}
    ds_write_b128 v{TMP+2}, {vr(O[0]+4,4)} offset:1024
    ds_write_b32 v{TMP+3}, v{O[0]+8} offset:2048
    s_nop 7
    """)
    for i in range(9): a(f"v_mov_b32 v{O[0]+i}, v{O[1]+i}")
    a("""
    s_add_u32 s31, s31, 1
    s_branch k2_tail2
    """)
    a.label("k2_tailB")
    a(f"""
    s_nop 15
    s_nop 3
    ds_write_b128 v{TMP+2}, {vr(O[1],4)}
    ds_write_b128 v{TMP+2}, {vr(O[1]+4,4)} offset:1024
    ds_write_b32 v{TMP+3}, v{O[1]+8} offset:2048
    """)
    a.label("k2_tail2")
    a(f"""
    s_waitcnt lgkmcnt(0)
    {"" if "soloA" in VAR else "s_barrier"}
    ds_read_b128 {vr(S[0],4)}, v{TMP+4}
    ds_read_b128 {vr(S[0]+4,4)}, v{TMP+4} offset:1024
    ds_read_b32 v{S[0]+8}, v{TMP+5} offset:2048
    s_lshl_b32 s36, s31, 5
    s_add_u32 s36, s36, s29
    s_lshl_b32 s36, s36, 10
    s_add_u32 s36, s36, {OFF_O}
    s_waitcnt lgkmcnt(0)
    """)
    for i in range(9): a(f"v_add_f32 v{O[0]+i}, v{O[0]+i}, v{S[0]+i}")
    a(f"""
    v_mov_b32 v{TMP+1}, v{O[0]+8}
    v_mov_b32 v{TMP+2}, v{O[0]+8}
    s_nop 1
    v_permlane32_swap_b32 v{TMP+1}, v{TMP+2}
    s_nop 1
    v_rcp_f32 v{TMP+1}, v{TMP+1}
    s_nop 0
    """)
    for i in range(8): a(f"v_mul_f32 v{O[0]+i}, v{O[0]+i}, v{TMP+1}")
    for i in range(4): a(f"v_cvt_pk_bf16_f32 v{TMP+4+i}, v{O[0]+2*i}, v{O[0]+2*i+1}")
    a.sc_srd="s[20:23]"
    a(f"buffer_store_dwordx4 {vr(TMP+4,4)}, v{TMP}, s[20:23], s36 offen")
    if asm.F23:
        if "wgflag" in VAR:
            a("""
            s_waitcnt vmcnt(0)
            s_barrier
            """)
            stamp(a,8)
            a(f"""
            s_cmp_eq_u32 s3, 0
            s_cbranch_scc0 ph3_start
            s_lshl_b32 s36, s30, 5
            s_add_u32 s36, s36, s29
            s_lshl_b32 s36, s36, 2
            s_add_u32 s36, s36, {OFF_F2}
            """)
            flag_store(a,36,TMP)
            a("s_branch ph3_start")
        elif "oflag" in VAR:
            a(f"""
            s_lshl_b32 s36, s31, 5
            s_add_u32 s36, s36, s29
            s_lshl_b32 s36, s36, 2
            s_add_u32 s36, s36, {OFF_F2}
            s_waitcnt vmcnt(0)
            """)
            stamp(a,8)
            flag_store(a,36,TMP)
            a("s_branch ph3_start")
        else:
            stamp(a,8)
            a("s_branch ph3_start")
    else:
        if asm.STAMP:
            a("s_waitcnt vmcnt(0)"); stamp(a,8); stamp_dump(a,1)
        a("s_endpgm")
    def act_tab(): a("s_call_b64 s[60:61], k2_tab")
    def act_arriveB():
        dma_arrive(a, (26 if asm.F23 else 24) if TABIT<=ARRIT else 0)
    def act_b2():
        stamp(a,3); a("s_call_b64 s[60:61], k2_b2"); stamp(a,4)
    def act_pub(): a("s_call_b64 s[60:61], k2_pub")
    def act_prio0(): a("s_setprio 0")
    hooksB=[(TABIT,act_tab),(ARRIT,act_arriveB),(DWAIT,lambda: dma_wait(a,"hb")),(B2IT,act_b2)]
    hooksB.sort(key=lambda h:h[0])
    if asm.F23: hooksB.append((PUBIT,act_pub))
    def arriveA():
        if PF:
            a("s_cmp_eq_u32 s3, 7")
            a("s_cbranch_scc0 k2_arr_n")
            dma_arrive(a,2)
            a("s_branch k2_arr_d")
            a.label("k2_arr_n")
            dma_arrive(a)
            a.label("k2_arr_d")
        else: dma_arrive(a)
    ARR_A=ARRA if AUP else ARRIT
    hooksA=[(ARR_A,arriveA),(DWAIT,lambda: dma_wait(a,"ha"))]
    if asm.F23:
        def req_flags():
            a("s_cmp_eq_u32 s3, 4")
            a("s_cbranch_scc0 k2_noreq")
            a(f"v_lshlrev_b32 v{TMP}, 4, v1")
            a(f"v_add_u32 v{TMP}, {OFF_F2B}, v{TMP}")
            a.sc_srd="s[20:23]"
            a(f"buffer_load_dwordx4 {vr(TMP+4,4)}, v{TMP}, s[20:23], 0 offen")
            a.sc_srd=P1
            a.label("k2_noreq")
        hooksA.append((HA-1,req_flags))
    def emit(role,hooks):
        its=sorted(set(h[0] for h in hooks))
        for n,it in enumerate(its):
            nxt=its[n+1] if n+1<len(its) else 99
            a(f"s_cmp_eq_u32 s40, {it}")
            a(f"s_cbranch_scc0 k2_hk{role}_{n+1}")
            for (i2,f) in hooks:
                if i2==it: f()
            a(f"s_mov_b32 s40, {nxt}")
            a("s_branch k2_hookret")
            a.label(f"k2_hk{role}_{n+1}")
        a("s_branch k2_hookret")
        return its[0]
    a.label("k2_hook")
    a("""
    s_cmp_lt_u32 s3, 4
    s_cbranch_scc0 k2_hookA
    """)
    emit("B",hooksB)
    a.label("k2_hookA")
    emit("A",hooksA)
    a.label("k2_fallback")
    a("s_mov_b32 s57, 1")
    if DRIP: kv_dma(a,rest)
    a("""
    s_cmp_lt_u32 s3, 4
    s_cbranch_scc0 k2_fbA
    """)
    dma_arrive(a)
    dma_wait(a,"fbb")
    a("""
    s_call_b64 s[60:61], k2_tab
    s_call_b64 s[60:61], k2_b2
    """)
    if asm.F23: a("s_call_b64 s[60:61], k2_pub")
    a("""
    s_branch k2_fb_pre
    """)
    a.label("k2_fbA")
    dma_arrive(a)
    dma_wait(a,"fb")
    a.label("k2_fb_pre")
    if asm.F23: a("s_call_b64 s[60:61], k2_mid")
    a(f"""
    v_mov_b32 v{TMP+1}, 0xff800000
    v_mov_b32 v{TMP+2}, 0xff800000
    v_and_b32 v{TMP+3}, 31, v1
    v_lshrrev_b32 v{TMP+4}, 5, v1
    v_lshlrev_b32 v{TMP+4}, 10, v{TMP+4}
    v_lshl_add_u32 v{TMP+3}, v{TMP+3}, 4, v{TMP+4}
    s_mov_b32 s42, 64
    """)
    a.label("k2_fb_max")
    a(f"""
    ds_read_b128 {vr(F[0][0],4)}, v{TMP+3}
    v_add_u32 v{TMP+3}, {KV_TILE}, v{TMP+3}
    s_waitcnt lgkmcnt(0)
    v_mfma_f32_32x32x16_bf16 {vr(S[0],16)}, {vr(F[0][0],4)}, {vr(Q[0],4)}, 0
    v_mfma_f32_32x32x16_bf16 {vr(CI[0],16)}, {vr(F[0][0],4)}, {vr(Q[1],4)}, 0
    s_nop 15
    """)
    for i in range(0,16,2): a(f"v_max3_f32 v{TMP+1}, v{S[0]+i}, v{S[0]+i+1}, v{TMP+1}")
    for i in range(0,16,2): a(f"v_max3_f32 v{TMP+2}, v{CI[0]+i}, v{CI[0]+i+1}, v{TMP+2}")
    a(f"""
    s_sub_u32 s42, s42, 1
    s_cmp_lg_u32 s42, 0
    s_cbranch_scc1 k2_fb_max
    v_mov_b32 v{TMP+3}, v{TMP+1}
    v_mov_b32 v{TMP+4}, v{TMP+2}
    s_nop 1
    v_permlane32_swap_b32 v{TMP+1}, v{TMP+3}
    v_permlane32_swap_b32 v{TMP+2}, v{TMP+4}
    s_nop 1
    v_max_f32 v{TMP+1}, v{TMP+1}, v{TMP+3}
    v_max_f32 v{TMP+2}, v{TMP+2}, v{TMP+4}
    """)
    for qq in range(2):
        for i in range(16): a(f"v_sub_f32 v{CI[qq]+i}, 0, v{TMP+1+qq}")
    a("s_nop 1")
    a("s_mov_b32 s43, s45")
    pipe_prologue(a,True)
    attn_loop(a,True)
    a("s_branch k2_tail")
    if asm.F23:
        a.label("k2_mid")
        a.sc_srd="s[20:23]"
        a(f"""
        s_cmp_lt_u32 s3, 4
        s_cbranch_scc0 k2_mid_A
        s_setprio 0
        s_setpc_b64 s[60:61]
        """)
        a.label("k2_mid_A")
        a(f"""
        s_cmp_eq_u32 s3, 4
        s_cbranch_scc0 k2_mid_ret
        v_mov_b32 v{TMP+2}, {K2_CNT+16}
        s_mov_b32 s49, 0x100000
        """)
        a.label("k2_mid_tag")
        a(f"""
        ds_read_b32 v{TMP+3}, v{TMP+2}
        s_waitcnt lgkmcnt(0)
        v_readfirstlane_b32 s56, v{TMP+3}
        s_sub_u32 s49, s49, 1
        s_cmp_eq_u32 s49, 0
        s_cbranch_scc1 k2_mid_tagok
        s_cmp_eq_u32 s56, 0
        s_cbranch_scc1 k2_mid_tag
        """)
        a.label("k2_mid_tagok")
        a(f"""
        v_lshlrev_b32 v{TMP}, 4, v1
        v_add_u32 v{TMP}, {OFF_F2B}, v{TMP}
        s_mov_b32 s49, 0x20000
        s_cmp_eq_u32 s57, 0
        s_cbranch_scc1 k2_mid_have
        """)
        a.label("k2_mid_poll")
        a(f"""
        buffer_load_dwordx4 {vr(TMP+4,4)}, v{TMP}, s[20:23], 0 offen
        """)
        a.label("k2_mid_have")
        a(f"""
        s_waitcnt vmcnt(0)
        v_cmp_eq_u32 vcc, s56, v{TMP+4}
        v_cmp_eq_u32 s[50:51], s56, v{TMP+5}
        s_nop 1
        s_and_b64 vcc, vcc, s[50:51]
        v_cmp_eq_u32 s[50:51], s56, v{TMP+6}
        s_nop 1
        s_and_b64 vcc, vcc, s[50:51]
        v_cmp_eq_u32 s[50:51], s56, v{TMP+7}
        s_nop 1
        s_and_b64 vcc, vcc, s[50:51]
        s_cmp_eq_u64 vcc, -1
        s_cbranch_scc1 k2_mid_ok
        s_sub_u32 s49, s49, 1
        s_cmp_eq_u32 s49, 0
        s_cbranch_scc1 k2_mid_ok
        s_sleep 4
        s_branch k2_mid_poll
        """)
        a.label("k2_mid_ok")
        a(f"""
        v_mov_b32 v{TMP+2}, {K2_CNT+20}
        v_mov_b32 v{TMP+3}, 1
        ds_write_b32 v{TMP+2}, v{TMP+3}
        s_lshr_b32 s33, s19, 3
        s_lshl_b32 s33, s33, 3
        s_add_u32 s33, s33, s18                  ; n2
        s_and_b32 s36, s19, 7                    ; a
        v_lshrrev_b32 v{TMP}, 1, v1
        v_lshlrev_b32 v{TMP}, 13, v{TMP}
        v_and_b32 v{TMP+1}, 1, v1
        v_lshl_add_u32 v{TMP}, v{TMP+1}, 4, v{TMP}
        s_lshl_b32 s33, s33, 8
        s_lshl_b32 s36, s36, 5
        s_add_u32 s33, s33, s36
        s_add_u32 s33, s33, {OFF_Y}
        """)
        for e in range(8):
            a(f"s_mov_b32 m0, {K2_E+e*1024}")
            a(f"s_add_u32 s36, s33, {e*32*8192}")
            a(f"buffer_load_dwordx4 v{TMP}, s[20:23], s36 offen lds")
        a.label("k2_mid_ret")
        a("s_setpc_b64 s[60:61]")
    a.label("k2_tab")
    a.sc_srd=P1
    if asm.F12:
        a(f"""
        s_cmp_eq_u32 s3, 0
        s_cbranch_scc0 k2_nop1b
        v_lshlrev_b32 v{TMP+2}, 2, v1
        v_add_u32 v{TMP+2}, {OFF_F1B}, v{TMP+2}
        """)
        poll(a,"p1b",1,[(TMP+2,TMP+4)])
        a.label("k2_nop1b")
        bbar(a,"tab")
    a(f"""
    v_lshlrev_b32 v{TMP}, 4, v1
    v_lshrrev_b32 v{TMP+3}, 4, v1
    s_lshl_b32 s32, s3, 3
    v_add_u32 v{TMP+4}, s32, v{TMP+3}        ; n2 (e=0)
    v_and_b32 v{TMP+5}, 15, v{TMP+4}
    v_and_b32 v{TMP+6}, 15, v1
    v_xor_b32 v{TMP+5}, v{TMP+5}, v{TMP+6}
    v_lshlrev_b32 v{TMP+5}, 4, v{TMP+5}
    v_lshl_add_u32 v{TMP+5}, v{TMP+4}, 8, v{TMP+5}
    v_xor_b32 v{TMP+6}, 64, v{TMP+5}
    v_add_u32 v{TMP+6}, 1024, v{TMP+6}
    s_lshl_b32 s32, s28, 13
    s_add_u32 s32, s32, {OFF_Z}
    s_lshl_b32 s33, s3, 11
    s_add_u32 m0, s33, {K2_COL}
    s_nop 0
    buffer_load_dwordx4 v{TMP+5}, s[20:23], s32 offen lds
    s_add_u32 m0, s33, {K2_COL+1024}
    s_nop 0
    buffer_load_dwordx4 v{TMP+6}, s[20:23], s32 offen lds
    """)
    a(f"s_lshl_b32 s36, s3, 13")
    a(f"s_add_u32 s36, s36, {OFF_T64}")
    for k in range(8):
        a(f"buffer_load_dwordx4 {vr(T64+4*k,4)}, v{TMP}, s[20:23], s36 offen offset:{(k%4)*1024}")
        if k==3: a("s_add_u32 s36, s36, 4096")
    a(f"s_lshl_b32 s36, s3, 12")
    a(f"s_add_u32 s36, s36, {OFF_TW}")
    for k in range(4):
        a(f"buffer_load_dwordx4 {vr(TW+4*k,4)}, v{TMP}, s[20:23], s36 offen offset:{k*1024}")
    a(f"s_mov_b32 s36, {OFF_A32}")
    for k in range(8):
        a(f"buffer_load_dwordx4 {vr(A32+4*k,4)}, v{TMP}, s[20:23], s36 offen offset:{(k%4)*1024}")
        if k==3: a("s_add_u32 s36, s36, 4096")
    a(f"""
    s_lshl_b32 s36, s28, 13
    s_lshl_b32 s37, s3, 11
    s_add_u32 s36, s36, s37
    s_add_u32 s36, s36, {OFF_WT}
    buffer_load_dwordx4 {vr(WT,4)}, v{TMP}, s[20:23], s36 offen
    buffer_load_dwordx4 {vr(WT+4,4)}, v{TMP}, s[20:23], s36 offen offset:1024
    """)
    if asm.F23:
        a.sc_srd="s[20:23]"
        a(f"""
        v_mov_b32 v{TMP+4}, -1
        v_mov_b32 v{TMP+5}, -1
        v_mov_b32 v{TMP+6}, -1
        v_mov_b32 v{TMP+7}, -1
        s_lshl_b32 s36, s31, 5
        s_add_u32 s36, s36, s29
        s_lshl_b32 s36, s36, 10
        s_add_u32 s36, s36, {OFF_O}
        buffer_store_dwordx4 {vr(TMP+4,4)}, v{TMP}, s[20:23], s36 offen
        s_add_u32 s36, s36, 32768
        buffer_store_dwordx4 {vr(TMP+4,4)}, v{TMP}, s[20:23], s36 offen
        """)
        a.sc_srd=P1
    a("s_setpc_b64 s[60:61]")
    a.label("k2_b2")
    a.sc_srd=P1
    a.p1=P1
    b2_part1(a)
    b2_part2(a)
    if asm.F23:
        a.label("k2_pub")
        a.sc_srd="s[20:23]"
        a("s_waitcnt vmcnt(0)")
        bbar(a,"pub")
        a("s_cmp_eq_u32 s3, 0")
        a("s_cbranch_scc0 k2_pub1")
        if not asm.F12: tag_resolve(a,"b")
        a(f"""
        v_mov_b32 v{TMP+2}, {K2_CNT+16}
        v_mov_b32 v{TMP+3}, s56
        ds_write_b32 v{TMP+2}, v{TMP+3}
        s_lshl_b32 s36, s28, 2
        s_add_u32 s36, s36, {OFF_F2B}
        """)
        flag_store(a,36,TMP)
        a.label("k2_pub1")
        a.sc_srd=P1
        a(f"""
        s_lshr_b32 s36, s19, 2                   ; ct
        s_lshl_b32 s36, s36, 16
        s_lshl_b32 s37, s3, 13
        s_add_u32 s36, s36, s37
        s_add_u32 s36, s36, {OFF_WOF}
        v_lshlrev_b32 v{TMP}, 4, v1
        """)
        for hh in range(8):
            a(f"s_add_u32 s37, s36, {hh*1024}")
            a(f"buffer_load_dwordx4 {vr(WOR+8*hh,4)}, v{TMP}, s[20:23], s37 offen")
            a(f"s_add_u32 s37, s37, 32768")
            a(f"buffer_load_dwordx4 {vr(WOR+8*hh+4,4)}, v{TMP}, s[20:23], s37 offen")
        a("s_setpc_b64 s[60:61]")
    a.sc_srd=None
    if own:
        a.label("k2_end")
        a("s_endpgm")
    return a
```

```python
import asm
from asm import *
from layout import *
import k1, k2
from k1 import srd, twiddle, gen_consts
from k2 import bbar, poll, flag_store, get_tag, WOR, TMP as T2
import os
OUTSC={'':'','sc1':' sc1','nt':' nt','none':''}[os.environ.get('OUTSC','sc1')]
PREPOLL=int(os.environ.get('PREPOLL','1'))
KF_LDS=163840
PSTR=17408
S3=4*PSTR

def ph1_end(a):
    a.label("ph1_end")
    a("s_barrier")
    stamp(a,20)
    srd(a,20,16,WS_SIZE)
    a("""
    s_cmp_eq_u32 s3, 0
    s_cbranch_scc0 kf_noflag1
    v_readfirstlane_b32 s56, v252
    v_mov_b32 v2, 0
    s_mov_b32 s49, 0x20000
    s_cmp_eq_u32 s56, 0
    s_cbranch_scc0 kf_tag_done
    """)
    a.label("kf_tag")
    a("""
    global_load_dword v3, v2, s[54:55] sc1
    s_waitcnt vmcnt(0)
    v_readfirstlane_b32 s56, v3
    s_sub_u32 s49, s49, 1
    s_cmp_eq_u32 s49, 0
    s_cbranch_scc1 kf_tag_done
    s_cmp_eq_u32 s56, 0
    s_cbranch_scc0 kf_tag_done
    s_sleep 1
    s_branch kf_tag
    """)
    a.label("kf_tag_done")
    a(f"""
    s_cmp_ge_u32 s2, 192
    s_cbranch_scc1 kf_flagB
    s_lshl_b32 s36, s29, 4
    s_add_u32 s36, s36, s28
    s_lshl_b32 s36, s36, 2
    s_add_u32 s36, s36, {OFF_F1Q}
    s_branch kf_flag1
    """)
    a.label("kf_flagB")
    a(f"""
    s_sub_u32 s36, s2, 192
    s_lshl_b32 s36, s36, 2
    s_add_u32 s36, s36, {OFF_F1B}
    """)
    a.label("kf_flag1")
    a.sc_srd="s[20:23]"
    flag_store(a,36,4)
    a.sc_srd=None
    a.label("kf_noflag1")

def phase3(a):
    a.label("ph3_start")
    a.sc_srd="s[20:23]"
    a(f"""
    v_lshlrev_b32 v2, 4, v1                  ; lane*16
    s_cmp_ge_u32 s3, 4
    s_cbranch_scc1 ph3_B
    s_lshl_b32 s28, s18, 2
    s_and_b32 s29, s19, 3
    s_add_u32 s28, s28, s29                  ; rt
    s_lshr_b32 s29, s19, 2                   ; ct
    s_lshl_b32 s30, s28, 16
    s_lshl_b32 s31, s3, 13
    s_add_u32 s30, s30, s31
    s_add_u32 s30, s30, {OFF_O}
    s_mov_b32 s49, 0x20000
    v_and_b32 v3, 7, v1
    v_lshlrev_b32 v3, 10, v3
    v_bfe_u32 v4, v1, 3, 1
    v_lshl_add_u32 v3, v4, 15, v3
    v_add_u32 v3, 1020, v3
    """)
    a(f"""
    v_and_b32 v8, 31, v1
    v_lshrrev_b32 v4, 5, v1
    v_mul_u32_u24 v8, 272, v8
    v_lshl_add_u32 v8, v4, 4, v8
    s_mul_i32 s33, s3, {PSTR}
    v_add_u32 v208, s33, v8
    v_lshrrev_b32 v4, 3, v1                  ; rl
    v_and_b32 v5, 7, v1                      ; c
    s_lshl_b32 s33, s3, 4
    v_add_u32 v6, s33, v4
    v_mul_u32_u24 v7, 272, v6
    v_lshl_add_u32 v7, v5, 5, v7
    s_lshl_b32 s33, s28, 6
    v_add_u32 v6, s33, v6
    v_lshlrev_b32 v6, 11, v6
    v_lshl_add_u32 v6, v5, 4, v6
    s_lshl_b32 s35, s29, 7
    """)
    srd(a,24,52,2048*1024*2)
    if PREPOLL:
        a.label("ph3_pre")
        a("""
        buffer_load_dword v4, v3, s[20:23], s30 offen
        s_waitcnt vmcnt(0)
        v_cmp_eq_u32 vcc, -1, v4
        s_nop 1
        s_cmp_eq_u64 vcc, 0
        s_cbranch_scc1 ph3_pre_ok
        s_sub_u32 s49, s49, 1
        s_cmp_eq_u32 s49, 0
        s_cbranch_scc1 ph3_pre_ok
        s_sleep 1
        s_branch ph3_pre
        """)
        a.label("ph3_pre_ok")
        a("s_mov_b32 s49, 0x20000")
    OL=8; ACCS=[72,88,112,128]
    a.label("ph3_opoll")
    for hh in range(8):
        a(f"s_add_u32 s34, s30, {hh*1024}")
        a(f"buffer_load_dwordx4 {vr(OL+8*hh,4)}, v2, s[20:23], s34 offen")
        a(f"s_add_u32 s34, s34, 32768")
        a(f"buffer_load_dwordx4 {vr(OL+8*hh+4,4)}, v2, s[20:23], s34 offen")
    for hh in range(8):
        a(f"s_waitcnt vmcnt({2*(7-hh)})")
        b=OL+8*hh
        for nl in range(2):
            for st in range(2):
                acc=ACCS[nl*2+st]
                a(f"v_mfma_f32_32x32x16_bf16 {vr(acc,16)}, {vr(WOR+8*hh+4*nl,4)}, {vr(OL+8*hh+4*st,4)}, {'0' if hh==0 else vr(acc,16)}")
        if hh==0:
            a(f"v_max3_u32 v3, v{b}, v{b+1}, v{b+2}")
            a(f"v_max3_u32 v3, v3, v{b+3}, v{b+4}")
            a(f"v_max3_u32 v3, v3, v{b+5}, v{b+6}")
            a(f"v_max_u32 v3, v3, v{b+7}")
        else:
            for k in range(0,8,2): a(f"v_max3_u32 v3, v3, v{b+k}, v{b+k+1}")
    a("""
    v_cmp_eq_u32 vcc, -1, v3
    s_nop 1
    s_cmp_eq_u64 vcc, 0
    s_cbranch_scc1 ph3_ook
    s_sub_u32 s49, s49, 1
    s_cmp_eq_u32 s49, 0
    s_cbranch_scc1 ph3_ook
    s_nop 15
    s_sleep 2
    s_branch ph3_opoll
    """)
    a.label("ph3_ook")
    stamp(a,21)
    a("s_nop 7")
    for q in range(4):
        nl,st=q>>1,q&1
        if q==2: a("s_nop 3")
        for jj in range(4):
            a(f"ds_write_b128 v208, {vr(ACCS[q]+4*jj,4)} offset:{st*32*272+(32*nl+8*jj)*4}")
    bbar(a,"p3b")
    stamp(a,22)
    R=8
    for e in range(2):
        for w in range(4):
            for hf in range(2):
                a(f"ds_read_b128 {vr(R+32*e+8*w+4*hf,4)}, v7 offset:{w*PSTR+e*8*272+hf*16}")
    for e in range(2):
        a(f"s_waitcnt lgkmcnt({8*(1-e)})")
        b=R+32*e
        for k in range(8):
            a(f"v_add_f32 v{b+k}, v{b+k}, v{b+8+k}")
            a(f"v_add_f32 v{b+16+k}, v{b+16+k}, v{b+24+k}")
        for k in range(8): a(f"v_add_f32 v{b+k}, v{b+k}, v{b+16+k}")
        for k in range(4): a(f"v_cvt_pk_bf16_f32 v{80+4*e+k}, v{b+2*k}, v{b+2*k+1}")
        a(f"s_add_u32 s36, s35, {e*8*2048}")
        a(f"buffer_store_dwordx4 {vr(80+4*e,4)}, v6, s[24:27], s36 offen{OUTSC}")
    if asm.STAMP:
        a("s_waitcnt vmcnt(0)"); stamp(a,23); stamp_dump(a,0 if asm.F12 else 1)
    a("s_endpgm")
    a.label("ph3_B")
    VM,VQ,VMF,VQF=3,4,5,6
    R16,TWc,TWs,A32=8,16,24,32
    AB=64; P=80; D1=88; D2=112; TMP=128
    a(f"""
    s_sub_u32 s28, s3, 4                     ; jv
    s_lshr_b32 s29, s19, 3
    s_lshl_b32 s29, s29, 3
    s_add_u32 s29, s29, s18                  ; n2
    s_and_b32 s30, s19, 7                    ; a
    """)
    a(f"""
    v_and_b32 v{VM}, 15, v1
    v_lshrrev_b32 v{VQ}, 4, v1
    v_cvt_f32_u32 v{VMF}, v{VM}
    v_lshlrev_b32 v{VQF}, 2, v{VQ}
    v_cvt_f32_u32 v{VQF}, v{VQF}
    """)
    srd(a,24,52,2048*1024*2)
    gen_consts(a, True, 2.0**-21, R16, TWc, TWs, A32, TMP, VMF, VQF)
    a(f"""
    v_lshl_add_u32 v{TMP}, v{VQ}, 7, v{VM}           ; 128q + m
    v_sub_u32 v{TMP+1}, 512, v{TMP}
    v_cmp_gt_u32 vcc, 32, v1                         ; q<2 <=> lane<32
    v_mov_b32 v{TMP+2}, -1.0
    v_mov_b32 v{TMP+3}, -512
    v_cndmask_b32 v{TMP}, v{TMP+1}, v{TMP}, vcc
    v_cndmask_b32 v7, v{TMP+2}, 1.0, vcc             ; sigma
    v_mov_b32 v{TMP+4}, 512
    v_cndmask_b32 v{TMP+3}, v{TMP+3}, v{TMP+4}, vcc  ; step
    s_lshl_b32 s33, s28, 3
    s_add_u32 s33, s33, {k2.K2_E}
    v_lshl_add_u32 v{TMP}, v{TMP}, 5, s33            ; base
    v_mov_b32 v{TMP+5}, s33
    v_cmp_eq_u32 vcc, 32, v1
    v_add_u32 v{TMP+7}, v{TMP}, v{TMP+3}             ; addr e=1
    s_nop 0
    v_cndmask_b32 v{TMP+6}, v{TMP}, v{TMP+5}, vcc
    s_mov_b64 s[36:37], vcc
    s_waitcnt vmcnt(0)
    """)
    bbar(a,"p3d",8)
    stamp(a,21)
    a(f"ds_read_b64 {vr(AB,2)}, v{TMP+6}")
    for e in range(1,8):
        i,t=e>>1,e&1
        a(f"ds_read_b64 {vr(AB+2*(4*t+i),2)}, v{TMP+7}")
        if e<7: a(f"v_add_u32 v{TMP+7}, v{TMP+7}, v{TMP+3}")
    a(f"""
    v_cmp_eq_u32 vcc, 0, v1
    s_nop 1
    s_or_b64 s[38:39], vcc, s[36:37]
    v_cndmask_b32 v{TMP+8}, v7, 0, s[38:39]          ; sigma0
    s_waitcnt lgkmcnt(0)
    """)
    for t in range(2):
        for i in range(4):
            A,B=AB+2*(4*t+i),AB+2*(4*t+i)+1
            ar,ai,br,bi=TMP+10,TMP+11,TMP+12,TMP+13
            a(f"v_lshlrev_b32 v{ar}, 16, v{A}")
            a(f"v_and_b32 v{ai}, 0xffff0000, v{A}")
            a(f"v_lshlrev_b32 v{br}, 16, v{B}")
            a(f"v_and_b32 v{bi}, 0xffff0000, v{B}")
            sg=7
            if t==0 and i==0:
                a(f"v_cndmask_b32 v{ar}, v{ar}, v{ai}, s[36:37]")
                a(f"v_cndmask_b32 v{br}, v{br}, v{bi}, s[36:37]")
                sg=TMP+8
            a(f"v_fma_f32 v{TMP+14}, -v{sg}, v{bi}, v{ar}")
            a(f"v_fma_f32 v{TMP+15}, v{sg}, v{ai}, v{br}")
            a(f"v_cvt_pk_bf16_f32 v{P+4*t+i}, v{TMP+14}, v{TMP+15}")
    a("s_nop 1")
    for t in range(2):
        for part in range(2):
            a(f"v_mfma_f32_16x16x32_bf16 {vr(D1+8*t+4*part,4)}, {vr(P+4*t,4)}, {vr(R16+4*part,4)}, 0")
    a("s_nop 7")
    for t in range(2):
        twiddle(a, D1+8*t, D1+8*t+4, TWc+4*t, TWs+4*t, P+4*t, TMP)
    a("s_nop 1")
    for t in range(2):
        for tp in range(2):
            for part in range(2):
                d=D2+8*tp+4*part
                a(f"v_mfma_f32_16x16x32_bf16 {vr(d,4)}, {vr(P+4*t,4)}, {vr(A32+((tp*2+part)*2+t)*4,4)}, {'0' if t==0 else vr(d,4)}")
    a(f"""
    v_lshlrev_b32 v{TMP}, 5, v{VM}
    v_lshl_add_u32 v{TMP}, v{VQ}, 3, v{TMP}
    s_lshl_b32 s33, s30, 3
    s_lshl_b32 s34, s28, 1
    s_add_u32 s33, s33, s34
    s_lshl_b32 s33, s33, 5
    s_add_u32 s33, s33, s29
    s_lshl_b32 s33, s33, 11
    s_add_u32 s33, s33, 1024
    s_nop 3
    """)
    for part in range(2):
        for tp in range(2):
            d=D2+8*tp+4*part
            o=TMP+2+2*(part*2+tp)
            a(f"v_cvt_pk_bf16_f32 v{o}, v{d}, v{d+1}")
            a(f"v_cvt_pk_bf16_f32 v{o+1}, v{d+2}, v{d+3}")
            a(f"s_add_u32 s34, s33, {part*32*2048+tp*512}")
            a(f"buffer_store_dwordx2 {vr(o,2)}, v{TMP}, s[24:27], s34 offen{OUTSC}")
    if asm.STAMP:
        a("s_waitcnt vmcnt(0)"); stamp(a,23); stamp_dump(a,0 if asm.F12 else 1)
    a.sc_srd=None

def build_k23():
    asm.FUSED=True; asm.F12=False; asm.F23=True
    a=Asm()
    asm.SMAP={0:0,1:4,2:5,3:6,4:7,6:8,8:9,21:10,22:11,23:12}
    if asm.STAMP==3: asm.SMAP={0:0,2:1,3:2,4:3,6:4,8:5,21:6,23:7}
    if asm.STAMP==3 and os.environ.get("SLOOP"): asm.SMAP={0:0,2:1,30:2,3:3,4:4,31:5,32:6,6:7}
    k2.build_k2(a)
    phase3(a)
    a.label("k2_end")
    a("s_endpgm")
    asm.FUSED=False; asm.F23=False; asm.SMAP=None
    return a

def build_fused():
    asm.FUSED=True; asm.F12=True; asm.F23=True
    a=Asm()
    asm.SMAP={0:0,1:1,3:2,20:3}
    k1.build_k1(a)
    ph1_end(a)
    asm.SMAP={9:4,2:5,3:6,4:7,6:8,8:9,21:10,22:11,23:12}
    k2.build_k2(a)
    phase3(a)
    a.label("k1_end")
    a.label("k2_end")
    a("s_endpgm")
    return a
```

```python
import struct
def f2u(x): return struct.unpack("<I",struct.pack("<f",x))[0]
FUSED=False
F12=False
F23=False
class Asm:
    def __init__(self):
        self.lines=[]
        self.sc_srd=None
    def __call__(self, s):
        for l in s.strip("\n").split("\n"):
            l=l.strip()
            if not l: continue
            if (FUSED or getattr(self,'force_sc',False)) and self.sc_srd and l.startswith("buffer_") and self.sc_srd in l:
                code,_,cm=l.partition(";")
                code=code.rstrip()
                sfx=getattr(self,'sc_sfx'," sc1")
                if code.endswith(" lds"): code=code[:-4]+sfx+" lds"
                else: code+=sfx
                l=code
            self.lines.append("    "+l)
    def label(self,name): self.lines.append(name+":")
    def comment(self,s): self.lines.append("    ; "+s)
    def raw(self,s): self.lines.append(s)
    def text(self): return "\n".join(self.lines)+"\n"
def vr(b,n=1): return f"v{b}" if n==1 else f"v[{b}:{b+n-1}]"
def sr(b,n=1): return f"s{b}" if n==1 else f"s[{b}:{b+n-1}]"

STAMP=False
OFF_DBG=0x0F00000
SMAP=None
def stamp(a,k,real=False):
    if not STAMP: return
    if SMAP is not None:
        if k not in SMAP: return
        k=SMAP[k]
    a(f"s_waitcnt lgkmcnt(0)")
    if STAMP==3:
        if k>=8: k=7
        a(f"s_memrealtime s[{70+2*k}:{71+2*k}]")
        a(f"s_memtime s[{86+2*k}:{87+2*k}]")
    else:
        a(f"{'s_memtime' if STAMP==2 else 's_memrealtime'} s[{70+2*k}:{71+2*k}]")
    a(f"s_waitcnt lgkmcnt(0)")
_dumpn=[0]
def stamp_dump(a,kid,wsreg=16):
    if not STAMP: return
    if STAMP==4:
        _dumpn[0]+=1; n=_dumpn[0]
        a("s_mov_b64 exec, -1")
        a("s_or_b32 s68, s2, s3")
        a("s_cmp_eq_u32 s68, 0")
        a(f"s_cbranch_scc0 dbgdump_skip{n}")
        a("v_mov_b32 v200, 0")
        for k in range(1,14):
            a(f"s_sub_u32 s68, s{70+2*k}, s70")
            a(f"v_mov_b32 v201, s68")
            a(f"global_store_dword v200, v201, s[54:55] offset:{4*k}")
            a("s_nop 1")
        a("s_waitcnt vmcnt(0)")
        a.label(f"dbgdump_skip{n}")
        return
    a("s_mov_b64 exec, -1")
    a("s_lshl_b32 s68, s2, 3")
    a("s_add_u32 s68, s68, s3")
    a("s_lshl_b32 s68, s68, 7")
    a(f"s_add_u32 s68, s68, {OFF_DBG+kid*0x40000}")
    a(f"s_add_u32 s64, s{wsreg}, s68")
    a(f"s_addc_u32 s65, s{wsreg+1}, 0")
    a("v_mov_b32 v200, 0")
    for k in range(32):
        a(f"v_mov_b32 v201, s{70+k}")
        a(f"global_store_dword v200, v201, s[64:65] offset:{4*k}")
        a("s_nop 1")
    a("s_waitcnt vmcnt(0)")

_pf=[0]
def code_prefetch(a, target, end, nblk, voff, vdst, back=False):
    _pf[0]+=1; n=_pf[0]
    a("s_getpc_b64 s[66:67]")
    a.label(f"pf_here{n}")
    if not back:
        a(f"s_add_u32 s66, s66, {target}-pf_here{n}")
        a("s_addc_u32 s67, s67, 0")
    else:
        a(f"s_sub_u32 s66, s66, pf_here{n}-{target}")
        a("s_subb_u32 s67, s67, 0")
    a(f"v_lshlrev_b32 v{voff}, 7, v1")
    a(f"s_mov_b32 s64, {end}-{target}-4")
    for k in range(nblk):
        a(f"v_min_u32 v{voff+1}, s64, v{voff}")
        a(f"global_load_dword v{vdst}, v{voff+1}, s[66:67]")
        if k+1<nblk: a(f"v_add_u32 v{voff}, 8192, v{voff}")

def page_touch(a, base, lastoff, voff, vdst):
    a(f"v_min_u32 v{voff}, 15, v1")
    a(f"v_lshlrev_b32 v{voff}, 21, v{voff}")
    a(f"v_min_u32 v{voff}, {lastoff}, v{voff}")
    a(f"global_load_dword v{vdst}, v{voff}, s[{base}:{base+1}]")
```

```python
import asm
from asm import *
from layout import *

K1_LDS = 133120

def srd(a, d, base, size):
    a(f"s_mov_b32 s{d}, s{base}")
    a(f"s_and_b32 s{d+1}, s{base+1}, 0xffff")
    a(f"s_mov_b32 s{d+2}, {size}")
    a(f"s_mov_b32 s{d+3}, 0x20000")

_fin=[0]
def fin(a, restore_exec=False):
    if asm.F12:
        if restore_exec: a("s_mov_b64 exec, -1")
        _fin[0]+=1
        a("s_cmp_eq_u32 s3, 0")
        a(f"s_cbranch_scc0 k1_fin{_fin[0]}")
        a("v_mov_b32 v253, 0")
        a("global_load_dword v252, v253, s[54:55] sc1")
        a.label(f"k1_fin{_fin[0]}")
        a("s_waitcnt vmcnt(0)")
        a("s_branch ph1_end")
    else: a("s_endpgm")

def k1_prologue(a):
    a("""
    s_cmp_ge_u32 s2, 256
    s_cbranch_scc1 k1_end
    s_load_dwordx4 s[4:7], s[0:1], 0
    s_load_dwordx2 s[8:9], s[0:1], 16
    s_load_dwordx2 s[10:11], s[0:1], 24
    s_load_dwordx4 s[12:15], s[0:1], 32
    s_load_dwordx2 s[16:17], s[0:1], 64
    """)
    if asm.F12:
        a("""
        s_load_dwordx4 s[52:55], s[0:1], 48
        """)
    a("""
    v_and_b32 v1, 63, v0
    v_lshrrev_b32 v2, 6, v0
    s_nop 0
    v_readfirstlane_b32 s3, v2
    """)
    if asm.F12:
        a("""
        s_or_b32 s57, s2, s3
        s_cmp_eq_u32 s57, 0
        s_cbranch_scc0 kf_nononce
        s_memrealtime s[56:57]
        s_waitcnt lgkmcnt(0)
        s_or_b32 s56, s56, 1
        v_mov_b32 v2, 0
        v_mov_b32 v3, s56
        s_mov_b64 exec, 1
        global_store_dword v2, v3, s[54:55] sc1
        s_mov_b64 exec, -1
        """)
        a.label("kf_nononce")
    stamp(a,0)
    a("""
    s_cmp_ge_u32 s2, 192
    s_cbranch_scc1 k1_B
    s_and_b32 s18, s2, 7
    s_lshr_b32 s19, s2, 3
    s_and_b32 s28, s18, 3
    s_lshl_b32 s28, s28, 2
    s_and_b32 s29, s19, 3
    s_add_u32 s28, s28, s29          ; s28 = rb
    s_lshr_b32 s29, s18, 2
    s_mul_i32 s29, s29, 6
    s_lshr_b32 s30, s19, 2
    s_add_u32 s29, s29, s30          ; s29 = cb
    s_cmp_ge_u32 s3, 4
    s_cbranch_scc0 k1_compute
    """)

def k1_loader(a):
    a.comment("---- loader waves 4..7 ----")
    a("""
    s_sub_u32 s30, s3, 4             ; lw
    v_lshrrev_b32 v2, 3, v1          ; l>>3
    v_lshrrev_b32 v3, 4, v1          ; l>>4
    v_and_b32 v4, 7, v1
    v_xor_b32 v4, v4, v3
    v_lshlrev_b32 v4, 4, v4
    v_lshl_add_u32 v4, v2, 10, v4    ; voffX0
    v_xor_b32 v5, 64, v4             ; voffX1
    v_and_b32 v6, 15, v1
    v_lshlrev_b32 v7, 2, v3
    v_xor_b32 v6, v6, v7
    v_lshlrev_b32 v6, 4, v6
    v_mul_u32_u24 v7, 3072, v3
    v_add_u32 v6, v6, v7             ; voffW
    s_lshl_b32 s31, s28, 17          ; rb*128*1024
    s_lshl_b32 s32, s30, 15          ; lw*32*1024
    s_add_u32 s31, s31, s32          ; sX0
    s_mul_i32 s32, s30, 16*3072
    s_lshl_b32 s33, s29, 8
    s_add_u32 s32, s32, s33          ; sW0
    s_lshl_b32 s33, s30, 12
    s_waitcnt lgkmcnt(0)
    """)
    stamp(a,4)
    srd(a,20,4,2097152); srd(a,24,6,1572864)
    import os
    ROT=int(os.environ.get("K1ROT","1"))
    if ROT:
        a("""
        s_lshr_b32 s35, s19, 2
        s_and_b32 s36, s19, 3
        s_lshl_b32 s36, s36, 1
        s_add_u32 s35, s35, s36
        """)
    else: a("s_mov_b32 s35, 0")
    def issue(c):
        slot=c&3
        a(f"s_add_u32 s36, s35, {c}")
        a("s_and_b32 s36, s36, 7")
        a("s_lshl_b32 s37, s36, 7")
        a("s_add_u32 s37, s37, s31")
        a(f"s_mul_i32 s38, s36, {64*3072}")
        a("s_add_u32 s38, s38, s32")
        for e in range(4):
            a(f"s_add_u32 m0, s33, {slot*32768+e*1024}")
            a(f"s_add_u32 s34, s37, {e*8192}")
            a(f"buffer_load_dwordx4 v{4+(e&1)}, s[20:23], s34 offen lds")
        for e in range(4):
            a(f"s_add_u32 m0, s33, {slot*32768+16384+e*1024}")
            a(f"s_add_u32 s34, s38, {4*e*3072}")
            a(f"buffer_load_dwordx4 v6, s[24:27], s34 offen lds")
    import os
    LA=int(os.environ.get("K1LA","2"))
    issued=-1
    for c in range(min(LA,4)):
        issue(c); issued=c
        if c==0: stamp(a,5)
    stamp(a,6)
    for c in range(8):
        n=8*(issued-c)
        a(f"s_waitcnt vmcnt({n})")
        a("s_barrier")
        if c in (0,3,7): stamp(a,{0:1,3:2,7:3}[c])
        while issued<min(7,c+LA,c+3):
            issued+=1; issue(issued)
    if not asm.F12: stamp_dump(a,0)
    fin(a)

def k1_compute(a):
    import os
    a.label("k1_compute")
    import os
    qsc=os.environ.get("K1QSC","sc1")
    a.sc_srd="s[20:23]" if (asm.F12 or qsc!="none") else None
    if qsc!="none" and not asm.F12:
        a.force_sc=True; a.sc_sfx=" "+qsc.replace("_"," ")
    XA,XB,WA,WB=2,6,10,12
    a("""
    s_lshr_b32 s30, s3, 1            ; wm
    s_and_b32 s31, s3, 1             ; wn
    v_and_b32 v14, 31, v1            ; r
    v_lshrrev_b32 v15, 5, v1         ; h
    v_lshrrev_b32 v16, 1, v14
    v_and_b32 v16, 7, v16            ; (r>>1)&7
    v_xor_b32 v16, v16, v15          ; h ^ c
    v_lshlrev_b32 v16, 4, v16
    v_lshl_add_u32 v16, v14, 7, v16  ; r*128 + slot*16
    s_lshl_b32 s32, s30, 13          ; wm*64*128
    v_add_u32 v2, s32, v16
    v_xor_b32 v3, 32, v2
    v_xor_b32 v4, 64, v2
    v_xor_b32 v5, 96, v2
    v_add_u32 v6, 0x10000, v2
    v_add_u32 v7, 0x10000, v3
    v_add_u32 v8, 0x10000, v4
    v_add_u32 v9, 0x10000, v5
    v_and_b32 v16, 15, v1
    v_lshrrev_b32 v16, 2, v16        ; r4
    v_lshl_add_u32 v17, v15, 3, v16  ; 8h + r4
    v_lshlrev_b32 v17, 8, v17        ; *256
    s_lshl_b32 s32, s31, 1
    v_xor_b32 v18, s32, v16          ; nt0 ^ r4
    v_lshl_add_u32 v17, v18, 6, v17
    v_lshrrev_b32 v18, 4, v1
    v_and_b32 v18, 1, v18
    v_lshl_add_u32 v17, v18, 5, v17  ; + cg*32
    v_and_b32 v18, 3, v1
    v_lshl_add_u32 v17, v18, 3, v17  ; + c4*8
    v_add_u32 v10, 16384, v17
    v_xor_b32 v11, 64, v10
    v_add_u32 v12, 0x10000, v10
    v_add_u32 v13, 0x10000, v11
    """)
    if os.environ.get("K1PF","0")=="1":
        a("s_cmp_eq_u32 s3, 0")
        a("s_cbranch_scc0 k1_nopf")
        code_prefetch(a,"k1_compute","k1_B",2,250,252,back=True)
        a.label("k1_nopf")
    for i in range(64): a(f"v_mov_b32 v{64+i}, 0")
    a("s_waitcnt lgkmcnt(0)")
    if os.environ.get("TOUCH","0")=="1" and not asm.F12:
        a("s_cmp_eq_u32 s3, 1")
        a("s_cbranch_scc0 k1_notouch")
        a("s_load_dwordx2 s[40:41], s[0:1], 48")
        page_touch(a,16,0xEFFFFC,250,251)
        a("s_waitcnt lgkmcnt(0)")
        page_touch(a,40,4194300,250,252)
        a.label("k1_notouch")
    srd(a,20,16,WS_SIZE)
    a("""
    s_cmp_ge_u32 s29, 8
    s_cbranch_scc1 k1_vloop
    """)
    bufs=[(16,20,24,28),(32,36,40,44)]
    def reads(c,ks,buf):
        slot=c&3
        xa=(XA if slot<2 else XB)+ks; wa=(WA if slot<2 else WB)
        so=(slot&1)*32768
        X0,X1,W0,W1=buf
        a(f"ds_read_b128 {vr(X0,4)}, v{xa} offset:{so}")
        a(f"ds_read_b64_tr_b16 {vr(W0,2)}, v{wa} offset:{so+ks*4096}")
        a(f"ds_read_b64_tr_b16 {vr(W0+2,2)}, v{wa} offset:{so+ks*4096+1024}")
        a(f"ds_read_b128 {vr(X1,4)}, v{xa} offset:{so+4096}")
        a(f"ds_read_b64_tr_b16 {vr(W1,2)}, v{wa+1} offset:{so+ks*4096}")
        a(f"ds_read_b64_tr_b16 {vr(W1+2,2)}, v{wa+1} offset:{so+ks*4096+1024}")
    def loop(vtype):
        a("s_barrier")
        stamp(a,1)
        reads(0,0,bufs[0])
        for c in range(8):
            for ks in range(4):
                j=4*c+ks
                cur=bufs[j&1]; nxt=bufs[(j+1)&1]
                if ks<3:
                    reads(c,ks+1,nxt)
                    a("s_waitcnt lgkmcnt(6)")
                else:
                    a("s_waitcnt lgkmcnt(0)")
                    if c<7:
                        a("s_barrier")
                        reads(c+1,0,nxt)
                X0,X1,W0,W1=cur
                for ntl in range(2):
                    for rt in range(2):
                        acc=64+(ntl*2+rt)*16
                        W=(W0,W1)[ntl]; X=(X0,X1)[rt]
                        if not vtype: a(f"v_mfma_f32_32x32x16_bf16 {vr(acc,16)}, {vr(W,4)}, {vr(X,4)}, {vr(acc,16)}")
                        else:         a(f"v_mfma_f32_32x32x16_bf16 {vr(acc,16)}, {vr(X,4)}, {vr(W,4)}, {vr(acc,16)}")
            if c==3: stamp(a,2)
        stamp(a,3)
    loop(False)
    a("""
    s_and_b32 s33, s29, 3
    s_lshl_b32 s33, s33, 3
    s_lshl_b32 s34, s31, 2
    s_add_u32 s33, s33, s34          ; head0
    s_lshl_b32 s34, s28, 2
    s_lshl_b32 s35, s30, 1
    s_add_u32 s34, s34, s35          ; tile0
    s_cmp_ge_u32 s29, 4
    s_cbranch_scc1 k1_kepi
    """)
    a(f"""
    v_lshlrev_b32 v2, 9, v15
    v_lshl_add_u32 v2, v14, 4, v2    ; h*512 + r*16
    s_lshl_b32 s35, s33, 16
    s_lshl_b32 s36, s34, 10
    s_add_u32 s35, s35, s36
    s_add_u32 s35, s35, {OFF_Q}
    s_mov_b32 s37, {hex(f2u(QSCALE))}
    s_nop 7
    """)
    for ntl in range(2):
        for rt in range(2):
            acc=64+(ntl*2+rt)*16
            for i in range(16): a(f"v_mul_f32 v{acc+i}, s37, v{acc+i}")
            t=16+(ntl*2+rt)*8
            for i in range(8): a(f"v_cvt_pk_bf16_f32 v{t+i}, v{acc+2*i}, v{acc+2*i+1}")
            for hh in range(2):
                a(f"s_add_u32 s36, s35, {(2*ntl+hh)*65536+rt*1024}")
                a(f"buffer_store_dwordx4 {vr(t+4*hh,4)}, v2, s[20:23], s36 offen")
    if asm.STAMP and not asm.F12:
        stamp(a,5); a("s_waitcnt vmcnt(0)"); stamp(a,4); stamp_dump(a,0)
    fin(a)
    a.label("k1_kepi")
    a(f"""
    v_and_b32 v2, 0x13, v14
    v_and_b32 v3, 4, v14
    v_lshl_or_b32 v2, v3, 1, v2
    v_and_b32 v3, 8, v14
    v_lshrrev_b32 v3, 1, v3
    v_or_b32 v2, v2, v3              ; pi(r)
    v_lshlrev_b32 v2, 4, v2
    v_lshl_add_u32 v2, v15, 10, v2   ; h*1024 + pi(r)*16
    s_mul_i32 s35, s33, {KV_HEAD}
    s_mul_i32 s36, s34, {KV_TILE}
    s_add_u32 s35, s35, s36
    s_add_u32 s35, s35, {OFF_KV}
    s_nop 5
    """)
    for ntl in range(2):
        for rt in range(2):
            acc=64+(ntl*2+rt)*16
            t=16+(ntl*2+rt)*8
            for i in range(8): a(f"v_cvt_pk_bf16_f32 v{t+i}, v{acc+2*i}, v{acc+2*i+1}")
            for hh in range(2):
                a(f"s_add_u32 s36, s35, {(2*ntl+hh)*KV_HEAD+rt*KV_TILE}")
                a(f"buffer_store_dwordx4 {vr(t+4*hh,4)}, v2, s[20:23], s36 offen")
    for q in range(4):
        acc=64+q*16
        for hh in range(2):
            a(f"v_mul_f32 v{48+2*q+hh}, v{acc+8*hh}, v{acc+8*hh}")
        for i in range(1,8):
            for hh in range(2):
                a(f"v_fmac_f32 v{48+2*q+hh}, v{acc+8*hh+i}, v{acc+8*hh+i}")
    a("s_nop 1")
    for q in range(4): a(f"v_permlane32_swap_b32 v{48+2*q}, v{49+2*q}")
    a("s_nop 1")
    for q in range(4): a(f"v_add_f32 v{48+2*q}, v{48+2*q}, v{49+2*q}")
    for sh in ("row_shr:1","row_shr:2","row_shr:4","row_shr:8"):
        for q in range(4): a(f"v_max_f32_dpp v{48+2*q}, v{48+2*q}, v{48+2*q} {sh} row_mask:0xf bank_mask:0xf bound_ctrl:0")
    for q in range(4): a(f"v_max_f32_dpp v{48+2*q}, v{48+2*q}, v{48+2*q} row_bcast:15 row_mask:0xa bank_mask:0xf")
    a(f"""
    v_lshlrev_b32 v3, 8, v15
    s_lshl_b32 s35, s33, 8
    s_lshl_b32 s36, s34, 2
    s_add_u32 s35, s35, s36
    s_add_u32 s35, s35, {OFF_KN}
    s_mov_b32 exec_lo, 0x80000000
    s_mov_b32 exec_hi, 0x80000000
    """)
    for ntl in range(2):
        for rt in range(2):
            q=ntl*2+rt
            a(f"s_add_u32 s36, s35, {2*ntl*256+rt*4}")
            a(f"buffer_store_dword v{48+2*q}, v3, s[20:23], s36 offen")
    if asm.STAMP and not asm.F12:
        stamp(a,5); a("s_waitcnt vmcnt(0)"); stamp(a,4); stamp_dump(a,0)
    fin(a,True)
    a.label("k1_vloop")
    loop(True)
    a(f"""
    s_and_b32 s33, s29, 3
    s_lshl_b32 s33, s33, 3
    s_lshl_b32 s34, s31, 2
    s_add_u32 s33, s33, s34          ; head0
    s_lshl_b32 s34, s28, 2
    s_lshl_b32 s35, s30, 1
    s_add_u32 s34, s34, s35          ; tile0
    v_lshrrev_b32 v2, 4, v14         ; n>>4
    s_mov_b32 s36, {KV_HEAD}
    v_mul_lo_u32 v2, v2, s36
    v_lshl_add_u32 v2, v15, 10, v2
    v_and_b32 v3, 15, v14
    v_lshl_add_u32 v2, v3, 4, v2
    s_mul_i32 s35, s33, {KV_HEAD}
    s_mul_i32 s36, s34, {KV_TILE}
    s_add_u32 s35, s35, s36
    s_add_u32 s35, s35, {OFF_KV+512}
    """)
    for ntl in range(2):
        for rt in range(2):
            acc=64+(ntl*2+rt)*16
            t=16+(ntl*2+rt)*8
            for i in range(8): a(f"v_cvt_pk_bf16_f32 v{t+i}, v{acc+2*i}, v{acc+2*i+1}")
            for u in range(2):
                a(f"s_add_u32 s36, s35, {2*ntl*KV_HEAD+rt*KV_TILE+u*256}")
                a(f"buffer_store_dwordx4 {vr(t+4*u,4)}, v2, s[20:23], s36 offen")
    if asm.STAMP and not asm.F12:
        stamp(a,5); a("s_waitcnt vmcnt(0)"); stamp(a,4); stamp_dump(a,0)
    fin(a,True)

def gen_consts(a, inv, scale, R16, TWc, TWs, A32, tmp, vm, vq):
    T=tmp
    a(f"v_mul_f32 v{T}, {hex(f2u(1/16.))}, v{vm}")
    for i in range(4):
        a(f"v_add_f32 v{T+1+i}, {float(i)}, v{vq}" if i else f"v_mov_b32 v{T+1}, v{vq}")
    for i in range(4): a(f"v_mul_f32 v{T+1+i}, v{T+1+i}, v{T}")
    for i in range(4):
        a(f"v_cos_f32 v{T+5+i}, v{T+1+i}")
        a(f"v_sin_f32 v{T+9+i}, v{T+1+i}")
    if scale!=1.0:
        a(f"s_mov_b32 s40, {hex(f2u(scale))}")
        for i in range(8): a(f"v_mul_f32 v{T+5+i}, s40, v{T+5+i}")
    else: a("s_nop 0")
    for i in range(4):
        c,s=T+5+i,T+9+i
        if not inv:
            a(f"v_cvt_pk_bf16_f32 v{R16+i}, v{c}, v{s}")
            a(f"v_cvt_pk_bf16_f32 v{R16+4+i}, -v{s}, v{c}")
        else:
            a(f"v_cvt_pk_bf16_f32 v{R16+i}, v{c}, -v{s}")
            a(f"v_cvt_pk_bf16_f32 v{R16+4+i}, v{s}, v{c}")
    a(f"v_mul_f32 v{T}, {hex(f2u(1/512.))}, v{vm}")
    for t in range(2):
        for i in range(4):
            k=16*t+i
            if k==0: a(f"v_mov_b32 v{T+1}, v{vq}")
            else:
                a(f"v_add_f32 v{T+1+4*t+i}, {hex(f2u(float(k)))}, v{vq}")
    for e in range(8): a(f"v_mul_f32 v{T+1+e}, v{T+1+e}, v{T}")
    for e in range(8):
        a(f"v_cos_f32 v{TWc+e}, v{T+1+e}")
        a(f"v_sin_f32 v{TWs+e}, {'-' if inv else ''}v{T+1+e}")
    gen_a32(a, inv, A32, tmp, vm, vq)

def gen_a32(a, inv, A32, tmp, vm, vq):
    T=tmp
    for t in range(2):
        for i in range(4):
            k=16*t+i
            if k==0: a(f"v_mov_b32 v{T+1}, v{vq}")
            else: a(f"v_add_f32 v{T+1+4*t+i}, {hex(f2u(float(k)))}, v{vq}")
    a(f"v_mul_f32 v{T+9}, {hex(f2u(1/32.))}, v{vm}")
    a(f"v_add_f32 v{T+10}, 0.5, v{T+9}")
    for tp in range(2):
        for e in range(8): a(f"v_mul_f32 v{T+11+e}, v{T+1+e}, v{T+9+tp}")
        for e in range(8):
            a(f"v_cos_f32 v{T+19+e}, v{T+11+e}")
            a(f"v_sin_f32 v{T+11+e}, v{T+11+e}")
        a("s_nop 0")
        for t in range(2):
            for i in range(4):
                e=4*t+i; c,s=T+19+e,T+11+e
                re=A32+((tp*2+0)*2+t)*4+i; im=A32+((tp*2+1)*2+t)*4+i
                if not inv:
                    a(f"v_cvt_pk_bf16_f32 v{re}, v{c}, v{s}")
                    a(f"v_cvt_pk_bf16_f32 v{im}, -v{s}, v{c}")
                else:
                    a(f"v_cvt_pk_bf16_f32 v{re}, v{c}, -v{s}")
                    a(f"v_cvt_pk_bf16_f32 v{im}, v{s}, v{c}")

def twiddle(a, re, im, c, s, out, tmp):
    T,U=tmp,tmp+4
    for p in (0,2):
        a(f"v_pk_mul_f32 {vr(T+p,2)}, {vr(re+p,2)}, {vr(c+p,2)}")
        a(f"v_pk_mul_f32 {vr(U+p,2)}, {vr(im+p,2)}, {vr(c+p,2)}")
    for p in (0,2):
        a(f"v_pk_fma_f32 {vr(T+p,2)}, {vr(im+p,2)}, {vr(s+p,2)}, {vr(T+p,2)}")
        a(f"v_pk_fma_f32 {vr(U+p,2)}, {vr(re+p,2)}, {vr(s+p,2)}, {vr(U+p,2)} neg_lo:[1,0,0] neg_hi:[1,0,0]")
    for i in range(4): a(f"v_cvt_pk_bf16_f32 v{out+i}, v{T+i}, v{U+i}")

XR_STRIDE=1056
B1_MB=33792
B1_WTL=66560
B1_MBW=100352

def k1_B(a):
    a.label("k1_B")
    import os
    a.sc_srd="s[24:27]" if (asm.F12 or os.environ.get("K1BSC","1")=="1") else None
    a.force_sc=True; a.sc_sfx=" sc1"
    VM,VQ,VMF,VQF=2,3,4,5
    R16,TWc,TWs,A32=8,16,24,32
    PIN=64
    D1=80
    D2=112
    TMP=144
    WOL,WOH=192,196
    ABL=200
    a(f"""
    s_sub_u32 s18, s2, 192           ; b
    s_lshr_b32 s19, s18, 1           ; n2
    s_and_b32 s28, s18, 1            ; hf
    v_and_b32 v{VM}, 15, v1
    v_lshrrev_b32 v{VQ}, 4, v1
    v_lshlrev_b32 v6, 4, v1          ; lane*16
    s_waitcnt lgkmcnt(0)
    """)
    srd(a,20,10,2097152)
    srd(a,24,16,WS_SIZE)
    srd(a,44,8,524288)
    import os
    def b_loads():
        a(f"""
        s_lshl_b32 s29, s28, 5
        s_lshl_b32 s30, s3, 2
        s_add_u32 s29, s29, s30
        s_lshl_b32 s29, s29, 5
        s_add_u32 s29, s29, s19          ; s0
        s_lshl_b32 s29, s29, 10
        s_mul_i32 s30, s3, {4*XR_STRIDE}
        """)
        for e in range(4):
            a(f"s_add_u32 m0, s30, {e*XR_STRIDE}")
            a(f"s_add_u32 s31, s29, {e*32*1024}")
            a(f"buffer_load_dwordx4 v6, s[20:23], s31 offen lds")
        a(f"""
        s_lshl_b32 s32, s18, 3
        s_add_u32 s32, s32, s3           ; idx
        s_lshr_b32 s33, s32, 5
        s_lshl_b32 s33, s33, 6
        s_and_b32 s34, s32, 31
        s_lshl_b32 s34, s34, 14
        s_add_u32 s33, s33, s34
        v_and_b32 v7, 31, v1
        v_lshlrev_b32 v7, 1, v7
        v_lshrrev_b32 v{TMP}, 5, v1
        v_lshl_add_u32 v7, v{TMP}, 12, v7    ; h*4 rows*1024 + n*2
        """)
        for j8 in range(8):
            d=8*(j8>>2)+(j8&3)
            a(f"s_add_u32 s34, s33, {d*1024}")
            dst=(WOL if j8%2==0 else WOH)+j8//2
            a(f"buffer_load_ushort v{dst}, v7, s[44:47], s34 offen")
        a(f"""
        s_and_b32 s35, s18, 7
        s_lshl_b32 s35, s35, 3
        s_add_u32 s35, s35, s3
        s_lshr_b32 s36, s18, 3
        s_and_b32 s37, s36, 3            ; q
        s_lshr_b32 s36, s36, 2           ; tp
        s_lshl_b32 s36, s36, 2
        s_add_u32 s36, s36, s37          ; 4tp+q
        s_lshl_b32 s36, s36, 8           ; *4*64
        s_add_u32 s35, s35, s36          ; g(i=0)
        s_mul_i32 s35, s35, 514
        v_and_b32 v{TMP}, 31, v1
        v_lshlrev_b32 v{TMP}, 4, v{TMP}
        v_add_u32 v{TMP}, s35, v{TMP}
        v_cmp_gt_u32 vcc, 32, v1
        v_mov_b32 v{TMP+2}, s14
        v_mov_b32 v{TMP+3}, s15
        v_mov_b32 v{TMP+4}, s12
        v_mov_b32 v{TMP+5}, s13
        v_cndmask_b32 v{TMP+2}, v{TMP+2}, v{TMP+4}, vcc
        v_cndmask_b32 v{TMP+3}, v{TMP+3}, v{TMP+5}, vcc
        v_add_co_u32 v{TMP+2}, vcc, v{TMP+2}, v{TMP}
        s_mul_i32 s36, s3, {4*XR_STRIDE}
        s_nop 0
        v_addc_co_u32 v{TMP+3}, vcc, 0, v{TMP+3}, vcc
        """)
        for i in range(4):
            a(f"s_add_u32 m0, s36, {B1_WTL+i*XR_STRIDE}")
            a("s_nop 0")
            a(f"global_load_lds_dwordx4 {vr(TMP+2,2)}, off")
            if i<3:
                a(f"v_add_co_u32 v{TMP+2}, vcc, {64*514}, v{TMP+2}")
                a("s_nop 1")
                a(f"v_addc_co_u32 v{TMP+3}, vcc, 0, v{TMP+3}, vcc")
        a(f"""
        s_sub_u32 s35, s18, 32
        s_cmp_lt_u32 s35, 32
        s_cselect_b32 s39, 1, 0
        s_cmp_eq_u32 s3, 7
        s_cselect_b32 s39, s39, 0
        s_cmp_eq_u32 s39, 1
        s_cbranch_scc0 k1_B_noab
        s_lshl_b32 s36, s35, 6
        v_add_u32 v{TMP}, s36, v1        ; g
        v_sub_u32 v{TMP+1}, 2048, v{TMP}
        v_and_b32 v{TMP+1}, 2047, v{TMP+1}   ; -g
        v_mul_u32_u24 v{TMP}, 514, v{TMP}
        v_mul_u32_u24 v{TMP+1}, 514, v{TMP+1}
        """)
        srd(a,48,12,2048*257*2); srd(a,40,14,2048*257*2)
        for k,(arr,val,off) in enumerate([(48,TMP,0),(40,TMP,0),(48,TMP+1,0),(40,TMP+1,0),(48,TMP,512),(40,TMP,512),(48,TMP+1,512),(40,TMP+1,512)]):
            a(f"buffer_load_ushort v{ABL+k}, v{val}, s[{arr}:{arr+3}], 0 offen offset:{off}")
        a.label("k1_B_noab")
    def b_consts():
        a(f"""
        v_cvt_f32_u32 v{VMF}, v{VM}
        v_lshlrev_b32 v{VQF}, 2, v{VQ}
        v_cvt_f32_u32 v{VQF}, v{VQF}
        """)
        gen_consts(a, False, 1.0, R16, TWc, TWs, A32, TMP, VMF, VQF)
    if os.environ.get("K1BORD","1")=="1":
        b_consts(); b_loads()
    else:
        b_loads(); b_consts()
    if os.environ.get("K1PF","0")=="1" and getattr(asm,"NEXT_KERNEL",None):
        a("s_cmp_eq_u32 s3, 6")
        a("s_cbranch_scc0 k1_nopf2")
        code_prefetch(a,asm.NEXT_KERNEL,"k2_end",2,250,252)
        a.label("k1_nopf2")
    a(f"""
    s_cmp_lt_u32 s18, 2
    s_cbranch_scc0 k1_B_not64
    s_lshl_b32 s36, s18, 3
    s_add_u32 s36, s36, s3           ; unit
    s_lshr_b32 s37, s36, 2           ; w
    s_and_b32 s38, s36, 3            ; u
    s_lshl_b32 s37, s37, 4
    s_lshl_b32 s38, s38, 4
    v_add_u32 v{TMP}, s37, v{VM}
    v_cvt_f32_u32 v{TMP}, v{TMP}
    v_mul_f32 v{TMP}, {hex(f2u(1/64.))}, v{TMP}
    v_cvt_f32_u32 v{TMP+1}, s38
    v_add_f32 v{TMP+1}, v{TMP+1}, v{VQF}
    v_add_f32 v{TMP+2}, 1.0, v{TMP+1}
    v_add_f32 v{TMP+3}, 2.0, v{TMP+1}
    v_add_f32 v{TMP+4}, 1.0, v{TMP+3}
    """)
    for i in range(4): a(f"v_mul_f32 v{TMP+1+i}, v{TMP+1+i}, v{TMP}")
    for i in range(4):
        a(f"v_cos_f32 v{TMP+5+i}, v{TMP+1+i}")
        a(f"v_sin_f32 v{TMP+9+i}, v{TMP+1+i}")
    a("s_nop 0")
    for i in range(4):
        a(f"v_cvt_pk_bf16_f32 v{TMP+16+i}, v{TMP+5+i}, v{TMP+9+i}")
        a(f"v_cvt_pk_bf16_f32 v{TMP+20+i}, -v{TMP+9+i}, v{TMP+5+i}")
    a(f"""
    s_lshl_b32 s36, s36, 11
    s_add_u32 s36, s36, {OFF_T64}
    buffer_store_dwordx4 {vr(TMP+16,4)}, v6, s[24:27], s36 offen
    buffer_store_dwordx4 {vr(TMP+20,4)}, v6, s[24:27], s36 offen offset:1024
    """)
    a.label("k1_B_not64")
    a(f"""
    s_cmp_eq_u32 s18, 2
    s_cbranch_scc0 k1_B_notw
    s_cmp_lt_u32 s3, 4
    s_cbranch_scc0 k1_B_a32
    s_lshl_b32 s37, s3, 4
    v_add_u32 v{TMP}, s37, v{VM}
    v_cvt_f32_u32 v{TMP}, v{TMP}
    v_mul_f32 v{TMP}, {hex(f2u(1/2048.))}, v{TMP}
    """)
    for t in range(2):
        for i in range(4):
            k=16*t+i
            if k==0: a(f"v_mov_b32 v{TMP+1}, v{VQF}")
            else: a(f"v_add_f32 v{TMP+1+4*t+i}, {hex(f2u(float(k)))}, v{VQF}")
    for e in range(8): a(f"v_mul_f32 v{TMP+1+e}, v{TMP+1+e}, v{TMP}")
    for e in range(8):
        a(f"v_cos_f32 v{TMP+16+e}, v{TMP+1+e}")
        a(f"v_sin_f32 v{TMP+24+e}, v{TMP+1+e}")
    a(f"""
    s_lshl_b32 s36, s3, 12
    s_add_u32 s36, s36, {OFF_TW}
    buffer_store_dwordx4 {vr(TMP+16,4)}, v6, s[24:27], s36 offen
    buffer_store_dwordx4 {vr(TMP+20,4)}, v6, s[24:27], s36 offen offset:1024
    buffer_store_dwordx4 {vr(TMP+24,4)}, v6, s[24:27], s36 offen offset:2048
    buffer_store_dwordx4 {vr(TMP+28,4)}, v6, s[24:27], s36 offen offset:3072
    s_branch k1_B_notw
    """)
    a.label("k1_B_a32")
    a("""
    s_cmp_eq_u32 s3, 4
    s_cbranch_scc0 k1_B_notw
    """)
    for blk in range(8):
        a(f"s_mov_b32 s36, {OFF_A32+blk*1024}")
        a(f"buffer_store_dwordx4 {vr(A32+4*blk,4)}, v6, s[24:27], s36 offen")
    a.label("k1_B_notw")
    a(f"""
    v_bfe_u32 v{TMP}, v1, 2, 2       ; r4
    v_and_b32 v{TMP+1}, 1, v{TMP}
    v_mul_u32_u24 v{TMP+1}, {XR_STRIDE}, v{TMP+1}
    v_lshrrev_b32 v{TMP+2}, 1, v{TMP}
    v_lshl_add_u32 v{TMP+2}, v{VQ}, 2, v{TMP+2}    ; 4q + (r4>>1)
    v_lshl_add_u32 v{TMP+1}, v{TMP+2}, 6, v{TMP+1}
    v_and_b32 v{TMP+2}, 3, v1
    v_lshl_add_u32 v{TMP+1}, v{TMP+2}, 3, v{TMP+1}
    s_mul_i32 s30, s3, {4*XR_STRIDE}
    v_add_u32 v7, s30, v{TMP+1}
    """)
    stamp(a,1)
    a("s_waitcnt vmcnt(0)")
    stamp(a,2)
    for pp in range(2):
        for t in range(2):
            a(f"ds_read_b64_tr_b16 {vr(PIN+8*pp+4*t,2)}, v7 offset:{pp*2*XR_STRIDE+t*32}")
            a(f"ds_read_b64_tr_b16 {vr(PIN+8*pp+4*t+2,2)}, v7 offset:{pp*2*XR_STRIDE+t*32+128}")
    for j in range(4): a(f"v_lshl_or_b32 v{WOL+j}, v{WOH+j}, 16, v{WOL+j}")
    a(f"""
    s_lshl_b32 s32, s32, 10
    s_add_u32 s32, s32, {OFF_WOF}
    buffer_store_dwordx4 {vr(WOL,4)}, v6, s[24:27], s32 offen
    """)
    a(f"""
    s_cmp_eq_u32 s39, 1
    s_cbranch_scc0 k1_B_noab2
    """)
    for k in range(8): a(f"v_lshlrev_b32 v{ABL+k}, 16, v{ABL+k}")
    a(f"""
    v_add_f32 v{TMP}, v{ABL}, v{ABL+2}        ; 2*Wh0.re
    v_sub_f32 v{TMP+1}, v{ABL+1}, v{ABL+3}    ; 2*Wh0.im
    v_add_f32 v{TMP+2}, v{ABL+4}, v{ABL+6}    ; 2*Wh256.re
    v_sub_f32 v{TMP+3}, v{ABL+5}, v{ABL+7}    ; 2*Wh256.im
    v_add_f32 v{TMP+4}, v{TMP}, v{TMP+2}
    v_add_f32 v{TMP+5}, v{TMP+1}, v{TMP+3}
    v_sub_f32 v{TMP+6}, v{TMP}, v{TMP+2}
    v_sub_f32 v{TMP+7}, v{TMP+1}, v{TMP+3}
    v_mul_f32 v{TMP+4}, 0.25, v{TMP+4}
    v_mul_f32 v{TMP+5}, 0.25, v{TMP+5}
    v_mul_f32 v{TMP+6}, 0.25, v{TMP+6}
    v_mul_f32 v{TMP+7}, 0.25, v{TMP+7}
    v_cvt_pk_bf16_f32 v{TMP+4}, v{TMP+4}, v{TMP+5}
    v_cvt_pk_bf16_f32 v{TMP+5}, v{TMP+6}, v{TMP+7}
    s_lshr_b32 s36, s35, 4
    s_lshl_b32 s36, s36, 2
    s_and_b32 s37, s35, 3
    s_add_u32 s36, s36, s37          ; e
    s_and_b32 s38, s36, 1
    s_lshl_b32 s38, s38, 3           ; (e&1)*8
    s_lshr_b32 s36, s36, 1
    s_lshl_b32 s36, s36, 10          ; ep*1024
    s_add_u32 s36, s36, s38
    s_lshr_b32 s37, s35, 2
    s_and_b32 s37, s37, 3
    s_lshl_b32 s37, s37, 8           ; q*16*16
    s_add_u32 s36, s36, s37
    s_add_u32 s36, s36, {OFF_AB}
    v_lshlrev_b32 v{TMP+8}, 12, v{VQ}
    v_lshl_add_u32 v{TMP+8}, v{VM}, 4, v{TMP+8}
    buffer_store_dwordx2 {vr(TMP+4,2)}, v{TMP+8}, s[24:27], s36 offen
    """)
    a.label("k1_B_noab2")
    a("s_waitcnt lgkmcnt(0)")
    for pp in range(2):
        for t in range(2):
            for part in range(2):
                a(f"v_mfma_f32_16x16x32_bf16 {vr(D1+16*pp+8*t+4*part,4)}, {vr(PIN+8*pp+4*t,4)}, {vr(R16+4*part,4)}, 0")
    a("s_nop 4")
    for pp in range(2):
        for t in range(2):
            twiddle(a, D1+16*pp+8*t, D1+16*pp+8*t+4, TWc+4*t, TWs+4*t, PIN+8*pp+4*t, TMP)
    a("s_nop 1")
    for pp in range(2):
        for tp in range(2):
            for part in range(2):
                d=D2+16*pp+8*tp+4*part
                for t in range(2):
                    A=A32+((tp*2+part)*2+t)*4
                    a(f"v_mfma_f32_16x16x32_bf16 {vr(d,4)}, {vr(A,4)}, {vr(PIN+8*pp+4*t,4)}, {'0' if t==0 else vr(d,4)}")
    a(f"""
    v_lshl_add_u32 v{TMP}, v{VQ}, 6, v{VM}         ; m + 64q
    s_mul_i32 s30, s3, {4*XR_STRIDE}
    v_lshl_add_u32 v{TMP+1}, v{TMP}, 3, s30
    v_sub_u32 v{TMP+2}, {256-48}, v{TMP}            ; 256-48-f0
    v_lshl_add_u32 v{TMP+2}, v{TMP+2}, 3, s30
    v_add_u32 v{TMP+3}, 384, v{TMP+2}               ; i=0 address
    v_cmp_eq_u32 vcc, 0, v1
    v_mov_b32 v{TMP+4}, s30
    s_nop 0
    v_cndmask_b32 v{TMP+3}, v{TMP+3}, v{TMP+4}, vcc ; lane0 -> g=0 (Z[256])
    s_nop 1
    """)
    for pp in range(2):
        for i in range(4):
            a(f"ds_write2_b32 v{TMP+1}, v{D2+16*pp+8+i}, v{D2+16*pp+12+i} offset0:{(pp*2048+i*128)//4 if False else i*32} offset1:{i*32+1}" if pp==0 else
              f"ds_write2_b32 v{TMP+5}, v{D2+16*pp+8+i}, v{D2+16*pp+12+i} offset0:{i*32} offset1:{i*32+1}")
        if pp==0: a(f"v_add_u32 v{TMP+5}, 2048, v{TMP+1}")
    a("s_waitcnt lgkmcnt(0)")
    PR=D1
    for pp in range(2):
        a(f"ds_read_b64 {vr(PR+8*pp,2)}, v{TMP+3} offset:{pp*2048}")
        for i in range(1,4):
            a(f"ds_read_b64 {vr(PR+8*pp+2*i,2)}, v{TMP+2} offset:{pp*2048+(3-i)*128}")
    a(f"""
    v_lshrrev_b32 v{TMP+6}, 1, v{VM}               ; (f>>1)&7 = m>>1
    v_xor_b32 v{TMP+6}, s3, v{TMP+6}               ; wave ^ (m>>1)
    v_lshlrev_b32 v{TMP+6}, 4, v{TMP+6}
    v_lshl_add_u32 v{TMP+6}, v{TMP}, 7, v{TMP+6}
    v_add_u32 v{TMP+6}, {B1_MB}, v{TMP+6}
    s_waitcnt lgkmcnt(0)
    """)
    O=TMP+8
    for pp in range(2):
        for i in range(4):
            zr,zi=D2+16*pp+i, D2+16*pp+4+i
            pr,pi=PR+8*pp+2*i, PR+8*pp+2*i+1
            a(f"v_add_f32 v{O}, v{zr}, v{pr}")
            a(f"v_sub_f32 v{O+1}, v{zi}, v{pi}")
            a(f"v_add_f32 v{O+2}, v{zi}, v{pi}")
            a(f"v_sub_f32 v{O+3}, v{pr}, v{zr}")
            if i==0:
                a(f"v_add_f32 v{O+4}, v{zr}, v{zr}")
                a(f"v_add_f32 v{O+5}, v{pr}, v{pr}")
                a(f"v_add_f32 v{O+6}, v{zi}, v{zi}")
                a(f"v_add_f32 v{O+7}, v{pi}, v{pi}")
                for k in range(4): a(f"v_cndmask_b32 v{O+k}, v{O+k}, v{O+4+k}, vcc")
            o2=O+8+2*((pp*4+i)%4)
            a(f"v_cvt_pk_bf16_f32 v{o2}, v{O}, v{O+1}")
            a(f"v_cvt_pk_bf16_f32 v{o2+1}, v{O+2}, v{O+3}")
            a(f"ds_write_b64 v{TMP+6}, {vr(o2,2)} offset:{i*2048+pp*8}")
    a(f"""
    v_bfe_u32 v{TMP}, v1, 2, 2                     ; r4
    v_lshrrev_b32 v{TMP+1}, 1, v{TMP}
    v_mul_u32_u24 v{TMP+1}, {XR_STRIDE}, v{TMP+1}
    v_and_b32 v{TMP+2}, 1, v{TMP}
    v_lshl_add_u32 v{TMP+1}, v{TMP+2}, 9, v{TMP+1}
    v_lshl_add_u32 v{TMP+1}, v{VQ}, 5, v{TMP+1}
    v_and_b32 v{TMP+2}, 3, v1
    v_lshl_add_u32 v{TMP+1}, v{TMP+2}, 3, v{TMP+1} ; + c4*8
    s_mul_i32 s30, s3, {4*XR_STRIDE}
    s_add_u32 s30, s30, {B1_WTL}
    v_add_u32 v{TMP+1}, s30, v{TMP+1}
    """)
    for jj in range(4):
        a(f"ds_read_b64_tr_b16 {vr(D1+4*jj,2)}, v{TMP+1} offset:{jj*128}")
        a(f"ds_read_b64_tr_b16 {vr(D1+4*jj+2,2)}, v{TMP+1} offset:{jj*128+2*XR_STRIDE}")
    a(f"""
    v_and_b32 v{TMP+2}, 7, v1
    v_xor_b32 v{TMP+2}, s3, v{TMP+2}
    v_lshlrev_b32 v{TMP+2}, 4, v{TMP+2}
    v_lshl_add_u32 v{TMP+2}, v1, 7, v{TMP+2}
    v_add_u32 v{TMP+2}, {B1_MBW}, v{TMP+2}
    """)
    for jj in range(4):
        a(f"s_waitcnt lgkmcnt({6-2*jj})")
        a(f"ds_write_b128 v{TMP+2}, {vr(D1+4*jj,4)} offset:{jj*8192}")
    a("""
    s_waitcnt lgkmcnt(0)
    s_barrier
    """)
    a(f"""
    v_lshrrev_b32 v{TMP}, 3, v1
    v_and_b32 v{TMP+1}, 7, v1
    s_lshl_b32 s30, s3, 5
    v_add_u32 v{TMP+2}, s30, v{TMP}                ; f
    v_xor_b32 v{TMP+3}, v{TMP}, v{TMP+1}
    v_lshlrev_b32 v{TMP+3}, 4, v{TMP+3}
    v_lshl_add_u32 v{TMP+3}, v{TMP+2}, 7, v{TMP+3}
    v_add_u32 v{TMP+3}, {B1_MBW}, v{TMP+3}
    v_lshlrev_b32 v{TMP+5}, 13, v{TMP+2}
    v_lshl_add_u32 v{TMP+5}, v{TMP+1}, 4, v{TMP+5} ; f*8192 + c8*16
    s_and_b32 s31, s18, 7
    s_lshr_b32 s32, s31, 1
    s_lshl_b32 s32, s32, 11
    s_and_b32 s31, s31, 1
    s_lshl_b32 s31, s31, 7
    s_add_u32 s32, s32, s31
    s_lshr_b32 s31, s18, 5
    s_lshl_b32 s31, s31, 10
    s_add_u32 s32, s32, s31
    s_lshr_b32 s31, s18, 3
    s_and_b32 s31, s31, 3
    s_lshl_b32 s31, s31, 8
    s_add_u32 s32, s32, s31
    s_add_u32 s32, s32, {OFF_WT}
    """)
    for jj in range(4):
        a(f"ds_read_b128 {vr(D1+4*jj,4)}, v{TMP+3} offset:{jj*1024}")
    for jj in range(4):
        a(f"s_waitcnt lgkmcnt({3-jj})")
        a(f"s_add_u32 s31, s32, {jj*8*8192}")
        a(f"buffer_store_dwordx4 {vr(D1+4*jj,4)}, v{TMP+5}, s[24:27], s31 offen")
    a(f"""
    v_lshrrev_b32 v{TMP}, 3, v1                    ; fl
    v_and_b32 v{TMP+1}, 7, v1                      ; c8
    s_lshl_b32 s30, s3, 5
    v_add_u32 v{TMP+2}, s30, v{TMP}                ; f (jj=0)
    v_lshrrev_b32 v{TMP+3}, 1, v{TMP}
    v_xor_b32 v{TMP+3}, v{TMP+3}, v{TMP+1}
    v_lshlrev_b32 v{TMP+3}, 4, v{TMP+3}
    v_lshl_add_u32 v{TMP+3}, v{TMP+2}, 7, v{TMP+3}
    v_add_u32 v{TMP+3}, {B1_MB}, v{TMP+3}
    v_xor_b32 v{TMP+4}, 64, v{TMP+3}
    v_lshlrev_b32 v{TMP+5}, 13, v{TMP+2}
    v_lshl_add_u32 v{TMP+5}, v{TMP+1}, 4, v{TMP+5} ; f*8192 + c8*16
    s_lshl_b32 s31, s19, 8
    s_lshl_b32 s32, s28, 7
    s_add_u32 s31, s31, s32
    s_add_u32 s31, s31, {OFF_Z}
    """)
    for jj in range(4):
        a(f"ds_read_b128 {vr(D2+4*jj,4)}, v{TMP+3+(jj&1)} offset:{jj*1024}")
    for jj in range(4):
        a(f"s_waitcnt lgkmcnt({3-jj})")
        a(f"s_add_u32 s32, s31, {jj*8*8192}")
        a(f"buffer_store_dwordx4 {vr(D2+4*jj,4)}, v{TMP+5}, s[24:27], s32 offen")
    import os
    if os.environ.get("K1WB","0")=="1" and not asm.F12:
        a("""
        s_waitcnt vmcnt(0)
        s_barrier
        s_cmp_eq_u32 s3, 0
        s_cbranch_scc0 k1_nowb
        buffer_wbl2 sc1
        """)
        a.label("k1_nowb")
    if asm.STAMP and not asm.F12:
        stamp(a,3); a("s_waitcnt vmcnt(0)"); stamp(a,4); stamp_dump(a,0)
    fin(a)

def build_k1(a=None):
    own = a is None
    if own: a=Asm()
    k1_prologue(a)
    k1_loader(a)
    k1_compute(a)
    k1_B(a)
    a.sc_srd=None
    if own:
        a.label("k1_end")
        a("s_endpgm")
    return a
```

```python
import asm
from asm import *
from layout import *
from k1 import srd, twiddle
import os
VAR=set(os.environ.get("VAR","").split(","))
def opt(name,default):
    for v in VAR:
        if v.startswith(name+"="): return int(v.split("=")[1])
    return default
K2_COL=131072
K2_E=K2_COL+8192
K2_LDS=163840
K2_CNT=163840-64
THRESH2=4096.0/1.03
NB=opt("NB",30)
NA=64-NB
AUP=opt("AUP",1)
ARRA=opt("ARRA",1)
ST1R=opt("ST1R",4)
DRIP=opt("DRIP",1)
DWAIT=opt("DWAIT",5 if ST1R==6 else 3)
ARRIT=opt("ARRIT",2)
TABIT=opt("TABIT",2)
B2IT=opt("B2IT",4)
PUBIT=opt("PUBIT",6)
XB=opt("XB",13)

HB=opt("HB",PUBIT+1); HA=opt("HA",9)
XA=opt("XA",11)
assert (XA-HA)%2==0 and (NA//2-XA)%2==0 and XA>HA and NA//2>XA
assert (XB-HB)%2==0 and XB>HB and (NB//2-XB)%2==0 and NB//2>XB and (NA//2-HA)%2==0, (HB,XB,NB,HA)
VK,VV,VIDX=2,3,4
Q=[8,12]; S=[16,32]; O=[48,64]
F=[(80,84,88),(92,96,100)]
TMP=104
T64,A32,TW,WT,BUF,D1,P=112,144,176,192,200,232,248
X2=200
CI=[112,128]
VM,VQd=108,109
WOR=144

ALIGN="noalign" not in VAR
def expo(a,r,wide=False): a(f"v_exp_f32{'_e64' if wide else ''} v{r}, v{r}")

def unit(a,tau,qt,fb,extra=()):
    extra=list(extra)
    def ex():
        if extra: extra.pop(0)()
    tp=tau&1
    Sc,Sn=S[qt],S[1-qt]
    def pv(Ob,V,B): a(f"v_smfmac_f32_32x32x32_bf16 {vr(Ob,16)}, {vr(V,4)}, {vr(B,8)}, v{VIDX}")
    def qk(Sd,K,qq): a(f"v_mfma_f32_32x32x16_bf16 {vr(Sd,16)}, {vr(K,4)}, {vr(Q[qq],4)}, {vr(CI[qq],16) if fb else '0'}")
    if qt==0:
        Kc,V0c,V1c=F[tp]; Kn,V0n,V1n=F[1-tp]
        expo(a,Sc); expo(a,Sc+1)
        pv(O[1],V1n,Sn+8)
        a(f"ds_read_b128 {vr(Kn,4)}, v{VK} offset:{(tau+1)*KV_TILE}")
        expo(a,Sc+2)
        a("s_mov_b64 exec, s[62:63]")
        a(f"ds_read_b128 {vr(V0n,4)}, v{VK} offset:{(tau+1)*KV_TILE+512}")
        a(f"ds_read_b128 {vr(V1n,4)}, v{VK} offset:{(tau+1)*KV_TILE+768}")
        a("s_mov_b64 exec, -1")
        expo(a,Sc+3); expo(a,Sc+4); expo(a,Sc+5)
        qk(Sn,Kc,1)
        for i in range(6,12):
            expo(a,Sc+i)
            if i==7: ex()
        pv(O[0],V0c,Sc)
        for i in range(12,16):
            expo(a,Sc+i)
            if i==13: ex()
    else:
        Kc,V0c,V1c=F[tp]; Kn,V0n,V1n=F[1-tp]
        expo(a,Sc); expo(a,Sc+1)
        pv(O[0],V1c,Sn+8)
        expo(a,Sc+2); expo(a,Sc+3); expo(a,Sc+4)
        a("s_waitcnt lgkmcnt(0)")
        expo(a,Sc+5,ALIGN)
        qk(Sn,Kn,0)
        for i in range(6,12):
            expo(a,Sc+i)
            if i==7: ex()
        pv(O[1],V0c,Sc)
        for i in range(12,16):
            expo(a,Sc+i)
            if i==13: ex()

def bbar(a,tag,cnt=0):
    a(f"""
    v_mov_b32 v111, {K2_CNT+cnt}
    v_mov_b32 v110, 1
    s_waitcnt lgkmcnt(0)
    s_mov_b64 exec, 1
    ds_add_u32 v111, v110
    s_mov_b64 exec, -1
    s_add_u32 s47, s47, 4
    """)
    a.label(f"k2_bbar_{tag}")
    a(f"""
    ds_read_b32 v109, v111
    s_waitcnt lgkmcnt(0)
    v_readfirstlane_b32 s48, v109
    s_nop 0
    s_cmp_lt_u32 s48, s47
    s_cbranch_scc1 k2_bbar_{tag}
    """)

def dma_arrive(a,younger=0):
    a(f"""
    s_waitcnt vmcnt({younger})
    v_mov_b32 v{TMP}, {K2_CNT+4}
    v_mov_b32 v{TMP+1}, 1
    s_mov_b64 exec, 1
    ds_add_u32 v{TMP}, v{TMP+1}
    s_mov_b64 exec, -1
    """)
def dma_wait(a,tag):
    a(f"v_mov_b32 v{TMP}, {K2_CNT+4}")
    a.label(f"k2_dwait_{tag}")
    a(f"""
    ds_read_b32 v{TMP+1}, v{TMP}
    s_waitcnt lgkmcnt(0)
    v_readfirstlane_b32 s48, v{TMP+1}
    s_nop 0
    s_cmp_lt_u32 s48, 8
    s_cbranch_scc1 k2_dwait_{tag}
    """)

def kv_dma(a, ns):
    for n in ns:
        a(f"s_add_u32 m0, s34, {n*1024}")
        a(f"s_add_u32 s36, s35, {n*1024}")
        a(f"buffer_load_dwordx4 v{TMP}, s[20:23], s36 offen lds")

def b2_part1(a):
    a("s_waitcnt vmcnt(0)")
    if asm.F23 and not asm.F12:
        a("s_cmp_eq_u32 s3, 0")
        a("s_cbranch_scc0 k2_notagreq")
        tag_request(a)
        a.label("k2_notagreq")
    bbar(a,"col")
    a(f"""
    v_and_b32 v{VM}, 15, v1
    v_lshrrev_b32 v{VQd}, 4, v1
    v_xor_b32 v104, v{VM}, v{VQd}
    v_lshlrev_b32 v104, 4, v104
    v_lshl_add_u32 v104, v{VM}, 8, v104
    v_add_u32 v104, {K2_COL}, v104
    v_xor_b32 v105, 64, v104
    v_xor_b32 v106, 128, v104
    v_xor_b32 v107, 192, v104
    """)
    for u in range(4):
        for t in range(2):
            a(f"ds_read_b128 {vr(BUF+16*t+4*u,4)}, v{104+u} offset:{t*4096}")
    for u in range(4):
        a(f"s_waitcnt lgkmcnt({6-2*u})")
        for t in range(2):
            for part in range(2):
                d=D1+8*t+4*part
                a(f"v_mfma_f32_16x16x32_bf16 {vr(d,4)}, {vr(BUF+16*t+4*u,4)}, {vr(T64+8*u+4*part,4)}, {'0' if u==0 else vr(d,4)}")
    a("""
    s_cmp_eq_u32 s28, 0
    s_cbranch_scc0 k2_p1_noab
    """)
    a(f"v_lshlrev_b32 v110, 4, v1")
    a(f"s_lshl_b32 s36, s3, 12")
    a(f"s_add_u32 s36, s36, {OFF_AB}")
    for ep in range(4):
        a(f"buffer_load_dwordx4 {vr(216+4*ep,4)}, v110, s[20:23], s36 offen offset:{ep*1024}")
    a.label("k2_p1_noab")
    a("s_nop 6")
    for t in range(2):
        twiddle(a, D1+8*t, D1+8*t+4, TW+4*t, TW+8+4*t, P+4*t, 104)
    a("s_nop 1")
    for t in range(2):
        for tp in range(2):
            for part in range(2):
                d=X2+8*tp+4*part
                a(f"v_mfma_f32_16x16x32_bf16 {vr(d,4)}, {vr(A32+((tp*2+part)*2+t)*4,4)}, {vr(P+4*t,4)}, {'0' if t==0 else vr(d,4)}")

def b2_part2(a):
    a("s_waitcnt vmcnt(0)")
    a("""
    s_cmp_eq_u32 s28, 0
    s_cbranch_scc1 k2_p2_special
    """)
    for tp in range(2):
        xr,xi=X2+8*tp,X2+8*tp+4
        wr,wi=D1+8*tp,D1+8*tp+4
        for i in range(4):
            a(f"v_lshlrev_b32 v{wr+i}, 16, v{WT+4*tp+i}")
            a(f"v_and_b32 v{wi+i}, 0xffff0000, v{WT+4*tp+i}")
        for p in (0,2):
            a(f"v_pk_mul_f32 {vr(104+p,2)}, {vr(xr+p,2)}, {vr(wr+p,2)}")
            a(f"v_pk_mul_f32 {vr(108+p,2)}, {vr(xr+p,2)}, {vr(wi+p,2)}")
        for p in (0,2):
            a(f"v_pk_fma_f32 {vr(104+p,2)}, {vr(xi+p,2)}, {vr(wi+p,2)}, {vr(104+p,2)} neg_lo:[1,0,0] neg_hi:[1,0,0]")
            a(f"v_pk_fma_f32 {vr(108+p,2)}, {vr(xi+p,2)}, {vr(wr+p,2)}, {vr(108+p,2)}")
        for i in range(4): a(f"v_cvt_pk_bf16_f32 v{P+4*tp+i}, v{104+i}, -v{108+i}")
    a.label("k2_p2_common")
    a("s_nop 1")
    for tp in range(2):
        for t in range(2):
            for part in range(2):
                d=D1+8*t+4*part
                a(f"v_mfma_f32_16x16x32_bf16 {vr(d,4)}, {vr(A32+((t*2+part)*2+tp)*4,4)}, {vr(P+4*tp,4)}, {'0' if tp==0 else vr(d,4)}")
    t0=X2
    a(f"""
    v_and_b32 v{t0}, 15, v1                 ; m
    v_lshrrev_b32 v{t0+1}, 4, v1            ; q
    v_lshrrev_b32 v{t0+2}, 2, v{t0}         ; m>>2
    s_lshl_b32 s36, s3, 2
    v_add_u32 v{t0+2}, s36, v{t0+2}         ; 4w + (m>>2)
    v_lshlrev_b32 v{t0+3}, 2, v{t0+1}       ; 4q
    v_xor_b32 v{t0+2}, v{t0+2}, v{t0+3}
    v_lshlrev_b32 v{t0+2}, 4, v{t0+2}
    v_lshl_add_u32 v{t0+2}, v{t0+3}, 8, v{t0+2}
    v_and_b32 v{t0+4}, 3, v{t0}
    v_lshl_add_u32 v{t0+2}, v{t0+4}, 2, v{t0+2}
    v_add_u32 v{t0+8}, {K2_E}, v{t0+2}
    v_xor_b32 v{t0+9}, 16, v{t0+8}
    v_xor_b32 v{t0+10}, 32, v{t0+8}
    v_xor_b32 v{t0+11}, 48, v{t0+8}
    """)
    for t in range(2):
        twiddle(a, D1+8*t, D1+8*t+4, TW+4*t, TW+8+4*t, P+4*t, 104)
    for t in range(2):
        for i in range(4):
            a(f"ds_write_b32 v{t0+8+i}, v{P+4*t+i} offset:{t*4096+i*256}")
    bbar(a,"e")
    a(f"""
    v_and_b32 v{VM}, 15, v1
    v_lshrrev_b32 v{VQd}, 4, v1
    v_xor_b32 v104, v{VM}, v{VQd}
    v_lshlrev_b32 v104, 4, v104
    v_lshl_add_u32 v104, v{VM}, 8, v104
    v_add_u32 v104, {K2_E}, v104
    v_xor_b32 v105, 64, v104
    v_xor_b32 v106, 128, v104
    v_xor_b32 v107, 192, v104
    """)
    for u in range(4):
        for t in range(2):
            a(f"ds_read_b128 {vr(BUF+16*t+4*u,4)}, v{104+u} offset:{t*4096}")
    a(f"""
    v_lshlrev_b32 v110, 8, v{VM}
    v_lshl_add_u32 v110, v{VQd}, 4, v110
    s_lshl_b32 s36, s28, 13
    s_lshl_b32 s37, s3, 6
    s_add_u32 s36, s36, s37
    s_add_u32 s36, s36, {OFF_Y}
    """)
    for u in range(4):
        a(f"s_waitcnt lgkmcnt({6-2*u})")
        for t in range(2):
            for part in range(2):
                d=D1+8*t+4*part
                a(f"v_mfma_f32_16x16x32_bf16 {vr(d,4)}, {vr(T64+8*u+4*part,4)}, {vr(BUF+16*t+4*u,4)}, {'0' if u==0 else vr(d,4)}")
    a("s_nop 7")
    for t in range(2):
        for i in range(4): a(f"v_cvt_pk_bf16_f32 v{P+4*t+i}, v{D1+8*t+i}, -v{D1+8*t+4+i}")
        a.sc_srd="s[20:23]"
        a(f"buffer_store_dwordx4 {vr(P+4*t,4)}, v110, s[20:23], s36 offen")
        a.sc_srd=a.p1
        if t==0: a("s_add_u32 s36, s36, 4096")
    a("s_setpc_b64 s[60:61]")
    a.label("k2_p2_special")
    bbar(a,"s0")
    XCH=K2_COL
    a(f"""
    v_and_b32 v104, 15, v1
    v_lshrrev_b32 v105, 4, v1
    s_lshl_b32 s36, s3, 4
    v_add_u32 v104, s36, v104                 ; k1
    v_lshl_add_u32 v104, v105, 8, v104         ; g0 = k1 + 64*4q
    v_lshlrev_b32 v106, 3, v104
    v_add_u32 v106, {XCH}, v106
    """)
    for tp in range(2):
        for i in range(4):
            off=(i*64+tp*1024)*8
            a(f"ds_write_b32 v106, v{X2+8*tp+i} offset:{off}")
            a(f"ds_write_b32 v106, v{X2+8*tp+4+i} offset:{off+4}")
    bbar(a,"s1")
    for tp in range(2):
        for i in range(4):
            e=4*tp+i
            a(f"v_sub_u32 v107, {2048-(i*64+tp*1024)}, v104")
            a(f"v_and_b32 v107, 2047, v107")
            a(f"v_lshlrev_b32 v107, 3, v107")
            a(f"v_add_u32 v107, {XCH}, v107")
            a(f"ds_read_b64 {vr(D1+2*e,2)}, v107")
    bbar(a,"s2")
    for tp in range(2):
        for i in range(4):
            e=4*tp+i
            src=216+2*e
            ab=WT
            a(f"v_lshlrev_b32 v{ab}, 16, v{src}")
            a(f"v_and_b32 v{ab+1}, 0xffff0000, v{src}")
            a(f"v_lshlrev_b32 v{ab+2}, 16, v{src+1}")
            a(f"v_and_b32 v{ab+3}, 0xffff0000, v{src+1}")
            zr,zi=X2+8*tp+i,X2+8*tp+4+i
            pr,pi=D1+2*e,D1+2*e+1
            a(f"v_mul_f32 v104, v{zr}, v{ab}")
            a(f"v_mul_f32 v105, v{zr}, v{ab+1}")
            a(f"v_fma_f32 v104, -v{zi}, v{ab+1}, v104")
            a(f"v_fma_f32 v105, v{zi}, v{ab}, v105")
            a(f"v_fma_f32 v104, v{pr}, v{ab+2}, v104")
            a(f"v_fma_f32 v105, v{pr}, v{ab+3}, v105")
            a(f"v_fma_f32 v104, v{pi}, v{ab+3}, v104")
            a(f"v_fma_f32 v105, -v{pi}, v{ab+2}, v105")
            a(f"v_cvt_pk_bf16_f32 v{P+e}, v104, -v105")
    a("s_branch k2_p2_common")


def rounds():
    nA0=NB*KV_TILE//1024
    st1=[x for k in range(ST1R//2) for x in (8*k,nA0+8*k)]
    rest=[]
    n=8*(ST1R//2)
    while n<nA0:
        rest.append(min(n,nA0-8) if n+8>nA0 else n); n+=8
    n=nA0+8*(ST1R//2)
    while n<128:
        rest.append(min(n,120)); n+=8
    lo=[r for r in rest if r<nA0]; hi=[r for r in rest if r>=nA0]
    out=[]
    while lo or hi:
        if lo: out.append(lo.pop(0))
        if hi: out.append(hi.pop(0))
    return st1,out

def attn_loop(a,fb):
    if fb:
        a.label("k2_loop_fb")
        unit(a,0,0,fb); unit(a,0,1,fb); unit(a,1,0,fb); unit(a,1,1,fb)
        a(f"""
        v_add_u32 v{VK}, {2*KV_TILE}, v{VK}
        s_add_u32 s42, s42, 1
        s_cmp_lt_u32 s42, s43
        s_cbranch_scc1 k2_loop_fb
        """)
        return
    if ALIGN: a.raw(".p2align 6")
    a.label("k2_loop")
    a("""
    s_cmp_eq_u32 s42, s40
    s_cbranch_scc1 k2_hook
    """)
    a.label("k2_hookret")
    unit(a,0,0,fb); unit(a,0,1,fb); unit(a,1,0,fb); unit(a,1,1,fb)
    a(f"""
    v_add_u32 v{VK}, {2*KV_TILE}, v{VK}
    s_add_u32 s42, s42, 1
    s_cmp_lt_u32 s42, s44
    s_cbranch_scc1 k2_loop
    """)
    a(".p2align 3, 0xbf800000" if False else "s_nop 0") if False else None
    stamp(a,31)
    if ALIGN: a.raw(".p2align 6")
    if "shift4" in VAR: a("s_nop 0")
    a.label("k2_lean")
    for tau in range(4):
        unit(a,tau,0,fb); unit(a,tau,1,fb)
    a(f"""
    v_add_u32 v{VK}, {4*KV_TILE}, v{VK}
    s_sub_u32 s43, s43, 1
    s_cmp_lg_u32 s43, 0
    s_cbranch_scc1 k2_lean
    s_cmp_eq_u32 s41, 0
    s_cbranch_scc1 k2_lean_done
    """)
    stamp(a,32)
    if asm.F23: a("s_call_b64 s[60:61], k2_mid")
    else: a("s_setprio 0")
    a(f"""
    s_mov_b32 s43, s41
    s_mov_b32 s41, 0
    s_branch k2_lean
    """)
    a.label("k2_lean_done")

def pipe_prologue(a,fb):
    K,V0,V1=F[0]
    a(f"""
    ds_read_b128 {vr(K,4)}, v{VK}
    s_mov_b64 exec, s[62:63]
    ds_read_b128 {vr(V0,4)}, v{VK} offset:512
    ds_read_b128 {vr(V1,4)}, v{VK} offset:768
    s_mov_b64 exec, -1
    s_waitcnt lgkmcnt(2)
    v_mfma_f32_32x32x16_bf16 {vr(S[0],16)}, {vr(K,4)}, {vr(Q[0],4)}, {vr(CI[0],16) if fb else '0'}
    s_mov_b32 s42, 0
    s_waitcnt lgkmcnt(0)
    s_nop 11
    """)

def poll(a,tag,nloads,addr_regs,srdreg="s[20:23]",soff="0"):
    a(f"s_mov_b32 s49, 0x20000")
    a.label(f"poll_{tag}")
    for k in range(nloads):
        a(f"buffer_load_dword v{addr_regs[k][1]}, v{addr_regs[k][0]}, {srdreg}, {soff} offen")
    a("s_waitcnt vmcnt(0)")
    for k in range(nloads):
        a(f"v_cmp_eq_u32 {'vcc' if k==0 else 's[50:51]'}, s56, v{addr_regs[k][1]}")
        if k>0:
            a("s_nop 1"); a("s_and_b64 vcc, vcc, s[50:51]")
    a(f"""
    s_nop 1
    s_cmp_eq_u64 vcc, -1
    s_cbranch_scc1 poll_{tag}_done
    s_sub_u32 s49, s49, 1
    s_cmp_eq_u32 s49, 0
    s_cbranch_scc1 poll_{tag}_done
    s_sleep 1
    s_branch poll_{tag}
    """)
    a.label(f"poll_{tag}_done")

def get_tag(a,tagname):
    a(f"""
    v_mov_b32 v{TMP}, 0
    s_mov_b32 s49, 0x20000
    """)
    a.label(f"kf_tag_{tagname}")
    a(f"""
    global_load_dword v{TMP+1}, v{TMP}, s[54:55] sc1
    s_waitcnt vmcnt(0)
    v_readfirstlane_b32 s56, v{TMP+1}
    s_sub_u32 s49, s49, 1
    s_cmp_eq_u32 s49, 0
    s_cbranch_scc1 kf_tag_{tagname}_done
    s_cmp_eq_u32 s56, 0
    s_cbranch_scc0 kf_tag_{tagname}_done
    s_sleep 1
    s_branch kf_tag_{tagname}
    """)
    a.label(f"kf_tag_{tagname}_done")

def tag_request(a):
    a(f"""
    v_mov_b32 v{TMP}, 0
    global_load_dword v5, v{TMP}, s[54:55] sc1
    """)
def tag_resolve(a,tagname):
    a(f"""
    v_readfirstlane_b32 s56, v5
    s_nop 0
    s_cmp_eq_u32 s56, 0
    s_cbranch_scc0 kf_tagok_{tagname}
    """)
    get_tag(a,tagname)
    a.label(f"kf_tagok_{tagname}")

def flag_store(a, soff_expr_reg, vtmp):
    a(f"""
    v_mov_b32 v{vtmp}, 0
    v_mov_b32 v{vtmp+1}, s56
    s_mov_b64 exec, 1
    buffer_store_dword v{vtmp+1}, v{vtmp}, s[20:23], s{soff_expr_reg} offen
    s_mov_b64 exec, -1
    """)

def build_k2(a=None):
    own = a is None
    if own: a=Asm()
    P1="s[20:23]" if asm.F12 else None
    a.sc_srd=P1
    st1,rest=rounds()
    R=len(rest)
    if not asm.F12:
        a(f"""
        s_cmp_ge_u32 s2, 256
        s_cbranch_scc1 k2_end
        s_load_dwordx2 s[16:17], s[0:1], 64      ; ws
        {"s_load_dwordx4 s[52:55], s[0:1], 48      ; out, debug" if asm.F23 else ""}
        v_and_b32 v1, 63, v0
        v_lshrrev_b32 v{TMP}, 6, v0
        s_nop 0
        v_readfirstlane_b32 s3, v{TMP}
        """)
        if asm.F23:
            a("""
            s_or_b32 s57, s2, s3
            s_cmp_eq_u32 s57, 0
            s_cbranch_scc0 kf_nononce
            s_memrealtime s[56:57]
            s_waitcnt lgkmcnt(0)
            s_or_b32 s56, s56, 1
            v_mov_b32 v2, 0
            v_mov_b32 v3, s56
            s_mov_b64 exec, 1
            global_store_dword v2, v3, s[54:55] sc1
            s_mov_b64 exec, -1
            """)
            a.label("kf_nononce")
    stamp(a,0)
    a(f"""
    s_and_b32 s18, s2, 7
    s_lshr_b32 s19, s2, 3
    s_lshl_b32 s29, s18, 2
    s_and_b32 s30, s19, 3
    s_add_u32 s29, s29, s30                  ; hd
    s_lshr_b32 s30, s19, 2                   ; qb
    s_lshl_b32 s28, s18, 5
    s_add_u32 s28, s28, s19                  ; f
    v_lshlrev_b32 v{TMP}, 4, v1              ; lane*16
    s_and_b32 s33, s3, 3                     ; qg
    s_lshl_b32 s31, s30, 3
    s_lshl_b32 s33, s33, 1
    s_add_u32 s31, s31, s33
    s_waitcnt lgkmcnt(0)
    """)
    srd(a,20,16,WS_SIZE)
    if asm.F12:
        a(f"""
        s_cmp_eq_u32 s3, 0
        s_cbranch_scc0 k2_nopoll
        s_lshr_b32 s32, s29, 3                   ; hd>>3
        v_and_b32 v{TMP+1}, 15, v1
        v_lshrrev_b32 v{TMP+2}, 4, v1            ; group 0:K 1:V 2,3:Q
        v_and_b32 v{TMP+3}, 1, v1
        s_lshl_b32 s33, s30, 1
        v_add_u32 v{TMP+3}, s33, v{TMP+3}
        v_cmp_gt_u32 vcc, 2, v{TMP+2}
        v_mov_b32 v{TMP+4}, 4
        v_mov_b32 v{TMP+5}, 8
        v_cndmask_b32 v{TMP+1}, v{TMP+3}, v{TMP+1}, vcc   ; rb
        v_cmp_eq_u32 vcc, 0, v{TMP+2}
        v_mov_b32 v{TMP+6}, 0
        s_nop 0
        v_cndmask_b32 v{TMP+6}, v{TMP+6}, v{TMP+4}, vcc
        v_cmp_eq_u32 vcc, 1, v{TMP+2}
        s_nop 1
        v_cndmask_b32 v{TMP+6}, v{TMP+6}, v{TMP+5}, vcc   ; type*4
        v_add_u32 v{TMP+6}, s32, v{TMP+6}        ; cb
        v_lshl_add_u32 v{TMP+1}, v{TMP+6}, 4, v{TMP+1}
        v_lshlrev_b32 v{TMP+1}, 2, v{TMP+1}
        v_add_u32 v{TMP+1}, {OFF_F1Q}, v{TMP+1}
        """)
        poll(a,"p1",1,[(TMP+1,TMP+3)])
        a.label("k2_nopoll")
        a("s_barrier")
        stamp(a,9)
    a(f"""
    s_lshl_b32 s32, s29, 16
    s_lshl_b32 s33, s31, 10
    s_add_u32 s32, s32, s33
    s_add_u32 s32, s32, {OFF_Q}
    buffer_load_dwordx4 {vr(Q[0],4)}, v{TMP}, s[20:23], s32 offen
    buffer_load_dwordx4 {vr(Q[1],4)}, v{TMP}, s[20:23], s32 offen offset:1024
    v_lshlrev_b32 v{TMP+1}, 2, v1
    s_lshl_b32 s32, s29, 8
    s_add_u32 s32, s32, {OFF_KN}
    buffer_load_dword v{TMP+2}, v{TMP+1}, s[20:23], s32 offen
    s_lshl_b32 s34, s3, 10                   ; wave*1024
    s_mul_i32 s35, s29, {KV_HEAD}
    s_add_u32 s35, s35, s34
    s_add_u32 s35, s35, {OFF_KV}
    """)
    kv_dma(a,st1)
    a("s_waitcnt vmcnt(4)")

    a.label("k2_loaded")
    for qq in range(2):
        acc=TMP+5+qq
        for k in range(4):
            a(f"v_lshlrev_b32 v{TMP+3}, 16, v{Q[qq]+k}")
            a(f"v_and_b32 v{TMP+4}, 0xffff0000, v{Q[qq]+k}")
            a(f"v_mul_f32 v{acc}, v{TMP+3}, v{TMP+3}" if k==0 else f"v_fmac_f32 v{acc}, v{TMP+3}, v{TMP+3}")
            a(f"v_fmac_f32 v{acc}, v{TMP+4}, v{TMP+4}")
    a(f"""
    s_nop 1
    v_permlane32_swap_b32 v{TMP+5}, v{TMP+6}
    s_nop 1
    v_add_f32 v{TMP+5}, v{TMP+5}, v{TMP+6}
    """)
    for sh in ("row_shr:1","row_shr:2","row_shr:4","row_shr:8"):
        a("s_nop 0")
        a(f"v_max_f32_dpp v{TMP+2}, v{TMP+2}, v{TMP+2} {sh} row_mask:0xf bank_mask:0xf bound_ctrl:0")
        a(f"v_max_f32_dpp v{TMP+5}, v{TMP+5}, v{TMP+5} {sh} row_mask:0xf bank_mask:0xf bound_ctrl:0")
    for sh in ("row_bcast:15 row_mask:0xa","row_bcast:31 row_mask:0xc"):
        a("s_nop 0")
        a(f"v_max_f32_dpp v{TMP+2}, v{TMP+2}, v{TMP+2} {sh} bank_mask:0xf")
        a(f"v_max_f32_dpp v{TMP+5}, v{TMP+5}, v{TMP+5} {sh} bank_mask:0xf")
    a(f"""
    s_nop 0
    v_mul_f32 v{TMP+2}, v{TMP+2}, v{TMP+5}
    s_nop 0
    v_readlane_b32 s38, v{TMP+2}, 63
    v_and_b32 v{TMP+3}, 31, v1
    v_lshrrev_b32 v{TMP+4}, 5, v1
    v_lshlrev_b32 v{TMP+4}, 10, v{TMP+4}
    v_lshl_add_u32 v{VK}, v{TMP+3}, 4, v{TMP+4}
    s_cmp_lt_u32 s3, 4
    s_cselect_b32 s36, 0, {NB*KV_TILE}
    s_cselect_b32 s45, {NB//2}, {NA//2}
    s_cselect_b32 s44, {HB}, {HA}
    s_cselect_b32 s43, {(XB-HB)//2}, {(XA-HA)//2 if asm.F23 else (NA//2-HA)//2}
    s_cselect_b32 s41, {(NB//2-XB)//2}, {(NA//2-XA)//2 if asm.F23 else 0}
    s_cselect_b32 s40, {min(TABIT,ARRIT)}, {ARRA if AUP else ARRIT}
    v_add_u32 v{VK}, s36, v{VK}
    v_cmp_eq_u32 vcc, 16, v{TMP+3}
    v_mov_b32 v{TMP+4}, 0x3f803f80
    v_mov_b32 v{VIDX}, 0xdddd
    v_cndmask_b32 v{TMP+4}, 0, v{TMP+4}, vcc
    s_mov_b32 s62, 0xffff
    s_mov_b32 s63, 0xffff
    """)
    for r in (F[0][1],F[0][2],F[1][1]):
        for i in range(4): a(f"v_mov_b32 v{r+i}, v{TMP+4}")
    for qq in range(2):
        for i in range(16): a(f"v_mov_b32 v{O[qq]+i}, 0")
    for i in range(8): a(f"v_mov_b32 v{S[1]+8+i}, 0")
    for i in range(4): a(f"v_mov_b32 v{F[1][2]+i}, v{TMP+4}")
    if "nohook" in VAR:
        a("s_waitcnt vmcnt(0)"); a("s_mov_b32 s40, 99")
    a(f"""
    v_mov_b32 v{TMP+3}, {K2_CNT}
    v_mov_b32 v{TMP+4}, 0
    v_mov_b32 v{TMP+5}, 0
    v_mov_b32 v{TMP+6}, 0
    v_mov_b32 v{TMP+7}, 0
    s_mov_b32 s47, 0
    s_cmp_eq_u32 s3, 0
    s_cbranch_scc0 k2_noinit
    ds_write_b128 v{TMP+3}, {vr(TMP+4,4)}
    ds_write_b128 v{TMP+3}, {vr(TMP+4,4)} offset:16
    s_waitcnt lgkmcnt(0)
    """)
    a.label("k2_noinit")
    a("s_waitcnt vmcnt(0)")
    stamp(a,1)
    a("s_barrier")
    a(f"v_lshlrev_b32 v{TMP}, 4, v1")
    if not DRIP: kv_dma(a,rest)
    PF = "pf" in VAR and asm.F23
    if PF:
        a("s_cmp_eq_u32 s3, 7")
        a("s_cbranch_scc0 k2_nopf")
        code_prefetch(a,"k2_tail","k2_end",2,TMP+1,5)
        a.label("k2_nopf")
    a("""
    s_cmp_lt_u32 s3, 4
    s_cbranch_scc1 k2_prioB
    s_setprio 1
    s_branch k2_priodone
    """)
    a.label("k2_prioB")
    a("s_setprio 2" if "noprio" not in VAR else "s_setprio 0")
    a.label("k2_priodone")
    if "soloA" in VAR:
        a("s_cmp_lt_u32 s3, 4"); a("s_cbranch_scc1 k2_end")
    stamp(a,2)
    a(f"""
    s_cmp_le_u32 s38, {hex(f2u(THRESH2))}
    s_cbranch_scc0 k2_fallback
    """)
    a("s_mov_b32 s57, 0")
    pipe_prologue(a,False)
    if DRIP and AUP:
        a("""
        s_cmp_lt_u32 s3, 4
        s_cbranch_scc1 k2_drip
        """)
        kv_dma(a,rest)
        a("s_branch k2_loop")
        if ALIGN: a.raw(".p2align 3")
        a.label("k2_drip")
    if DRIP:
        todo=[(lambda n=n: kv_dma(a,[n])) for n in rest]
        per=-(-len(todo)//8)
        for trip in range(2):
            for tau in range(2):
                for qt in range(2):
                    take=todo[:per]; todo=todo[per:]
                    unit(a,tau,qt,False,take)
            a(f"v_add_u32 v{VK}, {2*KV_TILE}, v{VK}")
        assert not todo
        a("s_mov_b32 s42, 2")
        stamp(a,30)
    attn_loop(a,False)
    a.label("k2_tail")
    if asm.F23:
        a(f"""
        s_cmp_lt_u32 s3, 4
        s_cbranch_scc0 k2_tail_nf
        v_mov_b32 v{TMP+2}, {K2_CNT+20}
        s_mov_b32 s49, 0x1000000
        """)
        a.label("k2_tail_w")
        a(f"""
        ds_read_b32 v{TMP+3}, v{TMP+2}
        s_waitcnt lgkmcnt(0)
        v_readfirstlane_b32 s48, v{TMP+3}
        s_sub_u32 s49, s49, 1
        s_cmp_eq_u32 s49, 0
        s_cbranch_scc1 k2_tail_nf
        s_cmp_eq_u32 s48, 0
        s_cbranch_scc1 k2_tail_w
        """)
        a.label("k2_tail_nf")
    stamp(a,6)
    a(f"""
    s_nop 1
    v_smfmac_f32_32x32x32_bf16 {vr(O[1],16)}, {vr(F[1][2],4)}, {vr(S[1]+8,8)}, v{VIDX}
    s_setprio 0
    s_mul_i32 s36, s3, 2304
    s_add_u32 s37, s36, {K2_E+8192-3*2304}
    s_add_u32 s36, s36, {K2_COL}
    s_cmp_lt_u32 s3, 3
    s_cselect_b32 s36, s36, s37
    s_xor_b32 s44, s3, 4
    s_mul_i32 s45, s44, 2304
    s_add_u32 s46, s45, {K2_E+8192-3*2304}
    s_add_u32 s45, s45, {K2_COL}
    s_cmp_lt_u32 s44, 3
    s_cselect_b32 s45, s45, s46
    v_lshlrev_b32 v{TMP}, 4, v1
    v_lshlrev_b32 v{TMP+1}, 2, v1
    v_add_u32 v{TMP+2}, s36, v{TMP}
    v_add_u32 v{TMP+3}, s36, v{TMP+1}
    v_add_u32 v{TMP+4}, s45, v{TMP}
    v_add_u32 v{TMP+5}, s45, v{TMP+1}
    s_cmp_lt_u32 s3, 4
    s_cbranch_scc1 k2_tailB
    """)
    a(f"""
    s_nop 9
    ds_write_b128 v{TMP+2}, {vr(O[0],4)}
    ds_write_b128 v{TMP+2}, {vr(O[0]+4,4)} offset:1024
    ds_write_b32 v{TMP+3}, v{O[0]+8} offset:2048
    s_nop 7
    """)
    for i in range(9): a(f"v_mov_b32 v{O[0]+i}, v{O[1]+i}")
    a("""
    s_add_u32 s31, s31, 1
    s_branch k2_tail2
    """)
    a.label("k2_tailB")
    a(f"""
    s_nop 15
    s_nop 3
    ds_write_b128 v{TMP+2}, {vr(O[1],4)}
    ds_write_b128 v{TMP+2}, {vr(O[1]+4,4)} offset:1024
    ds_write_b32 v{TMP+3}, v{O[1]+8} offset:2048
    """)
    a.label("k2_tail2")
    a(f"""
    s_waitcnt lgkmcnt(0)
    {"" if "soloA" in VAR else "s_barrier"}
    ds_read_b128 {vr(S[0],4)}, v{TMP+4}
    ds_read_b128 {vr(S[0]+4,4)}, v{TMP+4} offset:1024
    ds_read_b32 v{S[0]+8}, v{TMP+5} offset:2048
    s_lshl_b32 s36, s31, 5
    s_add_u32 s36, s36, s29
    s_lshl_b32 s36, s36, 10
    s_add_u32 s36, s36, {OFF_O}
    s_waitcnt lgkmcnt(0)
    """)
    for i in range(9): a(f"v_add_f32 v{O[0]+i}, v{O[0]+i}, v{S[0]+i}")
    a(f"""
    v_mov_b32 v{TMP+1}, v{O[0]+8}
    v_mov_b32 v{TMP+2}, v{O[0]+8}
    s_nop 1
    v_permlane32_swap_b32 v{TMP+1}, v{TMP+2}
    s_nop 1
    v_rcp_f32 v{TMP+1}, v{TMP+1}
    s_nop 0
    """)
    for i in range(8): a(f"v_mul_f32 v{O[0]+i}, v{O[0]+i}, v{TMP+1}")
    for i in range(4): a(f"v_cvt_pk_bf16_f32 v{TMP+4+i}, v{O[0]+2*i}, v{O[0]+2*i+1}")
    a.sc_srd="s[20:23]"
    a(f"buffer_store_dwordx4 {vr(TMP+4,4)}, v{TMP}, s[20:23], s36 offen")
    if asm.F23:
        if "wgflag" in VAR:
            a("""
            s_waitcnt vmcnt(0)
            s_barrier
            """)
            stamp(a,8)
            a(f"""
            s_cmp_eq_u32 s3, 0
            s_cbranch_scc0 ph3_start
            s_lshl_b32 s36, s30, 5
            s_add_u32 s36, s36, s29
            s_lshl_b32 s36, s36, 2
            s_add_u32 s36, s36, {OFF_F2}
            """)
            flag_store(a,36,TMP)
            a("s_branch ph3_start")
        elif "oflag" in VAR:
            a(f"""
            s_lshl_b32 s36, s31, 5
            s_add_u32 s36, s36, s29
            s_lshl_b32 s36, s36, 2
            s_add_u32 s36, s36, {OFF_F2}
            s_waitcnt vmcnt(0)
            """)
            stamp(a,8)
            flag_store(a,36,TMP)
            a("s_branch ph3_start")
        else:
            stamp(a,8)
            a("s_branch ph3_start")
    else:
        if asm.STAMP:
            a("s_waitcnt vmcnt(0)"); stamp(a,8); stamp_dump(a,1)
        a("s_endpgm")
    def act_tab(): a("s_call_b64 s[60:61], k2_tab")
    def act_arriveB():
        dma_arrive(a, (26 if asm.F23 else 24) if TABIT<=ARRIT else 0)
    def act_b2():
        stamp(a,3); a("s_call_b64 s[60:61], k2_b2"); stamp(a,4)
    def act_pub(): a("s_call_b64 s[60:61], k2_pub")
    def act_prio0(): a("s_setprio 0")
    hooksB=[(TABIT,act_tab),(ARRIT,act_arriveB),(DWAIT,lambda: dma_wait(a,"hb")),(B2IT,act_b2)]
    hooksB.sort(key=lambda h:h[0])
    if asm.F23: hooksB.append((PUBIT,act_pub))
    def arriveA():
        if PF:
            a("s_cmp_eq_u32 s3, 7")
            a("s_cbranch_scc0 k2_arr_n")
            dma_arrive(a,2)
            a("s_branch k2_arr_d")
            a.label("k2_arr_n")
            dma_arrive(a)
            a.label("k2_arr_d")
        else: dma_arrive(a)
    ARR_A=ARRA if AUP else ARRIT
    hooksA=[(ARR_A,arriveA),(DWAIT,lambda: dma_wait(a,"ha"))]
    if asm.F23:
        def req_flags():
            a("s_cmp_eq_u32 s3, 4")
            a("s_cbranch_scc0 k2_noreq")
            a(f"v_lshlrev_b32 v{TMP}, 4, v1")
            a(f"v_add_u32 v{TMP}, {OFF_F2B}, v{TMP}")
            a.sc_srd="s[20:23]"
            a(f"buffer_load_dwordx4 {vr(TMP+4,4)}, v{TMP}, s[20:23], 0 offen")
            a.sc_srd=P1
            a.label("k2_noreq")
        hooksA.append((HA-1,req_flags))
        if os.environ.get("TOUCH","1")=="1":
            def touch():
                a("s_cmp_eq_u32 s3, 5")
                a("s_cbranch_scc0 k2_notouch")
                page_touch(a,52,4194300,6,7)
                a.label("k2_notouch")
            hooksA.append((DWAIT,touch))
    def emit(role,hooks):
        its=sorted(set(h[0] for h in hooks))
        for n,it in enumerate(its):
            nxt=its[n+1] if n+1<len(its) else 99
            a(f"s_cmp_eq_u32 s40, {it}")
            a(f"s_cbranch_scc0 k2_hk{role}_{n+1}")
            for (i2,f) in hooks:
                if i2==it: f()
            a(f"s_mov_b32 s40, {nxt}")
            a("s_branch k2_hookret")
            a.label(f"k2_hk{role}_{n+1}")
        a("s_branch k2_hookret")
        return its[0]
    a.label("k2_hook")
    a("""
    s_cmp_lt_u32 s3, 4
    s_cbranch_scc0 k2_hookA
    """)
    emit("B",hooksB)
    a.label("k2_hookA")
    emit("A",hooksA)
    a.label("k2_fallback")
    a("s_mov_b32 s57, 1")
    if DRIP: kv_dma(a,rest)
    a("""
    s_cmp_lt_u32 s3, 4
    s_cbranch_scc0 k2_fbA
    """)
    dma_arrive(a)
    dma_wait(a,"fbb")
    a("""
    s_call_b64 s[60:61], k2_tab
    s_call_b64 s[60:61], k2_b2
    """)
    if asm.F23: a("s_call_b64 s[60:61], k2_pub")
    a("""
    s_branch k2_fb_pre
    """)
    a.label("k2_fbA")
    dma_arrive(a)
    dma_wait(a,"fb")
    a.label("k2_fb_pre")
    if asm.F23: a("s_call_b64 s[60:61], k2_mid")
    a(f"""
    v_mov_b32 v{TMP+1}, 0xff800000
    v_mov_b32 v{TMP+2}, 0xff800000
    v_and_b32 v{TMP+3}, 31, v1
    v_lshrrev_b32 v{TMP+4}, 5, v1
    v_lshlrev_b32 v{TMP+4}, 10, v{TMP+4}
    v_lshl_add_u32 v{TMP+3}, v{TMP+3}, 4, v{TMP+4}
    s_mov_b32 s42, 64
    """)
    a.label("k2_fb_max")
    a(f"""
    ds_read_b128 {vr(F[0][0],4)}, v{TMP+3}
    v_add_u32 v{TMP+3}, {KV_TILE}, v{TMP+3}
    s_waitcnt lgkmcnt(0)
    v_mfma_f32_32x32x16_bf16 {vr(S[0],16)}, {vr(F[0][0],4)}, {vr(Q[0],4)}, 0
    v_mfma_f32_32x32x16_bf16 {vr(CI[0],16)}, {vr(F[0][0],4)}, {vr(Q[1],4)}, 0
    s_nop 15
    """)
    for i in range(0,16,2): a(f"v_max3_f32 v{TMP+1}, v{S[0]+i}, v{S[0]+i+1}, v{TMP+1}")
    for i in range(0,16,2): a(f"v_max3_f32 v{TMP+2}, v{CI[0]+i}, v{CI[0]+i+1}, v{TMP+2}")
    a(f"""
    s_sub_u32 s42, s42, 1
    s_cmp_lg_u32 s42, 0
    s_cbranch_scc1 k2_fb_max
    v_mov_b32 v{TMP+3}, v{TMP+1}
    v_mov_b32 v{TMP+4}, v{TMP+2}
    s_nop 1
    v_permlane32_swap_b32 v{TMP+1}, v{TMP+3}
    v_permlane32_swap_b32 v{TMP+2}, v{TMP+4}
    s_nop 1
    v_max_f32 v{TMP+1}, v{TMP+1}, v{TMP+3}
    v_max_f32 v{TMP+2}, v{TMP+2}, v{TMP+4}
    """)
    for qq in range(2):
        for i in range(16): a(f"v_sub_f32 v{CI[qq]+i}, 0, v{TMP+1+qq}")
    a("s_nop 1")
    a("s_mov_b32 s43, s45")
    pipe_prologue(a,True)
    attn_loop(a,True)
    a("s_branch k2_tail")
    if asm.F23:
        a.label("k2_mid")
        a.sc_srd="s[20:23]"
        a(f"""
        s_cmp_lt_u32 s3, 4
        s_cbranch_scc0 k2_mid_A
        s_setprio 0
        s_setpc_b64 s[60:61]
        """)
        a.label("k2_mid_A")
        a(f"""
        s_cmp_eq_u32 s3, 4
        s_cbranch_scc0 k2_mid_ret
        v_mov_b32 v{TMP+2}, {K2_CNT+16}
        s_mov_b32 s49, 0x100000
        """)
        a.label("k2_mid_tag")
        a(f"""
        ds_read_b32 v{TMP+3}, v{TMP+2}
        s_waitcnt lgkmcnt(0)
        v_readfirstlane_b32 s56, v{TMP+3}
        s_sub_u32 s49, s49, 1
        s_cmp_eq_u32 s49, 0
        s_cbranch_scc1 k2_mid_tagok
        s_cmp_eq_u32 s56, 0
        s_cbranch_scc1 k2_mid_tag
        """)
        a.label("k2_mid_tagok")
        a(f"""
        v_lshlrev_b32 v{TMP}, 4, v1
        v_add_u32 v{TMP}, {OFF_F2B}, v{TMP}
        s_mov_b32 s49, 0x20000
        s_cmp_eq_u32 s57, 0
        s_cbranch_scc1 k2_mid_have
        """)
        a.label("k2_mid_poll")
        a(f"""
        buffer_load_dwordx4 {vr(TMP+4,4)}, v{TMP}, s[20:23], 0 offen
        """)
        a.label("k2_mid_have")
        a(f"""
        s_waitcnt vmcnt(0)
        v_cmp_eq_u32 vcc, s56, v{TMP+4}
        v_cmp_eq_u32 s[50:51], s56, v{TMP+5}
        s_nop 1
        s_and_b64 vcc, vcc, s[50:51]
        v_cmp_eq_u32 s[50:51], s56, v{TMP+6}
        s_nop 1
        s_and_b64 vcc, vcc, s[50:51]
        v_cmp_eq_u32 s[50:51], s56, v{TMP+7}
        s_nop 1
        s_and_b64 vcc, vcc, s[50:51]
        s_cmp_eq_u64 vcc, -1
        s_cbranch_scc1 k2_mid_ok
        s_sub_u32 s49, s49, 1
        s_cmp_eq_u32 s49, 0
        s_cbranch_scc1 k2_mid_ok
        s_sleep 4
        s_branch k2_mid_poll
        """)
        a.label("k2_mid_ok")
        a(f"""
        v_mov_b32 v{TMP+2}, {K2_CNT+20}
        v_mov_b32 v{TMP+3}, 1
        ds_write_b32 v{TMP+2}, v{TMP+3}
        s_lshr_b32 s33, s19, 3
        s_lshl_b32 s33, s33, 3
        s_add_u32 s33, s33, s18                  ; n2
        s_and_b32 s36, s19, 7                    ; a
        v_lshrrev_b32 v{TMP}, 1, v1
        v_lshlrev_b32 v{TMP}, 13, v{TMP}
        v_and_b32 v{TMP+1}, 1, v1
        v_lshl_add_u32 v{TMP}, v{TMP+1}, 4, v{TMP}
        s_lshl_b32 s33, s33, 8
        s_lshl_b32 s36, s36, 5
        s_add_u32 s33, s33, s36
        s_add_u32 s33, s33, {OFF_Y}
        """)
        for e in range(8):
            a(f"s_mov_b32 m0, {K2_E+e*1024}")
            a(f"s_add_u32 s36, s33, {e*32*8192}")
            a(f"buffer_load_dwordx4 v{TMP}, s[20:23], s36 offen lds")
        a.label("k2_mid_ret")
        a("s_setpc_b64 s[60:61]")
    a.label("k2_tab")
    a.sc_srd=P1
    if asm.F12:
        a(f"""
        s_cmp_eq_u32 s3, 0
        s_cbranch_scc0 k2_nop1b
        v_lshlrev_b32 v{TMP+2}, 2, v1
        v_add_u32 v{TMP+2}, {OFF_F1B}, v{TMP+2}
        """)
        poll(a,"p1b",1,[(TMP+2,TMP+4)])
        a.label("k2_nop1b")
        bbar(a,"tab")
    a(f"""
    v_lshlrev_b32 v{TMP}, 4, v1
    v_lshrrev_b32 v{TMP+3}, 4, v1
    s_lshl_b32 s32, s3, 3
    v_add_u32 v{TMP+4}, s32, v{TMP+3}        ; n2 (e=0)
    v_and_b32 v{TMP+5}, 15, v{TMP+4}
    v_and_b32 v{TMP+6}, 15, v1
    v_xor_b32 v{TMP+5}, v{TMP+5}, v{TMP+6}
    v_lshlrev_b32 v{TMP+5}, 4, v{TMP+5}
    v_lshl_add_u32 v{TMP+5}, v{TMP+4}, 8, v{TMP+5}
    v_xor_b32 v{TMP+6}, 64, v{TMP+5}
    v_add_u32 v{TMP+6}, 1024, v{TMP+6}
    s_lshl_b32 s32, s28, 13
    s_add_u32 s32, s32, {OFF_Z}
    s_lshl_b32 s33, s3, 11
    s_add_u32 m0, s33, {K2_COL}
    s_nop 0
    buffer_load_dwordx4 v{TMP+5}, s[20:23], s32 offen lds
    s_add_u32 m0, s33, {K2_COL+1024}
    s_nop 0
    buffer_load_dwordx4 v{TMP+6}, s[20:23], s32 offen lds
    """)
    a(f"s_lshl_b32 s36, s3, 13")
    a(f"s_add_u32 s36, s36, {OFF_T64}")
    for k in range(8):
        a(f"buffer_load_dwordx4 {vr(T64+4*k,4)}, v{TMP}, s[20:23], s36 offen offset:{(k%4)*1024}")
        if k==3: a("s_add_u32 s36, s36, 4096")
    a(f"s_lshl_b32 s36, s3, 12")
    a(f"s_add_u32 s36, s36, {OFF_TW}")
    for k in range(4):
        a(f"buffer_load_dwordx4 {vr(TW+4*k,4)}, v{TMP}, s[20:23], s36 offen offset:{k*1024}")
    a(f"s_mov_b32 s36, {OFF_A32}")
    for k in range(8):
        a(f"buffer_load_dwordx4 {vr(A32+4*k,4)}, v{TMP}, s[20:23], s36 offen offset:{(k%4)*1024}")
        if k==3: a("s_add_u32 s36, s36, 4096")
    a(f"""
    s_lshl_b32 s36, s28, 13
    s_lshl_b32 s37, s3, 11
    s_add_u32 s36, s36, s37
    s_add_u32 s36, s36, {OFF_WT}
    buffer_load_dwordx4 {vr(WT,4)}, v{TMP}, s[20:23], s36 offen
    buffer_load_dwordx4 {vr(WT+4,4)}, v{TMP}, s[20:23], s36 offen offset:1024
    """)
    if asm.F23:
        a.sc_srd="s[20:23]"
        a(f"""
        v_mov_b32 v{TMP+4}, -1
        v_mov_b32 v{TMP+5}, -1
        v_mov_b32 v{TMP+6}, -1
        v_mov_b32 v{TMP+7}, -1
        s_lshl_b32 s36, s31, 5
        s_add_u32 s36, s36, s29
        s_lshl_b32 s36, s36, 10
        s_add_u32 s36, s36, {OFF_O}
        buffer_store_dwordx4 {vr(TMP+4,4)}, v{TMP}, s[20:23], s36 offen
        s_add_u32 s36, s36, 32768
        buffer_store_dwordx4 {vr(TMP+4,4)}, v{TMP}, s[20:23], s36 offen
        """)
        a.sc_srd=P1
    a("s_setpc_b64 s[60:61]")
    a.label("k2_b2")
    a.sc_srd=P1
    a.p1=P1
    b2_part1(a)
    b2_part2(a)
    if asm.F23:
        a.label("k2_pub")
        a.sc_srd="s[20:23]"
        a("s_waitcnt vmcnt(0)")
        bbar(a,"pub")
        a("s_cmp_eq_u32 s3, 0")
        a("s_cbranch_scc0 k2_pub1")
        if not asm.F12: tag_resolve(a,"b")
        a(f"""
        v_mov_b32 v{TMP+2}, {K2_CNT+16}
        v_mov_b32 v{TMP+3}, s56
        ds_write_b32 v{TMP+2}, v{TMP+3}
        s_lshl_b32 s36, s28, 2
        s_add_u32 s36, s36, {OFF_F2B}
        """)
        flag_store(a,36,TMP)
        a.label("k2_pub1")
        a.sc_srd=P1
        a(f"""
        s_lshr_b32 s36, s19, 2                   ; ct
        s_lshl_b32 s36, s36, 16
        s_lshl_b32 s37, s3, 13
        s_add_u32 s36, s36, s37
        s_add_u32 s36, s36, {OFF_WOF}
        v_lshlrev_b32 v{TMP}, 4, v1
        """)
        for hh in range(8):
            a(f"s_add_u32 s37, s36, {hh*1024}")
            a(f"buffer_load_dwordx4 {vr(WOR+8*hh,4)}, v{TMP}, s[20:23], s37 offen")
            a(f"s_add_u32 s37, s37, 32768")
            a(f"buffer_load_dwordx4 {vr(WOR+8*hh+4,4)}, v{TMP}, s[20:23], s37 offen")
        a("s_setpc_b64 s[60:61]")
    a.sc_srd=None
    if own:
        a.label("k2_end")
        a("s_endpgm")
    return a
```

```python
import asm
from asm import *
from layout import *
from k1 import srd, twiddle
import os
VAR=set(os.environ.get("VAR","").split(","))
def opt(name,default):
    for v in VAR:
        if v.startswith(name+"="): return int(v.split("=")[1])
    return default
K2_COL=131072
K2_E=K2_COL+8192
K2_LDS=163840
K2_CNT=163840-64
THRESH2=4096.0/1.03
NB=opt("NB",30)
NA=64-NB
AUP=opt("AUP",1)
ARRA=opt("ARRA",1)
ST1R=opt("ST1R",4)
DRIP=opt("DRIP",1)
DWAIT=opt("DWAIT",5 if ST1R==6 else 3)
ARRIT=opt("ARRIT",2)
TABIT=opt("TABIT",2)
B2IT=opt("B2IT",4)
PUBIT=opt("PUBIT",6)
XB=opt("XB",13)

HB=opt("HB",PUBIT+1); HA=opt("HA",5)
XA=opt("XA",11)
assert (XA-HA)%2==0 and (NA//2-XA)%2==0 and XA>HA and NA//2>XA
assert (XB-HB)%2==0 and XB>HB and (NB//2-XB)%2==0 and NB//2>XB and (NA//2-HA)%2==0, (HB,XB,NB,HA)
VK,VV,VIDX=2,3,4
Q=[8,12]; S=[16,32]; O=[48,64]
F=[(80,84,88),(92,96,100)]
TMP=104
T64,A32,TW,WT,BUF,D1,P=112,144,176,192,200,232,248
X2=200
CI=[112,128]
VM,VQd=108,109
WOR=144

ALIGN="noalign" not in VAR
def expo(a,r,wide=False): a(f"v_exp_f32{'_e64' if wide else ''} v{r}, v{r}")

def unit(a,tau,qt,fb,extra=()):
    extra=list(extra)
    def ex():
        if extra: extra.pop(0)()
    tp=tau&1
    Sc,Sn=S[qt],S[1-qt]
    def pv(Ob,V,B): a(f"v_smfmac_f32_32x32x32_bf16 {vr(Ob,16)}, {vr(V,4)}, {vr(B,8)}, v{VIDX}")
    def qk(Sd,K,qq): a(f"v_mfma_f32_32x32x16_bf16 {vr(Sd,16)}, {vr(K,4)}, {vr(Q[qq],4)}, {vr(CI[qq],16) if fb else '0'}")
    if qt==0:
        Kc,V0c,V1c=F[tp]; Kn,V0n,V1n=F[1-tp]
        expo(a,Sc); expo(a,Sc+1)
        pv(O[1],V1n,Sn+8)
        a(f"ds_read_b128 {vr(Kn,4)}, v{VK} offset:{(tau+1)*KV_TILE}")
        expo(a,Sc+2)
        a("s_mov_b64 exec, s[62:63]")
        a(f"ds_read_b128 {vr(V0n,4)}, v{VK} offset:{(tau+1)*KV_TILE+512}")
        a(f"ds_read_b128 {vr(V1n,4)}, v{VK} offset:{(tau+1)*KV_TILE+768}")
        a("s_mov_b64 exec, -1")
        expo(a,Sc+3); expo(a,Sc+4,ALIGN)
        qk(Sn,Kc,1)
        expo(a,Sc+5,ALIGN)
        for i in range(6,12):
            expo(a,Sc+i)
            if i==7: ex()
        pv(O[0],V0c,Sc)
        for i in range(12,16):
            expo(a,Sc+i)
            if i==13: ex()
    else:
        Kc,V0c,V1c=F[tp]; Kn,V0n,V1n=F[1-tp]
        expo(a,Sc); expo(a,Sc+1)
        pv(O[0],V1c,Sn+8)
        expo(a,Sc+2); expo(a,Sc+3); expo(a,Sc+4)
        a("s_waitcnt lgkmcnt(0)")
        qk(Sn,Kn,0)
        expo(a,Sc+5,ALIGN)
        for i in range(6,12):
            expo(a,Sc+i)
            if i==7: ex()
        pv(O[1],V0c,Sc)
        for i in range(12,16):
            expo(a,Sc+i)
            if i==13: ex()

def bbar(a,tag,cnt=0):
    a(f"""
    v_mov_b32 v111, {K2_CNT+cnt}
    v_mov_b32 v110, 1
    s_waitcnt lgkmcnt(0)
    s_mov_b64 exec, 1
    ds_add_u32 v111, v110
    s_mov_b64 exec, -1
    s_add_u32 s47, s47, 4
    """)
    a.label(f"k2_bbar_{tag}")
    a(f"""
    ds_read_b32 v109, v111
    s_waitcnt lgkmcnt(0)
    v_readfirstlane_b32 s48, v109
    s_nop 0
    s_cmp_lt_u32 s48, s47
    s_cbranch_scc1 k2_bbar_{tag}
    """)

def dma_arrive(a,younger=0):
    a(f"""
    s_waitcnt vmcnt({younger})
    v_mov_b32 v{TMP}, {K2_CNT+4}
    v_mov_b32 v{TMP+1}, 1
    s_mov_b64 exec, 1
    ds_add_u32 v{TMP}, v{TMP+1}
    s_mov_b64 exec, -1
    """)
def dma_wait(a,tag):
    a(f"v_mov_b32 v{TMP}, {K2_CNT+4}")
    a.label(f"k2_dwait_{tag}")
    a(f"""
    ds_read_b32 v{TMP+1}, v{TMP}
    s_waitcnt lgkmcnt(0)
    v_readfirstlane_b32 s48, v{TMP+1}
    s_nop 0
    s_cmp_lt_u32 s48, 8
    s_cbranch_scc1 k2_dwait_{tag}
    """)

def kv_dma(a, ns):
    for n in ns:
        a(f"s_add_u32 m0, s34, {n*1024}")
        a(f"s_add_u32 s36, s35, {n*1024}")
        a(f"buffer_load_dwordx4 v{TMP}, s[20:23], s36 offen lds")

def b2_part1(a):
    a("s_waitcnt vmcnt(0)")
    if asm.F23 and not asm.F12:
        a("s_cmp_eq_u32 s3, 0")
        a("s_cbranch_scc0 k2_notagreq")
        tag_request(a)
        a.label("k2_notagreq")
    bbar(a,"col")
    a(f"""
    v_and_b32 v{VM}, 15, v1
    v_lshrrev_b32 v{VQd}, 4, v1
    v_xor_b32 v104, v{VM}, v{VQd}
    v_lshlrev_b32 v104, 4, v104
    v_lshl_add_u32 v104, v{VM}, 8, v104
    v_add_u32 v104, {K2_COL}, v104
    v_xor_b32 v105, 64, v104
    v_xor_b32 v106, 128, v104
    v_xor_b32 v107, 192, v104
    """)
    for u in range(4):
        for t in range(2):
            a(f"ds_read_b128 {vr(BUF+16*t+4*u,4)}, v{104+u} offset:{t*4096}")
    for u in range(4):
        a(f"s_waitcnt lgkmcnt({6-2*u})")
        for t in range(2):
            for part in range(2):
                d=D1+8*t+4*part
                a(f"v_mfma_f32_16x16x32_bf16 {vr(d,4)}, {vr(BUF+16*t+4*u,4)}, {vr(T64+8*u+4*part,4)}, {'0' if u==0 else vr(d,4)}")
    a("""
    s_cmp_eq_u32 s28, 0
    s_cbranch_scc0 k2_p1_noab
    """)
    a(f"v_lshlrev_b32 v110, 4, v1")
    a(f"s_lshl_b32 s36, s3, 12")
    a(f"s_add_u32 s36, s36, {OFF_AB}")
    for ep in range(4):
        a(f"buffer_load_dwordx4 {vr(216+4*ep,4)}, v110, s[20:23], s36 offen offset:{ep*1024}")
    a.label("k2_p1_noab")
    a("s_nop 6")
    for t in range(2):
        twiddle(a, D1+8*t, D1+8*t+4, TW+4*t, TW+8+4*t, P+4*t, 104)
    a("s_nop 1")
    for t in range(2):
        for tp in range(2):
            for part in range(2):
                d=X2+8*tp+4*part
                a(f"v_mfma_f32_16x16x32_bf16 {vr(d,4)}, {vr(A32+((tp*2+part)*2+t)*4,4)}, {vr(P+4*t,4)}, {'0' if t==0 else vr(d,4)}")

def b2_part2(a):
    a("s_waitcnt vmcnt(0)")
    a("""
    s_cmp_eq_u32 s28, 0
    s_cbranch_scc1 k2_p2_special
    """)
    for tp in range(2):
        xr,xi=X2+8*tp,X2+8*tp+4
        wr,wi=D1+8*tp,D1+8*tp+4
        for i in range(4):
            a(f"v_lshlrev_b32 v{wr+i}, 16, v{WT+4*tp+i}")
            a(f"v_and_b32 v{wi+i}, 0xffff0000, v{WT+4*tp+i}")
        for p in (0,2):
            a(f"v_pk_mul_f32 {vr(104+p,2)}, {vr(xr+p,2)}, {vr(wr+p,2)}")
            a(f"v_pk_mul_f32 {vr(108+p,2)}, {vr(xr+p,2)}, {vr(wi+p,2)}")
        for p in (0,2):
            a(f"v_pk_fma_f32 {vr(104+p,2)}, {vr(xi+p,2)}, {vr(wi+p,2)}, {vr(104+p,2)} neg_lo:[1,0,0] neg_hi:[1,0,0]")
            a(f"v_pk_fma_f32 {vr(108+p,2)}, {vr(xi+p,2)}, {vr(wr+p,2)}, {vr(108+p,2)}")
        for i in range(4): a(f"v_cvt_pk_bf16_f32 v{P+4*tp+i}, v{104+i}, -v{108+i}")
    a.label("k2_p2_common")
    a("s_nop 1")
    for tp in range(2):
        for t in range(2):
            for part in range(2):
                d=D1+8*t+4*part
                a(f"v_mfma_f32_16x16x32_bf16 {vr(d,4)}, {vr(A32+((t*2+part)*2+tp)*4,4)}, {vr(P+4*tp,4)}, {'0' if tp==0 else vr(d,4)}")
    t0=X2
    a(f"""
    v_and_b32 v{t0}, 15, v1                 ; m
    v_lshrrev_b32 v{t0+1}, 4, v1            ; q
    v_lshrrev_b32 v{t0+2}, 2, v{t0}         ; m>>2
    s_lshl_b32 s36, s3, 2
    v_add_u32 v{t0+2}, s36, v{t0+2}         ; 4w + (m>>2)
    v_lshlrev_b32 v{t0+3}, 2, v{t0+1}       ; 4q
    v_xor_b32 v{t0+2}, v{t0+2}, v{t0+3}
    v_lshlrev_b32 v{t0+2}, 4, v{t0+2}
    v_lshl_add_u32 v{t0+2}, v{t0+3}, 8, v{t0+2}
    v_and_b32 v{t0+4}, 3, v{t0}
    v_lshl_add_u32 v{t0+2}, v{t0+4}, 2, v{t0+2}
    v_add_u32 v{t0+8}, {K2_E}, v{t0+2}
    v_xor_b32 v{t0+9}, 16, v{t0+8}
    v_xor_b32 v{t0+10}, 32, v{t0+8}
    v_xor_b32 v{t0+11}, 48, v{t0+8}
    """)
    for t in range(2):
        twiddle(a, D1+8*t, D1+8*t+4, TW+4*t, TW+8+4*t, P+4*t, 104)
    for t in range(2):
        for i in range(4):
            a(f"ds_write_b32 v{t0+8+i}, v{P+4*t+i} offset:{t*4096+i*256}")
    bbar(a,"e")
    a(f"""
    v_and_b32 v{VM}, 15, v1
    v_lshrrev_b32 v{VQd}, 4, v1
    v_xor_b32 v104, v{VM}, v{VQd}
    v_lshlrev_b32 v104, 4, v104
    v_lshl_add_u32 v104, v{VM}, 8, v104
    v_add_u32 v104, {K2_E}, v104
    v_xor_b32 v105, 64, v104
    v_xor_b32 v106, 128, v104
    v_xor_b32 v107, 192, v104
    """)
    for u in range(4):
        for t in range(2):
            a(f"ds_read_b128 {vr(BUF+16*t+4*u,4)}, v{104+u} offset:{t*4096}")
    a(f"""
    v_lshlrev_b32 v110, 8, v{VM}
    v_lshl_add_u32 v110, v{VQd}, 4, v110
    s_lshl_b32 s36, s28, 13
    s_lshl_b32 s37, s3, 6
    s_add_u32 s36, s36, s37
    s_add_u32 s36, s36, {OFF_Y}
    """)
    for u in range(4):
        a(f"s_waitcnt lgkmcnt({6-2*u})")
        for t in range(2):
            for part in range(2):
                d=D1+8*t+4*part
                a(f"v_mfma_f32_16x16x32_bf16 {vr(d,4)}, {vr(T64+8*u+4*part,4)}, {vr(BUF+16*t+4*u,4)}, {'0' if u==0 else vr(d,4)}")
    a("s_nop 7")
    for t in range(2):
        for i in range(4): a(f"v_cvt_pk_bf16_f32 v{P+4*t+i}, v{D1+8*t+i}, -v{D1+8*t+4+i}")
        a.sc_srd="s[20:23]"
        a(f"buffer_store_dwordx4 {vr(P+4*t,4)}, v110, s[20:23], s36 offen")
        a.sc_srd=a.p1
        if t==0: a("s_add_u32 s36, s36, 4096")
    a("s_setpc_b64 s[60:61]")
    a.label("k2_p2_special")
    bbar(a,"s0")
    XCH=K2_COL
    a(f"""
    v_and_b32 v104, 15, v1
    v_lshrrev_b32 v105, 4, v1
    s_lshl_b32 s36, s3, 4
    v_add_u32 v104, s36, v104                 ; k1
    v_lshl_add_u32 v104, v105, 8, v104         ; g0 = k1 + 64*4q
    v_lshlrev_b32 v106, 3, v104
    v_add_u32 v106, {XCH}, v106
    """)
    for tp in range(2):
        for i in range(4):
            off=(i*64+tp*1024)*8
            a(f"ds_write_b32 v106, v{X2+8*tp+i} offset:{off}")
            a(f"ds_write_b32 v106, v{X2+8*tp+4+i} offset:{off+4}")
    bbar(a,"s1")
    for tp in range(2):
        for i in range(4):
            e=4*tp+i
            a(f"v_sub_u32 v107, {2048-(i*64+tp*1024)}, v104")
            a(f"v_and_b32 v107, 2047, v107")
            a(f"v_lshlrev_b32 v107, 3, v107")
            a(f"v_add_u32 v107, {XCH}, v107")
            a(f"ds_read_b64 {vr(D1+2*e,2)}, v107")
    bbar(a,"s2")
    for tp in range(2):
        for i in range(4):
            e=4*tp+i
            src=216+2*e
            ab=WT
            a(f"v_lshlrev_b32 v{ab}, 16, v{src}")
            a(f"v_and_b32 v{ab+1}, 0xffff0000, v{src}")
            a(f"v_lshlrev_b32 v{ab+2}, 16, v{src+1}")
            a(f"v_and_b32 v{ab+3}, 0xffff0000, v{src+1}")
            zr,zi=X2+8*tp+i,X2+8*tp+4+i
            pr,pi=D1+2*e,D1+2*e+1
            a(f"v_mul_f32 v104, v{zr}, v{ab}")
            a(f"v_mul_f32 v105, v{zr}, v{ab+1}")
            a(f"v_fma_f32 v104, -v{zi}, v{ab+1}, v104")
            a(f"v_fma_f32 v105, v{zi}, v{ab}, v105")
            a(f"v_fma_f32 v104, v{pr}, v{ab+2}, v104")
            a(f"v_fma_f32 v105, v{pr}, v{ab+3}, v105")
            a(f"v_fma_f32 v104, v{pi}, v{ab+3}, v104")
            a(f"v_fma_f32 v105, -v{pi}, v{ab+2}, v105")
            a(f"v_cvt_pk_bf16_f32 v{P+e}, v104, -v105")
    a("s_branch k2_p2_common")


def rounds():
    nA0=NB*KV_TILE//1024
    st1=[x for k in range(ST1R//2) for x in (8*k,nA0+8*k)]
    rest=[]
    n=8*(ST1R//2)
    while n<nA0:
        rest.append(min(n,nA0-8) if n+8>nA0 else n); n+=8
    n=nA0+8*(ST1R//2)
    while n<128:
        rest.append(min(n,120)); n+=8
    lo=[r for r in rest if r<nA0]; hi=[r for r in rest if r>=nA0]
    out=[]
    while lo or hi:
        if lo: out.append(lo.pop(0))
        if hi: out.append(hi.pop(0))
    return st1,out

def attn_loop(a,fb):
    if fb:
        a.label("k2_loop_fb")
        unit(a,0,0,fb); unit(a,0,1,fb); unit(a,1,0,fb); unit(a,1,1,fb)
        a(f"""
        v_add_u32 v{VK}, {2*KV_TILE}, v{VK}
        s_add_u32 s42, s42, 1
        s_cmp_lt_u32 s42, s43
        s_cbranch_scc1 k2_loop_fb
        """)
        return
    if ALIGN: a.raw(".p2align 6")
    a.label("k2_loop")
    a("""
    s_cmp_eq_u32 s42, s40
    s_cbranch_scc1 k2_hook
    """)
    a.label("k2_hookret")
    unit(a,0,0,fb); unit(a,0,1,fb); unit(a,1,0,fb); unit(a,1,1,fb)
    a(f"""
    v_add_u32 v{VK}, {2*KV_TILE}, v{VK}
    s_add_u32 s42, s42, 1
    s_cmp_lt_u32 s42, s44
    s_cbranch_scc1 k2_loop
    """)
    a(".p2align 3, 0xbf800000" if False else "s_nop 0") if False else None
    stamp(a,31)
    if ALIGN: a.raw(".p2align 6")
    if "shift4" in VAR: a("s_nop 0")
    a.label("k2_lean")
    for tau in range(4):
        unit(a,tau,0,fb); unit(a,tau,1,fb)
    a(f"""
    v_add_u32 v{VK}, {4*KV_TILE}, v{VK}
    s_sub_u32 s43, s43, 1
    s_cmp_lg_u32 s43, 0
    s_cbranch_scc1 k2_lean
    s_cmp_eq_u32 s41, 0
    s_cbranch_scc1 k2_lean_done
    """)
    stamp(a,32)
    if asm.F23: a("s_call_b64 s[60:61], k2_mid")
    else: a("s_setprio 0")
    a(f"""
    s_mov_b32 s43, s41
    s_mov_b32 s41, 0
    s_branch k2_lean
    """)
    a.label("k2_lean_done")

def pipe_prologue(a,fb):
    K,V0,V1=F[0]
    a(f"""
    ds_read_b128 {vr(K,4)}, v{VK}
    s_mov_b64 exec, s[62:63]
    ds_read_b128 {vr(V0,4)}, v{VK} offset:512
    ds_read_b128 {vr(V1,4)}, v{VK} offset:768
    s_mov_b64 exec, -1
    s_waitcnt lgkmcnt(2)
    v_mfma_f32_32x32x16_bf16 {vr(S[0],16)}, {vr(K,4)}, {vr(Q[0],4)}, {vr(CI[0],16) if fb else '0'}
    s_mov_b32 s42, 0
    s_waitcnt lgkmcnt(0)
    s_nop 11
    """)

def poll(a,tag,nloads,addr_regs,srdreg="s[20:23]",soff="0"):
    a(f"s_mov_b32 s49, 0x20000")
    a.label(f"poll_{tag}")
    for k in range(nloads):
        a(f"buffer_load_dword v{addr_regs[k][1]}, v{addr_regs[k][0]}, {srdreg}, {soff} offen")
    a("s_waitcnt vmcnt(0)")
    for k in range(nloads):
        a(f"v_cmp_eq_u32 {'vcc' if k==0 else 's[50:51]'}, s56, v{addr_regs[k][1]}")
        if k>0:
            a("s_nop 1"); a("s_and_b64 vcc, vcc, s[50:51]")
    a(f"""
    s_nop 1
    s_cmp_eq_u64 vcc, -1
    s_cbranch_scc1 poll_{tag}_done
    s_sub_u32 s49, s49, 1
    s_cmp_eq_u32 s49, 0
    s_cbranch_scc1 poll_{tag}_done
    s_sleep 1
    s_branch poll_{tag}
    """)
    a.label(f"poll_{tag}_done")

def get_tag(a,tagname):
    a(f"""
    v_mov_b32 v{TMP}, 0
    s_mov_b32 s49, 0x20000
    """)
    a.label(f"kf_tag_{tagname}")
    a(f"""
    global_load_dword v{TMP+1}, v{TMP}, s[54:55] sc1
    s_waitcnt vmcnt(0)
    v_readfirstlane_b32 s56, v{TMP+1}
    s_sub_u32 s49, s49, 1
    s_cmp_eq_u32 s49, 0
    s_cbranch_scc1 kf_tag_{tagname}_done
    s_cmp_eq_u32 s56, 0
    s_cbranch_scc0 kf_tag_{tagname}_done
    s_sleep 1
    s_branch kf_tag_{tagname}
    """)
    a.label(f"kf_tag_{tagname}_done")

def tag_request(a):
    a(f"""
    v_mov_b32 v{TMP}, 0
    global_load_dword v5, v{TMP}, s[54:55] sc1
    """)
def tag_resolve(a,tagname):
    a(f"""
    v_readfirstlane_b32 s56, v5
    s_nop 0
    s_cmp_eq_u32 s56, 0
    s_cbranch_scc0 kf_tagok_{tagname}
    """)
    get_tag(a,tagname)
    a.label(f"kf_tagok_{tagname}")

def flag_store(a, soff_expr_reg, vtmp):
    a(f"""
    v_mov_b32 v{vtmp}, 0
    v_mov_b32 v{vtmp+1}, s56
    s_mov_b64 exec, 1
    buffer_store_dword v{vtmp+1}, v{vtmp}, s[20:23], s{soff_expr_reg} offen
    s_mov_b64 exec, -1
    """)

def build_k2(a=None):
    own = a is None
    if own: a=Asm()
    P1="s[20:23]" if asm.F12 else None
    a.sc_srd=P1
    st1,rest=rounds()
    R=len(rest)
    if not asm.F12:
        a(f"""
        s_cmp_ge_u32 s2, 256
        s_cbranch_scc1 k2_end
        s_load_dwordx2 s[16:17], s[0:1], 64      ; ws
        {"s_load_dwordx4 s[52:55], s[0:1], 48      ; out, debug" if asm.F23 else ""}
        v_and_b32 v1, 63, v0
        v_lshrrev_b32 v{TMP}, 6, v0
        s_nop 0
        v_readfirstlane_b32 s3, v{TMP}
        """)
        if asm.F23:
            a("""
            s_or_b32 s57, s2, s3
            s_cmp_eq_u32 s57, 0
            s_cbranch_scc0 kf_nononce
            s_memrealtime s[56:57]
            s_waitcnt lgkmcnt(0)
            s_or_b32 s56, s56, 1
            v_mov_b32 v2, 0
            v_mov_b32 v3, s56
            s_mov_b64 exec, 1
            global_store_dword v2, v3, s[54:55] sc1
            s_mov_b64 exec, -1
            """)
            a.label("kf_nononce")
    stamp(a,0)
    a(f"""
    s_and_b32 s18, s2, 7
    s_lshr_b32 s19, s2, 3
    s_lshl_b32 s29, s18, 2
    s_and_b32 s30, s19, 3
    s_add_u32 s29, s29, s30                  ; hd
    s_lshr_b32 s30, s19, 2                   ; qb
    s_lshl_b32 s28, s18, 5
    s_add_u32 s28, s28, s19                  ; f
    v_lshlrev_b32 v{TMP}, 4, v1              ; lane*16
    s_and_b32 s33, s3, 3                     ; qg
    s_lshl_b32 s31, s30, 3
    s_lshl_b32 s33, s33, 1
    s_add_u32 s31, s31, s33
    s_waitcnt lgkmcnt(0)
    """)
    srd(a,20,16,WS_SIZE)
    if asm.F12:
        a(f"""
        s_cmp_eq_u32 s3, 0
        s_cbranch_scc0 k2_nopoll
        s_lshr_b32 s32, s29, 3                   ; hd>>3
        v_and_b32 v{TMP+1}, 15, v1
        v_lshrrev_b32 v{TMP+2}, 4, v1            ; group 0:K 1:V 2,3:Q
        v_and_b32 v{TMP+3}, 1, v1
        s_lshl_b32 s33, s30, 1
        v_add_u32 v{TMP+3}, s33, v{TMP+3}
        v_cmp_gt_u32 vcc, 2, v{TMP+2}
        v_mov_b32 v{TMP+4}, 4
        v_mov_b32 v{TMP+5}, 8
        v_cndmask_b32 v{TMP+1}, v{TMP+3}, v{TMP+1}, vcc   ; rb
        v_cmp_eq_u32 vcc, 0, v{TMP+2}
        v_mov_b32 v{TMP+6}, 0
        s_nop 0
        v_cndmask_b32 v{TMP+6}, v{TMP+6}, v{TMP+4}, vcc
        v_cmp_eq_u32 vcc, 1, v{TMP+2}
        s_nop 1
        v_cndmask_b32 v{TMP+6}, v{TMP+6}, v{TMP+5}, vcc   ; type*4
        v_add_u32 v{TMP+6}, s32, v{TMP+6}        ; cb
        v_lshl_add_u32 v{TMP+1}, v{TMP+6}, 4, v{TMP+1}
        v_lshlrev_b32 v{TMP+1}, 2, v{TMP+1}
        v_add_u32 v{TMP+1}, {OFF_F1Q}, v{TMP+1}
        """)
        poll(a,"p1",1,[(TMP+1,TMP+3)])
        a.label("k2_nopoll")
        a("s_barrier")
        stamp(a,9)
    a(f"""
    s_lshl_b32 s32, s29, 16
    s_lshl_b32 s33, s31, 10
    s_add_u32 s32, s32, s33
    s_add_u32 s32, s32, {OFF_Q}
    buffer_load_dwordx4 {vr(Q[0],4)}, v{TMP}, s[20:23], s32 offen
    buffer_load_dwordx4 {vr(Q[1],4)}, v{TMP}, s[20:23], s32 offen offset:1024
    v_lshlrev_b32 v{TMP+1}, 2, v1
    s_lshl_b32 s32, s29, 8
    s_add_u32 s32, s32, {OFF_KN}
    buffer_load_dword v{TMP+2}, v{TMP+1}, s[20:23], s32 offen
    s_lshl_b32 s34, s3, 10                   ; wave*1024
    s_mul_i32 s35, s29, {KV_HEAD}
    s_add_u32 s35, s35, s34
    s_add_u32 s35, s35, {OFF_KV}
    """)
    kv_dma(a,st1)
    a("s_waitcnt vmcnt(4)")

    a.label("k2_loaded")
    for qq in range(2):
        acc=TMP+5+qq
        for k in range(4):
            a(f"v_lshlrev_b32 v{TMP+3}, 16, v{Q[qq]+k}")
            a(f"v_and_b32 v{TMP+4}, 0xffff0000, v{Q[qq]+k}")
            a(f"v_mul_f32 v{acc}, v{TMP+3}, v{TMP+3}" if k==0 else f"v_fmac_f32 v{acc}, v{TMP+3}, v{TMP+3}")
            a(f"v_fmac_f32 v{acc}, v{TMP+4}, v{TMP+4}")
    a(f"""
    s_nop 1
    v_permlane32_swap_b32 v{TMP+5}, v{TMP+6}
    s_nop 1
    v_add_f32 v{TMP+5}, v{TMP+5}, v{TMP+6}
    """)
    for sh in ("row_shr:1","row_shr:2","row_shr:4","row_shr:8"):
        a("s_nop 0")
        a(f"v_max_f32_dpp v{TMP+2}, v{TMP+2}, v{TMP+2} {sh} row_mask:0xf bank_mask:0xf bound_ctrl:0")
        a(f"v_max_f32_dpp v{TMP+5}, v{TMP+5}, v{TMP+5} {sh} row_mask:0xf bank_mask:0xf bound_ctrl:0")
    for sh in ("row_bcast:15 row_mask:0xa","row_bcast:31 row_mask:0xc"):
        a("s_nop 0")
        a(f"v_max_f32_dpp v{TMP+2}, v{TMP+2}, v{TMP+2} {sh} bank_mask:0xf")
        a(f"v_max_f32_dpp v{TMP+5}, v{TMP+5}, v{TMP+5} {sh} bank_mask:0xf")
    a(f"""
    s_nop 0
    v_mul_f32 v{TMP+2}, v{TMP+2}, v{TMP+5}
    s_nop 0
    v_readlane_b32 s38, v{TMP+2}, 63
    v_and_b32 v{TMP+3}, 31, v1
    v_lshrrev_b32 v{TMP+4}, 5, v1
    v_lshlrev_b32 v{TMP+4}, 10, v{TMP+4}
    v_lshl_add_u32 v{VK}, v{TMP+3}, 4, v{TMP+4}
    s_cmp_lt_u32 s3, 4
    s_cselect_b32 s36, 0, {NB*KV_TILE}
    s_cselect_b32 s45, {NB//2}, {NA//2}
    s_cselect_b32 s44, {HB}, {HA}
    s_cselect_b32 s43, {(XB-HB)//2}, {(XA-HA)//2 if asm.F23 else (NA//2-HA)//2}
    s_cselect_b32 s41, {(NB//2-XB)//2}, {(NA//2-XA)//2 if asm.F23 else 0}
    s_cselect_b32 s40, {min(TABIT,ARRIT)}, {ARRA if AUP else ARRIT}
    v_add_u32 v{VK}, s36, v{VK}
    v_cmp_eq_u32 vcc, 16, v{TMP+3}
    v_mov_b32 v{TMP+4}, 0x3f803f80
    v_mov_b32 v{VIDX}, 0xdddd
    v_cndmask_b32 v{TMP+4}, 0, v{TMP+4}, vcc
    s_mov_b32 s62, 0xffff
    s_mov_b32 s63, 0xffff
    """)
    for r in (F[0][1],F[0][2],F[1][1]):
        for i in range(4): a(f"v_mov_b32 v{r+i}, v{TMP+4}")
    for qq in range(2):
        for i in range(16): a(f"v_mov_b32 v{O[qq]+i}, 0")
    for i in range(8): a(f"v_mov_b32 v{S[1]+8+i}, 0")
    for i in range(4): a(f"v_mov_b32 v{F[1][2]+i}, v{TMP+4}")
    if "nohook" in VAR:
        a("s_waitcnt vmcnt(0)"); a("s_mov_b32 s40, 99")
    a(f"""
    v_mov_b32 v{TMP+3}, {K2_CNT}
    v_mov_b32 v{TMP+4}, 0
    v_mov_b32 v{TMP+5}, 0
    v_mov_b32 v{TMP+6}, 0
    v_mov_b32 v{TMP+7}, 0
    s_mov_b32 s47, 0
    s_cmp_eq_u32 s3, 0
    s_cbranch_scc0 k2_noinit
    ds_write_b128 v{TMP+3}, {vr(TMP+4,4)}
    ds_write_b128 v{TMP+3}, {vr(TMP+4,4)} offset:16
    s_waitcnt lgkmcnt(0)
    """)
    a.label("k2_noinit")
    a("s_waitcnt vmcnt(0)")
    stamp(a,1)
    a("s_barrier")
    a(f"v_lshlrev_b32 v{TMP}, 4, v1")
    if not DRIP: kv_dma(a,rest)
    PF = "pf" in VAR and asm.F23
    if PF:
        a("s_cmp_eq_u32 s3, 7")
        a("s_cbranch_scc0 k2_nopf")
        code_prefetch(a,"k2_tail","k2_end",2,TMP+1,5)
        a.label("k2_nopf")
    a("""
    s_cmp_lt_u32 s3, 4
    s_cbranch_scc1 k2_prioB
    s_setprio 1
    s_branch k2_priodone
    """)
    a.label("k2_prioB")
    a("s_setprio 2" if "noprio" not in VAR else "s_setprio 0")
    a.label("k2_priodone")
    if "soloA" in VAR:
        a("s_cmp_lt_u32 s3, 4"); a("s_cbranch_scc1 k2_end")
    stamp(a,2)
    a(f"""
    s_cmp_le_u32 s38, {hex(f2u(THRESH2))}
    s_cbranch_scc0 k2_fallback
    """)
    a("s_mov_b32 s57, 0")
    pipe_prologue(a,False)
    if DRIP and AUP:
        a("""
        s_cmp_lt_u32 s3, 4
        s_cbranch_scc1 k2_drip
        """)
        kv_dma(a,rest)
        a("s_branch k2_loop")
        if ALIGN: a.raw(".p2align 3")
        a.label("k2_drip")
    if DRIP:
        todo=[(lambda n=n: kv_dma(a,[n])) for n in rest]
        per=-(-len(todo)//8)
        for trip in range(2):
            for tau in range(2):
                for qt in range(2):
                    take=todo[:per]; todo=todo[per:]
                    unit(a,tau,qt,False,take)
            a(f"v_add_u32 v{VK}, {2*KV_TILE}, v{VK}")
        assert not todo
        a("s_mov_b32 s42, 2")
        stamp(a,30)
    attn_loop(a,False)
    a.label("k2_tail")
    if asm.F23:
        a(f"""
        s_cmp_lt_u32 s3, 4
        s_cbranch_scc0 k2_tail_nf
        v_mov_b32 v{TMP+2}, {K2_CNT+20}
        s_mov_b32 s49, 0x1000000
        """)
        a.label("k2_tail_w")
        a(f"""
        ds_read_b32 v{TMP+3}, v{TMP+2}
        s_waitcnt lgkmcnt(0)
        v_readfirstlane_b32 s48, v{TMP+3}
        s_sub_u32 s49, s49, 1
        s_cmp_eq_u32 s49, 0
        s_cbranch_scc1 k2_tail_nf
        s_cmp_eq_u32 s48, 0
        s_cbranch_scc1 k2_tail_w
        """)
        a.label("k2_tail_nf")
    stamp(a,6)
    a(f"""
    s_nop 1
    v_smfmac_f32_32x32x32_bf16 {vr(O[1],16)}, {vr(F[1][2],4)}, {vr(S[1]+8,8)}, v{VIDX}
    s_setprio 0
    s_mul_i32 s36, s3, 2304
    s_add_u32 s37, s36, {K2_E+8192-3*2304}
    s_add_u32 s36, s36, {K2_COL}
    s_cmp_lt_u32 s3, 3
    s_cselect_b32 s36, s36, s37
    s_xor_b32 s44, s3, 4
    s_mul_i32 s45, s44, 2304
    s_add_u32 s46, s45, {K2_E+8192-3*2304}
    s_add_u32 s45, s45, {K2_COL}
    s_cmp_lt_u32 s44, 3
    s_cselect_b32 s45, s45, s46
    v_lshlrev_b32 v{TMP}, 4, v1
    v_lshlrev_b32 v{TMP+1}, 2, v1
    v_add_u32 v{TMP+2}, s36, v{TMP}
    v_add_u32 v{TMP+3}, s36, v{TMP+1}
    v_add_u32 v{TMP+4}, s45, v{TMP}
    v_add_u32 v{TMP+5}, s45, v{TMP+1}
    s_cmp_lt_u32 s3, 4
    s_cbranch_scc1 k2_tailB
    """)
    a(f"""
    s_nop 9
    ds_write_b128 v{TMP+2}, {vr(O[0],4)}
    ds_write_b128 v{TMP+2}, {vr(O[0]+4,4)} offset:1024
    ds_write_b32 v{TMP+3}, v{O[0]+8} offset:2048
    s_nop 7
    """)
    for i in range(9): a(f"v_mov_b32 v{O[0]+i}, v{O[1]+i}")
    a("""
    s_add_u32 s31, s31, 1
    s_branch k2_tail2
    """)
    a.label("k2_tailB")
    a(f"""
    s_nop 15
    s_nop 3
    ds_write_b128 v{TMP+2}, {vr(O[1],4)}
    ds_write_b128 v{TMP+2}, {vr(O[1]+4,4)} offset:1024
    ds_write_b32 v{TMP+3}, v{O[1]+8} offset:2048
    """)
    a.label("k2_tail2")
    a(f"""
    s_waitcnt lgkmcnt(0)
    {"" if "soloA" in VAR else "s_barrier"}
    ds_read_b128 {vr(S[0],4)}, v{TMP+4}
    ds_read_b128 {vr(S[0]+4,4)}, v{TMP+4} offset:1024
    ds_read_b32 v{S[0]+8}, v{TMP+5} offset:2048
    s_lshl_b32 s36, s31, 5
    s_add_u32 s36, s36, s29
    s_lshl_b32 s36, s36, 10
    s_add_u32 s36, s36, {OFF_O}
    s_waitcnt lgkmcnt(0)
    """)
    for i in range(9): a(f"v_add_f32 v{O[0]+i}, v{O[0]+i}, v{S[0]+i}")
    a(f"""
    v_mov_b32 v{TMP+1}, v{O[0]+8}
    v_mov_b32 v{TMP+2}, v{O[0]+8}
    s_nop 1
    v_permlane32_swap_b32 v{TMP+1}, v{TMP+2}
    s_nop 1
    v_rcp_f32 v{TMP+1}, v{TMP+1}
    s_nop 0
    """)
    for i in range(8): a(f"v_mul_f32 v{O[0]+i}, v{O[0]+i}, v{TMP+1}")
    for i in range(4): a(f"v_cvt_pk_bf16_f32 v{TMP+4+i}, v{O[0]+2*i}, v{O[0]+2*i+1}")
    a.sc_srd="s[20:23]"
    a(f"buffer_store_dwordx4 {vr(TMP+4,4)}, v{TMP}, s[20:23], s36 offen")
    if asm.F23:
        if "wgflag" in VAR:
            a("""
            s_waitcnt vmcnt(0)
            s_barrier
            """)
            stamp(a,8)
            a(f"""
            s_cmp_eq_u32 s3, 0
            s_cbranch_scc0 ph3_start
            s_lshl_b32 s36, s30, 5
            s_add_u32 s36, s36, s29
            s_lshl_b32 s36, s36, 2
            s_add_u32 s36, s36, {OFF_F2}
            """)
            flag_store(a,36,TMP)
            a("s_branch ph3_start")
        elif "oflag" in VAR:
            a(f"""
            s_lshl_b32 s36, s31, 5
            s_add_u32 s36, s36, s29
            s_lshl_b32 s36, s36, 2
            s_add_u32 s36, s36, {OFF_F2}
            s_waitcnt vmcnt(0)
            """)
            stamp(a,8)
            flag_store(a,36,TMP)
            a("s_branch ph3_start")
        else:
            stamp(a,8)
            a("s_branch ph3_start")
    else:
        if asm.STAMP:
            a("s_waitcnt vmcnt(0)"); stamp(a,8); stamp_dump(a,1)
        a("s_endpgm")
    def act_tab(): a("s_call_b64 s[60:61], k2_tab")
    def act_arriveB():
        dma_arrive(a, (26 if asm.F23 else 24) if TABIT<=ARRIT else 0)
    def act_b2():
        stamp(a,3); a("s_call_b64 s[60:61], k2_b2"); stamp(a,4)
    def act_pub(): a("s_call_b64 s[60:61], k2_pub")
    def act_prio0(): a("s_setprio 0")
    hooksB=[(TABIT,act_tab),(ARRIT,act_arriveB),(DWAIT,lambda: dma_wait(a,"hb")),(B2IT,act_b2)]
    hooksB.sort(key=lambda h:h[0])
    if asm.F23: hooksB.append((PUBIT,act_pub))
    def arriveA():
        if PF:
            a("s_cmp_eq_u32 s3, 7")
            a("s_cbranch_scc0 k2_arr_n")
            dma_arrive(a,2)
            a("s_branch k2_arr_d")
            a.label("k2_arr_n")
            dma_arrive(a)
            a.label("k2_arr_d")
        else: dma_arrive(a)
    ARR_A=ARRA if AUP else ARRIT
    hooksA=[(ARR_A,arriveA),(DWAIT,lambda: dma_wait(a,"ha"))]
    if asm.F23:
        def req_flags():
            a("s_cmp_eq_u32 s3, 4")
            a("s_cbranch_scc0 k2_noreq")
            a(f"v_lshlrev_b32 v{TMP}, 4, v1")
            a(f"v_add_u32 v{TMP}, {OFF_F2B}, v{TMP}")
            a.sc_srd="s[20:23]"
            a(f"buffer_load_dwordx4 {vr(TMP+4,4)}, v{TMP}, s[20:23], 0 offen")
            a.sc_srd=P1
            a.label("k2_noreq")
        hooksA.append((HA-1,req_flags))
        if os.environ.get("TOUCH","0")=="1":
            def touch():
                a("s_cmp_eq_u32 s3, 5")
                a("s_cbranch_scc0 k2_notouch")
                page_touch(a,52,4194300,6,7)
                a.label("k2_notouch")
            hooksA.append((DWAIT,touch))
    def emit(role,hooks):
        its=sorted(set(h[0] for h in hooks))
        for n,it in enumerate(its):
            nxt=its[n+1] if n+1<len(its) else 99
            a(f"s_cmp_eq_u32 s40, {it}")
            a(f"s_cbranch_scc0 k2_hk{role}_{n+1}")
            for (i2,f) in hooks:
                if i2==it: f()
            a(f"s_mov_b32 s40, {nxt}")
            a("s_branch k2_hookret")
            a.label(f"k2_hk{role}_{n+1}")
        a("s_branch k2_hookret")
        return its[0]
    a.label("k2_hook")
    a("""
    s_cmp_lt_u32 s3, 4
    s_cbranch_scc0 k2_hookA
    """)
    emit("B",hooksB)
    a.label("k2_hookA")
    emit("A",hooksA)
    a.label("k2_fallback")
    a("s_mov_b32 s57, 1")
    if DRIP: kv_dma(a,rest)
    a("""
    s_cmp_lt_u32 s3, 4
    s_cbranch_scc0 k2_fbA
    """)
    dma_arrive(a)
    dma_wait(a,"fbb")
    a("""
    s_call_b64 s[60:61], k2_tab
    s_call_b64 s[60:61], k2_b2
    """)
    if asm.F23: a("s_call_b64 s[60:61], k2_pub")
    a("""
    s_branch k2_fb_pre
    """)
    a.label("k2_fbA")
    dma_arrive(a)
    dma_wait(a,"fb")
    a.label("k2_fb_pre")
    if asm.F23: a("s_call_b64 s[60:61], k2_mid")
    a(f"""
    v_mov_b32 v{TMP+1}, 0xff800000
    v_mov_b32 v{TMP+2}, 0xff800000
    v_and_b32 v{TMP+3}, 31, v1
    v_lshrrev_b32 v{TMP+4}, 5, v1
    v_lshlrev_b32 v{TMP+4}, 10, v{TMP+4}
    v_lshl_add_u32 v{TMP+3}, v{TMP+3}, 4, v{TMP+4}
    s_mov_b32 s42, 64
    """)
    a.label("k2_fb_max")
    a(f"""
    ds_read_b128 {vr(F[0][0],4)}, v{TMP+3}
    v_add_u32 v{TMP+3}, {KV_TILE}, v{TMP+3}
    s_waitcnt lgkmcnt(0)
    v_mfma_f32_32x32x16_bf16 {vr(S[0],16)}, {vr(F[0][0],4)}, {vr(Q[0],4)}, 0
    v_mfma_f32_32x32x16_bf16 {vr(CI[0],16)}, {vr(F[0][0],4)}, {vr(Q[1],4)}, 0
    s_nop 15
    """)
    for i in range(0,16,2): a(f"v_max3_f32 v{TMP+1}, v{S[0]+i}, v{S[0]+i+1}, v{TMP+1}")
    for i in range(0,16,2): a(f"v_max3_f32 v{TMP+2}, v{CI[0]+i}, v{CI[0]+i+1}, v{TMP+2}")
    a(f"""
    s_sub_u32 s42, s42, 1
    s_cmp_lg_u32 s42, 0
    s_cbranch_scc1 k2_fb_max
    v_mov_b32 v{TMP+3}, v{TMP+1}
    v_mov_b32 v{TMP+4}, v{TMP+2}
    s_nop 1
    v_permlane32_swap_b32 v{TMP+1}, v{TMP+3}
    v_permlane32_swap_b32 v{TMP+2}, v{TMP+4}
    s_nop 1
    v_max_f32 v{TMP+1}, v{TMP+1}, v{TMP+3}
    v_max_f32 v{TMP+2}, v{TMP+2}, v{TMP+4}
    """)
    for qq in range(2):
        for i in range(16): a(f"v_sub_f32 v{CI[qq]+i}, 0, v{TMP+1+qq}")
    a("s_nop 1")
    a("s_mov_b32 s43, s45")
    pipe_prologue(a,True)
    attn_loop(a,True)
    a("s_branch k2_tail")
    if asm.F23:
        a.label("k2_mid")
        a.sc_srd="s[20:23]"
        a(f"""
        s_cmp_lt_u32 s3, 4
        s_cbranch_scc0 k2_mid_A
        s_setprio 0
        s_setpc_b64 s[60:61]
        """)
        a.label("k2_mid_A")
        a(f"""
        s_cmp_eq_u32 s3, 4
        s_cbranch_scc0 k2_mid_ret
        v_mov_b32 v{TMP+2}, {K2_CNT+16}
        s_mov_b32 s49, 0x100000
        """)
        a.label("k2_mid_tag")
        a(f"""
        ds_read_b32 v{TMP+3}, v{TMP+2}
        s_waitcnt lgkmcnt(0)
        v_readfirstlane_b32 s56, v{TMP+3}
        s_sub_u32 s49, s49, 1
        s_cmp_eq_u32 s49, 0
        s_cbranch_scc1 k2_mid_tagok
        s_cmp_eq_u32 s56, 0
        s_cbranch_scc1 k2_mid_tag
        """)
        a.label("k2_mid_tagok")
        a(f"""
        v_lshlrev_b32 v{TMP}, 4, v1
        v_add_u32 v{TMP}, {OFF_F2B}, v{TMP}
        s_mov_b32 s49, 0x20000
        s_cmp_eq_u32 s57, 0
        s_cbranch_scc1 k2_mid_have
        """)
        a.label("k2_mid_poll")
        a(f"""
        buffer_load_dwordx4 {vr(TMP+4,4)}, v{TMP}, s[20:23], 0 offen
        """)
        a.label("k2_mid_have")
        a(f"""
        s_waitcnt vmcnt(0)
        v_cmp_eq_u32 vcc, s56, v{TMP+4}
        v_cmp_eq_u32 s[50:51], s56, v{TMP+5}
        s_nop 1
        s_and_b64 vcc, vcc, s[50:51]
        v_cmp_eq_u32 s[50:51], s56, v{TMP+6}
        s_nop 1
        s_and_b64 vcc, vcc, s[50:51]
        v_cmp_eq_u32 s[50:51], s56, v{TMP+7}
        s_nop 1
        s_and_b64 vcc, vcc, s[50:51]
        s_cmp_eq_u64 vcc, -1
        s_cbranch_scc1 k2_mid_ok
        s_sub_u32 s49, s49, 1
        s_cmp_eq_u32 s49, 0
        s_cbranch_scc1 k2_mid_ok
        s_sleep 4
        s_branch k2_mid_poll
        """)
        a.label("k2_mid_ok")
        a(f"""
        v_mov_b32 v{TMP+2}, {K2_CNT+20}
        v_mov_b32 v{TMP+3}, 1
        ds_write_b32 v{TMP+2}, v{TMP+3}
        s_lshr_b32 s33, s19, 3
        s_lshl_b32 s33, s33, 3
        s_add_u32 s33, s33, s18                  ; n2
        s_and_b32 s36, s19, 7                    ; a
        v_lshrrev_b32 v{TMP}, 1, v1
        v_lshlrev_b32 v{TMP}, 13, v{TMP}
        v_and_b32 v{TMP+1}, 1, v1
        v_lshl_add_u32 v{TMP}, v{TMP+1}, 4, v{TMP}
        s_lshl_b32 s33, s33, 8
        s_lshl_b32 s36, s36, 5
        s_add_u32 s33, s33, s36
        s_add_u32 s33, s33, {OFF_Y}
        """)
        for e in range(8):
            a(f"s_mov_b32 m0, {K2_E+e*1024}")
            a(f"s_add_u32 s36, s33, {e*32*8192}")
            a(f"buffer_load_dwordx4 v{TMP}, s[20:23], s36 offen lds")
        a.label("k2_mid_ret")
        a("s_setpc_b64 s[60:61]")
    a.label("k2_tab")
    a.sc_srd=P1
    if asm.F12:
        a(f"""
        s_cmp_eq_u32 s3, 0
        s_cbranch_scc0 k2_nop1b
        v_lshlrev_b32 v{TMP+2}, 2, v1
        v_add_u32 v{TMP+2}, {OFF_F1B}, v{TMP+2}
        """)
        poll(a,"p1b",1,[(TMP+2,TMP+4)])
        a.label("k2_nop1b")
        bbar(a,"tab")
    a(f"""
    v_lshlrev_b32 v{TMP}, 4, v1
    v_lshrrev_b32 v{TMP+3}, 4, v1
    s_lshl_b32 s32, s3, 3
    v_add_u32 v{TMP+4}, s32, v{TMP+3}        ; n2 (e=0)
    v_and_b32 v{TMP+5}, 15, v{TMP+4}
    v_and_b32 v{TMP+6}, 15, v1
    v_xor_b32 v{TMP+5}, v{TMP+5}, v{TMP+6}
    v_lshlrev_b32 v{TMP+5}, 4, v{TMP+5}
    v_lshl_add_u32 v{TMP+5}, v{TMP+4}, 8, v{TMP+5}
    v_xor_b32 v{TMP+6}, 64, v{TMP+5}
    v_add_u32 v{TMP+6}, 1024, v{TMP+6}
    s_lshl_b32 s32, s28, 13
    s_add_u32 s32, s32, {OFF_Z}
    s_lshl_b32 s33, s3, 11
    s_add_u32 m0, s33, {K2_COL}
    s_nop 0
    buffer_load_dwordx4 v{TMP+5}, s[20:23], s32 offen lds
    s_add_u32 m0, s33, {K2_COL+1024}
    s_nop 0
    buffer_load_dwordx4 v{TMP+6}, s[20:23], s32 offen lds
    """)
    a(f"s_lshl_b32 s36, s3, 13")
    a(f"s_add_u32 s36, s36, {OFF_T64}")
    for k in range(8):
        a(f"buffer_load_dwordx4 {vr(T64+4*k,4)}, v{TMP}, s[20:23], s36 offen offset:{(k%4)*1024}")
        if k==3: a("s_add_u32 s36, s36, 4096")
    a(f"s_lshl_b32 s36, s3, 12")
    a(f"s_add_u32 s36, s36, {OFF_TW}")
    for k in range(4):
        a(f"buffer_load_dwordx4 {vr(TW+4*k,4)}, v{TMP}, s[20:23], s36 offen offset:{k*1024}")
    a(f"s_mov_b32 s36, {OFF_A32}")
    for k in range(8):
        a(f"buffer_load_dwordx4 {vr(A32+4*k,4)}, v{TMP}, s[20:23], s36 offen offset:{(k%4)*1024}")
        if k==3: a("s_add_u32 s36, s36, 4096")
    a(f"""
    s_lshl_b32 s36, s28, 13
    s_lshl_b32 s37, s3, 11
    s_add_u32 s36, s36, s37
    s_add_u32 s36, s36, {OFF_WT}
    buffer_load_dwordx4 {vr(WT,4)}, v{TMP}, s[20:23], s36 offen
    buffer_load_dwordx4 {vr(WT+4,4)}, v{TMP}, s[20:23], s36 offen offset:1024
    """)
    if asm.F23:
        a.sc_srd="s[20:23]"
        a(f"""
        v_mov_b32 v{TMP+4}, -1
        v_mov_b32 v{TMP+5}, -1
        v_mov_b32 v{TMP+6}, -1
        v_mov_b32 v{TMP+7}, -1
        s_lshl_b32 s36, s31, 5
        s_add_u32 s36, s36, s29
        s_lshl_b32 s36, s36, 10
        s_add_u32 s36, s36, {OFF_O}
        buffer_store_dwordx4 {vr(TMP+4,4)}, v{TMP}, s[20:23], s36 offen
        s_add_u32 s36, s36, 32768
        buffer_store_dwordx4 {vr(TMP+4,4)}, v{TMP}, s[20:23], s36 offen
        """)
        a.sc_srd=P1
    a("s_setpc_b64 s[60:61]")
    a.label("k2_b2")
    a.sc_srd=P1
    a.p1=P1
    b2_part1(a)
    b2_part2(a)
    if asm.F23:
        a.label("k2_pub")
        a.sc_srd="s[20:23]"
        a("s_waitcnt vmcnt(0)")
        bbar(a,"pub")
        a("s_cmp_eq_u32 s3, 0")
        a("s_cbranch_scc0 k2_pub1")
        if not asm.F12: tag_resolve(a,"b")
        a(f"""
        v_mov_b32 v{TMP+2}, {K2_CNT+16}
        v_mov_b32 v{TMP+3}, s56
        ds_write_b32 v{TMP+2}, v{TMP+3}
        s_lshl_b32 s36, s28, 2
        s_add_u32 s36, s36, {OFF_F2B}
        """)
        flag_store(a,36,TMP)
        a.label("k2_pub1")
        a.sc_srd=P1
        a(f"""
        s_lshr_b32 s36, s19, 2                   ; ct
        s_lshl_b32 s36, s36, 16
        s_lshl_b32 s37, s3, 13
        s_add_u32 s36, s36, s37
        s_add_u32 s36, s36, {OFF_WOF}
        v_lshlrev_b32 v{TMP}, 4, v1
        """)
        for hh in range(8):
            a(f"s_add_u32 s37, s36, {hh*1024}")
            a(f"buffer_load_dwordx4 {vr(WOR+8*hh,4)}, v{TMP}, s[20:23], s37 offen")
            a(f"s_add_u32 s37, s37, 32768")
            a(f"buffer_load_dwordx4 {vr(WOR+8*hh+4,4)}, v{TMP}, s[20:23], s37 offen")
        a("s_setpc_b64 s[60:61]")
    a.sc_srd=None
    if own:
        a.label("k2_end")
        a("s_endpgm")
    return a
```

```python
import asm
from asm import *
from layout import *
from k1 import srd, twiddle
import os
VAR=set(os.environ.get("VAR","").split(","))
def opt(name,default):
    for v in VAR:
        if v.startswith(name+"="): return int(v.split("=")[1])
    return default
K2_COL=131072
K2_E=K2_COL+8192
K2_LDS=163840
K2_CNT=163840-64
THRESH2=4096.0/1.03
NB=opt("NB",30)
NA=64-NB
AUP=opt("AUP",1)
ARRA=opt("ARRA",1)
ST1R=opt("ST1R",4)
DRIP=opt("DRIP",1)
DWAIT=opt("DWAIT",5 if ST1R==6 else 3)
ARRIT=opt("ARRIT",2)
TABIT=opt("TABIT",2)
B2IT=opt("B2IT",4)
PUBIT=opt("PUBIT",6)
XB=opt("XB",13)

HB=opt("HB",PUBIT+1); HA=opt("HA",5)
XA=opt("XA",11)
assert (XA-HA)%2==0 and (NA//2-XA)%2==0 and XA>HA and NA//2>XA
assert (XB-HB)%2==0 and XB>HB and (NB//2-XB)%2==0 and NB//2>XB and (NA//2-HA)%2==0, (HB,XB,NB,HA)
VK,VV,VIDX=2,3,4
Q=[8,12]; S=[16,32]; O=[48,64]
F=[(80,84,88),(92,96,100)]
TMP=104
T64,A32,TW,WT,BUF,D1,P=112,144,176,192,200,232,248
X2=200
CI=[112,128]
VM,VQd=108,109
WOR=144

ALIGN="noalign" not in VAR
def expo(a,r,wide=False): a(f"v_exp_f32{'_e64' if wide else ''} v{r}, v{r}")

def unit(a,tau,qt,fb,extra=()):
    extra=list(extra)
    def ex():
        if extra: extra.pop(0)()
    tp=tau&1
    Sc,Sn=S[qt],S[1-qt]
    def pv(Ob,V,B): a(f"v_smfmac_f32_32x32x32_bf16 {vr(Ob,16)}, {vr(V,4)}, {vr(B,8)}, v{VIDX}")
    def qk(Sd,K,qq): a(f"v_mfma_f32_32x32x16_bf16 {vr(Sd,16)}, {vr(K,4)}, {vr(Q[qq],4)}, {vr(CI[qq],16) if fb else '0'}")
    if qt==0:
        Kc,V0c,V1c=F[tp]; Kn,V0n,V1n=F[1-tp]
        expo(a,Sc); expo(a,Sc+1)
        pv(O[1],V1n,Sn+8)
        a(f"ds_read_b128 {vr(Kn,4)}, v{VK} offset:{(tau+1)*KV_TILE}")
        expo(a,Sc+2)
        a("s_mov_b64 exec, s[62:63]")
        a(f"ds_read_b128 {vr(V0n,4)}, v{VK} offset:{(tau+1)*KV_TILE+512}")
        a(f"ds_read_b128 {vr(V1n,4)}, v{VK} offset:{(tau+1)*KV_TILE+768}")
        a("s_mov_b64 exec, -1")
        expo(a,Sc+3); expo(a,Sc+4); expo(a,Sc+5)
        qk(Sn,Kc,1)
        for i in range(6,12):
            expo(a,Sc+i)
            if i==7: ex()
        pv(O[0],V0c,Sc)
        for i in range(12,16):
            expo(a,Sc+i)
            if i==13: ex()
    else:
        Kc,V0c,V1c=F[tp]; Kn,V0n,V1n=F[1-tp]
        expo(a,Sc); expo(a,Sc+1)
        pv(O[0],V1c,Sn+8)
        expo(a,Sc+2); expo(a,Sc+3); expo(a,Sc+4)
        a("s_waitcnt lgkmcnt(0)")
        expo(a,Sc+5,ALIGN)
        qk(Sn,Kn,0)
        for i in range(6,12):
            expo(a,Sc+i)
            if i==7: ex()
        pv(O[1],V0c,Sc)
        for i in range(12,16):
            expo(a,Sc+i)
            if i==13: ex()

def bbar(a,tag,cnt=0):
    a(f"""
    v_mov_b32 v111, {K2_CNT+cnt}
    v_mov_b32 v110, 1
    s_waitcnt lgkmcnt(0)
    s_mov_b64 exec, 1
    ds_add_u32 v111, v110
    s_mov_b64 exec, -1
    s_add_u32 s47, s47, 4
    """)
    a.label(f"k2_bbar_{tag}")
    a(f"""
    ds_read_b32 v109, v111
    s_waitcnt lgkmcnt(0)
    v_readfirstlane_b32 s48, v109
    s_nop 0
    s_cmp_lt_u32 s48, s47
    s_cbranch_scc1 k2_bbar_{tag}
    """)

def dma_arrive(a,younger=0):
    a(f"""
    s_waitcnt vmcnt({younger})
    v_mov_b32 v{TMP}, {K2_CNT+4}
    v_mov_b32 v{TMP+1}, 1
    s_mov_b64 exec, 1
    ds_add_u32 v{TMP}, v{TMP+1}
    s_mov_b64 exec, -1
    """)
def dma_wait(a,tag):
    a(f"v_mov_b32 v{TMP}, {K2_CNT+4}")
    a.label(f"k2_dwait_{tag}")
    a(f"""
    ds_read_b32 v{TMP+1}, v{TMP}
    s_waitcnt lgkmcnt(0)
    v_readfirstlane_b32 s48, v{TMP+1}
    s_nop 0
    s_cmp_lt_u32 s48, 8
    s_cbranch_scc1 k2_dwait_{tag}
    """)

def kv_dma(a, ns):
    for n in ns:
        a(f"s_add_u32 m0, s34, {n*1024}")
        a(f"s_add_u32 s36, s35, {n*1024}")
        a(f"buffer_load_dwordx4 v{TMP}, s[20:23], s36 offen lds")

def b2_part1(a):
    a("s_waitcnt vmcnt(0)")
    if asm.F23 and not asm.F12:
        a("s_cmp_eq_u32 s3, 0")
        a("s_cbranch_scc0 k2_notagreq")
        tag_request(a)
        a.label("k2_notagreq")
    bbar(a,"col")
    a(f"""
    v_and_b32 v{VM}, 15, v1
    v_lshrrev_b32 v{VQd}, 4, v1
    v_xor_b32 v104, v{VM}, v{VQd}
    v_lshlrev_b32 v104, 4, v104
    v_lshl_add_u32 v104, v{VM}, 8, v104
    v_add_u32 v104, {K2_COL}, v104
    v_xor_b32 v105, 64, v104
    v_xor_b32 v106, 128, v104
    v_xor_b32 v107, 192, v104
    """)
    for u in range(4):
        for t in range(2):
            a(f"ds_read_b128 {vr(BUF+16*t+4*u,4)}, v{104+u} offset:{t*4096}")
    for u in range(4):
        a(f"s_waitcnt lgkmcnt({6-2*u})")
        for t in range(2):
            for part in range(2):
                d=D1+8*t+4*part
                a(f"v_mfma_f32_16x16x32_bf16 {vr(d,4)}, {vr(BUF+16*t+4*u,4)}, {vr(T64+8*u+4*part,4)}, {'0' if u==0 else vr(d,4)}")
    a("""
    s_cmp_eq_u32 s28, 0
    s_cbranch_scc0 k2_p1_noab
    """)
    a(f"v_lshlrev_b32 v110, 4, v1")
    a(f"s_lshl_b32 s36, s3, 12")
    a(f"s_add_u32 s36, s36, {OFF_AB}")
    for ep in range(4):
        a(f"buffer_load_dwordx4 {vr(216+4*ep,4)}, v110, s[20:23], s36 offen offset:{ep*1024}")
    a.label("k2_p1_noab")
    a("s_nop 6")
    for t in range(2):
        twiddle(a, D1+8*t, D1+8*t+4, TW+4*t, TW+8+4*t, P+4*t, 104)
    a("s_nop 1")
    for t in range(2):
        for tp in range(2):
            for part in range(2):
                d=X2+8*tp+4*part
                a(f"v_mfma_f32_16x16x32_bf16 {vr(d,4)}, {vr(A32+((tp*2+part)*2+t)*4,4)}, {vr(P+4*t,4)}, {'0' if t==0 else vr(d,4)}")

def b2_part2(a):
    a("s_waitcnt vmcnt(0)")
    a("""
    s_cmp_eq_u32 s28, 0
    s_cbranch_scc1 k2_p2_special
    """)
    for tp in range(2):
        xr,xi=X2+8*tp,X2+8*tp+4
        wr,wi=D1+8*tp,D1+8*tp+4
        for i in range(4):
            a(f"v_lshlrev_b32 v{wr+i}, 16, v{WT+4*tp+i}")
            a(f"v_and_b32 v{wi+i}, 0xffff0000, v{WT+4*tp+i}")
        for p in (0,2):
            a(f"v_pk_mul_f32 {vr(104+p,2)}, {vr(xr+p,2)}, {vr(wr+p,2)}")
            a(f"v_pk_mul_f32 {vr(108+p,2)}, {vr(xr+p,2)}, {vr(wi+p,2)}")
        for p in (0,2):
            a(f"v_pk_fma_f32 {vr(104+p,2)}, {vr(xi+p,2)}, {vr(wi+p,2)}, {vr(104+p,2)} neg_lo:[1,0,0] neg_hi:[1,0,0]")
            a(f"v_pk_fma_f32 {vr(108+p,2)}, {vr(xi+p,2)}, {vr(wr+p,2)}, {vr(108+p,2)}")
        for i in range(4): a(f"v_cvt_pk_bf16_f32 v{P+4*tp+i}, v{104+i}, -v{108+i}")
    a.label("k2_p2_common")
    a("s_nop 1")
    for tp in range(2):
        for t in range(2):
            for part in range(2):
                d=D1+8*t+4*part
                a(f"v_mfma_f32_16x16x32_bf16 {vr(d,4)}, {vr(A32+((t*2+part)*2+tp)*4,4)}, {vr(P+4*tp,4)}, {'0' if tp==0 else vr(d,4)}")
    t0=X2
    a(f"""
    v_and_b32 v{t0}, 15, v1                 ; m
    v_lshrrev_b32 v{t0+1}, 4, v1            ; q
    v_lshrrev_b32 v{t0+2}, 2, v{t0}         ; m>>2
    s_lshl_b32 s36, s3, 2
    v_add_u32 v{t0+2}, s36, v{t0+2}         ; 4w + (m>>2)
    v_lshlrev_b32 v{t0+3}, 2, v{t0+1}       ; 4q
    v_xor_b32 v{t0+2}, v{t0+2}, v{t0+3}
    v_lshlrev_b32 v{t0+2}, 4, v{t0+2}
    v_lshl_add_u32 v{t0+2}, v{t0+3}, 8, v{t0+2}
    v_and_b32 v{t0+4}, 3, v{t0}
    v_lshl_add_u32 v{t0+2}, v{t0+4}, 2, v{t0+2}
    v_add_u32 v{t0+8}, {K2_E}, v{t0+2}
    v_xor_b32 v{t0+9}, 16, v{t0+8}
    v_xor_b32 v{t0+10}, 32, v{t0+8}
    v_xor_b32 v{t0+11}, 48, v{t0+8}
    """)
    for t in range(2):
        twiddle(a, D1+8*t, D1+8*t+4, TW+4*t, TW+8+4*t, P+4*t, 104)
    for t in range(2):
        for i in range(4):
            a(f"ds_write_b32 v{t0+8+i}, v{P+4*t+i} offset:{t*4096+i*256}")
    bbar(a,"e")
    a(f"""
    v_and_b32 v{VM}, 15, v1
    v_lshrrev_b32 v{VQd}, 4, v1
    v_xor_b32 v104, v{VM}, v{VQd}
    v_lshlrev_b32 v104, 4, v104
    v_lshl_add_u32 v104, v{VM}, 8, v104
    v_add_u32 v104, {K2_E}, v104
    v_xor_b32 v105, 64, v104
    v_xor_b32 v106, 128, v104
    v_xor_b32 v107, 192, v104
    """)
    for u in range(4):
        for t in range(2):
            a(f"ds_read_b128 {vr(BUF+16*t+4*u,4)}, v{104+u} offset:{t*4096}")
    a(f"""
    v_lshlrev_b32 v110, 8, v{VM}
    v_lshl_add_u32 v110, v{VQd}, 4, v110
    s_lshl_b32 s36, s28, 13
    s_lshl_b32 s37, s3, 6
    s_add_u32 s36, s36, s37
    s_add_u32 s36, s36, {OFF_Y}
    """)
    for u in range(4):
        a(f"s_waitcnt lgkmcnt({6-2*u})")
        for t in range(2):
            for part in range(2):
                d=D1+8*t+4*part
                a(f"v_mfma_f32_16x16x32_bf16 {vr(d,4)}, {vr(T64+8*u+4*part,4)}, {vr(BUF+16*t+4*u,4)}, {'0' if u==0 else vr(d,4)}")
    a("s_nop 7")
    for t in range(2):
        for i in range(4): a(f"v_cvt_pk_bf16_f32 v{P+4*t+i}, v{D1+8*t+i}, -v{D1+8*t+4+i}")
        a.sc_srd="s[20:23]"
        a(f"buffer_store_dwordx4 {vr(P+4*t,4)}, v110, s[20:23], s36 offen")
        a.sc_srd=a.p1
        if t==0: a("s_add_u32 s36, s36, 4096")
    a("s_setpc_b64 s[60:61]")
    a.label("k2_p2_special")
    bbar(a,"s0")
    XCH=K2_COL
    a(f"""
    v_and_b32 v104, 15, v1
    v_lshrrev_b32 v105, 4, v1
    s_lshl_b32 s36, s3, 4
    v_add_u32 v104, s36, v104                 ; k1
    v_lshl_add_u32 v104, v105, 8, v104         ; g0 = k1 + 64*4q
    v_lshlrev_b32 v106, 3, v104
    v_add_u32 v106, {XCH}, v106
    """)
    for tp in range(2):
        for i in range(4):
            off=(i*64+tp*1024)*8
            a(f"ds_write_b32 v106, v{X2+8*tp+i} offset:{off}")
            a(f"ds_write_b32 v106, v{X2+8*tp+4+i} offset:{off+4}")
    bbar(a,"s1")
    for tp in range(2):
        for i in range(4):
            e=4*tp+i
            a(f"v_sub_u32 v107, {2048-(i*64+tp*1024)}, v104")
            a(f"v_and_b32 v107, 2047, v107")
            a(f"v_lshlrev_b32 v107, 3, v107")
            a(f"v_add_u32 v107, {XCH}, v107")
            a(f"ds_read_b64 {vr(D1+2*e,2)}, v107")
    bbar(a,"s2")
    for tp in range(2):
        for i in range(4):
            e=4*tp+i
            src=216+2*e
            ab=WT
            a(f"v_lshlrev_b32 v{ab}, 16, v{src}")
            a(f"v_and_b32 v{ab+1}, 0xffff0000, v{src}")
            a(f"v_lshlrev_b32 v{ab+2}, 16, v{src+1}")
            a(f"v_and_b32 v{ab+3}, 0xffff0000, v{src+1}")
            zr,zi=X2+8*tp+i,X2+8*tp+4+i
            pr,pi=D1+2*e,D1+2*e+1
            a(f"v_mul_f32 v104, v{zr}, v{ab}")
            a(f"v_mul_f32 v105, v{zr}, v{ab+1}")
            a(f"v_fma_f32 v104, -v{zi}, v{ab+1}, v104")
            a(f"v_fma_f32 v105, v{zi}, v{ab}, v105")
            a(f"v_fma_f32 v104, v{pr}, v{ab+2}, v104")
            a(f"v_fma_f32 v105, v{pr}, v{ab+3}, v105")
            a(f"v_fma_f32 v104, v{pi}, v{ab+3}, v104")
            a(f"v_fma_f32 v105, -v{pi}, v{ab+2}, v105")
            a(f"v_cvt_pk_bf16_f32 v{P+e}, v104, -v105")
    a("s_branch k2_p2_common")


def rounds():
    nA0=NB*KV_TILE//1024
    st1=[x for k in range(ST1R//2) for x in (8*k,nA0+8*k)]
    rest=[]
    n=8*(ST1R//2)
    while n<nA0:
        rest.append(min(n,nA0-8) if n+8>nA0 else n); n+=8
    n=nA0+8*(ST1R//2)
    while n<128:
        rest.append(min(n,120)); n+=8
    lo=[r for r in rest if r<nA0]; hi=[r for r in rest if r>=nA0]
    out=[]
    while lo or hi:
        if lo: out.append(lo.pop(0))
        if hi: out.append(hi.pop(0))
    return st1,out

def attn_loop(a,fb):
    if fb:
        a.label("k2_loop_fb")
        unit(a,0,0,fb); unit(a,0,1,fb); unit(a,1,0,fb); unit(a,1,1,fb)
        a(f"""
        v_add_u32 v{VK}, {2*KV_TILE}, v{VK}
        s_add_u32 s42, s42, 1
        s_cmp_lt_u32 s42, s43
        s_cbranch_scc1 k2_loop_fb
        """)
        return
    if ALIGN: a.raw(".p2align 6")
    a.label("k2_loop")
    a("""
    s_cmp_eq_u32 s42, s40
    s_cbranch_scc1 k2_hook
    """)
    a.label("k2_hookret")
    unit(a,0,0,fb); unit(a,0,1,fb); unit(a,1,0,fb); unit(a,1,1,fb)
    a(f"""
    v_add_u32 v{VK}, {2*KV_TILE}, v{VK}
    s_add_u32 s42, s42, 1
    s_cmp_lt_u32 s42, s44
    s_cbranch_scc1 k2_loop
    """)
    a(".p2align 3, 0xbf800000" if False else "s_nop 0") if False else None
    stamp(a,31)
    if ALIGN: a.raw(".p2align 6")
    if "shift4" in VAR: a("s_nop 0")
    a.label("k2_lean")
    for tau in range(4):
        unit(a,tau,0,fb); unit(a,tau,1,fb)
    a(f"""
    v_add_u32 v{VK}, {4*KV_TILE}, v{VK}
    s_sub_u32 s43, s43, 1
    s_cmp_lg_u32 s43, 0
    s_cbranch_scc1 k2_lean
    s_cmp_eq_u32 s41, 0
    s_cbranch_scc1 k2_lean_done
    """)
    stamp(a,32)
    if asm.F23: a("s_call_b64 s[60:61], k2_mid")
    else: a("s_setprio 0")
    a(f"""
    s_mov_b32 s43, s41
    s_mov_b32 s41, 0
    s_branch k2_lean
    """)
    a.label("k2_lean_done")

def pipe_prologue(a,fb):
    K,V0,V1=F[0]
    a(f"""
    ds_read_b128 {vr(K,4)}, v{VK}
    s_mov_b64 exec, s[62:63]
    ds_read_b128 {vr(V0,4)}, v{VK} offset:512
    ds_read_b128 {vr(V1,4)}, v{VK} offset:768
    s_mov_b64 exec, -1
    s_waitcnt lgkmcnt(2)
    v_mfma_f32_32x32x16_bf16 {vr(S[0],16)}, {vr(K,4)}, {vr(Q[0],4)}, {vr(CI[0],16) if fb else '0'}
    s_mov_b32 s42, 0
    s_waitcnt lgkmcnt(0)
    s_nop 11
    """)

def poll(a,tag,nloads,addr_regs,srdreg="s[20:23]",soff="0"):
    a(f"s_mov_b32 s49, 0x20000")
    a.label(f"poll_{tag}")
    for k in range(nloads):
        a(f"buffer_load_dword v{addr_regs[k][1]}, v{addr_regs[k][0]}, {srdreg}, {soff} offen")
    a("s_waitcnt vmcnt(0)")
    for k in range(nloads):
        a(f"v_cmp_eq_u32 {'vcc' if k==0 else 's[50:51]'}, s56, v{addr_regs[k][1]}")
        if k>0:
            a("s_nop 1"); a("s_and_b64 vcc, vcc, s[50:51]")
    a(f"""
    s_nop 1
    s_cmp_eq_u64 vcc, -1
    s_cbranch_scc1 poll_{tag}_done
    s_sub_u32 s49, s49, 1
    s_cmp_eq_u32 s49, 0
    s_cbranch_scc1 poll_{tag}_done
    s_sleep 1
    s_branch poll_{tag}
    """)
    a.label(f"poll_{tag}_done")

def get_tag(a,tagname):
    a(f"""
    v_mov_b32 v{TMP}, 0
    s_mov_b32 s49, 0x20000
    """)
    a.label(f"kf_tag_{tagname}")
    a(f"""
    global_load_dword v{TMP+1}, v{TMP}, s[54:55] sc1
    s_waitcnt vmcnt(0)
    v_readfirstlane_b32 s56, v{TMP+1}
    s_sub_u32 s49, s49, 1
    s_cmp_eq_u32 s49, 0
    s_cbranch_scc1 kf_tag_{tagname}_done
    s_cmp_eq_u32 s56, 0
    s_cbranch_scc0 kf_tag_{tagname}_done
    s_sleep 1
    s_branch kf_tag_{tagname}
    """)
    a.label(f"kf_tag_{tagname}_done")

def tag_request(a):
    a(f"""
    v_mov_b32 v{TMP}, 0
    global_load_dword v5, v{TMP}, s[54:55] sc1
    """)
def tag_resolve(a,tagname):
    a(f"""
    v_readfirstlane_b32 s56, v5
    s_nop 0
    s_cmp_eq_u32 s56, 0
    s_cbranch_scc0 kf_tagok_{tagname}
    """)
    get_tag(a,tagname)
    a.label(f"kf_tagok_{tagname}")

def flag_store(a, soff_expr_reg, vtmp):
    a(f"""
    v_mov_b32 v{vtmp}, 0
    v_mov_b32 v{vtmp+1}, s56
    s_mov_b64 exec, 1
    buffer_store_dword v{vtmp+1}, v{vtmp}, s[20:23], s{soff_expr_reg} offen
    s_mov_b64 exec, -1
    """)

def build_k2(a=None):
    own = a is None
    if own: a=Asm()
    P1="s[20:23]" if asm.F12 else None
    a.sc_srd=P1
    st1,rest=rounds()
    R=len(rest)
    if not asm.F12:
        a(f"""
        s_cmp_ge_u32 s2, 256
        s_cbranch_scc1 k2_end
        s_load_dwordx2 s[16:17], s[0:1], 64      ; ws
        {"s_load_dwordx4 s[52:55], s[0:1], 48      ; out, debug" if asm.F23 else ""}
        v_and_b32 v1, 63, v0
        v_lshrrev_b32 v{TMP}, 6, v0
        s_nop 0
        v_readfirstlane_b32 s3, v{TMP}
        """)
        if asm.F23:
            a("""
            s_or_b32 s57, s2, s3
            s_cmp_eq_u32 s57, 0
            s_cbranch_scc0 kf_nononce
            s_memrealtime s[56:57]
            s_waitcnt lgkmcnt(0)
            s_or_b32 s56, s56, 1
            v_mov_b32 v2, 0
            v_mov_b32 v3, s56
            s_mov_b64 exec, 1
            global_store_dword v2, v3, s[54:55] sc1
            s_mov_b64 exec, -1
            """)
            a.label("kf_nononce")
    stamp(a,0)
    a(f"""
    s_and_b32 s18, s2, 7
    s_lshr_b32 s19, s2, 3
    s_lshl_b32 s29, s18, 2
    s_and_b32 s30, s19, 3
    s_add_u32 s29, s29, s30                  ; hd
    s_lshr_b32 s30, s19, 2                   ; qb
    s_lshl_b32 s28, s18, 5
    s_add_u32 s28, s28, s19                  ; f
    v_lshlrev_b32 v{TMP}, 4, v1              ; lane*16
    s_and_b32 s33, s3, 3                     ; qg
    s_lshl_b32 s31, s30, 3
    s_lshl_b32 s33, s33, 1
    s_add_u32 s31, s31, s33
    s_waitcnt lgkmcnt(0)
    """)
    srd(a,20,16,WS_SIZE)
    if asm.F12:
        a(f"""
        s_cmp_eq_u32 s3, 0
        s_cbranch_scc0 k2_nopoll
        s_lshr_b32 s32, s29, 3                   ; hd>>3
        v_and_b32 v{TMP+1}, 15, v1
        v_lshrrev_b32 v{TMP+2}, 4, v1            ; group 0:K 1:V 2,3:Q
        v_and_b32 v{TMP+3}, 1, v1
        s_lshl_b32 s33, s30, 1
        v_add_u32 v{TMP+3}, s33, v{TMP+3}
        v_cmp_gt_u32 vcc, 2, v{TMP+2}
        v_mov_b32 v{TMP+4}, 4
        v_mov_b32 v{TMP+5}, 8
        v_cndmask_b32 v{TMP+1}, v{TMP+3}, v{TMP+1}, vcc   ; rb
        v_cmp_eq_u32 vcc, 0, v{TMP+2}
        v_mov_b32 v{TMP+6}, 0
        s_nop 0
        v_cndmask_b32 v{TMP+6}, v{TMP+6}, v{TMP+4}, vcc
        v_cmp_eq_u32 vcc, 1, v{TMP+2}
        s_nop 1
        v_cndmask_b32 v{TMP+6}, v{TMP+6}, v{TMP+5}, vcc   ; type*4
        v_add_u32 v{TMP+6}, s32, v{TMP+6}        ; cb
        v_lshl_add_u32 v{TMP+1}, v{TMP+6}, 4, v{TMP+1}
        v_lshlrev_b32 v{TMP+1}, 2, v{TMP+1}
        v_add_u32 v{TMP+1}, {OFF_F1Q}, v{TMP+1}
        """)
        poll(a,"p1",1,[(TMP+1,TMP+3)])
        a.label("k2_nopoll")
        a("s_barrier")
        stamp(a,9)
    a(f"""
    s_lshl_b32 s32, s29, 16
    s_lshl_b32 s33, s31, 10
    s_add_u32 s32, s32, s33
    s_add_u32 s32, s32, {OFF_Q}
    buffer_load_dwordx4 {vr(Q[0],4)}, v{TMP}, s[20:23], s32 offen
    buffer_load_dwordx4 {vr(Q[1],4)}, v{TMP}, s[20:23], s32 offen offset:1024
    v_lshlrev_b32 v{TMP+1}, 2, v1
    s_lshl_b32 s32, s29, 8
    s_add_u32 s32, s32, {OFF_KN}
    buffer_load_dword v{TMP+2}, v{TMP+1}, s[20:23], s32 offen
    s_lshl_b32 s34, s3, 10                   ; wave*1024
    s_mul_i32 s35, s29, {KV_HEAD}
    s_add_u32 s35, s35, s34
    s_add_u32 s35, s35, {OFF_KV}
    """)
    kv_dma(a,st1)
    a("s_waitcnt vmcnt(4)")

    a.label("k2_loaded")
    for qq in range(2):
        acc=TMP+5+qq
        for k in range(4):
            a(f"v_lshlrev_b32 v{TMP+3}, 16, v{Q[qq]+k}")
            a(f"v_and_b32 v{TMP+4}, 0xffff0000, v{Q[qq]+k}")
            a(f"v_mul_f32 v{acc}, v{TMP+3}, v{TMP+3}" if k==0 else f"v_fmac_f32 v{acc}, v{TMP+3}, v{TMP+3}")
            a(f"v_fmac_f32 v{acc}, v{TMP+4}, v{TMP+4}")
    a(f"""
    s_nop 1
    v_permlane32_swap_b32 v{TMP+5}, v{TMP+6}
    s_nop 1
    v_add_f32 v{TMP+5}, v{TMP+5}, v{TMP+6}
    """)
    for sh in ("row_shr:1","row_shr:2","row_shr:4","row_shr:8"):
        a("s_nop 0")
        a(f"v_max_f32_dpp v{TMP+2}, v{TMP+2}, v{TMP+2} {sh} row_mask:0xf bank_mask:0xf bound_ctrl:0")
        a(f"v_max_f32_dpp v{TMP+5}, v{TMP+5}, v{TMP+5} {sh} row_mask:0xf bank_mask:0xf bound_ctrl:0")
    for sh in ("row_bcast:15 row_mask:0xa","row_bcast:31 row_mask:0xc"):
        a("s_nop 0")
        a(f"v_max_f32_dpp v{TMP+2}, v{TMP+2}, v{TMP+2} {sh} bank_mask:0xf")
        a(f"v_max_f32_dpp v{TMP+5}, v{TMP+5}, v{TMP+5} {sh} bank_mask:0xf")
    a(f"""
    s_nop 0
    v_mul_f32 v{TMP+2}, v{TMP+2}, v{TMP+5}
    s_nop 0
    v_readlane_b32 s38, v{TMP+2}, 63
    v_and_b32 v{TMP+3}, 31, v1
    v_lshrrev_b32 v{TMP+4}, 5, v1
    v_lshlrev_b32 v{TMP+4}, 10, v{TMP+4}
    v_lshl_add_u32 v{VK}, v{TMP+3}, 4, v{TMP+4}
    s_cmp_lt_u32 s3, 4
    s_cselect_b32 s36, 0, {NB*KV_TILE}
    s_cselect_b32 s45, {NB//2}, {NA//2}
    s_cselect_b32 s44, {HB}, {HA}
    s_cselect_b32 s43, {(XB-HB)//2}, {(XA-HA)//2 if asm.F23 else (NA//2-HA)//2}
    s_cselect_b32 s41, {(NB//2-XB)//2}, {(NA//2-XA)//2 if asm.F23 else 0}
    s_cselect_b32 s40, {min(TABIT,ARRIT)}, {ARRA if AUP else ARRIT}
    v_add_u32 v{VK}, s36, v{VK}
    v_cmp_eq_u32 vcc, 16, v{TMP+3}
    v_mov_b32 v{TMP+4}, 0x3f803f80
    v_mov_b32 v{VIDX}, 0xdddd
    v_cndmask_b32 v{TMP+4}, 0, v{TMP+4}, vcc
    s_mov_b32 s62, 0xffff
    s_mov_b32 s63, 0xffff
    """)
    for r in (F[0][1],F[0][2],F[1][1]):
        for i in range(4): a(f"v_mov_b32 v{r+i}, v{TMP+4}")
    for qq in range(2):
        for i in range(16): a(f"v_mov_b32 v{O[qq]+i}, 0")
    for i in range(8): a(f"v_mov_b32 v{S[1]+8+i}, 0")
    for i in range(4): a(f"v_mov_b32 v{F[1][2]+i}, v{TMP+4}")
    if "nohook" in VAR:
        a("s_waitcnt vmcnt(0)"); a("s_mov_b32 s40, 99")
    a(f"""
    v_mov_b32 v{TMP+3}, {K2_CNT}
    v_mov_b32 v{TMP+4}, 0
    v_mov_b32 v{TMP+5}, 0
    v_mov_b32 v{TMP+6}, 0
    v_mov_b32 v{TMP+7}, 0
    s_mov_b32 s47, 0
    s_cmp_eq_u32 s3, 0
    s_cbranch_scc0 k2_noinit
    ds_write_b128 v{TMP+3}, {vr(TMP+4,4)}
    ds_write_b128 v{TMP+3}, {vr(TMP+4,4)} offset:16
    s_waitcnt lgkmcnt(0)
    """)
    a.label("k2_noinit")
    a("s_waitcnt vmcnt(0)")
    stamp(a,1)
    a("s_barrier")
    a(f"v_lshlrev_b32 v{TMP}, 4, v1")
    if not DRIP: kv_dma(a,rest)
    PF = "pf" in VAR and asm.F23
    if PF:
        a("s_cmp_eq_u32 s3, 7")
        a("s_cbranch_scc0 k2_nopf")
        code_prefetch(a,"k2_tail","k2_end",2,TMP+1,5)
        a.label("k2_nopf")
    a("""
    s_cmp_lt_u32 s3, 4
    s_cbranch_scc1 k2_prioB
    s_setprio 1
    s_branch k2_priodone
    """)
    a.label("k2_prioB")
    a("s_setprio 2" if "noprio" not in VAR else "s_setprio 0")
    a.label("k2_priodone")
    if "soloA" in VAR:
        a("s_cmp_lt_u32 s3, 4"); a("s_cbranch_scc1 k2_end")
    stamp(a,2)
    a(f"""
    s_cmp_le_u32 s38, {hex(f2u(THRESH2))}
    s_cbranch_scc0 k2_fallback
    """)
    a("s_mov_b32 s57, 0")
    pipe_prologue(a,False)
    if DRIP and AUP:
        a("""
        s_cmp_lt_u32 s3, 4
        s_cbranch_scc1 k2_drip
        """)
        kv_dma(a,rest)
        a("s_branch k2_loop")
        if ALIGN: a.raw(".p2align 3")
        a.label("k2_drip")
    if DRIP:
        todo=[(lambda n=n: kv_dma(a,[n])) for n in rest]
        per=-(-len(todo)//8)
        for trip in range(2):
            for tau in range(2):
                for qt in range(2):
                    take=todo[:per]; todo=todo[per:]
                    unit(a,tau,qt,False,take)
            a(f"v_add_u32 v{VK}, {2*KV_TILE}, v{VK}")
        assert not todo
        a("s_mov_b32 s42, 2")
        stamp(a,30)
    attn_loop(a,False)
    a.label("k2_tail")
    if asm.F23:
        a(f"""
        s_cmp_lt_u32 s3, 4
        s_cbranch_scc0 k2_tail_nf
        v_mov_b32 v{TMP+2}, {K2_CNT+20}
        s_mov_b32 s49, 0x1000000
        """)
        a.label("k2_tail_w")
        a(f"""
        ds_read_b32 v{TMP+3}, v{TMP+2}
        s_waitcnt lgkmcnt(0)
        v_readfirstlane_b32 s48, v{TMP+3}
        s_sub_u32 s49, s49, 1
        s_cmp_eq_u32 s49, 0
        s_cbranch_scc1 k2_tail_nf
        s_cmp_eq_u32 s48, 0
        s_cbranch_scc1 k2_tail_w
        """)
        a.label("k2_tail_nf")
    stamp(a,6)
    a(f"""
    s_nop 1
    v_smfmac_f32_32x32x32_bf16 {vr(O[1],16)}, {vr(F[1][2],4)}, {vr(S[1]+8,8)}, v{VIDX}
    s_setprio 0
    s_mul_i32 s36, s3, 2304
    s_add_u32 s37, s36, {K2_E+8192-3*2304}
    s_add_u32 s36, s36, {K2_COL}
    s_cmp_lt_u32 s3, 3
    s_cselect_b32 s36, s36, s37
    s_xor_b32 s44, s3, 4
    s_mul_i32 s45, s44, 2304
    s_add_u32 s46, s45, {K2_E+8192-3*2304}
    s_add_u32 s45, s45, {K2_COL}
    s_cmp_lt_u32 s44, 3
    s_cselect_b32 s45, s45, s46
    v_lshlrev_b32 v{TMP}, 4, v1
    v_lshlrev_b32 v{TMP+1}, 2, v1
    v_add_u32 v{TMP+2}, s36, v{TMP}
    v_add_u32 v{TMP+3}, s36, v{TMP+1}
    v_add_u32 v{TMP+4}, s45, v{TMP}
    v_add_u32 v{TMP+5}, s45, v{TMP+1}
    s_cmp_lt_u32 s3, 4
    s_cbranch_scc1 k2_tailB
    """)
    a(f"""
    s_nop 9
    ds_write_b128 v{TMP+2}, {vr(O[0],4)}
    ds_write_b128 v{TMP+2}, {vr(O[0]+4,4)} offset:1024
    ds_write_b32 v{TMP+3}, v{O[0]+8} offset:2048
    s_nop 7
    """)
    for i in range(9): a(f"v_mov_b32 v{O[0]+i}, v{O[1]+i}")
    a("""
    s_add_u32 s31, s31, 1
    s_branch k2_tail2
    """)
    a.label("k2_tailB")
    a(f"""
    s_nop 15
    s_nop 3
    ds_write_b128 v{TMP+2}, {vr(O[1],4)}
    ds_write_b128 v{TMP+2}, {vr(O[1]+4,4)} offset:1024
    ds_write_b32 v{TMP+3}, v{O[1]+8} offset:2048
    """)
    a.label("k2_tail2")
    a(f"""
    s_waitcnt lgkmcnt(0)
    {"" if "soloA" in VAR else "s_barrier"}
    ds_read_b128 {vr(S[0],4)}, v{TMP+4}
    ds_read_b128 {vr(S[0]+4,4)}, v{TMP+4} offset:1024
    ds_read_b32 v{S[0]+8}, v{TMP+5} offset:2048
    s_lshl_b32 s36, s31, 5
    s_add_u32 s36, s36, s29
    s_lshl_b32 s36, s36, 10
    s_add_u32 s36, s36, {OFF_O}
    s_waitcnt lgkmcnt(0)
    """)
    for i in range(9): a(f"v_add_f32 v{O[0]+i}, v{O[0]+i}, v{S[0]+i}")
    a(f"""
    v_mov_b32 v{TMP+1}, v{O[0]+8}
    v_mov_b32 v{TMP+2}, v{O[0]+8}
    s_nop 1
    v_permlane32_swap_b32 v{TMP+1}, v{TMP+2}
    s_nop 1
    v_rcp_f32 v{TMP+1}, v{TMP+1}
    s_nop 0
    """)
    for i in range(8): a(f"v_mul_f32 v{O[0]+i}, v{O[0]+i}, v{TMP+1}")
    for i in range(4): a(f"v_cvt_pk_bf16_f32 v{TMP+4+i}, v{O[0]+2*i}, v{O[0]+2*i+1}")
    a.sc_srd="s[20:23]"
    a(f"buffer_store_dwordx4 {vr(TMP+4,4)}, v{TMP}, s[20:23], s36 offen")
    if asm.F23:
        if "wgflag" in VAR:
            a("""
            s_waitcnt vmcnt(0)
            s_barrier
            """)
            stamp(a,8)
            a(f"""
            s_cmp_eq_u32 s3, 0
            s_cbranch_scc0 ph3_start
            s_lshl_b32 s36, s30, 5
            s_add_u32 s36, s36, s29
            s_lshl_b32 s36, s36, 2
            s_add_u32 s36, s36, {OFF_F2}
            """)
            flag_store(a,36,TMP)
            a("s_branch ph3_start")
        elif "oflag" in VAR:
            a(f"""
            s_lshl_b32 s36, s31, 5
            s_add_u32 s36, s36, s29
            s_lshl_b32 s36, s36, 2
            s_add_u32 s36, s36, {OFF_F2}
            s_waitcnt vmcnt(0)
            """)
            stamp(a,8)
            flag_store(a,36,TMP)
            a("s_branch ph3_start")
        else:
            stamp(a,8)
            a("s_branch ph3_start")
    else:
        if asm.STAMP:
            a("s_waitcnt vmcnt(0)"); stamp(a,8); stamp_dump(a,1)
        a("s_endpgm")
    def act_tab(): a("s_call_b64 s[60:61], k2_tab")
    def act_arriveB():
        dma_arrive(a, (26 if asm.F23 else 24) if TABIT<=ARRIT else 0)
    def act_b2():
        stamp(a,3); a("s_call_b64 s[60:61], k2_b2"); stamp(a,4)
    def act_pub(): a("s_call_b64 s[60:61], k2_pub")
    def act_prio0(): a("s_setprio 0")
    hooksB=[(TABIT,act_tab),(ARRIT,act_arriveB),(DWAIT,lambda: dma_wait(a,"hb")),(B2IT,act_b2)]
    hooksB.sort(key=lambda h:h[0])
    if asm.F23: hooksB.append((PUBIT,act_pub))
    def arriveA():
        if PF:
            a("s_cmp_eq_u32 s3, 7")
            a("s_cbranch_scc0 k2_arr_n")
            dma_arrive(a,2)
            a("s_branch k2_arr_d")
            a.label("k2_arr_n")
            dma_arrive(a)
            a.label("k2_arr_d")
        else: dma_arrive(a)
    ARR_A=ARRA if AUP else ARRIT
    hooksA=[(ARR_A,arriveA),(DWAIT,lambda: dma_wait(a,"ha"))]
    if asm.F23:
        def req_flags():
            a("s_cmp_eq_u32 s3, 4")
            a("s_cbranch_scc0 k2_noreq")
            a(f"v_lshlrev_b32 v{TMP}, 4, v1")
            a(f"v_add_u32 v{TMP}, {OFF_F2B}, v{TMP}")
            a.sc_srd="s[20:23]"
            a(f"buffer_load_dwordx4 {vr(TMP+4,4)}, v{TMP}, s[20:23], 0 offen")
            a.sc_srd=P1
            a.label("k2_noreq")
        hooksA.append((HA-1,req_flags))
        if os.environ.get("TOUCH","0")=="1":
            def touch():
                a("s_cmp_eq_u32 s3, 5")
                a("s_cbranch_scc0 k2_notouch")
                page_touch(a,52,4194300,6,7)
                a.label("k2_notouch")
            hooksA.append((DWAIT,touch))
    def emit(role,hooks):
        its=sorted(set(h[0] for h in hooks))
        for n,it in enumerate(its):
            nxt=its[n+1] if n+1<len(its) else 99
            a(f"s_cmp_eq_u32 s40, {it}")
            a(f"s_cbranch_scc0 k2_hk{role}_{n+1}")
            for (i2,f) in hooks:
                if i2==it: f()
            a(f"s_mov_b32 s40, {nxt}")
            a("s_branch k2_hookret")
            a.label(f"k2_hk{role}_{n+1}")
        a("s_branch k2_hookret")
        return its[0]
    a.label("k2_hook")
    a("""
    s_cmp_lt_u32 s3, 4
    s_cbranch_scc0 k2_hookA
    """)
    emit("B",hooksB)
    a.label("k2_hookA")
    emit("A",hooksA)
    a.label("k2_fallback")
    a("s_mov_b32 s57, 1")
    if DRIP: kv_dma(a,rest)
    a("""
    s_cmp_lt_u32 s3, 4
    s_cbranch_scc0 k2_fbA
    """)
    dma_arrive(a)
    dma_wait(a,"fbb")
    a("""
    s_call_b64 s[60:61], k2_tab
    s_call_b64 s[60:61], k2_b2
    """)
    if asm.F23: a("s_call_b64 s[60:61], k2_pub")
    a("""
    s_branch k2_fb_pre
    """)
    a.label("k2_fbA")
    dma_arrive(a)
    dma_wait(a,"fb")
    a.label("k2_fb_pre")
    if asm.F23: a("s_call_b64 s[60:61], k2_mid")
    a(f"""
    v_mov_b32 v{TMP+1}, 0xff800000
    v_mov_b32 v{TMP+2}, 0xff800000
    v_and_b32 v{TMP+3}, 31, v1
    v_lshrrev_b32 v{TMP+4}, 5, v1
    v_lshlrev_b32 v{TMP+4}, 10, v{TMP+4}
    v_lshl_add_u32 v{TMP+3}, v{TMP+3}, 4, v{TMP+4}
    s_mov_b32 s42, 64
    """)
    a.label("k2_fb_max")
    a(f"""
    ds_read_b128 {vr(F[0][0],4)}, v{TMP+3}
    v_add_u32 v{TMP+3}, {KV_TILE}, v{TMP+3}
    s_waitcnt lgkmcnt(0)
    v_mfma_f32_32x32x16_bf16 {vr(S[0],16)}, {vr(F[0][0],4)}, {vr(Q[0],4)}, 0
    v_mfma_f32_32x32x16_bf16 {vr(CI[0],16)}, {vr(F[0][0],4)}, {vr(Q[1],4)}, 0
    s_nop 15
    """)
    for i in range(0,16,2): a(f"v_max3_f32 v{TMP+1}, v{S[0]+i}, v{S[0]+i+1}, v{TMP+1}")
    for i in range(0,16,2): a(f"v_max3_f32 v{TMP+2}, v{CI[0]+i}, v{CI[0]+i+1}, v{TMP+2}")
    a(f"""
    s_sub_u32 s42, s42, 1
    s_cmp_lg_u32 s42, 0
    s_cbranch_scc1 k2_fb_max
    v_mov_b32 v{TMP+3}, v{TMP+1}
    v_mov_b32 v{TMP+4}, v{TMP+2}
    s_nop 1
    v_permlane32_swap_b32 v{TMP+1}, v{TMP+3}
    v_permlane32_swap_b32 v{TMP+2}, v{TMP+4}
    s_nop 1
    v_max_f32 v{TMP+1}, v{TMP+1}, v{TMP+3}
    v_max_f32 v{TMP+2}, v{TMP+2}, v{TMP+4}
    """)
    for qq in range(2):
        for i in range(16): a(f"v_sub_f32 v{CI[qq]+i}, 0, v{TMP+1+qq}")
    a("s_nop 1")
    a("s_mov_b32 s43, s45")
    pipe_prologue(a,True)
    attn_loop(a,True)
    a("s_branch k2_tail")
    if asm.F23:
        a.label("k2_mid")
        a.sc_srd="s[20:23]"
        a(f"""
        s_cmp_lt_u32 s3, 4
        s_cbranch_scc0 k2_mid_A
        s_setprio 0
        s_setpc_b64 s[60:61]
        """)
        a.label("k2_mid_A")
        a(f"""
        s_cmp_eq_u32 s3, 4
        s_cbranch_scc0 k2_mid_ret
        v_mov_b32 v{TMP+2}, {K2_CNT+16}
        s_mov_b32 s49, 0x100000
        """)
        a.label("k2_mid_tag")
        a(f"""
        ds_read_b32 v{TMP+3}, v{TMP+2}
        s_waitcnt lgkmcnt(0)
        v_readfirstlane_b32 s56, v{TMP+3}
        s_sub_u32 s49, s49, 1
        s_cmp_eq_u32 s49, 0
        s_cbranch_scc1 k2_mid_tagok
        s_cmp_eq_u32 s56, 0
        s_cbranch_scc1 k2_mid_tag
        """)
        a.label("k2_mid_tagok")
        a(f"""
        v_lshlrev_b32 v{TMP}, 4, v1
        v_add_u32 v{TMP}, {OFF_F2B}, v{TMP}
        s_mov_b32 s49, 0x20000
        s_cmp_eq_u32 s57, 0
        s_cbranch_scc1 k2_mid_have
        """)
        a.label("k2_mid_poll")
        a(f"""
        buffer_load_dwordx4 {vr(TMP+4,4)}, v{TMP}, s[20:23], 0 offen
        """)
        a.label("k2_mid_have")
        a(f"""
        s_waitcnt vmcnt(0)
        v_cmp_eq_u32 vcc, s56, v{TMP+4}
        v_cmp_eq_u32 s[50:51], s56, v{TMP+5}
        s_nop 1
        s_and_b64 vcc, vcc, s[50:51]
        v_cmp_eq_u32 s[50:51], s56, v{TMP+6}
        s_nop 1
        s_and_b64 vcc, vcc, s[50:51]
        v_cmp_eq_u32 s[50:51], s56, v{TMP+7}
        s_nop 1
        s_and_b64 vcc, vcc, s[50:51]
        s_cmp_eq_u64 vcc, -1
        s_cbranch_scc1 k2_mid_ok
        s_sub_u32 s49, s49, 1
        s_cmp_eq_u32 s49, 0
        s_cbranch_scc1 k2_mid_ok
        s_sleep 4
        s_branch k2_mid_poll
        """)
        a.label("k2_mid_ok")
        a(f"""
        v_mov_b32 v{TMP+2}, {K2_CNT+20}
        v_mov_b32 v{TMP+3}, 1
        ds_write_b32 v{TMP+2}, v{TMP+3}
        s_lshr_b32 s33, s19, 3
        s_lshl_b32 s33, s33, 3
        s_add_u32 s33, s33, s18                  ; n2
        s_and_b32 s36, s19, 7                    ; a
        v_lshrrev_b32 v{TMP}, 1, v1
        v_lshlrev_b32 v{TMP}, 13, v{TMP}
        v_and_b32 v{TMP+1}, 1, v1
        v_lshl_add_u32 v{TMP}, v{TMP+1}, 4, v{TMP}
        s_lshl_b32 s33, s33, 8
        s_lshl_b32 s36, s36, 5
        s_add_u32 s33, s33, s36
        s_add_u32 s33, s33, {OFF_Y}
        """)
        for e in range(8):
            a(f"s_mov_b32 m0, {K2_E+e*1024}")
            a(f"s_add_u32 s36, s33, {e*32*8192}")
            a(f"buffer_load_dwordx4 v{TMP}, s[20:23], s36 offen lds")
        a.label("k2_mid_ret")
        a("s_setpc_b64 s[60:61]")
    a.label("k2_tab")
    a.sc_srd=P1
    if asm.F12:
        a(f"""
        s_cmp_eq_u32 s3, 0
        s_cbranch_scc0 k2_nop1b
        v_lshlrev_b32 v{TMP+2}, 2, v1
        v_add_u32 v{TMP+2}, {OFF_F1B}, v{TMP+2}
        """)
        poll(a,"p1b",1,[(TMP+2,TMP+4)])
        a.label("k2_nop1b")
        bbar(a,"tab")
    a(f"""
    v_lshlrev_b32 v{TMP}, 4, v1
    v_lshrrev_b32 v{TMP+3}, 4, v1
    s_lshl_b32 s32, s3, 3
    v_add_u32 v{TMP+4}, s32, v{TMP+3}        ; n2 (e=0)
    v_and_b32 v{TMP+5}, 15, v{TMP+4}
    v_and_b32 v{TMP+6}, 15, v1
    v_xor_b32 v{TMP+5}, v{TMP+5}, v{TMP+6}
    v_lshlrev_b32 v{TMP+5}, 4, v{TMP+5}
    v_lshl_add_u32 v{TMP+5}, v{TMP+4}, 8, v{TMP+5}
    v_xor_b32 v{TMP+6}, 64, v{TMP+5}
    v_add_u32 v{TMP+6}, 1024, v{TMP+6}
    s_lshl_b32 s32, s28, 13
    s_add_u32 s32, s32, {OFF_Z}
    s_lshl_b32 s33, s3, 11
    s_add_u32 m0, s33, {K2_COL}
    s_nop 0
    buffer_load_dwordx4 v{TMP+5}, s[20:23], s32 offen lds
    s_add_u32 m0, s33, {K2_COL+1024}
    s_nop 0
    buffer_load_dwordx4 v{TMP+6}, s[20:23], s32 offen lds
    """)
    a(f"s_lshl_b32 s36, s3, 13")
    a(f"s_add_u32 s36, s36, {OFF_T64}")
    for k in range(8):
        a(f"buffer_load_dwordx4 {vr(T64+4*k,4)}, v{TMP}, s[20:23], s36 offen offset:{(k%4)*1024}")
        if k==3: a("s_add_u32 s36, s36, 4096")
    a(f"s_lshl_b32 s36, s3, 12")
    a(f"s_add_u32 s36, s36, {OFF_TW}")
    for k in range(4):
        a(f"buffer_load_dwordx4 {vr(TW+4*k,4)}, v{TMP}, s[20:23], s36 offen offset:{k*1024}")
    a(f"s_mov_b32 s36, {OFF_A32}")
    for k in range(8):
        a(f"buffer_load_dwordx4 {vr(A32+4*k,4)}, v{TMP}, s[20:23], s36 offen offset:{(k%4)*1024}")
        if k==3: a("s_add_u32 s36, s36, 4096")
    a(f"""
    s_lshl_b32 s36, s28, 13
    s_lshl_b32 s37, s3, 11
    s_add_u32 s36, s36, s37
    s_add_u32 s36, s36, {OFF_WT}
    buffer_load_dwordx4 {vr(WT,4)}, v{TMP}, s[20:23], s36 offen
    buffer_load_dwordx4 {vr(WT+4,4)}, v{TMP}, s[20:23], s36 offen offset:1024
    """)
    if asm.F23:
        a.sc_srd="s[20:23]"
        a(f"""
        v_mov_b32 v{TMP+4}, -1
        v_mov_b32 v{TMP+5}, -1
        v_mov_b32 v{TMP+6}, -1
        v_mov_b32 v{TMP+7}, -1
        s_lshl_b32 s36, s31, 5
        s_add_u32 s36, s36, s29
        s_lshl_b32 s36, s36, 10
        s_add_u32 s36, s36, {OFF_O}
        buffer_store_dwordx4 {vr(TMP+4,4)}, v{TMP}, s[20:23], s36 offen
        s_add_u32 s36, s36, 32768
        buffer_store_dwordx4 {vr(TMP+4,4)}, v{TMP}, s[20:23], s36 offen
        """)
        a.sc_srd=P1
    a("s_setpc_b64 s[60:61]")
    a.label("k2_b2")
    a.sc_srd=P1
    a.p1=P1
    b2_part1(a)
    b2_part2(a)
    if asm.F23:
        a.label("k2_pub")
        a.sc_srd="s[20:23]"
        a("s_waitcnt vmcnt(0)")
        bbar(a,"pub")
        a("s_cmp_eq_u32 s3, 0")
        a("s_cbranch_scc0 k2_pub1")
        if not asm.F12: tag_resolve(a,"b")
        a(f"""
        v_mov_b32 v{TMP+2}, {K2_CNT+16}
        v_mov_b32 v{TMP+3}, s56
        ds_write_b32 v{TMP+2}, v{TMP+3}
        s_lshl_b32 s36, s28, 2
        s_add_u32 s36, s36, {OFF_F2B}
        """)
        flag_store(a,36,TMP)
        a.label("k2_pub1")
        a.sc_srd=P1
        a(f"""
        s_lshr_b32 s36, s19, 2                   ; ct
        s_lshl_b32 s36, s36, 16
        s_lshl_b32 s37, s3, 13
        s_add_u32 s36, s36, s37
        s_add_u32 s36, s36, {OFF_WOF}
        v_lshlrev_b32 v{TMP}, 4, v1
        """)
        for hh in range(8):
            a(f"s_add_u32 s37, s36, {hh*1024}")
            a(f"buffer_load_dwordx4 {vr(WOR+8*hh,4)}, v{TMP}, s[20:23], s37 offen")
            a(f"s_add_u32 s37, s37, 32768")
            a(f"buffer_load_dwordx4 {vr(WOR+8*hh+4,4)}, v{TMP}, s[20:23], s37 offen")
        a("s_setpc_b64 s[60:61]")
    a.sc_srd=None
    if own:
        a.label("k2_end")
        a("s_endpgm")
    return a
```
